```python
import torch

def _softmax(x, axis=-1):
    return torch.softmax(x, dim=axis)
def _gelu(x):
    return torch.nn.functional.gelu(x, approximate="tanh")
def _silu(x):
    return torch.nn.functional.silu(x)
def _sigmoid(x):
    return torch.sigmoid(x)
def _layernorm(x, axis=-1, eps=1e-5):
    m = x.mean(dim=axis, keepdim=True)
    v = x.var(dim=axis, keepdim=True, unbiased=False)
    return (x - m) / torch.sqrt(v + eps)
def _scatter_add(tgt, idx, src, axis=0):
    return tgt.clone().index_add_(axis, idx, src)
def _segment_sum(src, seg, n):
    out = torch.zeros((n,) + src.shape[1:], dtype=src.dtype)
    return out.index_add_(0, seg, src)
def _pad(x, pw):
    flat = tuple(v for pair in reversed(pw) for v in pair)
    return torch.nn.functional.pad(x, flat)

kernel_name = 'concat_heads__ssm_conv_s4__grouped_kv_mqa__prompt'

def setup_inputs():

    _w = (lambda a: (lambda t: t.to(torch.bfloat16) if t.is_floating_point() else t)(torch.as_tensor(a)))
    def _A_setup():
        B, L, D, N = 1, 2048, 640, 128
        A_re = -(lambda _x: torch.exp(torch.as_tensor(_x)))((lambda *s: torch.randn(*s, dtype=torch.bfloat16) * 6.4)(D, N))
        A_im = torch.pi * (lambda *s: torch.randn(*s, dtype=torch.bfloat16) * 0.1)(D, N)
        B_re = (lambda *s: torch.randn(*s, dtype=torch.bfloat16) * 0.1)(D, N)
        B_im = (lambda *s: torch.randn(*s, dtype=torch.bfloat16) * 0.1)(D, N)
        C_re = (lambda *s: torch.randn(*s, dtype=torch.bfloat16) * 0.1)(D, N)
        C_im = (lambda *s: torch.randn(*s, dtype=torch.bfloat16) * 0.1)(D, N)
        log_dt = (lambda *s: torch.randn(*s, dtype=torch.bfloat16) * 0.1)(D) * 0.5 - 4.0
        Dskip = (lambda *s: torch.randn(*s, dtype=torch.bfloat16) * 0.1)(D)
        return {
            "u": _w((lambda *s: torch.randn(*s, dtype=torch.bfloat16) * 0.05)(B, L, D)),
            "A_re": _w(A_re),
            "A_im": _w(A_im),
            "B_re": _w(B_re),
            "B_im": _w(B_im),
            "C_re": _w(C_re),
            "C_im": _w(C_im),
            "log_dt": _w(log_dt),
            "Dskip": _w(Dskip),
        }
    _A_in = _A_setup()

    def _B_setup():
        B, S, D, H = 1, 2048, 640, 32
        Dh = D // H
        return {
            "x": _w((lambda *s: torch.randn(*s, dtype=torch.bfloat16) * 0.05)(B, S, D)),
            "wq": _w((lambda *s: torch.randn(*s, dtype=torch.bfloat16) * 0.8)(D, H * Dh)),
            "wk": _w((lambda *s: torch.randn(*s, dtype=torch.bfloat16) * 0.8)(D, Dh)),
            "wv": _w((lambda *s: torch.randn(*s, dtype=torch.bfloat16) * 0.05)(D, Dh)),
            "wo": _w((lambda *s: torch.randn(*s, dtype=torch.bfloat16) * 0.05)(H * Dh, D)),
        }
    _B_in = _B_setup()

    return {
        "A_u": _A_in["u"],
        "A_A_re": _A_in["A_re"],
        "A_A_im": _A_in["A_im"],
        "A_B_re": _A_in["B_re"],
        "A_B_im": _A_in["B_im"],
        "A_C_re": _A_in["C_re"],
        "A_C_im": _A_in["C_im"],
        "A_log_dt": _A_in["log_dt"],
        "A_Dskip": _A_in["Dskip"],
        "B_x": _B_in["x"],
        "B_wq": _B_in["wq"],
        "B_wk": _B_in["wk"],
        "B_wv": _B_in["wv"],
        "B_wo": _B_in["wo"],
    }

def reference(A_u, A_A_re, A_A_im, A_B_re, A_B_im, A_C_re, A_C_im, A_log_dt, A_Dskip, B_x, B_wq, B_wk, B_wv, B_wo):
    def _A_ref(u, A_re, A_im, B_re, B_im, C_re, C_im, log_dt, Dskip):
        Bsz, L, D = u.shape
        dt = torch.exp(log_dt)[:, None]
        A = A_re + 1j * A_im
        Bc = B_re + 1j * B_im
        Cc = C_re + 1j * C_im
        logdA = dt * A
        dB = dt * Bc
        l = (lambda x, dt: x.to(dt))(torch.arange(L), A_re.dtype)
        P = torch.exp(logdA[:, :, None] * l[None, None, :])
        K = torch.einsum("dn,dnl,dn->dl", Cc, P, dB).real
        L2 = 2 * L
        Kp = _pad(K, ((0, 0), (0, L)))
        up = (lambda x, *d: x.permute(*d))(u, 0, 2, 1)
        up = _pad(up, ((0, 0), (0, 0), (0, L)))
        Kf = (lambda x, axes=(-2,-1): torch.fft.rfft2(x.float(), dim=axes))(Kp[:, None, :], axes=(-2, -1))
        Uf = (lambda x, axes=(-2,-1): torch.fft.rfft2(x.float(), dim=axes))(up[:, :, None, :], axes=(-2, -1))
        Yf = Uf * Kf[None, :, :, :]
        y = (lambda x, s, axes=(-2,-1): torch.fft.irfft2(x, s=s, dim=axes).to(torch.bfloat16))(Yf, (1, L2), axes=(-2, -1))[:, :, 0, :L]
        y = (lambda x, *d: x.permute(*d))(y, 0, 2, 1) + u * Dskip[None, None, :]
        return y

    def _B_ref(x, wq, wk, wv, wo):
        B, S, D = x.shape
        H = 32
        Dh = D // H
        q = (lambda x, *d: x.permute(*d))((x @ wq).reshape(B, S, H, Dh), 0, 2, 1, 3)
        k = x @ wk
        v = x @ wv
        scores = torch.einsum("bhqd,bkd->bhqk", q, k) * (Dh ** -0.5)
        p = _softmax(scores, axis=-1)
        o = torch.einsum("bhqk,bkd->bhqd", p, v)
        return (lambda x, *d: x.permute(*d))(o, 0, 2, 1, 3).reshape(B, S, H * Dh) @ wo

    a = _A_ref(A_u, A_A_re, A_A_im, A_B_re, A_B_im, A_C_re, A_C_im, A_log_dt, A_Dskip)
    b = _B_ref(B_x, B_wq, B_wk, B_wv, B_wo)
    return torch.concatenate([a, b], axis=-1)
```

```python
import re, sys
TRANS = ("v_exp_f32","v_log_f32","v_rcp_f32","v_rsq_f32","v_sqrt_f32","v_sin_f32","v_cos_f32","v_exp_f16","v_rcp_iflag_f32")
def regs_of(tok):
    tok = tok.strip()
    tok = re.sub(r"^(neg|abs|sext)\((.*)\)$", r"\2", tok)
    tok = tok.lstrip("-").strip("|")
    m = re.match(r"^([vas])(\d+)$", tok)
    if m: return [(m.group(1), int(m.group(2)))]
    m = re.match(r"^([vas])\[(\d+):(\d+)\]$", tok)
    if m: return [(m.group(1), i) for i in range(int(m.group(2)), int(m.group(3))+1)]
    if tok == "vcc": return [("s",106),("s",107)]
    if tok == "vcc_lo": return [("s",106)]
    if tok == "vcc_hi": return [("s",107)]
    if tok == "exec": return [("s",126),("s",127)]
    if tok == "exec_lo": return [("s",126)]
    if tok == "exec_hi": return [("s",127)]
    if tok == "m0": return [("s",124)]
    return []
def split_ops(s):
    out=[];depth=0;cur=""
    for ch in s:
        if ch in "[(": depth+=1
        if ch in "])": depth-=1
        if ch=="," and depth==0: out.append(cur.strip()); cur=""
        else: cur+=ch
    if cur.strip(): out.append(cur.strip())
    return out
class I: pass
def mfma_passes(op):
    if "32x32x16" in op or "32x32x8" in op: return 8
    if "16x16x32" in op or "16x16x16" in op: return 4
    if "32x32x2" in op: return 16
    if "16x16x4" in op: return 8
    return 16
def parse(line):
    t = line.split(";")[0].split("//")[0].strip()
    if not t or t.startswith(".") : return None
    if t.endswith(":"):
        i=I(); i.kind="label"; i.name=t[:-1]; i.text=t; return i
    parts=t.split(None,1); op=parts[0]; rest=parts[1] if len(parts)>1 else ""
    i=I(); i.op=op; i.text=t; i.kind="other"; i.w=[]; i.r=[]
    ops=split_ops(rest)
    mods=""
    clean=[]
    for o in ops:
        p=o.split(None,1)
        clean.append(p[0]);
        if len(p)>1: mods+=" "+p[1]
    i.ops=clean; i.mods=mods
    R=lambda k: regs_of(clean[k]) if k<len(clean) else []
    base=op.replace("_e32","").replace("_e64","").replace("_sdwa","").replace("_dpp","")
    i.base=base
    if op.startswith("v_mfma"):
        i.kind="mfma"; i.w=R(0); i.a=R(1); i.b=R(2); i.c=R(3); i.r=i.a+i.b+i.c; i.passes=mfma_passes(op)
    elif op.startswith("v_cmp"):
        i.kind="valu"; i.w=R(0); i.r=R(1)+R(2)
        if op.startswith("v_cmpx"): i.w=i.w+[("s",126),("s",127)]
    elif base in ("v_readfirstlane_b32","v_readlane_b32"):
        i.kind="valu"; i.w=R(0); i.r=R(1)+R(2); i.rl=True
    elif base.startswith("v_permlane"):
        i.kind="valu"; i.w=R(0)+R(1); i.r=R(0)+R(1); i.perm=True
    elif op.startswith("v_"):
        i.kind="valu"; i.w=R(0); i.r=[]
        k0=1
        if base in ("v_add_co_u32","v_sub_co_u32","v_addc_co_u32","v_subb_co_u32","v_subrev_co_u32","v_mad_u64_u32","v_div_scale_f32"):
            i.w=R(0)+R(1); k0=2
        for k in range(k0,len(clean)): i.r+=R(k)
        if base in ("v_fmac_f32","v_pk_fmac_f16","v_dot2c_f32_bf16","v_writelane_b32","v_fmac_f16") or "UNUSED_PRESERVE" in mods or "d16" in op: i.r+=R(0)
        if base=="v_cndmask_b32" and len(clean)==3: i.r+=[("s",106),("s",107)]
        if "_dpp" in op or "row_" in mods or "quad_perm" in mods or "wave_" in mods: i.dpp=True
        i.trans = base in TRANS
    elif op.startswith("ds_"):
        i.kind="ds"
        if op.startswith("ds_read") or op.startswith("ds_bpermute") or op.startswith("ds_permute") or op.startswith("ds_swizzle") or "_rtn" in op:
            i.w=R(0); i.r=[]
            for k in range(1,len(clean)): i.r+=R(k)
            if "d16" in op: i.r+=R(0)
        else:
            for k in range(0,len(clean)): i.r+=R(k)
    elif op.startswith("buffer_") or op.startswith("global_") or op.startswith("flat_"):
        i.kind="vmem"
        islds = ("lds" in mods.split()) or ("_lds_" in op)
        i.islds=islds
        if op in ("buffer_wbl2","buffer_inv"):
            i.kind="vmemctl"
        elif "load" in op and not islds:
            i.w=R(0)
            for k in range(1,len(clean)): i.r+=R(k)
            if "d16" in op: i.r+=R(0)
        elif "load" in op and islds:
            for k in range(0,len(clean)): i.r+=R(k)
            i.r+=[("s",124)]
        elif "atomic" in op and "sc0" in mods.split():
            i.w=R(0)
            for k in range(1,len(clean)): i.r+=R(k)
        else:
            for k in range(0,len(clean)): i.r+=R(k)
            i.store=True
            if op.startswith("buffer_store"): i.data=R(0)
            elif op.startswith("global_store"): i.data=R(1)
            else: i.data=[]
            i.wide = ("x3" in op or "x4" in op)
    elif op.startswith("s_load") or op.startswith("s_buffer_load") or op in ("s_memtime","s_memrealtime"):
        i.kind="smem"; i.w=R(0)
        for k in range(1,len(clean)): i.r+=R(k)
    elif op=="s_waitcnt":
        i.kind="wait"; i.vm=None; i.lgkm=None
        m=re.search(r"vmcnt\((\d+)\)",t);
        if m: i.vm=int(m.group(1))
        m=re.search(r"lgkmcnt\((\d+)\)",t)
        if m: i.lgkm=int(m.group(1))
    elif op=="s_nop":
        i.kind="nop"; i.n=int(clean[0],0)+1
    elif op.startswith("s_cbranch") or op=="s_branch":
        i.kind="branch"; i.target=clean[0]
        if "vcc" in op: i.r=[("s",106),("s",107)]
        if "exec" in op: i.r=[("s",126),("s",127)]
    elif op=="s_endpgm": i.kind="end"
    elif op=="s_barrier": i.kind="barrier"
    elif op.startswith("s_"):
        i.kind="salu"
        if op.startswith("s_cmp") or op.startswith("s_bitcmp") or op in ("s_setprio","s_sleep","s_setreg_b32","s_sendmsg","s_setreg_imm32_b32"):
            for k in range(0,len(clean)): i.r+=R(k)
        else:
            i.w=R(0)
            for k in range(1,len(clean)): i.r+=R(k)
            if "saveexec" in op: i.w=i.w+[("s",126),("s",127)]; i.r+=[("s",126),("s",127)]
            if op in ("s_addk_i32","s_mulk_i32","s_cmov_b32"): i.r+=R(0)
    return i

def check_trace(tr, name, maxerr=40):
    errs=[]
    def err(idx,msg):
        if len(errs)<maxerr: errs.append(f"[{name}] @{idx}: {msg}\n      instr: {tr[idx].text}")
    pos=0
    lastw={}
    lastmf={}
    lastmfc={}
    laststore={}
    vmq=[]
    lgq=[]
    smem_out=set()
    m0pos=-100
    for idx,i in enumerate(tr):
        k=i.kind
        if k=="label": continue
        if k=="nop":
            pos+=i.n; continue
        reads=getattr(i,"r",[]); writes=getattr(i,"w",[])
        pend={}
        for q in vmq:
            for r in q: pend[r]="vmem"
        for q in lgq:
            for r in q: pend[r]="lds"
        for r in smem_out: pend[r]="smem"
        if k not in ("wait",):
            for r in reads:
                if r in pend: err(idx,f"reads {r} with outstanding {pend[r]} load")
            for r in writes:
                if r in pend and not (k in("vmem","ds") and pend[r] in ("vmem","lds") and ((k=="vmem")==(pend[r]=="vmem"))):
                    err(idx,f"writes {r} with outstanding {pend[r]} load")
        def dist(p): return pos-p-1
        if k=="mfma":
            for r in i.r:
                if r in lastw and lastw[r][1].kind=="valu" and dist(lastw[r][0])<2: err(idx,f"VALU write {r} -> MFMA read needs 2, has {dist(lastw[r][0])}")
            for r in i.a+i.b:
                if r in lastmf:
                    p,pi=lastmf[r]; need={2:5,4:8,8:12,16:20}[pi.passes]
                    if dist(p)<need: err(idx,f"MFMA D {r} -> MFMA A/B needs {need}, has {dist(p)}")
            for r in i.c:
                if r in lastmf:
                    p,pi=lastmf[r]
                    if pi.w==i.c and pi.passes==i.passes: need=0 if pi.passes>=4 else 2
                    else: need={2:4,4:6,8:10,16:18}[pi.passes]
                    if dist(p)<need: err(idx,f"MFMA D {r} -> MFMA C overlap needs {need}, has {dist(p)}")
            for r in i.w:
                if r in lastmf and r not in i.c:
                    p,pi=lastmf[r]; need={2:4,4:6,8:10,16:18}[pi.passes]
                    if dist(p)<need: err(idx,f"MFMA D {r} -> MFMA D WAW (conservative) needs {need}, has {dist(p)}")
            for r in [("s",126),("s",127)]:
                if r in lastw and lastw[r][1].kind=="valu" and dist(lastw[r][0])<4: err(idx,"VALU exec write -> MFMA needs 4")
        else:
            for r in reads+writes:
                if r in lastmf and k in ("valu","vmem","ds"):
                    p,pi=lastmf[r]; need={2:5,4:8,8:12,16:20}[pi.passes]
                    if dist(p)<need: err(idx,f"MFMA D {r} -> {k} access needs {need}, has {dist(p)}")
        if k=="valu":
            for r in writes:
                if r in lastmfc:
                    p,pi=lastmfc[r]; need={2:1,4:3,8:7,16:15}[pi.passes]
                    if dist(p)<need: err(idx,f"MFMA srcC read {r} -> VALU write needs {need}, has {dist(p)}")
                if r in laststore and dist(laststore[r])<2: err(idx,f"wide store data {r} -> VALU write needs 2")
            for r in reads:
                if r in lastw:
                    p,pi=lastw[r]
                    if pi.kind=="valu":
                        if getattr(pi,"trans",False) and not getattr(i,"trans",False) and r[0]=="v" and dist(p)<1: err(idx,f"trans {r} -> VALU needs 1")
                        if r[0]=="s" and r[1] not in (126,127) and dist(p)<2 and not (i.base in ("v_addc_co_u32","v_subb_co_u32")) : err(idx,f"VALU sgpr write {r} -> VALU read needs 2, has {dist(p)}")
                        if getattr(i,"rl",False) and r[0]=="v" and dist(p)<1: err(idx,f"VALU write {r} -> readlane needs 1")
                        if getattr(i,"rl",False) and r[0]=="s" and dist(p)<4: err(idx,f"VALU sgpr write {r} -> lane select needs 4")
                        if getattr(i,"dpp",False) and r[0]=="v" and dist(p)<2: err(idx,f"VALU write {r} -> DPP needs 2")
                        if getattr(i,"perm",False) and r[0]=="v" and dist(p)<2: err(idx,f"VALU write {r} -> permlane needs 2")
                        if ("SDWA" in pi.op.upper() or "op_sel" in pi.mods and not pi.base.startswith("v_pk")) and r[0]=="v" and dist(p)<1: err(idx,f"sdwa/opsel write {r} -> VALU needs 1")
            if getattr(i,"dpp",False):
                for r in [("s",126),("s",127)]:
                    if r in lastw and lastw[r][1].kind=="valu" and dist(lastw[r][0])<5: err(idx,"VALU exec write -> DPP needs 5")
        if k=="vmem":
            for r in reads:
                if r[0]=="s" and r in lastw and lastw[r][1].kind=="valu" and dist(lastw[r][0])<5: err(idx,f"VALU sgpr write {r} -> VMEM read needs 5")
            if getattr(i,"islds",False) and dist(m0pos)<1: err(idx,"m0 write -> LDS-DMA needs 1")
        if k in ("salu","branch") :
            pass
        if k=="wait":
            if i.vm is not None:
                while len(vmq)>i.vm: vmq.pop(0)
            if i.lgkm is not None:
                if i.lgkm==0: lgq=[]; smem_out=set()
                else:
                    if smem_out: err(idx,"counted lgkmcnt with SMEM outstanding")
                    while len(lgq)>i.lgkm: lgq.pop(0)
        elif k=="vmem":
            vmq.append(list(writes) if not getattr(i,"store",False) else [])
            if len(vmq)>63: err(idx,"more than 63 vmem outstanding")
            if getattr(i,"store",False) and i.wide:
                for r in i.data: laststore[r]=pos
        elif k=="ds":
            lgq.append(list(writes))
            if len(lgq)>15:
                pass
        elif k=="smem":
            for r in writes: smem_out.add(r)
        if k=="mfma":
            for r in i.w: lastmf[r]=(pos,i); lastw.pop(r,None)
            for r in i.c: lastmfc[r]=(pos,i)
        elif k in ("valu","salu"):
            for r in writes:
                lastw[r]=(pos,i); lastmf.pop(r,None)
            if k=="salu" and ("s",124) in writes: m0pos=pos
        elif k in ("vmem","ds","smem"):
            for r in writes: lastw.pop(r,None); lastmf.pop(r,None)
        pos+=1
    return errs

def traces(instrs, entry, maxvisit=2, maxpaths=64):
    labels={i.name:n for n,i in enumerate(instrs) if i.kind=="label"}
    out=[]
    stack=[(labels[entry],[],{})]
    while stack and len(out)<maxpaths:
        pc,tr,vis=stack.pop()
        tr=list(tr); vis=dict(vis)
        while True:
            if pc>=len(instrs): break
            i=instrs[pc]
            tr.append(i)
            if i.kind=="end": break
            if i.kind=="branch":
                tgt=labels.get(i.target)
                if tgt is None: raise Exception("unknown label "+i.target)
                if i.op=="s_branch":
                    c=vis.get(pc,0)
                    if c>=maxvisit: break
                    vis[pc]=c+1; pc=tgt; continue
                if tgt<=pc:
                    c=vis.get(pc,0)
                    if c<maxvisit-1:
                        vis[pc]=c+1; pc=tgt; continue
                    vis[pc]=0
                    pc+=1; continue
                else:
                    c=vis.get(pc,0)
                    if c<1:
                        v2=dict(vis); v2[pc]=1
                        stack.append((tgt,tr,v2))
                        vis[pc]=1
                    pc+=1; continue
            pc+=1
        out.append(tr)
    return out

def expand(text):
    return text
def check_text(text, entries):
    instrs=[x for x in (parse(l) for l in text.splitlines()) if x is not None]
    allerr=[]
    for e in entries:
        seen=set()
        for tr in traces(instrs,e):
            for m in check_trace(tr,e):
                key=m.split(":",1)[1]
                if key not in seen:
                    seen.add(key); allerr.append(m)
    return allerr
if __name__=="__main__":
    t=open(sys.argv[1]).read()
    ents=sys.argv[2:]
    for m in check_text(t,ents): print(m)
```

```python
from common import *
S = [16, 32]; P = 48
QA = [56, 64]; QB = [60, 62]
O = [68, 84]
OIN = 100
VW, VR = 7, 8
def KAr(t): return ar(4*t, 4)
def KBr(t): return ar(32+2*t, 2)
def VAr(t, u): return ar(48+8*t+4*u, 4)
SLOT = 24576

def step(A, j, t, first=False, last=False, fillers=None, pre=None):
    cur = S[t & 1]; nxt = S[(t+1) & 1]
    par = j & 1
    if t < 7: nt, npar = t+1, par
    else: nt, npar = 0, par ^ 1
    do_next = not (last and t == 7)
    M1 = f"v_mfma_f32_32x32x16_bf16 {vr(nxt,16)}, {KAr(nt)}, {vr(QA[npar],4)}, 0" if do_next else None
    M2 = f"v_mfma_f32_32x32x8_bf16 {vr(nxt,16)}, {KBr(nt)}, {vr(QB[npar],2)}, {vr(nxt,16)}" if do_next else None
    if t == 0:
        PVp = None if first else f"v_mfma_f32_32x32x16_bf16 {vr(O[par^1],16)}, {VAr(7,1)}, {vr(P+4,4)}, {vr(O[par^1],16)}"
    else:
        PVp = f"v_mfma_f32_32x32x16_bf16 {vr(O[par],16)}, {VAr(t-1,1)}, {vr(P+4,4)}, {vr(O[par],16)}"
    c = "0" if t == 0 else vr(O[par],16)
    PV0 = f"v_mfma_f32_32x32x16_bf16 {vr(O[par],16)}, {VAr(t,0)}, {vr(P,4)}, {c}"
    E = lambda i: f"v_exp_f32 v{cur+i}, v{cur+i}"
    C = lambda i: f"v_cvt_pk_bf16_f32 v{P+i}, v{cur+2*i}, v{cur+2*i+1}"
    seq = [M1, E(0), E(1), PVp, E(2), C(0), E(3), E(4), C(1), E(5), M2, E(6), C(2), E(7), E(8), C(3), E(9), E(10), PV0,
           C(4), E(11), E(12), C(5), E(13), E(14), E(15), C(6), C(7)]
    seq = [x for x in seq if x]
    fillers = list(fillers or [])
    if fillers:
        out = []; n = len(seq); k = 0; m = len(fillers)
        for idx, x in enumerate(seq):
            out.append(x)
            want = ((idx+1) * m) // n
            while k < want:
                out.append(fillers[k]); k += 1
        out += fillers[k:]
        seq = out
    for x in (pre or []): A.e(x)
    for x in seq: A.e(x)

def ring_write(tau):
    par = (tau-1) & 1
    L = [f"v_pk_add_f32 {vr(O[par]+2*i,2)}, {vr(O[par]+2*i,2)}, {vr(OIN+2*i,2)}" for i in range(6)]
    L += [f"ds_write_b128 v{VW}, {vr(O[par]+4*g,4)} offset:{par*SLOT+1024*g}" for g in range(3)]
    return L
def ring_read(tau):
    par = (tau-1) & 1
    return [f"ds_read_b128 {vr(OIN+4*g,4)}, v{VR} offset:{par*SLOT+1024*g}" for g in range(3)]

def qload(par):
    return [f"buffer_load_dwordx4 {vr(QA[par],4)}, v4, s[12:15], s30 offen",
            f"buffer_load_dwordx2 {vr(QB[par],2)}, v6, s[12:15], s30 offen"]
def qnext():
    return ["s_sub_u32 s33, s33, 1", "s_and_b32 s33, s33, 7", "s_lshr_b32 s35, s33, 1", f"s_mul_i32 s35, s35, {64*QT}",
            "s_and_b32 s30, s33, 1", f"s_mul_i32 s30, s30, {QT}", "s_add_u32 s30, s30, s35", "s_add_u32 s30, s30, s34"]

def attn_role(A, pfx):
    A.e(f"s_load_dwordx2 s[4:5], s[0:1], {KA['ws']}")
    stamp_init(A)
    stamp(A)
    A.e("v_and_b32 v1, 63, v0")
    A.e("v_lshrrev_b32 v2, 6, v0")
    A.e("v_lshlrev_b32 v4, 4, v1          ; lane*16")
    A.e("v_readfirstlane_b32 s20, v2")
    A.e("v_lshlrev_b32 v5, 3, v1          ; lane*8")
    A.e("v_add_u32 v6, 1024, v5")
    A.e(f"v_mov_b32 v3, {OOB}")
    A.e("v_cmp_gt_u32 vcc, 32, v1")
    A.e("s_and_b32 s22, s3, 31            ; rb")
    A.e("s_lshr_b32 s23, s3, 5            ; hg")
    A.e(f"v_cndmask_b32 v6, v3, v6, vcc")
    A.e("s_mul_i32 s21, s20, 3072")
    A.e(f"v_add_u32 v{VW}, s21, v4")
    A.e("s_sub_u32 s21, s20, 1")
    A.e("s_and_b32 s21, s21, 7")
    A.e("s_mul_i32 s21, s21, 3072")
    A.e(f"v_add_u32 v{VR}, s21, v4")
    A.e("s_waitcnt lgkmcnt(0)")
    srd(A, 8, 4, WS_VA + 64*2048)
    srd(A, 12, 4, 2048*QT, add=WS_Q)
    A.e("s_lshl_b32 s34, s23, 8           ; 4hg*64")
    A.e("s_lshl_b32 s21, s22, 1")
    A.e("s_add_u32 s34, s34, s21")
    A.e(f"s_mul_i32 s34, s34, {QT}")
    A.e("s_add_u32 s33, s20, 1")
    for x in qnext(): A.e(x)
    for x in qload(0): A.e(x)
    A.e("s_lshl_b32 s24, s20, 13          ; KA: T*1024")
    A.e(f"s_lshl_b32 s25, s20, 12         ; KB: T*512")
    A.e(f"s_add_u32 s25, s25, {WS_KB}")
    A.e("s_lshl_b32 s26, s20, 14          ; VA: T*2048")
    A.e(f"s_add_u32 s26, s26, {WS_VA}")
    A.e("s_add_u32 s27, s24, 4096")
    def ldKA(t): A.e(f"buffer_load_dwordx4 {KAr(t)}, v4, s[8:11], {'s24' if t<4 else 's27'} offen offset:{1024*(t%4)}")
    def ldKB(t): A.e(f"buffer_load_dwordx2 {KBr(t)}, v5, s[8:11], s25 offen offset:{512*t}")
    def ldVA(t,u):
        A.e(f"s_add_u32 s28, s26, {2048*t}")
        A.e(f"buffer_load_dwordx4 {VAr(t,u)}, v4, s[8:11], s28 offen offset:{1024*u}")
    ldKA(0); ldKB(0)
    for t in range(8):
        ldVA(t,0)
        if t < 7: ldKA(t+1); ldKB(t+1)
        ldVA(t,1)
    for x in qnext(): A.e(x)
    for x in qload(1): A.e(x)
    for i in range(12): A.e(f"v_mov_b32 v{OIN+i}, 0")
    stamp(A)
    A.e("s_waitcnt vmcnt(32)")
    stamp(A)
    A.e(f"v_mfma_f32_32x32x16_bf16 {vr(S[0],16)}, {KAr(0)}, {vr(QA[0],4)}, 0")
    A.e(f"v_mfma_f32_32x32x8_bf16 {vr(S[0],16)}, {KBr(0)}, {vr(QB[0],2)}, {vr(S[0],16)}")
    A.e("s_nop 7"); A.e("s_nop 3")
    for t in range(8):
        step(A, 0, t, first=True, pre=[f"s_waitcnt vmcnt({28-4*t if t < 7 else 0})"])
    stamp(A)
    def qtile(tau, last=False):
        for t in range(8):
            fl = None; pre = None
            if t == 0 and not last: fl = qnext() + qload((tau+1) & 1)
            if t == 1: fl = ring_write(tau)
            if t == 2: pre = ["s_waitcnt lgkmcnt(0)", "s_barrier"]
            if t == 3: fl = ring_read(tau)
            if t == 7: pre = ["s_waitcnt vmcnt(0) lgkmcnt(0)"]
            step(A, tau, t, last=last, fillers=fl, pre=pre)
    A.e("s_mov_b32 s31, 3")
    A.label(f"{pfx}_loop")
    for tau in (1, 2):
        qtile(tau)
        stamp(A)
    A.e("s_sub_u32 s31, s31, 1")
    A.e("s_cmp_lg_u32 s31, 0")
    A.e(f"s_cbranch_scc1 {pfx}_loop")
    qtile(7, last=True)
    stamp(A)
    A.e("s_nop 1")
    Of = O[1]
    A.e(f"v_mfma_f32_32x32x16_bf16 {vr(Of,16)}, {VAr(7,1)}, {vr(P+4,4)}, {vr(Of,16)}")
    A.e("s_add_u32 s33, s20, 1")
    A.e("s_and_b32 s33, s33, 7            ; j")
    A.e("v_and_b32 v3, 31, v1")
    A.e("s_lshl_b32 s24, s22, 6           ; 64 rb")
    A.e("s_and_b32 s25, s33, 1")
    A.e("s_lshl_b32 s25, s25, 5")
    A.e("s_add_u32 s24, s24, s25")
    A.e("v_add_u32 v9, s24, v3            ; pos")
    A.e("s_movk_i32 s26, 1280")
    A.e("v_mul_u32_u24 v9, s26, v9")
    A.e("s_lshl_b32 s24, s23, 2")
    A.e("s_lshr_b32 s25, s33, 1")
    A.e("s_add_u32 s24, s24, s25          ; head")
    A.e("s_mul_i32 s24, s24, 40")
    A.e("v_lshrrev_b32 v10, 5, v1         ; h")
    A.e("v_lshl_add_u32 v9, v10, 3, v9")
    A.e("v_add_u32 v9, s24, v9")
    A.e(f"v_mov_b32 v12, {OOB}")
    A.e("v_cmp_eq_u32 vcc, 0, v10")
    srd(A, 16, 4, 2048*1280, add=WS_O)
    A.e(f"v_cndmask_b32 v11, v12, v9, vcc")
    for i in range(6): A.e(f"v_pk_add_f32 {vr(Of+2*i,2)}, {vr(Of+2*i,2)}, {vr(OIN+2*i,2)}")
    A.e(f"v_mov_b32 v28, v{Of+8}")
    A.e(f"v_mov_b32 v29, v{Of+8}")
    A.e("s_nop 1")
    A.e("v_permlane32_swap_b32 v28, v29")
    A.e("s_nop 1")
    A.e("v_rcp_f32 v29, v29")
    A.e("s_nop 0")
    for r in range(12): A.e(f"v_mul_f32 v{16+r}, v{Of+r}, v29")
    for g in range(3):
        A.e(f"v_cvt_pk_bf16_f32 v{32+2*g}, v{16+4*g}, v{17+4*g}")
        A.e(f"v_cvt_pk_bf16_f32 v{33+2*g}, v{18+4*g}, v{19+4*g}")
    A.e("buffer_store_dwordx2 v[32:33], v9, s[16:19], 0 offen")
    A.e("buffer_store_dwordx2 v[34:35], v9, s[16:19], 0 offen offset:16")
    A.e("buffer_store_dwordx2 v[36:37], v11, s[16:19], 0 offen offset:32")
    stamp(A)
    stamp_out(A, 4, 8, STAMP_BASE)
    A.e("s_endpgm")
```

```python
import math
NAME = "concat_heads__ssm_conv_s4__grouped_kv_mqa__prompt"
KA = dict(u=0, are=8, aim=16, bre=24, bim=32, cre=40, cim=48, ldt=56, dsk=64, x=72, wq=80, wk=88, wv=96, wo=104, out=112, dbg=120, ws=128)
WS_KA = 0x000000
WS_KB = 0x010000
WS_VA = 0x020000
WS_Q  = 0x100000
QT = 1280
WS_O  = 0x400000
WS_UT = 0x700000
UT_ROW = 4160
WS_KR = 0xA00000
KR_ROW = 4608
WS_YT = 0xE00000
WS_END = 0x1100000
QSCALE = (20 ** -0.5) * math.log2(math.e)
import struct
def f2u(x): return struct.unpack("<I", struct.pack("<f", x))[0]

class Asm:
    def __init__(self):
        self.lines = []
    def __call__(self, s=""):
        for l in s.split("\n"):
            self.lines.append(l)
    def e(self, s):
        self.lines.append("    " + s)
    def label(self, s):
        self.lines.append(s + ":")
    def c(self, s):
        self.lines.append("    ; " + s)
    def text(self):
        return "\n".join(self.lines) + "\n"
def vr(b, n=1): return f"v{b}" if n == 1 else f"v[{b}:{b+n-1}]"
def ar(b, n=1): return f"a{b}" if n == 1 else f"a[{b}:{b+n-1}]"
def sr(b, n=1): return f"s{b}" if n == 1 else f"s[{b}:{b+n-1}]"

def srd(A, s, ptr_lo, nbytes, add=None):
    if add is None:
        A.e(f"s_mov_b32 s{s}, s{ptr_lo}")
        A.e(f"s_mov_b32 s{s+1}, s{ptr_lo+1}")
    else:
        A.e(f"s_add_u32 s{s}, s{ptr_lo}, {add}")
        A.e(f"s_addc_u32 s{s+1}, s{ptr_lo+1}, 0")
    A.e(f"s_mov_b32 s{s+2}, {nbytes}")
    A.e(f"s_mov_b32 s{s+3}, 0x20000")

def kernel_begin(A, name):
    A(".text")
    A(f".globl {name}")
    A(".p2align 8")
    A(f".type {name},@function")
    A.label(name)
def kernel_desc(name, nvgpr, accum, nsgpr=96):
    return f""".section .rodata,"a"
.p2align 6
.amdhsa_kernel {name}
  .amdhsa_next_free_vgpr {nvgpr}
  .amdhsa_next_free_sgpr {nsgpr}
  .amdhsa_accum_offset {accum}
  .amdhsa_group_segment_fixed_size 0
  .amdhsa_kernarg_size 136
  .amdhsa_user_sgpr_count 2
  .amdhsa_user_sgpr_kernarg_segment_ptr 1
  .amdhsa_system_sgpr_workgroup_id_x 1
  .amdhsa_float_denorm_mode_32 3
.end_amdhsa_kernel
"""

OOB = "0x80000000"

class Cfg: STAMP = False
def stamp_init(A, vreg=120):
    if not Cfg.STAMP: return
    A.e("s_mov_b32 s92, 0"); A.e(f"v_mov_b32 v{vreg}, 0")
    rstamp(A, 62, vreg)
def stamp(A, vreg=120):
    if not Cfg.STAMP: return
    A.e("s_memtime s[90:91]")
    A.e("s_mov_b32 s93, m0")
    A.e("s_waitcnt lgkmcnt(0)")
    A.e("s_mov_b32 m0, s92")
    A.e("s_nop 3")
    A.e(f"v_writelane_b32 v{vreg}, s90, m0")
    A.e("s_add_u32 s92, s92, 1")
    A.e("s_mov_b32 m0, s93")
def rstamp(A, lane, vreg=120):
    if not Cfg.STAMP: return
    A.e("s_memrealtime s[90:91]")
    A.e("s_waitcnt lgkmcnt(0)")
    A.e(f"v_writelane_b32 v{vreg}, s90, {lane}")
def stamp_out(A, wsreg, waves, base, vreg=120, tmp=121):
    if not Cfg.STAMP: return
    rstamp(A, 63, vreg)
    A.e(f"s_mul_i32 s88, s2, {waves}")
    A.e("s_add_u32 s88, s88, s20")
    A.e("s_lshl_b32 s88, s88, 8")
    A.e(f"s_add_u32 s88, s88, {base}")
    A.e(f"v_mbcnt_lo_u32_b32 v{tmp}, -1, 0")
    A.e(f"v_mbcnt_hi_u32_b32 v{tmp}, -1, v{tmp}")
    A.e(f"v_lshlrev_b32 v{tmp}, 2, v{tmp}")
    A.e(f"v_add_u32 v{tmp}, s88, v{tmp}")
    A.e(f"global_store_dword v{tmp}, v{vreg}, s[{wsreg}:{wsreg+1}]")
STAMP_BASE = 0x1200000
```

```python
from common import *

def Xr(q):
    return ar(4*q,4) if q < 32 else vr(96+4*(q-32),4)
def lane_setup(A):
    A.e("v_and_b32 v1, 63, v0")
    A.e("v_lshrrev_b32 v4, 6, v0")
    A.e("v_and_b32 v2, 15, v1")
    A.e("v_readfirstlane_b32 s20, v4")
    A.e("v_lshrrev_b32 v3, 4, v1")
    A.e(f"v_mov_b32 v19, {OOB}")

def gemm_big(A, kind, pfx):
    if kind == 'q':
        A.e(f"s_load_dwordx2 s[4:5], s[0:1], {KA['x']}")
        A.e(f"s_load_dwordx2 s[6:7], s[0:1], {KA['wq']}")
        A.e(f"s_load_dwordx2 s[24:25], s[0:1], {KA['ws']}")
    else:
        A.e(f"s_load_dwordx2 s[4:5], s[0:1], {KA['ws']}")
        A.e(f"s_load_dwordx2 s[6:7], s[0:1], {KA['wo']}")
        A.e(f"s_load_dwordx2 s[24:25], s[0:1], {KA['out']}")
    stamp_init(A, 94); stamp(A, 94)
    lane_setup(A)
    A.e("s_and_b32 s22, s3, 15")
    A.e("s_lshr_b32 s23, s3, 4")
    A.e("s_mov_b32 s26, 52429")
    A.e("s_movk_i32 s27, 1280")
    for ph in range(5):
        A.e(f"v_add_u32 v12, {64*ph}, v1")
        A.e("v_mul_u32_u24 v13, s26, v12")
        A.e("v_lshrrev_b32 v13, 18, v13          ; row")
        A.e("v_mul_u32_u24 v14, 5, v13")
        A.e("v_sub_u32 v14, v12, v14             ; c")
        A.e("v_lshlrev_b32 v14, 4, v14")
        A.e(f"v_mad_u32_u24 v{6+ph}, v13, s27, v14")
    A.e("s_lshl_b32 s21, s20, 5          ; 32*w")
    A.e("v_add_u32 v12, s21, v2")
    A.e("v_mul_u32_u24 v12, s27, v12")
    A.e("v_lshlrev_b32 v13, 4, v3")
    A.e("v_add_u32 v4, v12, v13")
    A.e("v_add_u32 v5, 20480, v4")
    A.e("v_lshrrev_b32 v12, 2, v2")
    A.e("v_lshl_add_u32 v12, v3, 3, v12")
    A.e("v_mul_u32_u24 v12, 80, v12")
    A.e("v_and_b32 v13, 3, v2")
    A.e("v_lshl_add_u32 v11, v13, 3, v12")
    A.e("s_waitcnt lgkmcnt(0)")
    A.e("s_mul_i32 s21, s22, 163840     ; rb*128*1280")
    if kind == 'o':
        A.e(f"s_add_u32 s21, s21, {WS_O}")
    srd(A, 8, 4, 163840, add="s21")
    A.e("s_mul_i32 s21, s23, 80")
    srd(A, 12, 6, "0", add="s21")
    A.e("s_sub_u32 s14, 819200, s21")
    stamp(A, 94)
    for bi in range(3):
        if bi == 2:
            A.e("s_cmp_ge_u32 s20, 2")
            A.e(f"s_cbranch_scc1 {pfx}_wdone")
        A.e(f"s_add_u32 s28, s20, {4*bi}          ; block")
        A.e("s_mul_i32 s29, s28, 81920          ; block*64*1280")
        A.e("s_mul_i32 s28, s28, 5120")
        for ph in range(5):
            A.e(f"s_add_u32 m0, s28, {1024*ph}")
            A.e("s_nop 0")
            A.e(f"buffer_load_dwordx4 v{6+ph}, s[12:15], s29 offen lds")
    A.label(f"{pfx}_wdone")
    for ks in range(20):
        for nt in range(2):
            A.e(f"buffer_load_dwordx4 {Xr(nt*20+ks)}, v{4+nt}, s[8:11], 0 offen offset:{64*ks}")
    ACC = 20
    for i in range(24): A.e(f"v_mov_b32 v{ACC+i}, 0")
    if kind == 'q':
        A.e("s_lshl_b32 s21, s23, 7          ; 2cg*64")
        A.e("s_lshl_b32 s26, s22, 2")
        A.e("s_add_u32 s21, s21, s26")
        A.e("s_add_u32 s21, s21, s20")
        A.e(f"s_mul_i32 s21, s21, {QT}")
        A.e(f"s_add_u32 s21, s21, {WS_Q}")
        srd(A, 16, 24, 64*QT + QT, add="s21")
        for mt in range(3):
            A.e(f"v_lshl_add_u32 v68, v3, 2, {16*mt}     ; c0")
            A.e("v_cmp_le_u32 vcc, 20, v68")
            A.e("s_nop 1")
            A.e("v_cndmask_b32 v69, 0, 1, vcc          ; hl")
            A.e("v_mul_u32_u24 v70, 20, v69")
            A.e("v_sub_u32 v70, v68, v70               ; dim0")
            A.e(f"v_mov_b32 v71, {64*QT}")
            A.e("v_mul_u32_u24 v71, v69, v71           ; hl*64*QT")
            A.e("v_bfe_u32 v72, v70, 2, 1")
            A.e("v_lshlrev_b32 v72, 9, v72")
            A.e("v_lshrrev_b32 v73, 3, v70")
            A.e("v_lshl_add_u32 v72, v73, 3, v72")
            for nt in range(2):
                A.e(f"v_add_u32 v73, {16*nt}, v2          ; pos32")
                A.e("v_lshl_add_u32 v74, v73, 4, v72")
                A.e("v_lshlrev_b32 v75, 3, v73")
                A.e("v_add_u32 v75, 1024, v75")
                A.e("v_cmp_eq_u32 vcc, 16, v70")
                A.e("s_nop 1")
                A.e("v_cndmask_b32 v74, v74, v75, vcc")
                A.e("v_add_u32 v74, v74, v71")
                A.e("v_cmp_gt_u32 vcc, 40, v68")
                A.e("s_nop 1")
                A.e(f"v_cndmask_b32 v{12+nt*3+mt}, v19, v74, vcc")
    else:
        A.e("s_mul_i32 s21, s22, 327680")
        A.e("s_mul_i32 s26, s23, 80")
        A.e("s_add_u32 s21, s21, s26")
        A.e("s_add_u32 s21, s21, 1280")
        srd(A, 16, 24, "0", add="s21")
        A.e(f"s_sub_u32 s18, {2048*2560}, s21")
        A.e("s_lshl_b32 s21, s20, 5")
        A.e("s_movk_i32 s26, 2560")
        for nt in range(2):
            A.e(f"v_add_u32 v68, s21, v2")
            if nt: A.e("v_add_u32 v68, 16, v68")
            A.e("v_mul_u32_u24 v68, s26, v68")
            for mt in range(3):
                A.e(f"v_lshl_add_u32 v69, v3, 2, {16*mt}     ; c0")
                A.e("v_lshl_add_u32 v70, v69, 1, v68")
                A.e("v_cmp_gt_u32 vcc, 40, v69")
                A.e("s_nop 1")
                A.e(f"v_cndmask_b32 v{12+nt*3+mt}, v19, v70, vcc")
    stamp(A, 94)
    A.e("s_waitcnt vmcnt(40)")
    stamp(A, 94)
    A.e("s_barrier")
    stamp(A, 94)
    WF = 44
    def trread(ks, buf):
        for mt in range(3):
            for half in range(2):
                off = (32*ks + 4*half)*80 + 32*mt
                A.e(f"ds_read_b64_tr_b16 {vr(WF+buf*12+mt*4+half*2,2)}, v11 offset:{off}")
    trread(0, 0)
    for ks in range(20):
        buf = ks & 1
        if ks+1 < 20:
            trread(ks+1, buf ^ 1)
            A.e(f"s_waitcnt vmcnt({38-2*ks}) lgkmcnt(6)")
        else:
            A.e(f"s_waitcnt vmcnt(0) lgkmcnt(0)")
        for mt in range(3):
            for nt in range(2):
                acc = ACC + (nt*3+mt)*4
                A.e(f"v_mfma_f32_16x16x32_bf16 {vr(acc,4)}, {vr(WF+buf*12+mt*4,4)}, {Xr(nt*20+ks)}, {vr(acc,4)}")
    A.e("s_nop 7")
    stamp(A, 94)
    if kind == 'q':
        A.e(f"s_mov_b32 s26, {hex(f2u(QSCALE))}")
    for nt in range(2):
        for mt in range(3):
            acc = ACC + (nt*3+mt)*4
            if kind == 'q':
                for i in range(4): A.e(f"v_mul_f32 v{acc+i}, s26, v{acc+i}")
            A.e(f"v_cvt_pk_bf16_f32 v{76+(nt*3+mt)*2}, v{acc}, v{acc+1}")
            A.e(f"v_cvt_pk_bf16_f32 v{77+(nt*3+mt)*2}, v{acc+2}, v{acc+3}")
            A.e(f"buffer_store_dwordx2 {vr(76+(nt*3+mt)*2,2)}, v{12+nt*3+mt}, s[16:19], 0 offen")
    if Cfg.STAMP:
        A.e("s_waitcnt vmcnt(0)")
        stamp(A, 94)
        A.e(f"s_load_dwordx2 s[24:25], s[0:1], {KA['ws']}")
        A.e("s_waitcnt lgkmcnt(0)")
        stamp_out(A, 24, 4, STAMP_BASE + (0x100000 if kind == 'q' else 0x200000), 94, 95)
    A.e("s_endpgm")

def gemm_kv(A, pfx):
    A.e(f"s_load_dwordx2 s[4:5], s[0:1], {KA['x']}")
    A.e(f"s_load_dwordx2 s[6:7], s[0:1], {KA['wk']}")
    A.e(f"s_load_dwordx2 s[30:31], s[0:1], {KA['wv']}")
    A.e(f"s_load_dwordx2 s[24:25], s[0:1], {KA['ws']}")
    lane_setup(A)
    A.e("s_movk_i32 s27, 1280")
    A.e("v_lshlrev_b32 v6, 4, v1")
    A.e("s_lshl_b32 s21, s20, 4")
    A.e("v_add_u32 v12, s21, v2")
    A.e("v_mul_u32_u24 v12, s27, v12")
    A.e("v_lshlrev_b32 v13, 4, v3")
    A.e("v_add_u32 v4, v12, v13")
    A.e("v_lshrrev_b32 v12, 2, v2")
    A.e("v_lshl_add_u32 v12, v3, 3, v12")
    A.e("v_mul_u32_u24 v12, 40, v12")
    A.e("v_and_b32 v13, 3, v2")
    A.e("v_lshl_add_u32 v11, v13, 3, v12")
    A.e("s_waitcnt lgkmcnt(0)")
    A.e("s_mul_i32 s21, s3, 81920")
    srd(A, 8, 4, 81920, add="s21")
    srd(A, 12, 6, 25600)
    srd(A, 32, 30, 25600)
    for which in range(2):
        sr_ = 12 if which == 0 else 32
        for i in range(7):
            if i == 6:
                A.e("s_cmp_lg_u32 s20, 0")
                A.e(f"s_cbranch_scc1 {pfx}_wd{which}")
            A.e(f"s_add_u32 s28, s20, {4*i}")
            A.e("s_lshl_b32 s28, s28, 10")
            A.e(f"s_add_u32 m0, s28, {25600*which}")
            A.e("s_nop 0")
            A.e(f"buffer_load_dwordx4 v6, s[{sr_}:{sr_+3}], s28 offen lds")
        A.label(f"{pfx}_wd{which}")
    for ks in range(20):
        A.e(f"buffer_load_dwordx4 {ar(ks*4,4)}, v4, s[8:11], 0 offen offset:{64*ks}")
    ACC = 20
    for i in range(16): A.e(f"v_mov_b32 v{ACC+i}, 0")
    A.e("s_lshr_b32 s21, s20, 1")
    A.e("s_lshl_b32 s26, s3, 1")
    A.e("s_add_u32 s21, s21, s26          ; T")
    A.e("s_and_b32 s26, s20, 1            ; u")
    srd(A, 16, 24, WS_VA + 64*2048)
    A.e("v_and_b32 v68, 1, v3             ; h")
    A.e("v_lshrrev_b32 v69, 1, v3         ; g>>1")
    A.e("s_lshl_b32 s28, s26, 4           ; 16u")
    A.e("v_add_u32 v70, s28, v2           ; key32")
    A.e("v_lshl_add_u32 v71, v68, 5, v70")
    A.e("v_lshlrev_b32 v71, 4, v71")
    A.e("v_lshl_add_u32 v71, v69, 3, v71")
    A.e("s_lshl_b32 s28, s21, 10")
    A.e(f"s_add_u32 s28, s28, {WS_KA}")
    A.e("v_add_u32 v12, s28, v71")
    A.e("v_lshl_add_u32 v71, v3, 5, v70")
    A.e("v_lshlrev_b32 v71, 3, v71")
    A.e("s_lshl_b32 s28, s21, 9")
    A.e(f"s_add_u32 s28, s28, {WS_KB}")
    A.e("v_add_u32 v71, s28, v71")
    A.e("v_cmp_gt_u32 vcc, 2, v3")
    A.e("s_nop 1")
    A.e(f"v_cndmask_b32 v13, v19, v71, vcc")
    A.e("v_lshl_add_u32 v71, v68, 5, v2")
    A.e("v_lshlrev_b32 v71, 4, v71")
    A.e("v_lshl_add_u32 v71, v69, 3, v71")
    A.e("s_lshl_b32 s28, s21, 11")
    A.e("s_lshl_b32 s29, s26, 10")
    A.e("s_add_u32 s28, s28, s29")
    A.e(f"s_add_u32 s28, s28, {WS_VA}")
    A.e("v_add_u32 v14, s28, v71")
    A.e("v_add_u32 v15, 256, v14          ; nt'=1 (d+16)")
    A.e("s_waitcnt vmcnt(20)")
    A.e("s_barrier")
    WF = 44
    def trread(ks, buf):
        for m in range(4):
            for half in range(2):
                off = (32*ks + 4*half)*40 + 32*(m & 1) + 25600*(m >> 1)
                A.e(f"ds_read_b64_tr_b16 {vr(WF+buf*16+m*4+half*2,2)}, v11 offset:{off}")
    trread(0, 0)
    for ks in range(20):
        buf = ks & 1
        if ks+1 < 20:
            A.e("s_waitcnt lgkmcnt(0)")
            trread(ks+1, buf ^ 1)
            A.e(f"s_waitcnt vmcnt({19-ks})")
        else:
            A.e(f"s_waitcnt vmcnt(0) lgkmcnt(0)")
        for m in range(2):
            A.e(f"v_mfma_f32_16x16x32_bf16 {vr(ACC+4*m,4)}, {vr(WF+buf*16+m*4,4)}, {ar(ks*4,4)}, {vr(ACC+4*m,4)}")
        for m in range(2,4):
            A.e(f"v_mfma_f32_16x16x32_bf16 {vr(ACC+4*m,4)}, {ar(ks*4,4)}, {vr(WF+buf*16+m*4,4)}, {vr(ACC+4*m,4)}")
    A.e("s_nop 7")
    A.e("v_cvt_pk_bf16_f32 v76, v20, v21")
    A.e("v_cvt_pk_bf16_f32 v77, v22, v23")
    A.e("buffer_store_dwordx2 v[76:77], v12, s[16:19], 0 offen")
    A.e("v_cvt_pk_bf16_f32 v78, v24, v25")
    A.e("v_cvt_pk_bf16_f32 v79, v26, v27")
    A.e("v_cmp_eq_u32 vcc, 1, v3")
    A.e("v_mov_b32 v68, 0x3f80")
    A.e("s_nop 0")
    A.e("v_cndmask_b32 v78, v78, v68, vcc")
    A.e("v_cndmask_b32 v79, v79, 0, vcc")
    A.e("buffer_store_dwordx2 v[78:79], v13, s[16:19], 0 offen")
    A.e("v_cvt_pk_bf16_f32 v80, v28, v29")
    A.e("v_cvt_pk_bf16_f32 v81, v30, v31")
    A.e("buffer_store_dwordx2 v[80:81], v14, s[16:19], 0 offen")
    A.e("v_cvt_pk_bf16_f32 v82, v32, v33")
    A.e("v_cvt_pk_bf16_f32 v83, v34, v35")
    A.e("v_cmp_eq_u32 vcc, 4, v2")
    A.e("v_mov_b32 v68, 0x3f803f80")
    A.e("s_nop 0")
    A.e("v_cndmask_b32 v82, v82, v68, vcc")
    A.e("v_cndmask_b32 v83, v83, v68, vcc")
    A.e("v_cmp_lt_u32 vcc, 4, v2")
    A.e("s_nop 1")
    A.e("v_cndmask_b32 v82, v82, 0, vcc")
    A.e("v_cndmask_b32 v83, v83, 0, vcc")
    A.e("buffer_store_dwordx2 v[82:83], v15, s[16:19], 0 offen")
    A.e("s_endpgm")
```

```python
from common import *
import math
LOG2E = math.log2(math.e)
def lane_setup(A):
    A.e("v_and_b32 v1, 63, v0")
    A.e("v_lshrrev_b32 v4, 6, v0")
    A.e("v_and_b32 v2, 15, v1")
    A.e("v_readfirstlane_b32 s20, v4")
    A.e("v_lshrrev_b32 v3, 4, v1")

def tr_tile_addrs(A):
    A.e("s_mul_i32 s21, s20, 9216")
    A.e("v_lshrrev_b32 v8, 3, v1          ; r")
    A.e("v_and_b32 v9, 7, v1              ; c8")
    A.e("v_mul_u32_u24 v5, 144, v8")
    A.e("v_lshl_add_u32 v5, v9, 4, v5")
    A.e("v_add_u32 v5, s21, v5")
    A.e("v_lshrrev_b32 v10, 2, v2")
    A.e("v_lshl_add_u32 v10, v3, 3, v10")
    A.e("v_mul_u32_u24 v6, 144, v10")
    A.e("v_and_b32 v10, 3, v2")
    A.e("v_lshl_add_u32 v6, v10, 3, v6")
    A.e("v_add_u32 v6, s21, v6")

def ut_role(A, pfx):
    A.e(f"s_load_dwordx2 s[4:5], s[0:1], {KA['u']}")
    A.e(f"s_load_dwordx2 s[6:7], s[0:1], {KA['ws']}")
    lane_setup(A)
    tr_tile_addrs(A)
    A.e("s_movk_i32 s27, 1280")
    A.e("v_mul_u32_u24 v7, s27, v8")
    A.e("v_lshl_add_u32 v7, v9, 4, v7")
    A.e(f"s_movk_i32 s27, {UT_ROW}")
    A.e("v_mul_u32_u24 v11, s27, v2")
    A.e("v_lshl_add_u32 v11, v3, 4, v11")
    A.e("v_add_u32 v11, 32, v11")
    A.e("v_mul_u32_u24 v12, s27, v1")
    A.e("v_mov_b32 v60, 0"); A.e("v_mov_b32 v61, 0"); A.e("v_mov_b32 v62, 0"); A.e("v_mov_b32 v63, 0")
    A.e("s_waitcnt lgkmcnt(0)")
    srd(A, 8, 4, 2048*1280)
    srd(A, 12, 6, 640*UT_ROW, add=WS_UT)
    for k in range(2):
        A.e("s_lshl_b32 s22, s3, 3")
        A.e("s_lshl_b32 s23, s20, 1")
        A.e("s_add_u32 s22, s22, s23")
        if k: A.e("s_add_u32 s22, s22, 1")
        A.e("s_and_b32 s23, s22, 31")
        A.e("s_lshr_b32 s24, s22, 5")
        A.e("s_mul_i32 s25, s23, 81920        ; tt*64*1280")
        A.e("s_lshl_b32 s26, s24, 7")
        A.e("s_add_u32 s25, s25, s26          ; + cc*128")
        for i in range(8):
            A.e(f"s_add_u32 s26, s25, {i*8*1280}")
            A.e(f"buffer_load_dwordx4 {vr(16+4*i,4)}, v7, s[8:11], s26 offen")
        for i in range(8):
            A.e(f"s_waitcnt vmcnt({7-i})")
            A.e(f"ds_write_b128 v5, {vr(16+4*i,4)} offset:{i*8*144}")
        A.e(f"s_mul_i32 s25, s24, {64*UT_ROW}")
        A.e("s_lshl_b32 s26, s23, 7           ; tt*64*2")
        A.e("s_add_u32 s28, s25, s26")
        n = 0
        for cb in range(4):
            for th in range(2):
                b = 16 + 4*n
                A.e(f"ds_read_b64_tr_b16 {vr(b,2)}, v6 offset:{(32*th)*144 + 32*cb}")
                A.e(f"ds_read_b64_tr_b16 {vr(b+2,2)}, v6 offset:{(32*th+4)*144 + 32*cb}")
                n += 1
        n = 0
        for cb in range(4):
            for th in range(2):
                b = 16 + 4*n
                A.e(f"s_waitcnt lgkmcnt({14-2*n})")
                A.e(f"s_add_u32 s26, s28, {cb*16*UT_ROW + th*64}")
                A.e(f"buffer_store_dwordx4 {vr(b,4)}, v11, s[12:15], s26 offen")
                n += 1
        A.e("s_cmp_lg_u32 s23, 0")
        A.e(f"s_cbranch_scc1 {pfx}_nz0_{k}")
        A.e("buffer_store_dwordx4 v[60:63], v12, s[12:15], s25 offen")
        A.e("buffer_store_dwordx4 v[60:63], v12, s[12:15], s25 offen offset:16")
        A.label(f"{pfx}_nz0_{k}")
        A.e("s_cmp_lg_u32 s23, 31")
        A.e(f"s_cbranch_scc1 {pfx}_nz1_{k}")
        A.e(f"s_add_u32 s25, s25, {32+4096}")
        A.e("buffer_store_dwordx4 v[60:63], v12, s[12:15], s25 offen")
        A.e("buffer_store_dwordx4 v[60:63], v12, s[12:15], s25 offen offset:16")
        A.label(f"{pfx}_nz1_{k}")
        A.e("s_waitcnt vmcnt(0)")
    A.e("s_endpgm")

def rho(s, b):
    if s == 0: return b
    q = b >> s; rem = b & ((1 << s)-1); half = 1 << (s-1)
    if rem > half or (rem == half and (q & 1)): q += 1
    return q << s

def kgen_role(A, pfx):
    RS = 272
    WL = 33*RS + 16*RS
    for nm, s in (("are",4),("aim",6),("bre",8),("bim",10),("cre",12),("cim",14),("ldt",16),("ws",18)):
        A.e(f"s_load_dwordx2 s[{s}:{s+1}], s[0:1], {KA[nm]}")
    stamp_init(A, 126); stamp(A, 126)
    lane_setup(A)
    A.e("s_nop 0")
    A.e("s_lshl_b32 s22, s3, 2")
    A.e("s_add_u32 s22, s22, s20          ; d")
    A.e(f"s_mul_i32 s21, s20, {WL}")
    A.e("v_lshlrev_b32 v4, 2, v1          ; lane*4")
    A.e("s_lshl_b32 s23, s22, 8           ; d*256")
    A.e("v_add_u32 v5, s23, v4")
    A.e("s_waitcnt lgkmcnt(0)")
    for k, s in enumerate((4,6,8,10,12,14)):
        A.e(f"global_load_dword v{8+k}, v5, s[{s}:{s+1}]")
    A.e("s_lshl_b32 s23, s22, 1")
    A.e("v_mov_b32 v6, s23")
    A.e("global_load_ushort v14, v6, s[16:17]")
    A.e("v_add_u32 v6, s21, v4")
    A.e(f"v_add_u32 v7, {33*RS}, v6")
    tbl = [[rho(s, b) for b in range(32)] for s in range(4)]
    for s in range(4):
        for mt in range(2):
            dst = 64 + 2*s + mt
            A.e(f"v_add_u32 v15, {16*mt}, v2          ; b")
            if s > 0:
                half = 1 << (s-1)
                A.e(f"v_bfe_u32 v16, v15, {s}, 1")
                A.e(f"v_add3_u32 v15, v15, v16, {half-1}")
                A.e(f"v_lshrrev_b32 v15, {s}, v15")
                A.e(f"v_lshlrev_b32 v15, {s}, v15")
            A.e(f"v_mul_u32_u24 v15, {RS}, v15")
            A.e(f"v_lshl_add_u32 v15, v3, 4, v15")
            A.e(f"v_add_u32 v{dst}, s21, v15")
    for s in range(1,4):
        for b in range(32):
            half = 1 << (s-1)
            assert (((b + half - 1 + ((b >> s) & 1)) >> s) << s) == tbl[s][b], (s, b)
    A.e(f"v_mul_u32_u24 v15, {RS}, v2")
    A.e("v_lshl_add_u32 v15, v3, 4, v15")
    A.e(f"v_add_u32 v15, {33*RS}, v15")
    A.e("v_add_u32 v72, s21, v15")
    ACC = 80
    for i in range(40): A.e(f"v_mov_b32 v{ACC+i}, 0")
    stamp(A, 126)
    A.e("s_waitcnt vmcnt(0)")
    stamp(A, 126)
    A.e("v_lshlrev_b32 v14, 16, v14")
    A.e(f"v_mul_f32 v14, {hex(f2u(LOG2E))}, v14")
    A.e("v_exp_f32 v14, v14")
    A.e("s_nop 0")
    A.e("v_cvt_pk_bf16_f32 v14, v14, v14")
    A.e("v_lshlrev_b32 v14, 16, v14")
    for hf in range(2):
        for k in range(6):
            if hf == 0: A.e(f"v_lshlrev_b32 v{16+k}, 16, v{8+k}")
            else: A.e(f"v_and_b32 v{16+k}, 0xffff0000, v{8+k}")
        A.e("v_mul_f32 v16, v14, v16          ; zr")
        A.e("v_mul_f32 v17, v14, v17          ; zi")
        A.e("v_mul_f32 v18, v14, v18          ; dBr")
        A.e("v_mul_f32 v19, v14, v19          ; dBi")
        A.e(f"v_mul_f32 v16, {hex(f2u(LOG2E))}, v16      ; zr*log2e")
        A.e(f"v_mul_f32 v17, {hex(f2u(1/(2*math.pi)))}, v17   ; zi/2pi")
        A.e("v_mul_f32 v22, v20, v18")
        A.e("v_mul_f32 v23, v20, v19")
        A.e("v_fma_f32 v22, -v21, v19, v22")
        A.e("v_fma_f32 v23, v21, v18, v23")
        for (m, dst) in ((1, 24), (32, 26)):
            A.e(f"v_mul_f32 v28, {float(m)}, v16" if m == 1 else f"v_mul_f32 v28, {hex(f2u(32.0))}, v16")
            A.e(f"v_mul_f32 v29, {float(m)}, v17" if m == 1 else f"v_mul_f32 v29, {hex(f2u(32.0))}, v17")
            A.e("v_exp_f32 v28, v28")
            A.e("v_fract_f32 v29, v29")
            A.e("v_cos_f32 v30, v29")
            A.e("v_sin_f32 v31, v29")
            A.e("s_nop 0")
            A.e(f"v_mul_f32 v{dst}, v28, v30")
            A.e(f"v_mul_f32 v{dst+1}, v28, v31")
        def cmul(x, e, packdst, negim, waddr, woff, last=False):
            if not last:
                A.e(f"v_pk_mul_f32 v[32:33], v[{x}:{x+1}], v[{e}:{e+1}] op_sel:[0,0] op_sel_hi:[0,1]")
            A.e(f"v_cvt_pk_bf16_f32 v{packdst}, v{x}, {'-' if negim else ''}v{x+1}")
            if not last:
                A.e(f"v_pk_fma_f32 v[{x}:{x+1}], v[{x}:{x+1}], v[{e}:{e+1}], v[32:33] op_sel:[1,1,0] op_sel_hi:[1,0,1] neg_lo:[1,0,0]")
            A.e(f"ds_write_b32 v{waddr}, v{packdst} offset:{woff}")
        for j in range(33):
            cmul(22, 24, 34 + (j & 1), True, 6, j*RS, last=(j == 32))
        stamp(A, 126)
        A.e("v_mov_b32 v36, 1.0"); A.e("v_mov_b32 v37, 0")
        for nt in range(4):
            for c in range(16):
                cmul(36, 26, 34 + (c & 1), False, 7, c*RS, last=(nt == 3 and c == 15))
            variants = [(0,0),(0,1),(1,0),(1,1)] if nt == 0 else [((2 if nt == 1 else 3), 0), ((2 if nt == 1 else 3), 1)]
            tiles = [0,1,2,3] if nt == 0 else [2+2*nt, 3+2*nt]
            for ks in range(4):
                A.e(f"ds_read_b128 v[40:43], v72 offset:{64*ks}")
                for vi, (s, mt) in enumerate(variants):
                    A.e(f"ds_read_b128 {vr(44+4*vi,4)}, v{64+2*s+mt} offset:{64*ks}")
                for vi, (s, mt) in enumerate(variants):
                    A.e(f"s_waitcnt lgkmcnt({len(variants)-1-vi})")
                    acc = ACC + 4*tiles[vi]
                    A.e(f"v_mfma_f32_16x16x32_bf16 {vr(acc,4)}, {vr(44+4*vi,4)}, v[40:43], {vr(acc,4)}")
    A.e("s_nop 7")
    stamp(A, 126)
    srd(A, 24, 18, 640*KR_ROW, add=WS_KR)
    A.e(f"s_mul_i32 s23, s22, {KR_ROW}")
    A.e("v_cmp_gt_u32 vcc, 8, v2")
    A.e("s_nop 1")
    for i in range(8):
        A.e(f"v_cndmask_b32 v{ACC+i}, v{ACC+8+i}, v{ACC+i}, vcc")
    A.e("v_lshlrev_b32 v15, 5, v2")
    A.e("v_lshl_add_u32 v15, v3, 2, v15    ; 32c + 4g")
    A.e("v_sub_u32 v15, 2044, v15")
    A.e("v_lshlrev_b32 v15, 1, v15")
    for nt in range(4):
        for mt in range(2):
            tile = mt if nt == 0 else 2+2*nt+mt
            acc = ACC + 4*tile
            b = 44 + 2*((nt*2+mt) % 8)
            A.e(f"v_cvt_pk_bf16_f32 v{b}, v{acc+3}, v{acc+2}")
            A.e(f"v_cvt_pk_bf16_f32 v{b+1}, v{acc+1}, v{acc}")
            A.e(f"v_subrev_u32 v16, {(512*nt+16*mt)*2}, v15")
            A.e(f"buffer_store_dwordx2 {vr(b,2)}, v16, s[24:27], s23 offen")
    A.e("v_mov_b32 v60, 0"); A.e("v_mov_b32 v61, 0"); A.e("v_mov_b32 v62, 0"); A.e("v_mov_b32 v63, 0")
    A.e("v_lshlrev_b32 v16, 4, v1")
    A.e("v_add_u32 v16, 4096, v16")
    A.e(f"v_mov_b32 v17, {OOB}")
    A.e("v_cmp_gt_u32 vcc, 32, v1")
    A.e("s_nop 1")
    A.e(f"v_cndmask_b32 v16, v17, v16, vcc")
    A.e("buffer_store_dwordx4 v[60:63], v16, s[24:27], s23 offen")
    if Cfg.STAMP:
        A.e("s_waitcnt vmcnt(0)")
        stamp(A, 126)
        stamp_out(A, 18, 4, STAMP_BASE + 0x100000, 126, 125)
    A.e("s_endpgm")

def conv_role(A, pfx):
    WL = 21760
    A.e(f"s_load_dwordx2 s[4:5], s[0:1], {KA['ws']}")
    stamp_init(A, 126); stamp(A, 126)
    lane_setup(A)
    A.e("s_nop 0")
    A.e("s_lshl_b32 s22, s3, 2")
    A.e("s_add_u32 s22, s22, s20          ; d")
    A.e(f"s_mul_i32 s21, s20, {WL}")
    A.e("v_lshlrev_b32 v4, 4, v1          ; lane*16")
    A.e("s_waitcnt lgkmcnt(0)")
    A.e(f"s_mul_i32 s23, s22, {UT_ROW}")
    A.e(f"s_add_u32 s23, s23, {WS_UT}")
    srd(A, 8, 4, UT_ROW, add="s23")
    A.e(f"s_mul_i32 s23, s22, {KR_ROW}")
    A.e(f"s_add_u32 s23, s23, {WS_KR}")
    srd(A, 12, 4, KR_ROW, add="s23")
    A.e(f"s_mul_i32 s23, s22, 4096")
    A.e(f"s_add_u32 s23, s23, {WS_YT}")
    srd(A, 16, 4, 4096, add="s23")
    A.e(f"s_add_u32 m0, s21, 16640")
    A.e("s_nop 0")
    for i in range(4):
        A.e(f"buffer_load_dwordx4 v4, s[12:15], 0 offen offset:{1024*i} lds")
    A.e(f"s_add_u32 m0, s21, {16640+4096}")
    A.e("s_movk_i32 s24, 4096")
    A.e("buffer_load_dwordx4 v4, s[12:15], s24 offen lds")
    for ps in range(5):
        b = 16 + 12*(ps % 4) if ps < 4 else 64
        A.e(f"buffer_load_dwordx4 {vr(b,4)}, v4, s[8:11], 0 offen offset:{1024*ps}" if ps < 4 else
            f"buffer_load_dwordx4 {vr(b,4)}, v4, s[8:11], s24 offen")
        A.e(f"buffer_load_dwordx4 {vr(b+4,4)}, v4, s[8:11], 0 offen offset:{1024*ps+4}" if ps < 4 else
            f"buffer_load_dwordx4 {vr(b+4,4)}, v4, s[8:11], s24 offen offset:4")
        A.e(f"buffer_load_dword v{b+8}, v4, s[8:11], 0 offen offset:{1024*ps+20}" if ps < 4 else
            f"buffer_load_dword v{b+8}, v4, s[8:11], s24 offen offset:20")
    stamp(A, 126)
    A.e("v_add_u32 v5, s21, v4")
    for ps in range(5):
        b = 16 + 12*(ps % 4) if ps < 4 else 64
        A.e(f"s_waitcnt vmcnt({3*(4-ps)})")
        if ps == 4:
            A.e("v_cmp_gt_u32 vcc, 4, v1")
            A.e("s_and_saveexec_b64 s[26:27], vcc")
        D = lambda i: (b+i if i < 4 else (b+4+3 if i == 4 else b+8))
        for i in range(4): A.e(f"v_alignbit_b32 v{80+i}, v{D(i+1)}, v{D(i)}, 16")
        for i in range(4): A.e(f"v_alignbit_b32 v{84+i}, v{D(i+2)}, v{D(i+1)}, 16")
        A.e(f"ds_write_b128 v5, {vr(b,4)} offset:{1024*ps}")
        A.e(f"ds_write_b128 v5, v[80:83] offset:{4160+1024*ps}")
        A.e(f"ds_write_b128 v5, {vr(b+4,4)} offset:{2*4160+1024*ps}")
        A.e(f"ds_write_b128 v5, v[84:87] offset:{3*4160+1024*ps}")
        if ps == 4:
            A.e("s_mov_b64 exec, s[26:27]")
    A.e("v_add_u32 v6, 1, v2")
    A.e("v_and_b32 v6, 3, v6              ; cp")
    A.e("v_sub_u32 v7, v2, v6")
    A.e("v_add_u32 v7, 9, v7")
    A.e("v_and_b32 v8, 1, v3")
    A.e("v_lshlrev_b32 v8, 3, v8")
    A.e("v_sub_u32 v7, v7, v8")
    A.e("v_lshrrev_b32 v9, 1, v3")
    A.e("v_lshl_add_u32 v7, v9, 4, v7")
    A.e("v_lshlrev_b32 v7, 1, v7")
    A.e("s_movk_i32 s24, 4160")
    A.e("v_mad_u32_u24 v7, v6, s24, v7")
    A.e("v_add_u32 v7, s21, v7            ; vU")
    A.e("v_lshlrev_b32 v10, 4, v2")
    A.e("v_sub_u32 v10, 2040, v10")
    A.e("v_lshl_add_u32 v10, v9, 4, v10")
    A.e("v_sub_u32 v10, v10, v8")
    A.e("v_lshlrev_b32 v10, 1, v10")
    A.e(f"v_add_u32 v10, {16640-3584}, v10")
    A.e("v_add_u32 v10, s21, v10          ; vK")
    ACC = 16; AB = 48
    for i in range(32): A.e(f"v_mov_b32 v{ACC+i}, 0")
    A.e("s_waitcnt vmcnt(0) lgkmcnt(0)")
    stamp(A, 126)
    def rdB(D, buf):
        for i in range(8):
            A.e(f"ds_read_b128 {ar(32*buf+4*i,4)}, v10 offset:{512*(7-D)+64*i}")
    for c0 in (0, 2, 4, 6):
        for cc in range(2):
            for i in range(8):
                off = 512*(c0+cc) + 64*i
                r = AB + 32*cc + 4*i
                A.e(f"ds_read_b64 {vr(r,2)}, v7 offset:{off}")
                A.e(f"ds_read_b64 {vr(r+2,2)}, v7 offset:{off+8}")
            A.e("s_waitcnt lgkmcnt(0)")
        nD = 8 - c0
        rdB(0, 0)
        for D in range(nD):
            buf = D & 1
            if D+1 < nD:
                rdB(D+1, buf ^ 1)
                A.e("s_waitcnt lgkmcnt(8)")
            else:
                A.e("s_waitcnt lgkmcnt(0)")
            for i in range(8):
                for cc in range(2):
                    B = c0 + cc + D
                    if B > 7: continue
                    acc = ACC + 4*B
                    A.e(f"v_mfma_f32_16x16x32_bf16 {vr(acc,4)}, {vr(AB+32*cc+4*i,4)}, {ar(32*buf+4*i,4)}, {vr(acc,4)}")
    A.e("s_nop 7")
    stamp(A, 126)
    A.e("v_lshlrev_b32 v8, 5, v2")
    A.e("v_lshl_add_u32 v8, v3, 3, v8")
    for B in range(8):
        acc = ACC + 4*B
        A.e(f"v_cvt_pk_bf16_f32 v{48+2*B}, v{acc}, v{acc+1}")
        A.e(f"v_cvt_pk_bf16_f32 v{49+2*B}, v{acc+2}, v{acc+3}")
        A.e(f"buffer_store_dwordx2 {vr(48+2*B,2)}, v8, s[16:19], 0 offen offset:{512*B}")
    if Cfg.STAMP:
        A.e("s_waitcnt vmcnt(0)")
        stamp(A, 126)
        stamp_out(A, 4, 4, STAMP_BASE + 0x300000, 126, 125)
    A.e("s_endpgm")

def yt_role(A, pfx):
    A.e(f"s_load_dwordx2 s[4:5], s[0:1], {KA['ws']}")
    A.e(f"s_load_dwordx2 s[6:7], s[0:1], {KA['u']}")
    A.e(f"s_load_dwordx2 s[30:31], s[0:1], {KA['out']}")
    A.e(f"s_load_dwordx2 s[32:33], s[0:1], {KA['dsk']}")
    lane_setup(A)
    tr_tile_addrs(A)
    A.e("v_lshlrev_b32 v7, 12, v8")
    A.e("v_lshl_add_u32 v7, v9, 4, v7")
    A.e("s_movk_i32 s27, 1280")
    A.e("v_mul_u32_u24 v11, s27, v2")
    A.e("v_lshlrev_b32 v12, 1, v11")
    A.e("v_lshl_add_u32 v11, v3, 4, v11")
    A.e("v_lshl_add_u32 v12, v3, 4, v12")
    A.e("v_lshlrev_b32 v13, 4, v3")
    A.e("s_waitcnt lgkmcnt(0)")
    srd(A, 8, 4, 640*4096, add=WS_YT)
    srd(A, 12, 6, 2048*1280)
    srd(A, 16, 30, 2048*2560)
    srd(A, 36, 32, 1280)
    for k in range(2):
        A.e("s_lshl_b32 s22, s3, 3")
        A.e("s_lshl_b32 s23, s20, 1")
        A.e("s_add_u32 s22, s22, s23")
        if k: A.e("s_add_u32 s22, s22, 1")
        A.e("s_and_b32 s23, s22, 31           ; tt")
        A.e("s_lshr_b32 s24, s22, 5           ; cc")
        A.e("s_lshl_b32 s25, s24, 18          ; cc*64*4096")
        A.e("s_lshl_b32 s26, s23, 7")
        A.e("s_add_u32 s25, s25, s26")
        for i in range(8):
            A.e(f"s_add_u32 s26, s25, {i*8*4096}")
            A.e(f"buffer_load_dwordx4 {vr(16+4*i,4)}, v7, s[8:11], s26 offen")
        A.e("s_lshl_b32 s26, s24, 7")
        A.e("buffer_load_dwordx4 v[48:51], v13, s[36:39], s26 offen")
        A.e("buffer_load_dwordx4 v[52:55], v13, s[36:39], s26 offen offset:64")
        A.e("s_mul_i32 s28, s23, 81920")
        A.e("s_lshl_b32 s29, s24, 7")
        A.e("s_add_u32 s28, s28, s29")
        for tb in range(4):
            for chh in range(2):
                n = tb*2+chh
                A.e(f"s_add_u32 s26, s28, {tb*16*1280}")
                A.e(f"buffer_load_dwordx4 {vr(64+4*n,4)}, v11, s[12:15], s26 offen offset:{64*chh}")
        for i in range(8):
            A.e(f"s_waitcnt vmcnt({17-i})")
            A.e(f"ds_write_b128 v5, {vr(16+4*i,4)} offset:{i*8*144}")
        for tb in range(4):
            for chh in range(2):
                n = tb*2+chh
                b = 16+4*n
                A.e(f"ds_read_b64_tr_b16 {vr(b,2)}, v6 offset:{(32*chh)*144 + 32*tb}")
                A.e(f"ds_read_b64_tr_b16 {vr(b+2,2)}, v6 offset:{(32*chh+4)*144 + 32*tb}")
        A.e("s_waitcnt vmcnt(8)")
        for chh in range(2):
            for dw in range(4):
                A.e(f"v_lshlrev_b32 v{96+8*chh+2*dw}, 16, v{48+4*chh+dw}")
                A.e(f"v_and_b32 v{97+8*chh+2*dw}, 0xffff0000, v{48+4*chh+dw}")
        A.e("s_mul_i32 s28, s23, 163840")
        A.e("s_lshl_b32 s29, s24, 7")
        A.e("s_add_u32 s28, s28, s29")
        for tb in range(4):
            for chh in range(2):
                n = tb*2+chh
                A.e(f"s_waitcnt vmcnt({7-n}) lgkmcnt({14-2*n})" if k == 0 or True else "")
                for dw in range(4):
                    y = 16+4*n+dw; u = 64+4*n+dw
                    A.e(f"v_lshlrev_b32 v56, 16, v{u}")
                    A.e(f"v_and_b32 v57, 0xffff0000, v{u}")
                    A.e(f"v_mul_f32 v56, v56, v{96+8*chh+2*dw}")
                    A.e(f"v_mul_f32 v57, v57, v{97+8*chh+2*dw}")
                    A.e(f"v_cvt_pk_bf16_f32 v56, v56, v57")
                    A.e(f"v_lshlrev_b32 v58, 16, v{y}")
                    A.e(f"v_and_b32 v59, 0xffff0000, v{y}")
                    A.e(f"v_and_b32 v57, 0xffff0000, v56")
                    A.e(f"v_lshlrev_b32 v56, 16, v56")
                    A.e(f"v_add_f32 v57, v57, v59")
                    A.e(f"v_add_f32 v56, v56, v58")
                    A.e(f"v_cvt_pk_bf16_f32 v{y}, v56, v57")
        for tb in range(4):
            for chh in range(2):
                n = tb*2+chh
                A.e(f"s_add_u32 s26, s28, {tb*16*2560}")
                A.e(f"buffer_store_dwordx4 {vr(16+4*n,4)}, v12, s[16:19], s26 offen offset:{64*chh}")
        A.e("s_waitcnt vmcnt(0)")
    A.e("s_endpgm")
```

```python
import sys
from common import *
import gemm, attn, ssm, asmcheck

def dispatch(A, name, roles):
    total = sum(c for c, _ in roles)
    base = 0
    for c, lab in roles:
        A.e(f"s_sub_u32 s3, s2, {base}")
        A.e(f"s_cmp_lt_u32 s2, {base+c}")
        A.e(f"s_cbranch_scc1 {lab}")
        base += c
    A.e("s_endpgm")
    return total

def build(path, opts=None):
    opts = opts or {}
    A = Asm()
    K1 = "proj_kernel"; K2 = "attn_kernel"; K2b = "conv_kernel"; K3 = "outp_kernel"
    body = Asm()
    descs = []
    launches = []
    kernel_begin(body, K1)
    n = dispatch(body, K1, [(32, "k1_kv"), (256, "k1_q"), (160, "k1_kgen"), (40, "k1_ut")])
    body.label("k1_kv"); gemm.gemm_kv(body, "k1kv")
    body.label("k1_q"); gemm.gemm_big(body, "q", "k1q")
    body.label("k1_kgen"); ssm.kgen_role(body, "k1g")
    body.label("k1_ut"); ssm.ut_role(body, "k1u")
    descs.append(kernel_desc(K1, 256, 128)); launches.append((K1, n, 256, 53504))
    kernel_begin(body, K2)
    n = dispatch(body, K2, [(256, "k2_at")])
    body.label("k2_at"); attn.attn_role(body, "k2a")
    descs.append(kernel_desc(K2, 240, 128)); launches.append((K2, n, 512, 49152))
    kernel_begin(body, K2b)
    n = dispatch(body, K2b, [(160, "k2_cv")])
    body.label("k2_cv"); ssm.conv_role(body, "k2c")
    descs.append(kernel_desc(K2b, 192, 128)); launches.append((K2b, n, 256, 87040))
    kernel_begin(body, K3)
    n = dispatch(body, K3, [(256, "k3_o"), (40, "k3_yt")])
    body.label("k3_o"); gemm.gemm_big(body, "o", "k3o")
    body.label("k3_yt"); ssm.yt_role(body, "k3y")
    descs.append(kernel_desc(K3, 256, 128)); launches.append((K3, n, 256, 53504))
    hdr = open("cdna_kernels/" + NAME + ".s.ref").read().split("; Override launch")[0]
    out = hdr
    for (k, g, b, l) in launches:
        out += f"; @launch kernel={k} grid=({g},1,1) block=({b},1,1) lds={l}\n"
    out += '.amdgcn_target "amdgcn-amd-amdhsa--gfx950"\n'
    out += body.text()
    out += "".join(descs)
    open(path, "w").write(out)
    errs = asmcheck.check_text(body.text(), [K1, K2, K2b, K3])
    for e in errs: print(e)
    print("wrote", path, len(out), "bytes;", len(errs), "checker messages")
if __name__ == "__main__":
    if "stamp" in sys.argv: Cfg.STAMP = True
    build(sys.argv[1] if len(sys.argv) > 1 else "v1.s")
```

```python
from common import *
NT = 16
PREF_K, PREF_V = 6, 5
S = [16, 32]; P = [48, 56]
QA = [64, 72]; QB = [68, 70]
O = [80, 96]
VW = 7
def KAr(t): return ar(4*t, 4)
def KBr(t): return ar(64+2*t, 2)
def VAr(t, u): return ar(96+8*t+4*u, 4)
PART = 3072

def step(A, tau, t, first=False, last=False, fillers=None, pre=None):
    cur = S[t & 1]; nxt = S[(t+1) & 1]
    Pc = P[t & 1]; Pp = P[(t+1) & 1]
    par = tau & 1
    if t < NT-1: nt, npar = t+1, par
    else: nt, npar = 0, par ^ 1
    do_next = not (last and t == NT-1)
    M1 = f"v_mfma_f32_32x32x16_bf16 {vr(nxt,16)}, {KAr(nt)}, {vr(QA[npar],4)}, 0" if do_next else None
    M2 = f"v_mfma_f32_32x32x8_bf16 {vr(nxt,16)}, {KBr(nt)}, {vr(QB[npar],2)}, {vr(nxt,16)}" if do_next else None
    if t == 0:
        pt, op, c0 = NT-1, O[par ^ 1], None
    else:
        pt, op = t-1, O[par]
        c0 = "0" if t == 1 else None
    if t == 0 and first:
        PV0p = PVp = None
    else:
        PV0p = f"v_mfma_f32_32x32x16_bf16 {vr(op,16)}, {VAr(pt,0)}, {vr(Pp,4)}, {c0 or vr(op,16)}"
        PVp = f"v_mfma_f32_32x32x16_bf16 {vr(op,16)}, {VAr(pt,1)}, {vr(Pp+4,4)}, {vr(op,16)}"
    E = lambda i: f"v_exp_f32 v{cur+i}, v{cur+i}"
    C = lambda i: f"v_cvt_pk_bf16_f32 v{Pc+i}, v{cur+2*i}, v{cur+2*i+1}"
    seq = [E(0), M1, E(1), E(2), C(0), E(3), E(4), PV0p, C(1), E(5), E(6), C(2), E(7), M2, E(8), C(3), E(9), E(10), C(4), E(11),
           PVp, E(12), C(5), E(13), E(14), E(15), C(6), C(7)]
    seq = [x for x in seq if x]
    fillers = list(fillers or [])
    if fillers:
        out = []; n = len(seq); k = 0; m = len(fillers)
        for idx, x in enumerate(seq):
            out.append(x)
            want = ((idx+1) * m) // n
            while k < want:
                out.append(fillers[k]); k += 1
        out += fillers[k:]
        seq = out
    for x in (pre or []): A.e(x)
    for x in seq: A.e(x)

def final_pv(A, tau):
    par = tau & 1
    Pp = P[(NT-1) & 1]
    A.e(f"v_mfma_f32_32x32x16_bf16 {vr(O[par],16)}, {VAr(NT-1,0)}, {vr(Pp,4)}, {vr(O[par],16)}")
    A.e(f"v_mfma_f32_32x32x16_bf16 {vr(O[par],16)}, {VAr(NT-1,1)}, {vr(Pp+4,4)}, {vr(O[par],16)}")

def part_write(tau):
    par = (tau-1) & 1
    return [f"ds_write_b128 v{VW}, {vr(O[par]+4*g,4)} offset:{1024*g}" for g in range(3)]
def part_next():
    return ["s_lshr_b32 s35, s37, 1", "s_sub_u32 s35, s20, s35", "s_sub_u32 s35, s35, 1", "s_and_b32 s35, s35, 3",
            "s_mul_i32 s36, s37, 3", "s_add_u32 s35, s35, s36", f"s_mul_i32 s35, s35, {PART}", f"v_add_u32 v{VW}, s35, v4",
            "s_add_u32 s37, s37, 1", "s_and_b32 s37, s37, 7"]

def qload(par):
    return [f"buffer_load_dwordx4 {vr(QA[par],4)}, v4, s[12:15], s30 offen",
            f"buffer_load_dwordx2 {vr(QB[par],2)}, v6, s[12:15], s30 offen"]
def qnext():
    return ["s_add_u32 s33, s33, 1", "s_and_b32 s33, s33, 7", "s_lshr_b32 s35, s33, 1", f"s_mul_i32 s35, s35, {64*QT}",
            "s_and_b32 s30, s33, 1", f"s_mul_i32 s30, s30, {QT}", "s_add_u32 s30, s30, s35", "s_add_u32 s30, s30, s34"]

def attn_role(A, pfx):
    A.e(f"s_load_dwordx2 s[4:5], s[0:1], {KA['ws']}")
    stamp_init(A, 124)
    stamp(A, 124)
    A.e("v_and_b32 v1, 63, v0")
    A.e("v_lshrrev_b32 v2, 6, v0")
    A.e("v_lshlrev_b32 v4, 4, v1          ; lane*16")
    A.e("v_readfirstlane_b32 s20, v2")
    A.e("v_lshlrev_b32 v5, 3, v1          ; lane*8")
    A.e("v_add_u32 v6, 1024, v5")
    A.e(f"v_mov_b32 v3, {OOB}")
    A.e("v_cmp_gt_u32 vcc, 32, v1")
    A.e("s_and_b32 s22, s3, 31            ; rb")
    A.e("s_lshr_b32 s23, s3, 5            ; hg")
    A.e(f"v_cndmask_b32 v6, v3, v6, vcc")
    A.e(f"v_cndmask_b32 v5, v3, v5, vcc")
    A.e("v_and_b32 v2, 31, v1")
    A.e("v_cmp_gt_u32 vcc, 21, v2")
    A.e("s_nop 1")
    A.e("v_cndmask_b32 v8, v3, v4, vcc")
    A.e("s_waitcnt lgkmcnt(0)")
    srd(A, 8, 4, WS_VA + 64*2048)
    srd(A, 12, 4, 2048*QT, add=WS_Q)
    A.e("s_lshl_b32 s34, s23, 8           ; 4hg*64")
    A.e("s_lshl_b32 s21, s22, 1")
    A.e("s_add_u32 s34, s34, s21")
    A.e(f"s_mul_i32 s34, s34, {QT}")
    A.e("s_lshl_b32 s33, s20, 1")
    A.e("s_add_u32 s33, s33, 1")
    A.e("s_add_u32 s37, s33, 1")
    A.e("s_and_b32 s37, s37, 7")
    for x in qnext(): A.e(x)
    for x in qload(0): A.e(x)
    A.e("s_lshl_b32 s24, s20, 14          ; KA: T*1024")
    A.e(f"s_lshl_b32 s25, s20, 13         ; KB: T*512")
    A.e(f"s_add_u32 s25, s25, {WS_KB}")
    A.e("s_lshl_b32 s26, s20, 15          ; VA: T*2048")
    A.e(f"s_add_u32 s26, s26, {WS_VA}")
    def ldK(t): return [f"s_add_u32 s27, s24, {1024*t}", f"s_add_u32 s28, s25, {512*t}",
                        f"buffer_load_dwordx4 {KAr(t)}, v4, s[8:11], s27 offen",
                        f"buffer_load_dwordx2 {KBr(t)}, v5, s[8:11], s28 offen"]
    def ldV(t): return [f"s_add_u32 s29, s26, {2048*t}",
                        f"buffer_load_dwordx4 {VAr(t,0)}, v8, s[8:11], s29 offen",
                        f"buffer_load_dwordx4 {VAr(t,1)}, v8, s[8:11], s29 offen offset:1024"]
    PK, PVn = PREF_K, PREF_V
    for t in range(PK):
        for x in ldK(t): A.e(x)
        if t < PVn:
            for x in ldV(t): A.e(x)
    stamp(A, 124)
    A.e(f"s_waitcnt vmcnt({2*(PK+PVn-1)})")
    stamp(A, 124)
    A.e(f"v_mfma_f32_32x32x16_bf16 {vr(S[0],16)}, {KAr(0)}, {vr(QA[0],4)}, 0")
    A.e(f"v_mfma_f32_32x32x8_bf16 {vr(S[0],16)}, {KBr(0)}, {vr(QB[0],2)}, {vr(S[0],16)}")
    A.e("s_nop 7"); A.e("s_nop 3")
    order = ["Q"]
    for t in range(PK):
        order.append(f"K{t}")
        if t < PVn: order.append(f"V{t}")
    for t in range(NT):
        fl = []
        need = []
        if t+1 < NT: need.append(f"K{t+1}")
        if t >= 1: need.append(f"V{t-1}")
        if t == NT-1: need.append("Q1")
        idx = max(order.index(x) for x in need)
        nout = 2*(len(order) - 1 - idx)
        if t == NT-1: nout = 0
        new = []
        if t+PK < NT: fl += ldK(t+PK); new.append(f"K{t+PK}")
        if t+PVn < NT: fl += ldV(t+PVn); new.append(f"V{t+PVn}")
        if t == NT-4: fl += qnext() + qload(1); new.append("Q1")
        step(A, 0, t, first=True, fillers=fl, pre=[f"s_waitcnt vmcnt({nout})"])
        order += new
    stamp(A, 124)
    def qtile(tau, last=False):
        for t in range(NT):
            fl = None; pre = None
            if t == 1: fl = part_next()
            if t == 2 and not last: fl = qnext() + qload((tau+1) & 1)
            if t == 2 and last: fl = None
            if t == 3: fl = part_write(tau) if tau <= 6 else None
            if t == NT-1 and not last: pre = ["s_waitcnt vmcnt(0)"]
            step(A, tau, t, last=last, fillers=fl, pre=pre)
    A.e("s_mov_b32 s31, 3")
    A.label(f"{pfx}_loop")
    for tau in (1, 2):
        qtile(tau)
        stamp(A, 124)
    A.e("s_sub_u32 s31, s31, 1")
    A.e("s_cmp_lg_u32 s31, 0")
    A.e(f"s_cbranch_scc1 {pfx}_loop")
    for t in range(NT):
        step(A, 7, t, last=True)
    A.e("s_nop 1")
    final_pv(A, 7)
    stamp(A, 124)
    A.e("s_waitcnt lgkmcnt(0)")
    A.e("s_barrier")
    A.e(f"s_mul_i32 s21, s20, {6*PART}")
    A.e("v_add_u32 v9, s21, v4")
    RB = 128
    def rdpart(jj):
        for sl in range(3):
            for g in range(3):
                A.e(f"ds_read_b128 {vr(RB + (jj*3+sl)*12 + 4*g, 4)}, v9 offset:{(jj*3+sl)*PART + 1024*g}")
    rdpart(0)
    A.e("v_and_b32 v3, 31, v1")
    A.e("s_lshl_b32 s24, s22, 6           ; 64 rb")
    A.e("v_add_u32 v10, s24, v3")
    A.e("s_movk_i32 s26, 1280")
    A.e("v_mul_u32_u24 v10, s26, v10")
    A.e("s_lshl_b32 s24, s23, 2")
    A.e("s_add_u32 s24, s24, s20")
    A.e("s_mul_i32 s24, s24, 40")
    A.e("v_lshrrev_b32 v11, 5, v1         ; h")
    A.e("v_lshl_add_u32 v10, v11, 3, v10")
    A.e("v_add_u32 v10, s24, v10")
    A.e(f"v_mov_b32 v12, {OOB}")
    A.e("v_cmp_eq_u32 vcc, 0, v11")
    srd(A, 16, 4, 2048*1280, add=WS_O)
    A.e(f"v_cndmask_b32 v11, v12, v10, vcc")
    A.e("s_mov_b32 s27, 40960             ; 32 rows")
    for jj in range(2):
        Of = O[jj]
        A.e("s_waitcnt lgkmcnt(0)")
        if jj == 0: rdpart(1)
        for sl in range(3):
            for r in range(12): A.e(f"v_add_f32 v{Of+r}, v{Of+r}, v{RB+(jj*3+sl)*12+r}")
        A.e(f"v_mov_b32 v28, v{Of+8}")
        A.e(f"v_mov_b32 v29, v{Of+8}")
        A.e("s_nop 1")
        A.e("v_permlane32_swap_b32 v28, v29")
        A.e("s_nop 1")
        A.e("v_rcp_f32 v29, v29")
        A.e("s_nop 0")
        for r in range(12): A.e(f"v_mul_f32 v{16+r}, v{Of+r}, v29")
        for g in range(3):
            A.e(f"v_cvt_pk_bf16_f32 v{32+6*jj+2*g}, v{16+4*g}, v{17+4*g}")
            A.e(f"v_cvt_pk_bf16_f32 v{33+6*jj+2*g}, v{18+4*g}, v{19+4*g}")
        so = "0" if jj == 0 else "s27"
        A.e(f"buffer_store_dwordx2 {vr(32+6*jj,2)}, v10, s[16:19], {so} offen")
        A.e(f"buffer_store_dwordx2 {vr(34+6*jj,2)}, v10, s[16:19], {so} offen offset:16")
        A.e(f"buffer_store_dwordx2 {vr(36+6*jj,2)}, v11, s[16:19], {so} offen offset:32")
    stamp(A, 124)
    stamp_out(A, 4, 4, STAMP_BASE, 124, 125)
    A.e("s_endpgm")
LDS_ATTN = 24*PART
```

```python
from common import *
from ssm import lane_setup
CS = 4160
WL = 2*CS + 5120
LDS_CONV = 4*WL
def conv_role(A, pfx, stamp_base=None):
    A.e(f"s_load_dwordx2 s[4:5], s[0:1], {KA['ws']}")
    A.e(f"s_load_dwordx2 s[30:31], s[0:1], {KA['out']}")
    A.e(f"s_load_dwordx2 s[32:33], s[0:1], {KA['dsk']}")
    stamp_init(A, 126); stamp(A, 126)
    lane_setup(A)
    A.e("s_and_b32 s35, s3, 7")
    A.e("s_mul_i32 s35, s35, 20")
    A.e("s_lshr_b32 s36, s3, 3")
    A.e("s_add_u32 s35, s35, s36          ; grp")
    A.e("s_lshl_b32 s22, s35, 2")
    A.e("s_add_u32 s22, s22, s20          ; d")
    A.e(f"s_mul_i32 s21, s20, {WL}")
    A.e("v_lshlrev_b32 v4, 4, v1          ; lane*16")
    A.e("s_waitcnt lgkmcnt(0)")
    A.e(f"s_mul_i32 s23, s22, {UT_ROW}")
    A.e(f"s_add_u32 s23, s23, {WS_UT}")
    srd(A, 8, 4, UT_ROW, add="s23")
    A.e(f"s_mul_i32 s23, s22, {KR_ROW}")
    A.e(f"s_add_u32 s23, s23, {WS_KR}")
    srd(A, 12, 4, KR_ROW, add="s23")
    srd(A, 16, 30, 2048*2560)
    A.e("s_lshl_b32 s23, s35, 3")
    A.e("s_load_dwordx2 s[38:39], s[32:33], s23")
    A.e("s_movk_i32 s24, 4096")
    for ps in range(5):
        b = 16 + 6*ps
        so = "0" if ps < 4 else "s24"
        o = 1024*ps if ps < 4 else 0
        A.e(f"buffer_load_dwordx4 {vr(b,4)}, v4, s[8:11], {so} offen offset:{o}")
        A.e(f"buffer_load_dword v{b+4}, v4, s[8:11], {so} offen offset:{o+16}")
    A.e(f"s_add_u32 m0, s21, {2*CS}")
    A.e("s_nop 0")
    for i in range(4):
        A.e(f"buffer_load_dwordx4 v4, s[12:15], 0 offen offset:{1024*i} lds")
    A.e(f"s_add_u32 m0, s21, {2*CS+4096}")
    A.e("s_nop 0")
    A.e("buffer_load_dwordx4 v4, s[12:15], s24 offen lds")
    A.e("v_add_u32 v5, s21, v4")
    stamp(A, 126)
    for ps in range(5):
        b = 16 + 6*ps
        A.e(f"s_waitcnt vmcnt({5 + 2*(4-ps)})")
        if ps == 4:
            A.e("v_cmp_gt_u32 vcc, 4, v1")
            A.e("s_and_saveexec_b64 s[26:27], vcc")
        for i in range(4): A.e(f"v_alignbit_b32 v{48+i}, v{b+i+1}, v{b+i}, 16")
        A.e(f"ds_write_b128 v5, {vr(b,4)} offset:{1024*ps}")
        A.e(f"ds_write_b128 v5, v[48:51] offset:{CS+1024*ps}")
        if ps == 4:
            A.e("s_mov_b64 exec, s[26:27]")
    A.e("v_add_u32 v6, 1, v2")
    A.e("v_and_b32 v6, 1, v6              ; cp")
    A.e("v_sub_u32 v7, v2, v6")
    A.e("v_add_u32 v7, 9, v7")
    A.e("v_and_b32 v8, 1, v3")
    A.e("v_lshlrev_b32 v8, 3, v8")
    A.e("v_sub_u32 v7, v7, v8")
    A.e("v_lshrrev_b32 v9, 1, v3")
    A.e("v_lshl_add_u32 v7, v9, 4, v7")
    A.e("v_lshlrev_b32 v7, 1, v7")
    A.e(f"s_movk_i32 s24, {CS}")
    A.e("v_mad_u32_u24 v7, v6, s24, v7")
    A.e("v_add_u32 v7, s21, v7            ; vU")
    A.e("v_lshlrev_b32 v10, 4, v2")
    A.e("v_sub_u32 v10, 2040, v10")
    A.e("v_lshl_add_u32 v10, v9, 4, v10")
    A.e("v_sub_u32 v10, v10, v8")
    A.e("v_lshlrev_b32 v10, 1, v10")
    A.e(f"v_add_u32 v10, {2*CS-3584}, v10")
    A.e("v_add_u32 v10, s21, v10          ; vK")
    ACC = 16; AB = 48
    for i in range(32): A.e(f"v_mov_b32 v{ACC+i}, 0")
    A.e("s_waitcnt vmcnt(0) lgkmcnt(0)")
    stamp(A, 126)
    def rdB(D, buf):
        for i in range(8):
            A.e(f"ds_read_b128 {ar(32*buf+4*i,4)}, v10 offset:{512*(7-D)+64*i}")
    def rdA(c, cc):
        A.e(f"v_add_u32 v11, {512*c}, v7")
        for i in range(8):
            r = AB + 32*cc + 4*i
            A.e(f"ds_read2_b32 {vr(r,2)}, v11 offset0:{16*i} offset1:{16*i+1}")
            A.e(f"ds_read2_b32 {vr(r+2,2)}, v11 offset0:{16*i+2} offset1:{16*i+3}")
            if i == 3: A.e("s_waitcnt lgkmcnt(6)")
    for c0 in (0, 2, 4, 6):
        rdA(c0, 0)
        A.e("s_waitcnt lgkmcnt(4)")
        rdA(c0+1, 1)
        nD = 8 - c0
        A.e("s_waitcnt lgkmcnt(4)")
        rdB(0, 0)
        for D in range(nD):
            buf = D & 1
            if D+1 < nD:
                A.e("s_waitcnt lgkmcnt(7)") if D == 0 else None
                rdB(D+1, buf ^ 1)
                A.e("s_waitcnt lgkmcnt(8)")
            else:
                A.e("s_waitcnt lgkmcnt(0)")
            for i in range(8):
                for cc in range(2):
                    B = c0 + cc + D
                    if B > 7: continue
                    acc = ACC + 4*B
                    A.e(f"v_mfma_f32_16x16x32_bf16 {vr(acc,4)}, {vr(AB+32*cc+4*i,4)}, {ar(32*buf+4*i,4)}, {vr(acc,4)}")
    A.e("s_nop 7")
    stamp(A, 126)
    A.e("v_lshlrev_b32 v8, 5, v2")
    A.e("v_lshl_add_u32 v8, v3, 3, v8")
    A.e(f"v_add_u32 v8, {2*CS}, v8")
    A.e("v_add_u32 v8, s21, v8")
    for B in range(8):
        acc = ACC + 4*B
        A.e(f"v_cvt_pk_bf16_f32 v{48+2*B}, v{acc}, v{acc+1}")
        A.e(f"v_cvt_pk_bf16_f32 v{49+2*B}, v{acc+2}, v{acc+3}")
        A.e(f"ds_write_b64 v8, {vr(48+2*B,2)} offset:{512*B}")
    A.e("s_waitcnt lgkmcnt(0)")
    A.e("s_lshl_b32 s40, s38, 16")
    A.e("s_and_b32 s41, s38, 0xffff0000")
    A.e("s_lshl_b32 s42, s39, 16")
    A.e("s_and_b32 s43, s39, 0xffff0000")
    A.e("s_barrier")
    A.e("v_lshrrev_b32 v12, 2, v2")
    A.e(f"v_mul_u32_u24 v12, {WL}, v12")
    A.e("v_and_b32 v13, 3, v2")
    A.e("v_lshlrev_b32 v13, 3, v13")
    A.e("v_lshl_add_u32 v13, v3, 5, v13     ; (16q + 4c)*2")
    A.e("v_add_u32 v12, v12, v13")
    A.e("s_lshl_b32 s23, s20, 10            ; 512w*2 bytes")
    A.e("v_add_u32 v12, s23, v12")
    A.e(f"v_add_u32 v13, {2*CS}, v12        ; y addr")
    A.e("v_add_u32 v12, 32, v12")
    A.e("s_lshl_b32 s23, s20, 9")
    A.e("v_add_u32 v14, s23, v1")
    A.e("s_movk_i32 s24, 2560")
    A.e("v_mul_u32_u24 v14, s24, v14")
    A.e("s_lshl_b32 s23, s35, 3")
    A.e("v_add_u32 v14, s23, v14")
    for k in range(8):
        A.e(f"ds_read_b64_tr_b16 {vr(16+4*k,2)}, v13 offset:{128*k}")
        A.e(f"ds_read_b64_tr_b16 {vr(18+4*k,2)}, v12 offset:{128*k}")
        if k == 3: A.e("s_waitcnt lgkmcnt(2)")
    A.e(f"s_mov_b32 s25, {64*2560}")
    A.e("s_mov_b32 s28, 0")
    for k in range(8):
        if k == 3 or k == 7: A.e("s_waitcnt lgkmcnt(0)")
        elif k == 4: A.e("s_waitcnt lgkmcnt(6)")
        elif k == 5: A.e("s_waitcnt lgkmcnt(4)")
        elif k == 6: A.e("s_waitcnt lgkmcnt(2)")
        for dw in range(2):
            y = 16+4*k+dw; u = 18+4*k+dw
            A.e(f"v_lshlrev_b32 v56, 16, v{u}")
            A.e(f"v_and_b32 v57, 0xffff0000, v{u}")
            A.e(f"v_mul_f32 v56, s{40+2*dw}, v56")
            A.e(f"v_mul_f32 v57, s{41+2*dw}, v57")
            A.e(f"v_cvt_pk_bf16_f32 v56, v56, v57")
            A.e(f"v_lshlrev_b32 v58, 16, v{y}")
            A.e(f"v_and_b32 v59, 0xffff0000, v{y}")
            A.e(f"v_and_b32 v57, 0xffff0000, v56")
            A.e(f"v_lshlrev_b32 v56, 16, v56")
            A.e(f"v_add_f32 v57, v57, v59")
            A.e(f"v_add_f32 v56, v56, v58")
            A.e(f"v_cvt_pk_bf16_f32 v{y}, v56, v57")
        A.e(f"buffer_store_dwordx2 {vr(16+4*k,2)}, v14, s[16:19], s28 offen")
        A.e("s_add_u32 s28, s28, s25")
    if Cfg.STAMP:
        A.e("s_waitcnt vmcnt(0)")
        stamp(A, 126)
        stamp_out(A, 4, 4, stamp_base, 126, 125)
    A.e("s_endpgm")
```

```python
from common import *
BUF = 18432
XB = 8192
LDS_GEMM = 4*BUF + 1024

def lane_setup(A):
    A.e("v_and_b32 v1, 63, v0")
    A.e("v_lshrrev_b32 v4, 6, v0")
    A.e("v_and_b32 v2, 15, v1")
    A.e("v_readfirstlane_b32 s20, v4")
    A.e("v_lshrrev_b32 v3, 4, v1")
    A.e(f"v_mov_b32 v19, {OOB}")

def gemm_big(A, kind, pfx, stamp_base=None):
    if kind == 'q':
        A.e(f"s_load_dwordx2 s[4:5], s[0:1], {KA['x']}")
        A.e(f"s_load_dwordx2 s[6:7], s[0:1], {KA['wq']}")
        A.e(f"s_load_dwordx2 s[24:25], s[0:1], {KA['ws']}")
    else:
        A.e(f"s_load_dwordx2 s[4:5], s[0:1], {KA['ws']}")
        A.e(f"s_load_dwordx2 s[6:7], s[0:1], {KA['wo']}")
        A.e(f"s_load_dwordx2 s[24:25], s[0:1], {KA['out']}")
    stamp_init(A, 94); stamp(A, 94)
    lane_setup(A)
    A.e("s_and_b32 s22, s3, 31")
    A.e("s_lshr_b32 s23, s3, 5")
    A.e("s_movk_i32 s27, 1280")
    A.e("v_lshrrev_b32 v12, 3, v1")
    A.e("v_and_b32 v13, 7, v1")
    A.e("v_xor_b32 v13, v13, v12")
    A.e("v_lshlrev_b32 v13, 4, v13")
    A.e("s_lshl_b32 s21, s20, 4          ; 16 w rows")
    A.e("v_add_u32 v12, s21, v12")
    A.e("v_mad_u32_u24 v4, v12, s27, v13")
    A.e("v_add_u32 v5, 10240, v4")
    A.e("s_mov_b32 s26, 6554")
    for n in range(3):
        A.e(f"s_add_u32 s21, s20, {4*n}")
        A.e("s_lshl_b32 s21, s21, 6")
        A.e("v_add_u32 v12, s21, v1          ; p")
        A.e("v_mul_u32_u24 v13, s26, v12")
        A.e("v_lshrrev_b32 v13, 16, v13      ; rho")
        A.e("v_mul_u32_u24 v14, 10, v13")
        A.e("v_sub_u32 v14, v12, v14         ; cc")
        A.e("v_lshlrev_b32 v14, 4, v14")
        A.e("v_and_b32 v15, 0x33, v13")
        A.e("v_bfe_u32 v16, v13, 2, 1")
        A.e("v_lshl_or_b32 v15, v16, 3, v15")
        A.e("v_bfe_u32 v16, v13, 3, 1")
        A.e("v_lshl_or_b32 v15, v16, 2, v15")
        A.e(f"v_mad_u32_u24 v{6+n}, v15, s27, v14")
        if n == 2:
            A.e("v_cmp_gt_u32 vcc, 64, v13")
            A.e("s_nop 1")
            A.e("v_cndmask_b32 v8, v19, v8, vcc")
    for p in range(640): assert (p*6554) >> 16 == p//10
    for p in range(640, 768): assert (p*6554) >> 16 >= 64
    A.e("s_lshl_b32 s21, s20, 4")
    A.e("v_add_u32 v12, s21, v2")
    A.e("v_lshlrev_b32 v12, 7, v12")
    A.e("v_and_b32 v13, 7, v2")
    A.e("v_xor_b32 v14, v13, v3")
    A.e("v_lshl_add_u32 v9, v14, 4, v12       ; ks=0")
    A.e("v_add_u32 v14, 4, v3")
    A.e("v_xor_b32 v14, v13, v14")
    A.e("v_lshl_add_u32 v10, v14, 4, v12      ; ks=1")
    A.e("v_lshrrev_b32 v12, 1, v3")
    A.e("v_lshlrev_b32 v12, 4, v12")
    A.e("v_and_b32 v13, 1, v3")
    A.e("v_lshl_add_u32 v12, v13, 2, v12")
    A.e("v_lshrrev_b32 v13, 2, v2")
    A.e("v_add_u32 v12, v12, v13")
    A.e("v_mul_u32_u24 v12, 160, v12")
    A.e("v_and_b32 v13, 3, v2")
    A.e("v_lshl_add_u32 v12, v13, 3, v12")
    A.e(f"v_add_u32 v11, {XB}, v12")
    A.e(f"v_add_u32 v68, {2*BUF}, v11")
    A.e(f"v_add_u32 v69, {2*BUF}, v9")
    A.e(f"v_add_u32 v70, {2*BUF}, v10")
    A.e("s_waitcnt lgkmcnt(0)")
    A.e("s_mul_i32 s21, s22, 81920     ; rb*64*1280")
    if kind == 'o':
        A.e(f"s_add_u32 s21, s21, {WS_O}")
    srd(A, 8, 4, 81920, add="s21")
    A.e("s_mul_i32 s21, s23, 160")
    srd(A, 12, 6, "0", add="s21")
    A.e("s_sub_u32 s14, 819200, s21")
    A.e("s_lshl_b32 s30, s20, 11")
    A.e("s_lshl_b32 s31, s20, 10")
    A.e(f"s_add_u32 s31, s31, {XB}")
    def dma(c):
        b = (c % 4) * BUF
        A.e(f"s_add_u32 m0, s30, {b}")
        A.e(f"s_movk_i32 s28, {128*c}")
        A.e(f"buffer_load_dwordx4 v4, s[8:11], s28 offen lds")
        A.e(f"s_add_u32 m0, s30, {b+1024}")
        A.e(f"s_mov_b32 s29, {64*1280*c}")
        A.e(f"buffer_load_dwordx4 v5, s[8:11], s28 offen lds")
        for n in range(3):
            if n < 2:
                A.e(f"s_add_u32 m0, s31, {b + 4096*n}")
            else:
                A.e(f"s_add_u32 s33, s31, {b + 8192}")
                A.e("s_cmp_lt_u32 s20, 2")
                A.e(f"s_cselect_b32 m0, s33, {4*BUF}")
            A.e("s_nop 0")
            A.e(f"buffer_load_dwordx4 v{6+n}, s[12:15], s29 offen lds")
    stamp(A, 94)
    for c in range(3): dma(c)
    ACC = 20
    for i in range(20): A.e(f"v_mov_b32 v{ACC+i}, 0")
    if kind == 'q':
        A.e("s_lshl_b32 s21, s23, 8          ; 4cg*64")
        A.e("s_lshl_b32 s26, s22, 1")
        A.e("s_add_u32 s21, s21, s26")
        A.e("s_lshr_b32 s26, s20, 1")
        A.e("s_add_u32 s21, s21, s26")
        A.e(f"s_mul_i32 s21, s21, {QT}")
        A.e(f"s_add_u32 s21, s21, {WS_Q}")
        srd(A, 16, 24, 3*64*QT + QT, add="s21")
        A.e("s_and_b32 s26, s20, 1")
        A.e("s_lshl_b32 s26, s26, 4")
        A.e("v_add_u32 v73, s26, v2          ; pos32")
        A.e("s_movk_i32 s26, 3277")
        for mt in range(5):
            A.e(f"v_lshlrev_b32 v71, 2, v3")
            A.e(f"v_add_u32 v71, {16*mt}, v71     ; c0")
            A.e("v_mul_u32_u24 v72, s26, v71")
            A.e("v_lshrrev_b32 v72, 16, v72      ; hl = c0/20")
            A.e("v_mul_u32_u24 v74, 20, v72")
            A.e("v_sub_u32 v74, v71, v74         ; dim0")
            A.e(f"v_mov_b32 v75, {64*QT}")
            A.e("v_mul_u32_u24 v75, v72, v75     ; hl*64*QT")
            A.e("v_bfe_u32 v76, v74, 2, 1")
            A.e("v_lshlrev_b32 v76, 9, v76")
            A.e("v_lshrrev_b32 v77, 3, v74")
            A.e("v_lshl_add_u32 v76, v77, 3, v76")
            A.e("v_lshl_add_u32 v76, v73, 4, v76")
            A.e("v_lshlrev_b32 v77, 3, v73")
            A.e("v_add_u32 v77, 1024, v77")
            A.e("v_cmp_eq_u32 vcc, 16, v74")
            A.e("s_nop 1")
            A.e("v_cndmask_b32 v76, v76, v77, vcc")
            A.e(f"v_add_u32 v{12+mt}, v76, v75")
        for c0 in range(0, 80, 4): assert (c0*3277) >> 16 == c0//20
    else:
        A.e("s_mul_i32 s21, s22, 163840")
        A.e("s_mul_i32 s26, s23, 160")
        A.e("s_add_u32 s21, s21, s26")
        A.e("s_add_u32 s21, s21, 1280")
        srd(A, 16, 24, "0", add="s21")
        A.e(f"s_sub_u32 s18, {2048*2560}, s21")
        A.e("s_lshl_b32 s21, s20, 4")
        A.e("s_movk_i32 s26, 2560")
        A.e(f"v_add_u32 v71, s21, v2")
        A.e("v_mul_u32_u24 v71, s26, v71")
        A.e("v_lshl_add_u32 v71, v3, 3, v71")
        for mt in range(5):
            A.e(f"v_add_u32 v{12+mt}, {32*mt}, v71")
    WF = 40
    WFB = [96, 40]
    XF = [84, 88]
    def rd(c, ks, buf):
        b = c % 4
        wa = 11 if b < 2 else 68
        xa = (9 + ks) if b < 2 else (69 + ks)
        boff = (b & 1) * BUF
        A.e(f"ds_read_b128 {vr(XF[buf],4)}, v{xa} offset:{boff}")
        for mt in range(5):
            for h in range(2):
                off = boff + (32*ks + 8*h)*160 + 32*mt
                A.e(f"ds_read_b64_tr_b16 {vr(WFB[buf]+mt*4+h*2,2)}, v{wa} offset:{off}")
    def mm(buf):
        for mt in range(5):
            acc = ACC + 4*mt
            A.e(f"v_mfma_f32_16x16x32_bf16 {vr(acc,4)}, {vr(WFB[buf]+mt*4,4)}, {vr(XF[buf],4)}, {vr(acc,4)}")
    stamp(A, 94)
    for c in range(10):
        nout = 5*min(2, 9-c)
        A.e(f"s_waitcnt vmcnt({nout})")
        A.e("s_barrier")
        if c == 0: stamp(A, 94)
        if c+3 < 10: dma(c+3)
        rd(c, 0, 0)
        rd(c, 1, 1)
        A.e("s_waitcnt lgkmcnt(11)")
        mm(0)
        A.e("s_waitcnt lgkmcnt(0)")
        mm(1)
    A.e("s_nop 7")
    stamp(A, 94)
    if kind == 'q':
        A.e(f"s_mov_b32 s26, {hex(f2u(QSCALE))}")
    for mt in range(5):
        acc = ACC + 4*mt
        if kind == 'q':
            for i in range(4): A.e(f"v_mul_f32 v{acc+i}, s26, v{acc+i}")
        A.e(f"v_cvt_pk_bf16_f32 v{40+mt*2}, v{acc}, v{acc+1}")
        A.e(f"v_cvt_pk_bf16_f32 v{41+mt*2}, v{acc+2}, v{acc+3}")
        A.e(f"buffer_store_dwordx2 {vr(40+mt*2,2)}, v{12+mt}, s[16:19], 0 offen")
    if Cfg.STAMP:
        A.e("s_waitcnt vmcnt(0)")
        stamp(A, 94)
        A.e(f"s_load_dwordx2 s[24:25], s[0:1], {KA['ws']}")
        A.e("s_waitcnt lgkmcnt(0)")
        stamp_out(A, 24, 4, stamp_base, 94, 95)
    A.e("s_endpgm")

LDS_KV = 51200 + 3*8192
def gemm_kv(A, pfx):
    XO = 51200
    A.e(f"s_load_dwordx2 s[4:5], s[0:1], {KA['x']}")
    A.e(f"s_load_dwordx2 s[6:7], s[0:1], {KA['wk']}")
    A.e(f"s_load_dwordx2 s[30:31], s[0:1], {KA['wv']}")
    A.e(f"s_load_dwordx2 s[24:25], s[0:1], {KA['ws']}")
    lane_setup(A)
    A.e("s_movk_i32 s27, 1280")
    A.e("v_lshlrev_b32 v6, 4, v1")
    for n in range(2):
        A.e("s_lshl_b32 s21, s20, 3")
        A.e(f"s_add_u32 s21, s21, {4*n}")
        A.e("v_add_u32 v12, s21, v3          ; row")
        A.e("v_and_b32 v13, 15, v12")
        A.e("v_xor_b32 v13, v13, v2")
        A.e("v_lshlrev_b32 v13, 4, v13")
        A.e(f"v_mad_u32_u24 v{4+n}, v12, s27, v13")
    A.e("s_and_b32 s26, s20, 1")
    A.e("s_lshl_b32 s21, s26, 4")
    A.e("v_add_u32 v12, s21, v2")
    A.e("v_lshlrev_b32 v12, 8, v12")
    for ks in range(4):
        A.e(f"v_add_u32 v13, {4*ks}, v3")
        A.e("v_xor_b32 v13, v13, v2")
        A.e(f"v_lshl_add_u32 v13, v13, 4, v12")
        A.e(f"v_add_u32 v{7+ks}, {XO}, v13")
    A.e("v_lshrrev_b32 v12, 2, v2")
    A.e("v_lshl_add_u32 v12, v3, 3, v12")
    A.e("v_mul_u32_u24 v12, 40, v12")
    A.e("v_and_b32 v13, 3, v2")
    A.e("v_lshl_add_u32 v11, v13, 3, v12")
    A.e("s_lshr_b32 s33, s20, 1          ; part")
    A.e("s_mul_i32 s21, s33, 25600")
    A.e("v_add_u32 v11, s21, v11")
    A.e("s_waitcnt lgkmcnt(0)")
    A.e("s_mul_i32 s21, s3, 40960")
    srd(A, 8, 4, 40960, add="s21")
    srd(A, 12, 6, 25600)
    srd(A, 36, 30, 25600)
    A.e("s_lshl_b32 s34, s20, 11")
    A.e(f"s_add_u32 s34, s34, {XO}")
    def xdma(c):
        b = (c % 3) * 8192
        A.e(f"s_add_u32 m0, s34, {b}")
        A.e(f"s_movk_i32 s28, {256*c}")
        A.e(f"buffer_load_dwordx4 v4, s[8:11], s28 offen lds")
        A.e(f"s_add_u32 m0, s34, {b+1024}")
        A.e("s_nop 0")
        A.e(f"buffer_load_dwordx4 v5, s[8:11], s28 offen lds")
    xdma(0)
    for which in range(2):
        sr_ = 12 if which == 0 else 36
        for i in range(7):
            if i < 6:
                A.e(f"s_add_u32 s28, s20, {4*i}")
                A.e("s_lshl_b32 s28, s28, 10")
                A.e(f"s_add_u32 m0, s28, {25600*which}")
                A.e("s_nop 0")
                A.e(f"buffer_load_dwordx4 v6, s[{sr_}:{sr_+3}], s28 offen lds")
            else:
                A.e("s_cmp_lg_u32 s20, 0")
                A.e(f"s_cbranch_scc1 {pfx}_wd{which}")
                A.e(f"s_movk_i32 s28, {24*1024}")
                A.e(f"s_mov_b32 m0, {24*1024 + 25600*which}")
                A.e("s_nop 0")
                A.e(f"buffer_load_dwordx4 v6, s[{sr_}:{sr_+3}], s28 offen lds")
        A.label(f"{pfx}_wd{which}")
    xdma(1); xdma(2)
    ACC = 20
    for i in range(8): A.e(f"v_mov_b32 v{ACC+i}, 0")
    srd(A, 16, 24, WS_VA + 64*2048)
    A.e("v_and_b32 v68, 1, v3             ; h")
    A.e("v_lshrrev_b32 v69, 1, v3         ; g>>1")
    A.e("s_lshl_b32 s28, s26, 4           ; 16u")
    A.e("v_add_u32 v70, s28, v2           ; key32")
    A.e("v_lshl_add_u32 v71, v68, 5, v70")
    A.e("v_lshlrev_b32 v71, 4, v71")
    A.e("v_lshl_add_u32 v71, v69, 3, v71")
    A.e("s_lshl_b32 s28, s3, 10")
    A.e(f"s_add_u32 s28, s28, {WS_KA}")
    A.e("v_add_u32 v12, s28, v71")
    A.e("v_lshl_add_u32 v71, v3, 5, v70")
    A.e("v_lshlrev_b32 v71, 3, v71")
    A.e("s_lshl_b32 s28, s3, 9")
    A.e(f"s_add_u32 s28, s28, {WS_KB}")
    A.e("v_add_u32 v71, s28, v71")
    A.e("v_cmp_gt_u32 vcc, 2, v3")
    A.e("s_nop 1")
    A.e(f"v_cndmask_b32 v13, v19, v71, vcc")
    A.e("v_lshl_add_u32 v71, v68, 5, v2")
    A.e("v_lshlrev_b32 v71, 4, v71")
    A.e("v_lshl_add_u32 v71, v69, 3, v71")
    A.e("s_lshl_b32 s28, s3, 11")
    A.e("s_lshl_b32 s29, s26, 10")
    A.e("s_add_u32 s28, s28, s29")
    A.e(f"s_add_u32 s28, s28, {WS_VA}")
    A.e("v_add_u32 v14, s28, v71")
    A.e("v_add_u32 v15, 256, v14          ; nt'=1 (d+16)")
    WF = 44; XF = 84
    A.e("s_cmp_eq_u32 s33, 0")
    A.e(f"s_cbranch_scc0 {pfx}_vpart")
    for part in range(2):
        if part == 1: A.label(f"{pfx}_vpart")
        for c in range(5):
            if c == 0: A.e("s_waitcnt vmcnt(4)")
            elif c < 3: A.e(f"s_waitcnt vmcnt(2)")
            else: A.e(f"s_waitcnt vmcnt({2 if c == 3 else 0})")
            A.e("s_barrier")
            if 1 <= c <= 2: xdma(c+2)
            b = (c % 3) * 8192
            for ks in range(4):
                A.e(f"ds_read_b128 {vr(XF+4*ks,4)}, v{7+ks} offset:{b}")
                for m in range(2):
                    for h in range(2):
                        off = (128*c + 32*ks + 4*h)*40 + 32*m
                        A.e(f"ds_read_b64_tr_b16 {vr(WF+(ks*2+m)*4+h*2,2)}, v11 offset:{off}")
                A.e("s_waitcnt lgkmcnt(0)")
                for m in range(2):
                    if part == 0:
                        A.e(f"v_mfma_f32_16x16x32_bf16 {vr(ACC+4*m,4)}, {vr(WF+(ks*2+m)*4,4)}, {vr(XF+4*ks,4)}, {vr(ACC+4*m,4)}")
                    else:
                        A.e(f"v_mfma_f32_16x16x32_bf16 {vr(ACC+4*m,4)}, {vr(XF+4*ks,4)}, {vr(WF+(ks*2+m)*4,4)}, {vr(ACC+4*m,4)}")
        A.e("s_nop 7")
        if part == 0:
            A.e("v_cvt_pk_bf16_f32 v76, v20, v21")
            A.e("v_cvt_pk_bf16_f32 v77, v22, v23")
            A.e("buffer_store_dwordx2 v[76:77], v12, s[16:19], 0 offen")
            A.e("v_cvt_pk_bf16_f32 v78, v24, v25")
            A.e("v_cvt_pk_bf16_f32 v79, v26, v27")
            A.e("v_cmp_eq_u32 vcc, 1, v3")
            A.e("v_mov_b32 v68, 0x3f803f80")
            A.e("s_nop 0")
            A.e("v_cndmask_b32 v78, v78, v68, vcc")
            A.e("v_cndmask_b32 v79, v79, 0, vcc")
            A.e("buffer_store_dwordx2 v[78:79], v13, s[16:19], 0 offen")
        else:
            A.e("v_cvt_pk_bf16_f32 v80, v20, v21")
            A.e("v_cvt_pk_bf16_f32 v81, v22, v23")
            A.e("buffer_store_dwordx2 v[80:81], v14, s[16:19], 0 offen")
            A.e("v_cvt_pk_bf16_f32 v82, v24, v25")
            A.e("v_cvt_pk_bf16_f32 v83, v26, v27")
            A.e("v_cmp_eq_u32 vcc, 4, v2")
            A.e("v_mov_b32 v68, 0x3f803f80")
            A.e("s_nop 0")
            A.e("v_cndmask_b32 v82, v82, v68, vcc")
            A.e("v_cndmask_b32 v83, v83, v68, vcc")
            A.e("v_cmp_lt_u32 vcc, 4, v2")
            A.e("s_nop 1")
            A.e("v_cndmask_b32 v82, v82, 0, vcc")
            A.e("v_cndmask_b32 v83, v83, 0, vcc")
            A.e("buffer_store_dwordx2 v[82:83], v15, s[16:19], 0 offen")
        A.e("s_endpgm")
```

```python
from common import *
from gemm2 import lane_setup, gemm_kv, LDS_KV
BUF = 20480
XB = 12288
R = 3
LDS_GEMM = R*BUF
NRB = 22

def gemm_big(A, kind, pfx, stamp_base=None):
    if kind == 'q':
        A.e(f"s_load_dwordx2 s[4:5], s[0:1], {KA['x']}")
        A.e(f"s_load_dwordx2 s[6:7], s[0:1], {KA['wq']}")
        A.e(f"s_load_dwordx2 s[24:25], s[0:1], {KA['ws']}")
    else:
        A.e(f"s_load_dwordx2 s[4:5], s[0:1], {KA['ws']}")
        A.e(f"s_load_dwordx2 s[6:7], s[0:1], {KA['wo']}")
        A.e(f"s_load_dwordx2 s[24:25], s[0:1], {KA['out']}")
    stamp_init(A, 94); stamp(A, 94)
    lane_setup(A)
    A.e("s_and_b32 s21, s3, 7")
    A.e("s_mul_i32 s21, s21, 28")
    A.e("s_lshr_b32 s22, s3, 3")
    A.e("s_add_u32 s21, s21, s22          ; lin")
    A.e("s_cmp_ge_u32 s21, 220")
    A.e(f"s_cbranch_scc1 {pfx}_exit")
    A.e("s_mul_i32 s22, s21, 6554")
    A.e("s_lshr_b32 s22, s22, 16")
    A.e("s_mul_i32 s23, s22, 10")
    A.e("s_sub_u32 s23, s21, s23          ; cg")
    A.e("s_movk_i32 s27, 1280")
    A.e("v_lshrrev_b32 v12, 3, v1")
    A.e("v_and_b32 v13, 7, v1")
    A.e("v_xor_b32 v13, v13, v12")
    A.e("v_lshlrev_b32 v13, 4, v13")
    A.e("s_mul_i32 s21, s20, 24")
    A.e("v_add_u32 v12, s21, v12")
    A.e("v_mad_u32_u24 v4, v12, s27, v13")
    A.e("v_add_u32 v5, 10240, v4")
    A.e("v_add_u32 v6, 20480, v4")
    for n in range(2):
        A.e("s_lshl_b32 s21, s20, 4")
        A.e(f"s_add_u32 s21, s21, {8*n}")
        A.e("v_lshrrev_b32 v12, 3, v1")
        A.e("v_add_u32 v13, s21, v12          ; rho")
        A.e("v_and_b32 v15, 0x33, v13")
        A.e("v_bfe_u32 v16, v13, 2, 1")
        A.e("v_lshl_or_b32 v15, v16, 3, v15")
        A.e("v_bfe_u32 v16, v13, 3, 1")
        A.e("v_lshl_or_b32 v15, v16, 2, v15   ; k")
        A.e("v_bfe_u32 v16, v13, 1, 2")
        A.e("v_lshlrev_b32 v16, 1, v16")
        A.e("v_and_b32 v14, 7, v1")
        A.e("v_xor_b32 v14, v14, v16")
        A.e("v_lshlrev_b32 v14, 4, v14")
        A.e(f"v_mad_u32_u24 v{7+n}, v15, s27, v14")
    A.e("s_lshr_b32 s26, s20, 1           ; nh")
    A.e("s_mul_i32 s21, s26, 48")
    A.e("v_add_u32 v12, s21, v2")
    A.e("v_lshlrev_b32 v12, 7, v12")
    A.e("v_and_b32 v13, 7, v2")
    A.e("v_xor_b32 v14, v13, v3")
    A.e("v_lshl_add_u32 v9, v14, 4, v12       ; ks=0")
    A.e("v_add_u32 v14, 4, v3")
    A.e("v_xor_b32 v14, v13, v14")
    A.e("v_lshl_add_u32 v10, v14, 4, v12      ; ks=1")
    A.e("v_lshrrev_b32 v12, 1, v3")
    A.e("v_lshlrev_b32 v12, 4, v12")
    A.e("v_and_b32 v13, 1, v3")
    A.e("v_lshl_add_u32 v12, v13, 2, v12")
    A.e("v_lshrrev_b32 v14, 2, v2             ; r")
    A.e("v_add_u32 v12, v12, v14")
    A.e("v_lshlrev_b32 v12, 7, v12")
    A.e("v_lshrrev_b32 v14, 1, v14")
    A.e("v_lshl_add_u32 v13, v13, 1, v14      ; sw")
    A.e("v_and_b32 v14, 3, v2")
    A.e("v_lshl_add_u32 v12, v14, 3, v12")
    A.e(f"v_add_u32 v12, {XB}, v12")
    A.e("s_and_b32 s33, s20, 1            ; mh")
    A.e("s_lshl_b32 s21, s33, 1")
    for m in range(2):
        A.e(f"s_add_u32 s28, s21, {m}")
        A.e("v_xor_b32 v14, s28, v13")
        A.e(f"v_lshl_add_u32 v{11 if m == 0 else 18}, v14, 5, v12")
    A.e("s_waitcnt lgkmcnt(0)")
    A.e("s_mul_i32 s21, s22, 122880     ; rb*96*1280")
    A.e(f"s_sub_u32 s29, {2048*1280}, s21")
    A.e("s_min_u32 s29, s29, 122880")
    if kind == 'o':
        A.e(f"s_add_u32 s21, s21, {WS_O}")
    srd(A, 8, 4, "s29", add="s21")
    A.e("s_lshl_b32 s21, s23, 7")
    srd(A, 12, 6, "0", add="s21")
    A.e("s_sub_u32 s14, 819200, s21")
    A.e("s_mul_i32 s30, s20, 3072")
    A.e("s_lshl_b32 s31, s20, 11")
    A.e(f"s_add_u32 s31, s31, {XB}")
    def dma(c):
        b = (c % R) * BUF
        A.e(f"s_movk_i32 s28, {128*c}")
        for n in range(3):
            A.e(f"s_add_u32 m0, s30, {b+1024*n}")
            A.e(f"s_mov_b32 s29, {64*1280*c}" if n == 0 else "s_nop 0")
            A.e(f"buffer_load_dwordx4 v{4+n}, s[8:11], s28 offen lds")
        for n in range(2):
            A.e(f"s_add_u32 m0, s31, {b + 1024*n}")
            A.e("s_nop 0")
            A.e(f"buffer_load_dwordx4 v{7+n}, s[12:15], s29 offen lds")
    stamp(A, 94)
    for c in range(R-1): dma(c)
    ACC = 20
    for i in range(24): A.e(f"v_mov_b32 v{ACC+i}, 0")
    EA = 64
    if kind == 'q':
        srd(A, 16, 24, 2048*QT, add=WS_Q)
        A.e("s_movk_i32 s26, 3277")
        A.e(f"s_movk_i32 s35, {QT}")
        for m in range(2):
            A.e("s_lshl_b32 s21, s23, 6")
            A.e("s_lshl_b32 s28, s33, 5")
            A.e("s_add_u32 s21, s21, s28")
            A.e(f"s_add_u32 s21, s21, {16*m}")
            A.e(f"v_lshlrev_b32 v71, 2, v3")
            A.e(f"v_add_u32 v71, s21, v71         ; c0")
            A.e("v_mul_u32_u24 v72, s26, v71")
            A.e("v_lshrrev_b32 v72, 16, v72      ; head = c0/20")
            A.e("v_mul_u32_u24 v74, 20, v72")
            A.e("v_sub_u32 v74, v71, v74         ; dim0")
            A.e(f"s_mov_b32 s28, {64*QT}")
            A.e("v_mul_lo_u32 v75, v72, s28      ; head*64*QT")
            A.e("v_bfe_u32 v76, v74, 2, 1")
            A.e("v_lshlrev_b32 v76, 9, v76")
            A.e("v_lshrrev_b32 v77, 3, v74")
            A.e("v_lshl_add_u32 v76, v77, 3, v76")
            for j in range(3):
                A.e("s_mul_i32 s21, s22, 96")
                A.e("s_lshr_b32 s28, s20, 1")
                A.e("s_mul_i32 s28, s28, 48")
                A.e("s_add_u32 s21, s21, s28")
                A.e(f"s_add_u32 s21, s21, {16*j}")
                A.e("v_add_u32 v78, s21, v2          ; pos")
                A.e("v_lshrrev_b32 v79, 5, v78       ; ptile")
                A.e("v_and_b32 v80, 31, v78          ; pos32")
                A.e("v_lshl_add_u32 v81, v80, 4, v76")
                A.e("v_lshlrev_b32 v82, 3, v80")
                A.e("v_add_u32 v82, 1024, v82")
                A.e("v_cmp_eq_u32 vcc, 16, v74")
                A.e("v_mad_u32_u24 v79, v79, s35, v75")
                A.e("s_nop 0")
                A.e("v_cndmask_b32 v81, v81, v82, vcc")
                A.e("v_add_u32 v81, v81, v79")
                A.e("v_cmp_gt_u32 vcc, 0x800, v78")
                A.e("s_nop 1")
                A.e(f"v_cndmask_b32 v{EA+j*2+m}, v19, v81, vcc")
        for c0 in range(0, 640, 4): assert (c0*3277) >> 16 == c0//20, c0
    else:
        A.e("s_mul_i32 s21, s22, 245760")
        A.e("s_lshl_b32 s26, s23, 7")
        A.e("s_add_u32 s21, s21, s26")
        A.e("s_add_u32 s21, s21, 1280")
        srd(A, 16, 24, "0", add="s21")
        A.e(f"s_sub_u32 s18, {2048*2560}, s21")
        A.e("s_lshr_b32 s28, s20, 1")
        A.e("s_mul_i32 s28, s28, 48")
        A.e("s_movk_i32 s26, 2560")
        A.e("v_add_u32 v71, s28, v2")
        A.e("v_mul_u32_u24 v71, s26, v71")
        A.e("v_lshl_add_u32 v71, v3, 3, v71")
        A.e("s_lshl_b32 s28, s33, 6")
        A.e("v_add_u32 v71, s28, v71")
        for j in range(3):
            for m in range(2):
                A.e(f"v_add_u32 v{EA+j*2+m}, {j*16*2560 + 32*m}, v71")
    WFB = [96, 104]; XFB = [44, 112]
    def rd(c, ks, buf):
        boff = (c % R) * BUF
        for m in range(2):
            for h in range(2):
                off = boff + (32*ks + 8*h)*128
                A.e(f"ds_read_b64_tr_b16 {vr(WFB[buf]+m*4+h*2,2)}, v{11 if m == 0 else 18} offset:{off}")
        for j in range(3):
            A.e(f"ds_read_b128 {vr(XFB[buf]+4*j,4)}, v{9+ks} offset:{boff + 2048*j}")
    def mm(buf):
        for j in range(3):
            for m in range(2):
                acc = ACC + 4*(2*j+m)
                A.e(f"v_mfma_f32_16x16x32_bf16 {vr(acc,4)}, {vr(WFB[buf]+m*4,4)}, {vr(XFB[buf]+4*j,4)}, {vr(acc,4)}")
    stamp(A, 94)
    for c in range(10):
        nout = 5*min(R-2, 9-c)
        A.e(f"s_waitcnt vmcnt({nout})")
        A.e("s_barrier")
        if c == 0: stamp(A, 94)
        if c+R-1 < 10: dma(c+R-1)
        rd(c, 0, 0)
        rd(c, 1, 1)
        A.e("s_waitcnt lgkmcnt(7)")
        mm(0)
        A.e("s_waitcnt lgkmcnt(0)")
        mm(1)
    A.e("s_nop 7")
    stamp(A, 94)
    if kind == 'q':
        A.e(f"s_mov_b32 s26, {hex(f2u(QSCALE))}")
    for j in range(3):
        for m in range(2):
            n = 2*j+m
            acc = ACC + 4*n
            if kind == 'q':
                for i in range(4): A.e(f"v_mul_f32 v{acc+i}, s26, v{acc+i}")
            A.e(f"v_cvt_pk_bf16_f32 v{44+n*2}, v{acc}, v{acc+1}")
            A.e(f"v_cvt_pk_bf16_f32 v{45+n*2}, v{acc+2}, v{acc+3}")
            A.e(f"buffer_store_dwordx2 {vr(44+n*2,2)}, v{EA+n}, s[16:19], 0 offen")
    if Cfg.STAMP:
        A.e("s_waitcnt vmcnt(0)")
        stamp(A, 94)
        A.e(f"s_load_dwordx2 s[24:25], s[0:1], {KA['ws']}")
        A.e("s_waitcnt lgkmcnt(0)")
        stamp_out(A, 24, 4, stamp_base, 94, 95)
    A.label(f"{pfx}_exit")
    A.e("s_endpgm")
```

```python
import sys
from common import *
import gemm2, attn, ssm, asmcheck

def dispatch(A, name, roles):
    total = sum(c for c, _ in roles)
    base = 0
    for c, lab in roles:
        A.e(f"s_sub_u32 s3, s2, {base}")
        A.e(f"s_cmp_lt_u32 s2, {base+c}")
        A.e(f"s_cbranch_scc1 {lab}")
        base += c
    A.e("s_endpgm")
    return total

def write(path, body, descs, launches, entries):
    hdr = open("cdna_kernels/" + NAME + ".s.ref").read().split("; Override launch")[0]
    out = hdr
    for (k, g, b, l) in launches:
        out += f"; @launch kernel={k} grid=({g},1,1) block=({b},1,1) lds={l}\n"
    out += '.amdgcn_target "amdgcn-amd-amdhsa--gfx950"\n'
    out += body.text()
    out += "".join(descs)
    open(path, "w").write(out)
    errs = asmcheck.check_text(body.text(), entries)
    for e in errs: print(e)
    print("wrote", path, len(out), "bytes;", len(errs), "checker messages")

def build(path):
    K1 = "proj_kernel"; K2 = "attn_kernel"; K2b = "conv_kernel"; K3 = "outp_kernel"
    body = Asm(); descs = []; launches = []
    kernel_begin(body, K1)
    n = dispatch(body, K1, [(64, "k1_kv"), (256, "k1_q"), (160, "k1_kgen"), (40, "k1_ut")])
    body.label("k1_kv"); gemm2.gemm_kv(body, "k1kv")
    body.label("k1_q"); gemm2.gemm_big(body, "q", "k1q", STAMP_BASE + 0x100000)
    body.label("k1_kgen"); ssm.kgen_role(body, "k1g")
    body.label("k1_ut"); ssm.ut_role(body, "k1u")
    descs.append(kernel_desc(K1, 128, 128)); launches.append((K1, n, 256, 75776))
    kernel_begin(body, K2)
    n = dispatch(body, K2, [(256, "k2_at")])
    body.label("k2_at"); attn.attn_role(body, "k2a")
    descs.append(kernel_desc(K2, 240, 128)); launches.append((K2, n, 512, 49152))
    kernel_begin(body, K2b)
    n = dispatch(body, K2b, [(160, "k2_cv")])
    body.label("k2_cv"); ssm.conv_role(body, "k2c")
    descs.append(kernel_desc(K2b, 192, 128)); launches.append((K2b, n, 256, 87040))
    kernel_begin(body, K3)
    n = dispatch(body, K3, [(256, "k3_o"), (40, "k3_yt")])
    body.label("k3_o"); gemm2.gemm_big(body, "o", "k3o", STAMP_BASE + 0x200000)
    body.label("k3_yt"); ssm.yt_role(body, "k3y")
    descs.append(kernel_desc(K3, 128, 128)); launches.append((K3, n, 256, 74752))
    write(path, body, descs, launches, [K1, K2, K2b, K3])
if __name__ == "__main__":
    if "stamp" in sys.argv: Cfg.STAMP = True
    build(sys.argv[1])
```

```python
from common import *
from gemm2 import lane_setup
LDS_KV = 51200 + 3*8192
def gemm_kv(A, pfx):
    XO = 51200
    A.e(f"s_load_dwordx2 s[4:5], s[0:1], {KA['x']}")
    A.e(f"s_load_dwordx2 s[6:7], s[0:1], {KA['wk']}")
    A.e(f"s_load_dwordx2 s[30:31], s[0:1], {KA['wv']}")
    A.e(f"s_load_dwordx2 s[24:25], s[0:1], {KA['ws']}")
    lane_setup(A)
    A.e("s_movk_i32 s27, 1280")
    A.e("v_lshlrev_b32 v6, 4, v1")
    A.e("v_lshrrev_b32 v12, 3, v1")
    A.e("v_and_b32 v13, 7, v1")
    A.e("v_xor_b32 v13, v13, v12")
    A.e("v_lshlrev_b32 v13, 4, v13")
    A.e("s_lshl_b32 s21, s20, 4")
    A.e("v_add_u32 v12, s21, v12")
    A.e("v_mad_u32_u24 v4, v12, s27, v13")
    A.e("v_add_u32 v5, 10240, v4")
    A.e("v_add_u32 v12, s21, v2")
    A.e("v_lshlrev_b32 v12, 7, v12")
    A.e(f"v_add_u32 v12, {XO}, v12")
    A.e("v_and_b32 v13, 7, v2")
    A.e("v_xor_b32 v14, v13, v3")
    A.e("v_lshl_add_u32 v7, v14, 4, v12       ; ks=0")
    A.e("v_add_u32 v14, 4, v3")
    A.e("v_xor_b32 v14, v13, v14")
    A.e("v_lshl_add_u32 v8, v14, 4, v12       ; ks=1")
    A.e("v_lshrrev_b32 v12, 2, v2")
    A.e("v_lshl_add_u32 v12, v3, 3, v12")
    A.e("v_mul_u32_u24 v12, 40, v12")
    A.e("v_and_b32 v13, 3, v2")
    A.e("v_lshl_add_u32 v11, v13, 3, v12")
    A.e("s_waitcnt lgkmcnt(0)")
    A.e("s_mul_i32 s21, s3, 81920")
    srd(A, 8, 4, 81920, add="s21")
    srd(A, 12, 6, 25600)
    srd(A, 36, 30, 25600)
    A.e("s_lshl_b32 s34, s20, 11")
    A.e(f"s_add_u32 s34, s34, {XO}")
    def xdma(c):
        b = (c % 3) * 8192
        A.e(f"s_add_u32 m0, s34, {b}")
        A.e(f"s_movk_i32 s28, {128*c}")
        A.e(f"buffer_load_dwordx4 v4, s[8:11], s28 offen lds")
        A.e(f"s_add_u32 m0, s34, {b+1024}")
        A.e("s_nop 0")
        A.e(f"buffer_load_dwordx4 v5, s[8:11], s28 offen lds")
    xdma(0)
    for which in range(2):
        sr_ = 12 if which == 0 else 36
        for i in range(7):
            if i < 6:
                A.e(f"s_add_u32 s28, s20, {4*i}")
                A.e("s_lshl_b32 s28, s28, 10")
                A.e(f"s_add_u32 m0, s28, {25600*which}")
                A.e("s_nop 0")
                A.e(f"buffer_load_dwordx4 v6, s[{sr_}:{sr_+3}], s28 offen lds")
            else:
                A.e("s_cmp_lg_u32 s20, 0")
                A.e(f"s_cbranch_scc1 {pfx}_wd{which}")
                A.e(f"s_movk_i32 s28, {24*1024}")
                A.e(f"s_mov_b32 m0, {24*1024 + 25600*which}")
                A.e("s_nop 0")
                A.e(f"buffer_load_dwordx4 v6, s[{sr_}:{sr_+3}], s28 offen lds")
        A.label(f"{pfx}_wd{which}")
    xdma(1)
    ACC = 20
    for i in range(16): A.e(f"v_mov_b32 v{ACC+i}, 0")
    A.e("s_lshr_b32 s21, s20, 1")
    A.e("s_lshl_b32 s26, s3, 1")
    A.e("s_add_u32 s21, s21, s26          ; T")
    A.e("s_and_b32 s26, s20, 1            ; u")
    srd(A, 16, 24, WS_VA + 64*2048)
    A.e("v_and_b32 v68, 1, v3             ; h")
    A.e("v_lshrrev_b32 v69, 1, v3         ; g>>1")
    A.e("s_lshl_b32 s28, s26, 4           ; 16u")
    A.e("v_add_u32 v70, s28, v2           ; key32")
    A.e("v_lshl_add_u32 v71, v68, 5, v70")
    A.e("v_lshlrev_b32 v71, 4, v71")
    A.e("v_lshl_add_u32 v71, v69, 3, v71")
    A.e("s_lshl_b32 s28, s21, 10")
    A.e(f"s_add_u32 s28, s28, {WS_KA}")
    A.e("v_add_u32 v12, s28, v71")
    A.e("v_lshlrev_b32 v71, 3, v70")
    A.e("s_lshl_b32 s28, s21, 9")
    A.e(f"s_add_u32 s28, s28, {WS_KB}")
    A.e("v_add_u32 v71, s28, v71")
    A.e("v_cmp_eq_u32 vcc, 0, v3")
    A.e("s_nop 1")
    A.e(f"v_cndmask_b32 v13, v19, v71, vcc")
    A.e("v_lshl_add_u32 v71, v68, 5, v2")
    A.e("v_lshlrev_b32 v71, 4, v71")
    A.e("v_lshl_add_u32 v71, v69, 3, v71")
    A.e("s_lshl_b32 s28, s21, 11")
    A.e("s_lshl_b32 s29, s26, 10")
    A.e("s_add_u32 s28, s28, s29")
    A.e(f"s_add_u32 s28, s28, {WS_VA}")
    A.e("v_add_u32 v14, s28, v71")
    A.e("v_add_u32 v15, 256, v14          ; nt'=1 (d+16)")
    A.e("v_cmp_gt_u32 vcc, 5, v2")
    A.e("s_nop 1")
    A.e("v_cndmask_b32 v15, v19, v15, vcc ; only d=16..20")
    WF = 40; XF = 84
    for c in range(10):
        A.e(f"s_waitcnt vmcnt({2 if c < 9 else 0})")
        A.e("s_barrier")
        if c+2 < 10: xdma(c+2)
        b = (c % 3) * 8192
        for ks in range(2):
            A.e(f"ds_read_b128 {vr(XF+4*ks,4)}, v{7+ks} offset:{b}")
            for m in range(4):
                for h in range(2):
                    off = (64*c + 32*ks + 4*h)*40 + 32*(m & 1) + 25600*(m >> 1)
                    A.e(f"ds_read_b64_tr_b16 {vr(WF+(ks*4+m)*4+h*2,2)}, v11 offset:{off}")
        for ks in range(2):
            A.e(f"s_waitcnt lgkmcnt({9 if ks == 0 else 0})")
            for m in range(2):
                A.e(f"v_mfma_f32_16x16x32_bf16 {vr(ACC+4*m,4)}, {vr(WF+(ks*4+m)*4,4)}, {vr(XF+4*ks,4)}, {vr(ACC+4*m,4)}")
            for m in range(2,4):
                A.e(f"v_mfma_f32_16x16x32_bf16 {vr(ACC+4*m,4)}, {vr(XF+4*ks,4)}, {vr(WF+(ks*4+m)*4,4)}, {vr(ACC+4*m,4)}")
    A.e("s_nop 7")
    A.e("v_cvt_pk_bf16_f32 v76, v20, v21")
    A.e("v_cvt_pk_bf16_f32 v77, v22, v23")
    A.e("buffer_store_dwordx2 v[76:77], v12, s[16:19], 0 offen")
    A.e("v_cvt_pk_bf16_f32 v78, v24, v25")
    A.e("v_cvt_pk_bf16_f32 v79, v26, v27")
    A.e("buffer_store_dwordx2 v[78:79], v13, s[16:19], 0 offen")
    A.e("v_cvt_pk_bf16_f32 v80, v28, v29")
    A.e("v_cvt_pk_bf16_f32 v81, v30, v31")
    A.e("buffer_store_dwordx2 v[80:81], v14, s[16:19], 0 offen")
    A.e("v_cvt_pk_bf16_f32 v82, v32, v33")
    A.e("v_cvt_pk_bf16_f32 v83, v34, v35")
    A.e("v_cmp_eq_u32 vcc, 4, v2")
    A.e("v_mov_b32 v68, 0x3f803f80")
    A.e("s_nop 0")
    A.e("v_cndmask_b32 v82, v82, v68, vcc")
    A.e("v_cndmask_b32 v83, v83, v68, vcc")
    A.e("buffer_store_dwordx2 v[82:83], v15, s[16:19], 0 offen")
    A.e("s_endpgm")
```

```python
import sys
from common import *
import gemm3, kv64, attn4, ssm, conv2, asmcheck
from gen_v2 import dispatch, write
def build(path):
    K1 = "proj_kernel"; K2 = "attn_kernel"; K3 = "outp_kernel"
    body = Asm(); descs = []; launches = []
    kernel_begin(body, K1)
    n = dispatch(body, K1, [(224, "k1_q"), (32, "k1_kv"), (160, "k1_kgen"), (40, "k1_ut")])
    body.label("k1_kv"); kv64.gemm_kv(body, "k1kv")
    body.label("k1_q"); gemm3.gemm_big(body, "q", "k1q", STAMP_BASE + 0x100000)
    body.label("k1_kgen"); ssm.kgen_role(body, "k1g")
    body.label("k1_ut"); ssm.ut_role(body, "k1u")
    descs.append(kernel_desc(K1, 128, 128)); launches.append((K1, n, 256, kv64.LDS_KV))
    kernel_begin(body, K2)
    n = dispatch(body, K2, [(256, "k2_at")])
    body.label("k2_at"); attn4.attn_role(body, "k2a")
    descs.append(kernel_desc(K2, 512, 256)); launches.append((K2, n, 256, attn4.LDS_ATTN))
    kernel_begin(body, K3)
    n = dispatch(body, K3, [(224, "k3_o"), (160, "k3_cv")])
    body.label("k3_o"); gemm3.gemm_big(body, "o", "k3o", STAMP_BASE + 0x200000)
    body.label("k3_cv"); conv2.conv_role(body, "k3c", STAMP_BASE + 0x200000)
    descs.append(kernel_desc(K3, 192, 128)); launches.append((K3, n, 256, max(gemm3.LDS_GEMM, conv2.LDS_CONV)))
    write(path, body, descs, launches, [K1, K2, K3])
if __name__ == "__main__":
    if "stamp" in sys.argv: Cfg.STAMP = True
    build(sys.argv[1])
```

```python
from common import *
NT = 16
PREF_K, PREF_V = 6, 5
S = [16, 32]; P = [48, 56]
QA = [64, 72]; QB = [68, 70]
O = [80, 96]
VW = 7
def KAr(t): return ar(4*t, 4)
def KBr(t): return ar(64+2*t, 2)
def VAr(t, u): return ar(96+8*t+4*u, 4)
PART = 3072

def step(A, tau, t, first=False, last=False, fillers=None, pre=None):
    cur = S[t & 1]; nxt = S[(t+1) & 1]
    Pc = P[t & 1]; Pp = P[(t+1) & 1]
    par = tau & 1
    if t < NT-1: nt, npar = t+1, par
    else: nt, npar = 0, par ^ 1
    do_next = not (last and t == NT-1)
    M1 = f"v_mfma_f32_32x32x16_bf16 {vr(nxt,16)}, {KAr(nt)}, {vr(QA[npar],4)}, 0" if do_next else None
    M2 = f"v_mfma_f32_32x32x8_bf16 {vr(nxt,16)}, {KBr(nt)}, {vr(QB[npar],2)}, {vr(nxt,16)}" if do_next else None
    if t == 0:
        pt, op, c0 = NT-1, O[par ^ 1], None
    else:
        pt, op = t-1, O[par]
        c0 = "0" if t == 1 else None
    if t == 0 and first:
        PV0p = PVp = None
    else:
        PV0p = f"v_mfma_f32_32x32x16_bf16 {vr(op,16)}, {VAr(pt,0)}, {vr(Pp,4)}, {c0 or vr(op,16)}"
        PVp = f"v_mfma_f32_32x32x16_bf16 {vr(op,16)}, {VAr(pt,1)}, {vr(Pp+4,4)}, {vr(op,16)}"
    E = lambda i: f"v_exp_f32 v{cur+i}, v{cur+i}"
    C = lambda i: f"v_cvt_pk_bf16_f32 v{Pc+i}, v{cur+2*i}, v{cur+2*i+1}"
    seq = [E(0), M1, E(1), E(2), C(0), E(3), E(4), PV0p, C(1), E(5), E(6), C(2), E(7), M2, E(8), C(3), E(9), E(10), C(4), E(11),
           PVp, E(12), C(5), E(13), E(14), E(15), C(6), C(7)]
    seq = [x for x in seq if x]
    fillers = list(fillers or [])
    if fillers and any(x.startswith("s_cbranch") or "exec" in x or "m0" in x for x in fillers):
        seq = seq[:5] + fillers + seq[5:]
    elif fillers:
        out = []; n = len(seq); k = 0; m = len(fillers)
        for idx, x in enumerate(seq):
            out.append(x)
            want = ((idx+1) * m) // n
            while k < want:
                out.append(fillers[k]); k += 1
        out += fillers[k:]
        seq = out
    for x in (pre or []): A.e(x)
    for x in seq:
        if x.endswith(":"): A.label(x[:-1])
        else: A.e(x)

def final_pv(A, tau):
    par = tau & 1
    Pp = P[(NT-1) & 1]
    A.e(f"v_mfma_f32_32x32x16_bf16 {vr(O[par],16)}, {VAr(NT-1,0)}, {vr(Pp,4)}, {vr(O[par],16)}")
    A.e(f"v_mfma_f32_32x32x16_bf16 {vr(O[par],16)}, {VAr(NT-1,1)}, {vr(Pp+4,4)}, {vr(O[par],16)}")

def part_write(tau):
    par = (tau-1) & 1
    return [f"ds_write_b128 v{VW}, {vr(O[par]+4*g,4)} offset:{1024*g}" for g in range(3)]
def part_next():
    return ["s_lshr_b32 s35, s37, 1", "s_sub_u32 s35, s20, s35", "s_sub_u32 s35, s35, 1", "s_and_b32 s35, s35, 3",
            "s_mul_i32 s36, s37, 3", "s_add_u32 s35, s35, s36", f"s_mul_i32 s35, s35, {PART}", f"v_add_u32 v{VW}, s35, v4",
            "s_add_u32 s37, s37, 1", "s_and_b32 s37, s37, 7"]

def qload(par):
    return [f"buffer_load_dwordx4 {vr(QA[par],4)}, v4, s[12:15], s30 offen",
            f"buffer_load_dwordx2 {vr(QB[par],2)}, v6, s[12:15], s30 offen"]
def qnext():
    return ["s_add_u32 s33, s33, 1", "s_and_b32 s33, s33, 7", "s_lshr_b32 s35, s33, 1", f"s_mul_i32 s35, s35, {64*QT}",
            "s_and_b32 s30, s33, 1", f"s_mul_i32 s30, s30, {QT}", "s_add_u32 s30, s30, s35", "s_add_u32 s30, s30, s34"]

def attn_role(A, pfx):
    A.e(f"s_load_dwordx2 s[4:5], s[0:1], {KA['ws']}")
    stamp_init(A, 124)
    stamp(A, 124)
    A.e("v_and_b32 v1, 63, v0")
    A.e("v_lshrrev_b32 v2, 6, v0")
    A.e("v_lshlrev_b32 v4, 4, v1          ; lane*16")
    A.e("v_readfirstlane_b32 s20, v2")
    A.e("v_lshlrev_b32 v5, 3, v1          ; lane*8")
    A.e("v_add_u32 v6, 1024, v5")
    A.e(f"v_mov_b32 v3, {OOB}")
    A.e("v_cmp_gt_u32 vcc, 32, v1")
    A.e("s_and_b32 s22, s3, 31            ; rb")
    A.e("s_lshr_b32 s23, s3, 5            ; hg")
    A.e(f"v_cndmask_b32 v6, v3, v6, vcc")
    A.e(f"v_cndmask_b32 v5, v3, v5, vcc")
    A.e("v_and_b32 v2, 31, v1")
    A.e("v_cmp_gt_u32 vcc, 21, v2")
    A.e("s_nop 1")
    A.e("v_cndmask_b32 v8, v3, v4, vcc")
    A.e("s_waitcnt lgkmcnt(0)")
    srd(A, 8, 4, WS_VA + 64*2048)
    srd(A, 12, 4, 2048*QT, add=WS_Q)
    A.e("s_lshl_b32 s34, s23, 8           ; 4hg*64")
    A.e("s_lshl_b32 s21, s22, 1")
    A.e("s_add_u32 s34, s34, s21")
    A.e(f"s_mul_i32 s34, s34, {QT}")
    A.e("s_lshl_b32 s33, s20, 1")
    A.e("s_add_u32 s33, s33, 1")
    A.e("s_add_u32 s37, s33, 1")
    A.e("s_and_b32 s37, s37, 7")
    for x in qnext(): A.e(x)
    for x in qload(0): A.e(x)
    A.e("s_lshl_b32 s24, s20, 14          ; KA: T*1024")
    A.e(f"s_lshl_b32 s25, s20, 13         ; KB: T*512")
    A.e(f"s_add_u32 s25, s25, {WS_KB}")
    A.e("s_lshl_b32 s26, s20, 15          ; VA: T*2048")
    A.e(f"s_add_u32 s26, s26, {WS_VA}")
    def ldK(t): return [f"s_add_u32 s27, s24, {1024*t}", f"s_add_u32 s28, s25, {512*t}",
                        f"buffer_load_dwordx4 {KAr(t)}, v4, s[8:11], s27 offen",
                        f"buffer_load_dwordx2 {KBr(t)}, v5, s[8:11], s28 offen"]
    def ldV(t): return [f"s_add_u32 s29, s26, {2048*t}",
                        f"buffer_load_dwordx4 {VAr(t,0)}, v8, s[8:11], s29 offen",
                        f"buffer_load_dwordx4 {VAr(t,1)}, v8, s[8:11], s29 offen offset:1024"]
    PK, PVn = PREF_K, PREF_V
    for t in range(PK):
        for x in ldK(t): A.e(x)
        if t < PVn:
            for x in ldV(t): A.e(x)
    stamp(A, 124)
    A.e(f"s_waitcnt vmcnt({2*(PK+PVn-1)})")
    stamp(A, 124)
    A.e(f"v_mfma_f32_32x32x16_bf16 {vr(S[0],16)}, {KAr(0)}, {vr(QA[0],4)}, 0")
    A.e(f"v_mfma_f32_32x32x8_bf16 {vr(S[0],16)}, {KBr(0)}, {vr(QB[0],2)}, {vr(S[0],16)}")
    A.e("s_nop 7"); A.e("s_nop 3")
    order = ["Q"]
    for t in range(PK):
        order.append(f"K{t}")
        if t < PVn: order.append(f"V{t}")
    for t in range(NT):
        fl = []
        need = []
        if t+1 < NT: need.append(f"K{t+1}")
        if t >= 1: need.append(f"V{t-1}")
        if t == NT-1: need.append("Q1")
        idx = max(order.index(x) for x in need)
        nout = 2*(len(order) - 1 - idx)
        if t == NT-1: nout = 0
        new = []
        if t+PK < NT: fl += ldK(t+PK); new.append(f"K{t+PK}")
        if t+PVn < NT: fl += ldV(t+PVn); new.append(f"V{t+PVn}")
        if t == NT-4: fl += qnext() + qload(1); new.append("Q1")
        step(A, 0, t, first=True, fillers=fl, pre=[f"s_waitcnt vmcnt({nout})"])
        order += new
    stamp(A, 124)
    def qtile(tau, last=False):
        for t in range(NT):
            fl = None; pre = None
            if t == 1: fl = part_next()
            if t == 2 and not last: fl = qnext() + qload((tau+1) & 1)
            if t == 2 and last: fl = None
            if t == 3: fl = part_write(tau) if tau <= 6 else None
            if t == NT-1 and not last: pre = ["s_waitcnt vmcnt(0)"]
            step(A, tau, t, last=last, fillers=fl, pre=pre)
    A.e("s_mov_b32 s31, 3")
    A.label(f"{pfx}_loop")
    for tau in (1, 2):
        qtile(tau)
        stamp(A, 124)
    A.e("s_sub_u32 s31, s31, 1")
    A.e("s_cmp_lg_u32 s31, 0")
    A.e(f"s_cbranch_scc1 {pfx}_loop")
    for t in range(NT):
        step(A, 7, t, last=True)
    A.e("s_nop 1")
    final_pv(A, 7)
    stamp(A, 124)
    A.e("s_waitcnt lgkmcnt(0)")
    A.e("s_barrier")
    A.e(f"s_mul_i32 s21, s20, {6*PART}")
    A.e("v_add_u32 v9, s21, v4")
    RB = 128
    def rdpart(jj):
        for sl in range(3):
            for g in range(3):
                A.e(f"ds_read_b128 {vr(RB + (jj*3+sl)*12 + 4*g, 4)}, v9 offset:{(jj*3+sl)*PART + 1024*g}")
    rdpart(0)
    A.e("v_and_b32 v3, 31, v1")
    A.e("s_lshl_b32 s24, s22, 6           ; 64 rb")
    A.e("v_add_u32 v10, s24, v3")
    A.e("s_movk_i32 s26, 1280")
    A.e("v_mul_u32_u24 v10, s26, v10")
    A.e("s_lshl_b32 s24, s23, 2")
    A.e("s_add_u32 s24, s24, s20")
    A.e("s_mul_i32 s24, s24, 40")
    A.e("v_lshrrev_b32 v11, 5, v1         ; h")
    A.e("v_lshl_add_u32 v10, v11, 3, v10")
    A.e("v_add_u32 v10, s24, v10")
    A.e(f"v_mov_b32 v12, {OOB}")
    A.e("v_cmp_eq_u32 vcc, 0, v11")
    srd(A, 16, 4, 2048*1280, add=WS_O)
    A.e(f"v_cndmask_b32 v11, v12, v10, vcc")
    A.e("s_mov_b32 s27, 40960             ; 32 rows")
    for jj in range(2):
        Of = O[jj]
        A.e("s_waitcnt lgkmcnt(0)")
        if jj == 0: rdpart(1)
        for sl in range(3):
            for r in range(12): A.e(f"v_add_f32 v{Of+r}, v{Of+r}, v{RB+(jj*3+sl)*12+r}")
        A.e(f"v_mov_b32 v28, v{Of+8}")
        A.e(f"v_mov_b32 v29, v{Of+8}")
        A.e("s_nop 1")
        A.e("v_permlane32_swap_b32 v28, v29")
        A.e("s_nop 1")
        A.e("v_rcp_f32 v29, v29")
        A.e("s_nop 0")
        for r in range(12): A.e(f"v_mul_f32 v{16+r}, v{Of+r}, v29")
        for g in range(3):
            A.e(f"v_cvt_pk_bf16_f32 v{32+6*jj+2*g}, v{16+4*g}, v{17+4*g}")
            A.e(f"v_cvt_pk_bf16_f32 v{33+6*jj+2*g}, v{18+4*g}, v{19+4*g}")
        so = "0" if jj == 0 else "s27"
        A.e(f"buffer_store_dwordx2 {vr(32+6*jj,2)}, v10, s[16:19], {so} offen")
        A.e(f"buffer_store_dwordx2 {vr(34+6*jj,2)}, v10, s[16:19], {so} offen offset:16")
        A.e(f"buffer_store_dwordx2 {vr(36+6*jj,2)}, v11, s[16:19], {so} offen offset:32")
    stamp(A, 124)
    stamp_out(A, 4, 4, STAMP_BASE, 124, 125)
    A.e("s_endpgm")
LDS_ATTN = 24*PART
```

```python
from common import *
import attn4
from attn4 import S, P, QA, QB, O, VW, KAr, KBr, VAr, PART, NT, step, final_pv, part_write, part_next, qload, qnext
L_PART = 0
L_KR = 73728
L_U0 = 92160
L_WA = 108800
L_DUMMY = 160000
L_U1 = 64
L_WB = 16704
LDS_K23 = 161024
WCH = 10240
def Wchunk(c): return (L_WA + c*WCH) if c < 5 else (L_WB + (c-5)*WCH)
XBUF = [L_KR, L_KR+8192, L_U0, L_U0+8192, L_U1, L_U1+8192]
WS_FLAG = 0x1100000
CS = 4160
SPIN_MAX = 1 << 18

def w_voffsets(A, tmp=(12,13,14,15,16), dst=(244,245,246)):
    a, b, c, d, e = tmp
    A.e("s_mov_b32 s26, 6554")
    A.e("s_movk_i32 s27, 1280")
    for n in range(3):
        A.e(f"s_add_u32 s21, s20, {4*n}")
        A.e("s_lshl_b32 s21, s21, 6")
        A.e(f"v_add_u32 v{a}, s21, v1          ; p")
        A.e(f"v_mul_u32_u24 v{b}, s26, v{a}")
        A.e(f"v_lshrrev_b32 v{b}, 16, v{b}      ; rho")
        A.e(f"v_mul_u32_u24 v{c}, 10, v{b}")
        A.e(f"v_sub_u32 v{c}, v{a}, v{c}         ; cc")
        A.e(f"v_lshlrev_b32 v{c}, 4, v{c}")
        A.e(f"v_and_b32 v{d}, 0x33, v{b}")
        A.e(f"v_bfe_u32 v{e}, v{b}, 2, 1")
        A.e(f"v_lshl_or_b32 v{d}, v{e}, 3, v{d}")
        A.e(f"v_bfe_u32 v{e}, v{b}, 3, 1")
        A.e(f"v_lshl_or_b32 v{d}, v{e}, 2, v{d}")
        A.e(f"v_mad_u32_u24 v{dst[n]}, v{d}, s27, v{c}")
        if n == 2:
            A.e(f"v_mov_b32 v{a}, {OOB}")
            A.e(f"v_cmp_gt_u32 vcc, 64, v{b}")
            A.e("s_nop 1")
            A.e(f"v_cndmask_b32 v{dst[2]}, v{a}, v{dst[2]}, vcc")

def wdma(c, srd_w=40):
    L = [f"s_mov_b32 s45, {64*1280*c}"]
    for n in range(3):
        if n < 2:
            L.append(f"s_add_u32 m0, s44, {Wchunk(c) + 4096*n}")
        else:
            L.append(f"s_add_u32 s46, s44, {Wchunk(c) + 8192}")
            L.append("s_cmp_lt_u32 s20, 2")
            L.append(f"s_cselect_b32 m0, s46, {L_DUMMY}")
        L.append("s_nop 0")
        L.append(f"buffer_load_dwordx4 v{244+n}, s[{srd_w}:{srd_w+3}], s45 offen lds")
    return L

def k23_role(A, pfx):
    A.e(f"s_load_dwordx2 s[4:5], s[0:1], {KA['ws']}")
    A.e(f"s_load_dwordx2 s[6:7], s[0:1], {KA['wo']}")
    A.e(f"s_load_dwordx2 s[52:53], s[0:1], {KA['out']}")
    A.e(f"s_load_dwordx2 s[54:55], s[0:1], {KA['dsk']}")
    stamp_init(A, 252)
    stamp(A, 252)
    A.e("v_and_b32 v1, 63, v0")
    A.e("v_lshrrev_b32 v2, 6, v0")
    A.e("v_lshlrev_b32 v4, 4, v1          ; lane*16")
    A.e("v_readfirstlane_b32 s20, v2")
    A.e("v_lshlrev_b32 v5, 3, v1          ; lane*8")
    A.e("v_add_u32 v6, 1024, v5")
    A.e(f"v_mov_b32 v3, {OOB}")
    A.e("v_cmp_gt_u32 vcc, 32, v1")
    A.e("s_and_b32 s22, s3, 31            ; rb")
    A.e("s_lshr_b32 s23, s3, 5            ; hg")
    A.e(f"v_cndmask_b32 v6, v3, v6, vcc")
    A.e(f"v_cndmask_b32 v5, v3, v5, vcc")
    A.e("v_and_b32 v2, 31, v1")
    A.e("v_cmp_gt_u32 vcc, 21, v2")
    A.e("s_nop 1")
    A.e("v_cndmask_b32 v8, v3, v4, vcc")
    A.e("s_and_b32 s47, s3, 7")
    A.e("s_mul_i32 s47, s47, 20")
    A.e("s_lshr_b32 s48, s3, 3")
    A.e("s_add_u32 s47, s47, s48")
    A.e("s_min_u32 s47, s47, 159")
    A.e("s_lshl_b32 s48, s47, 2")
    A.e("s_add_u32 s48, s48, s20          ; channel d")
    A.e("s_waitcnt lgkmcnt(0)")
    A.e("s_lshl_b32 s21, s47, 3")
    A.e("s_load_dwordx2 s[38:39], s[54:55], s21")
    srd(A, 8, 4, WS_VA + 64*2048)
    srd(A, 12, 4, 2048*QT, add=WS_Q)
    A.e("s_lshl_b32 s34, s23, 8           ; 4hg*64")
    A.e("s_lshl_b32 s21, s22, 1")
    A.e("s_add_u32 s34, s34, s21")
    A.e(f"s_mul_i32 s34, s34, {QT}")
    A.e("s_lshl_b32 s33, s20, 1")
    A.e("s_add_u32 s33, s33, 1")
    A.e("s_add_u32 s37, s33, 1")
    A.e("s_and_b32 s37, s37, 7")
    for x in qnext(): A.e(x)
    for x in qload(0): A.e(x)
    A.e("s_lshl_b32 s24, s20, 14          ; KA: T*1024")
    A.e(f"s_lshl_b32 s25, s20, 13         ; KB: T*512")
    A.e(f"s_add_u32 s25, s25, {WS_KB}")
    A.e("s_lshl_b32 s26, s20, 15          ; VA: T*2048")
    A.e(f"s_add_u32 s26, s26, {WS_VA}")
    def ldK(t): return [f"s_add_u32 s27, s24, {1024*t}", f"s_add_u32 s28, s25, {512*t}",
                        f"buffer_load_dwordx4 {KAr(t)}, v4, s[8:11], s27 offen",
                        f"buffer_load_dwordx2 {KBr(t)}, v5, s[8:11], s28 offen"]
    def ldV(t): return [f"s_add_u32 s29, s26, {2048*t}",
                        f"buffer_load_dwordx4 {VAr(t,0)}, v8, s[8:11], s29 offen",
                        f"buffer_load_dwordx4 {VAr(t,1)}, v8, s[8:11], s29 offen offset:1024"]
    PK, PVn = attn4.PREF_K, attn4.PREF_V
    for t in range(PK):
        for x in ldK(t): A.e(x)
        if t < PVn:
            for x in ldV(t): A.e(x)
    A.e("s_mov_b32 s50, s24"); A.e("s_mov_b32 s51, s25")
    w_voffsets(A)
    A.e("s_mov_b32 s24, s50"); A.e("s_mov_b32 s25, s51")
    A.e("s_lshl_b32 s26, s20, 15          ; VA: T*2048")
    A.e(f"s_add_u32 s26, s26, {WS_VA}")
    A.e("s_mul_i32 s21, s23, 160")
    srd(A, 40, 6, "0", add="s21")
    A.e("s_sub_u32 s42, 819200, s21")
    A.e("s_lshl_b32 s44, s20, 10")
    A.e("s_waitcnt lgkmcnt(0)")
    stamp(A, 252)
    A.e(f"s_waitcnt vmcnt({2*(PK+PVn-1)})")
    stamp(A, 252)
    A.e(f"v_mfma_f32_32x32x16_bf16 {vr(S[0],16)}, {KAr(0)}, {vr(QA[0],4)}, 0")
    A.e(f"v_mfma_f32_32x32x8_bf16 {vr(S[0],16)}, {KBr(0)}, {vr(QB[0],2)}, {vr(S[0],16)}")
    A.e("s_nop 7"); A.e("s_nop 3")
    order = ["Q"]
    for t in range(PK):
        order.append(f"K{t}")
        if t < PVn: order.append(f"V{t}")
    for t in range(NT):
        fl = []
        need = []
        if t+1 < NT: need.append(f"K{t+1}")
        if t >= 1: need.append(f"V{t-1}")
        if t == NT-1: need.append("Q1")
        idx = max(order.index(x) for x in need)
        nout = 2*(len(order) - 1 - idx)
        if t == NT-1: nout = 0
        new = []
        if t+PK < NT: fl += ldK(t+PK); new.append(f"K{t+PK}")
        if t+PVn < NT: fl += ldV(t+PVn); new.append(f"V{t+PVn}")
        if t == NT-4: fl += qnext() + qload(1); new.append("Q1")
        step(A, 0, t, first=True, fillers=fl, pre=[f"s_waitcnt vmcnt({nout})"])
        order += new
    stamp(A, 252)
    def conv_prefetch():
        L = []
        L += [f"s_mul_i32 s56, s48, {KR_ROW}", f"s_add_u32 s56, s56, {WS_KR}",
              "s_add_u32 s60, s4, s56", "s_addc_u32 s61, s5, 0", f"s_mov_b32 s62, {KR_ROW}", "s_mov_b32 s63, 0x20000",
              f"s_mul_i32 s56, s48, {UT_ROW}", f"s_add_u32 s56, s56, {WS_UT}",
              "s_add_u32 s64, s4, s56", "s_addc_u32 s65, s5, 0", f"s_mov_b32 s66, {UT_ROW}", "s_mov_b32 s67, 0x20000",
              "s_mul_i32 s56, s20, 4608", f"s_add_u32 m0, s56, {L_KR}", "s_movk_i32 s57, 4096"]
        L += [f"buffer_load_dwordx4 v4, s[60:63], 0 offen offset:{1024*i} lds" for i in range(4)]
        L += [f"s_add_u32 m0, s56, {L_KR+4096}", "s_mov_b32 exec_hi, 0", "buffer_load_dwordx4 v4, s[60:63], s57 offen lds", "s_mov_b32 exec_hi, -1",
              f"s_mul_i32 s56, s20, {CS}", f"s_add_u32 m0, s56, {L_U0}", "s_nop 0"]
        L += [f"buffer_load_dwordx4 v4, s[64:67], 0 offen offset:{1024*i} lds" for i in range(4)]
        L += [f"s_add_u32 m0, s56, {L_U0+4096}", "s_mov_b64 exec, 15", "buffer_load_dwordx4 v4, s[64:67], s57 offen lds", "s_mov_b64 exec, -1"]
        return L
    def qtile(tau, last=False, extra=None):
        for t in range(NT):
            fl = None; pre = None
            if t == 1: fl = part_next()
            if t == 2 and not last: fl = qnext() + qload((tau+1) & 1)
            if t == 3: fl = part_write(tau) if tau <= 6 else None
            if t == NT-1 and not last: pre = ["s_waitcnt vmcnt(0)"]
            if extra and t in extra: fl = (fl or []) + extra[t]
            step(A, tau, t, last=last, fillers=fl, pre=pre)
    wl = []
    for c in range(5):
        x = wdma(c)
        idx = [i for i, y in enumerate(x) if y.startswith("buffer_load")]
        st = 0
        for i in idx:
            wl.append(x[st:i+1]); st = i+1
    qtile(1, extra={t: wl[t] for t in range(15)})
    stamp(A, 252)
    A.e("s_mov_b32 s31, 2")
    A.label(f"{pfx}_loop")
    for tau in (2, 3):
        qtile(tau)
        stamp(A, 252)
    A.e("s_sub_u32 s31, s31, 1")
    A.e("s_cmp_lg_u32 s31, 0")
    A.e(f"s_cbranch_scc1 {pfx}_loop")
    A.e("s_cmp_ge_u32 s3, 160")
    A.e("s_cselect_b64 vcc, -1, 0")
    cp = conv_prefetch()
    idx = [i for i, y in enumerate(cp) if y.startswith("buffer_load")]
    groups = []; st = 0
    for i in idx:
        end = i+1
        while end < len(cp) and cp[end].startswith("s_mov_b") and "exec" in cp[end] and "-1" in cp[end]: end += 1
        groups.append(cp[st:end]); st = end
    ex = {}
    for n, g in enumerate(groups):
        lab = f"{pfx}_cp{n}"
        ex[4+n] = [f"s_cbranch_vccnz {lab}"] + g + [lab + ":"]
    qtile(6, extra=ex)
    stamp(A, 252)
    for t in range(NT):
        step(A, 7, t, last=True)
    A.e("s_nop 1")
    final_pv(A, 7)
    stamp(A, 252)
    A.e("s_waitcnt lgkmcnt(0)")
    A.e("s_barrier")
    A.e(f"s_mul_i32 s21, s20, {6*PART}")
    A.e("v_add_u32 v9, s21, v4")
    RB = 128
    def rdpart(jj):
        for sl in range(3):
            for g in range(3):
                A.e(f"ds_read_b128 {vr(RB + (jj*3+sl)*12 + 4*g, 4)}, v9 offset:{(jj*3+sl)*PART + 1024*g}")
    rdpart(0)
    A.e("v_and_b32 v3, 31, v1")
    A.e("v_mul_u32_u24 v10, 160, v3")
    A.e("v_lshrrev_b32 v11, 5, v1         ; h")
    A.e("v_lshl_add_u32 v10, v11, 3, v10")
    A.e("s_mul_i32 s24, s20, 40")
    A.e("v_add_u32 v10, s24, v10")
    A.e(f"v_mov_b32 v12, {L_DUMMY}")
    A.e("v_add_u32 v13, 32, v10")
    A.e("v_cmp_eq_u32 vcc, 0, v11")
    srd(A, 16, 4, 2048*1280, add=WS_O)
    A.e(f"v_cndmask_b32 v11, v12, v13, vcc")
    A.e("v_add_u32 v13, 5120, v11")
    A.e(f"v_cndmask_b32 v13, v12, v13, vcc")
    for jj in range(2):
        Of = O[jj]
        A.e("s_waitcnt lgkmcnt(0)")
        if jj == 0: rdpart(1)
        for sl in range(3):
            for r in range(12): A.e(f"v_add_f32 v{Of+r}, v{Of+r}, v{RB+(jj*3+sl)*12+r}")
        A.e(f"v_mov_b32 v28, v{Of+8}")
        A.e(f"v_mov_b32 v29, v{Of+8}")
        A.e("s_nop 1")
        A.e("v_permlane32_swap_b32 v28, v29")
        A.e("s_nop 1")
        A.e("v_rcp_f32 v29, v29")
        A.e("s_nop 0")
        for r in range(12): A.e(f"v_mul_f32 v{16+r}, v{Of+r}, v29")
        for g in range(3):
            A.e(f"v_cvt_pk_bf16_f32 v{32+6*jj+2*g}, v{16+4*g}, v{17+4*g}")
            A.e(f"v_cvt_pk_bf16_f32 v{33+6*jj+2*g}, v{18+4*g}, v{19+4*g}")
    A.e("s_barrier")
    for jj in range(2):
        A.e(f"ds_write_b64 v10, {vr(32+6*jj,2)} offset:{5120*jj}")
        A.e(f"ds_write_b64 v10, {vr(34+6*jj,2)} offset:{5120*jj+16}")
        A.e(f"ds_write_b64 v{11 if jj == 0 else 13}, {vr(36+6*jj,2)}")
    A.e("s_mov_b32 s26, 6554")
    A.e("s_movk_i32 s27, 1280")
    A.e("s_mul_i32 s24, s22, 81920")
    A.e("s_mul_i32 s25, s23, 160")
    A.e("s_add_u32 s24, s24, s25")
    for i in range(3):
        A.e(f"v_add_u32 v14, {256*i}, v0")
        A.e("v_mul_u32_u24 v15, s26, v14")
        A.e("v_lshrrev_b32 v15, 16, v15         ; row")
        A.e("v_mul_u32_u24 v16, 10, v15")
        A.e("v_sub_u32 v16, v14, v16")
        A.e("v_lshlrev_b32 v16, 4, v16")
        A.e(f"v_mad_u32_u24 v{20+i}, v15, s27, v16")
    A.e(f"v_mov_b32 v12, {OOB}")
    A.e("v_cmp_gt_u32 vcc, 0x80, v0")
    A.e("v_lshlrev_b32 v14, 4, v0")
    A.e("s_waitcnt lgkmcnt(0)")
    A.e("v_cndmask_b32 v22, v12, v22, vcc")
    A.e("s_barrier")
    for i in range(3):
        A.e(f"ds_read_b128 {vr(24+4*i,4)}, v14 offset:{4096*i}")
    for i in range(3):
        A.e(f"s_waitcnt lgkmcnt({2-i})")
        A.e(f"buffer_store_dwordx4 {vr(24+4*i,4)}, v{20+i}, s[16:19], s24 offen sc1")
    A.e("s_waitcnt vmcnt(0)")
    A.e("s_barrier")
    stamp(A, 252)
    A.e("s_lshl_b32 s21, s22, 7")
    A.e(f"s_add_u32 s21, s21, {WS_FLAG}")
    srd(A, 68, 4, 128, add="s21")
    A.e("s_cmp_lg_u32 s20, 0")
    A.e(f"s_cbranch_scc1 {pfx}_noflag")
    A.e("s_lshl_b32 s21, s23, 2")
    A.e("v_mov_b32 v12, s21")
    A.e("v_mov_b32 v13, 1")
    A.e("s_mov_b64 exec, 1")
    A.e("buffer_store_dword v13, v12, s[68:71], 0 offen sc1")
    A.e("s_mov_b64 exec, -1")
    A.label(f"{pfx}_noflag")
    A.e("v_and_b32 v2, 15, v1")
    A.e("v_lshrrev_b32 v3, 4, v1")
    A.e("s_cmp_lt_u32 s3, 160")
    A.e(f"s_cbranch_scc1 {pfx}_conv")
    for c in range(5, 10):
        for x in wdma(c): A.e(x)
    A.e(f"s_branch {pfx}_noconv")
    A.label(f"{pfx}_conv")
    conv_part(A, pfx)
    A.label(f"{pfx}_noconv")
    outproj_part(A, pfx)

def conv_part(A, pfx):
    A.e(f"s_mul_i32 s21, s20, {CS}")
    A.e(f"v_add_u32 v5, s21, v4")
    A.e(f"v_add_u32 v6, {L_U0}, v5")
    for ps in range(5):
        b = 16 + 6*ps
        A.e(f"ds_read_b128 {vr(b,4)}, v6 offset:{1024*ps}")
        A.e(f"ds_read_b32 v{b+4}, v6 offset:{1024*ps+16}")
    for ps in range(5):
        b = 16 + 6*ps
        A.e(f"s_waitcnt lgkmcnt({2*(4-ps)})" if ps == 0 else "s_waitcnt lgkmcnt(%d)" % (2*(4-ps) + ps))
        if ps == 4:
            A.e("s_mov_b64 exec, 15")
        for i in range(4): A.e(f"v_alignbit_b32 v{48+4*(ps&1)+i}, v{b+i+1}, v{b+i}, 16")
        A.e(f"ds_write_b128 v5, {vr(48+4*(ps&1),4)} offset:{L_U1+1024*ps}")
        if ps == 4:
            A.e("s_mov_b64 exec, -1")
    A.e("v_add_u32 v6, 1, v2")
    A.e("v_and_b32 v6, 1, v6              ; cp")
    A.e("v_sub_u32 v7, v2, v6")
    A.e("v_add_u32 v7, 9, v7")
    A.e("v_and_b32 v8, 1, v3")
    A.e("v_lshlrev_b32 v8, 3, v8")
    A.e("v_sub_u32 v7, v7, v8")
    A.e("v_lshrrev_b32 v9, 1, v3")
    A.e("v_lshl_add_u32 v7, v9, 4, v7")
    A.e("v_lshlrev_b32 v7, 1, v7")
    A.e(f"v_mul_u32_u24 v11, {(L_U0 - L_U1) & 0xffffff}, v6" if False else "v_xor_b32 v11, 1, v6")
    A.e(f"s_mov_b32 s24, {L_U0 - L_U1}")
    A.e("v_mul_lo_u32 v11, v11, s24          ; cp==0 -> +(U0-U1)")
    A.e(f"v_add_u32 v7, v7, v11")
    A.e(f"v_add_u32 v7, {L_U1}, v7")
    A.e("v_add_u32 v7, s21, v7            ; vU")
    A.e("s_mul_i32 s21, s20, 4608")
    A.e("v_lshlrev_b32 v10, 4, v2")
    A.e("v_sub_u32 v10, 2040, v10")
    A.e("v_lshl_add_u32 v10, v9, 4, v10")
    A.e("v_sub_u32 v10, v10, v8")
    A.e("v_lshlrev_b32 v10, 1, v10")
    A.e(f"v_add_u32 v10, {L_KR-3584}, v10")
    A.e("v_add_u32 v10, s21, v10          ; vK")
    ACC = 16; AB = 48
    def Ar(c, i):
        return vr(AB + 32*c + 4*i, 4) if c < 6 else ar(64 + 32*(c-6) + 4*i, 4)
    def Ahalf(c, i, h):
        return vr(AB + 32*c + 4*i + 2*h, 2) if c < 6 else ar(64 + 32*(c-6) + 4*i + 2*h, 2)
    for i in range(32): A.e(f"v_mov_b32 v{ACC+i}, 0")
    A.e("s_waitcnt lgkmcnt(0)")
    stamp(A, 252)
    def readsA(c):
        L = [f"v_add_u32 v11, {512*c}, v7"]
        for i in range(8):
            L.append(f"ds_read2_b32 {Ahalf(c,i,0)}, v11 offset0:{16*i} offset1:{16*i+1}")
            L.append(f"ds_read2_b32 {Ahalf(c,i,1)}, v11 offset0:{16*i+2} offset1:{16*i+3}")
        return L
    def readsB(D, buf):
        return [f"ds_read_b128 {ar(32*buf+4*i,4)}, v10 offset:{512*(7-D)+64*i}" for i in range(8)]
    def capped(R):
        out = []; n = 0
        for x in R:
            if x.startswith("ds_"):
                if n and n % 8 == 0: out.append("s_waitcnt lgkmcnt(7)")
                n += 1
            out.append(x)
        return out
    for x in capped(readsA(0) + readsB(7, 0)): A.e(x)
    A.e("s_waitcnt lgkmcnt(0)")
    for s_ in range(8):
        D = 7 - s_; buf = s_ & 1
        Mold = []; Mnew = []
        for c in range(s_+1):
            for i in range(8):
                acc = ACC + 4*(c + D)
                m = f"v_mfma_f32_16x16x32_bf16 {vr(acc,4)}, {Ar(c,i)}, {ar(32*buf+4*i,4)}, {vr(acc,4)}"
                (Mnew if c == s_ else Mold).append(m)
        if s_ > 1:
            Mold = [Mold[c*8+i] for i in range(8) for c in range(s_)]
        RB_ = readsB(D-1, buf ^ 1) if s_ < 7 else []
        RA_ = readsA(s_+1) if s_ < 7 else []
        wd = wdma(s_+3) if 2 <= s_ <= 6 else []
        def weave(M, R):
            k = 0
            for n, m in enumerate(M):
                A.e(m)
                want = ((n+1)*len(R)) // len(M)
                while k < want:
                    A.e(R[k]); k += 1
            for y in R[k:]: A.e(y)
        if Mold:
            A.e("s_waitcnt lgkmcnt(7)")
            if wd:
                h = len(Mold)//2
                weave(Mold[:h], RB_)
                for y in wd: A.e(y)
                weave(Mold[h:], [])
            else:
                weave(Mold, RB_)
            A.e(f"s_waitcnt lgkmcnt({len(RB_)})")
            weave(Mnew, capped(RA_))
        else:
            weave(Mnew, RB_)
            for y in capped(["s_waitcnt lgkmcnt(7)"] + RA_): A.e(y)
        if s_ < 7: A.e("s_waitcnt lgkmcnt(15)")
    A.e("s_nop 7")
    stamp(A, 252)
    A.e(f"s_mul_i32 s21, s20, {CS}")
    A.e("v_lshlrev_b32 v8, 5, v2")
    A.e("v_lshl_add_u32 v8, v3, 3, v8")
    A.e(f"v_add_u32 v8, {L_U1}, v8")
    A.e("v_add_u32 v8, s21, v8")
    for B in range(8):
        acc = ACC + 4*B
        A.e(f"v_cvt_pk_bf16_f32 v{48+2*B}, v{acc}, v{acc+1}")
        A.e(f"v_cvt_pk_bf16_f32 v{49+2*B}, v{acc+2}, v{acc+3}")
        A.e(f"ds_write_b64 v8, {vr(48+2*B,2)} offset:{512*B}")
    A.e("s_waitcnt lgkmcnt(0)")
    A.e("s_lshl_b32 s72, s38, 16")
    A.e("s_and_b32 s73, s38, 0xffff0000")
    A.e("s_lshl_b32 s74, s39, 16")
    A.e("s_and_b32 s75, s39, 0xffff0000")
    A.e("s_barrier")
    A.e("v_lshrrev_b32 v12, 2, v2")
    A.e(f"s_movk_i32 s24, {CS}")
    A.e(f"v_mul_u32_u24 v12, s24, v12")
    A.e("v_and_b32 v13, 3, v2")
    A.e("v_lshlrev_b32 v13, 3, v13")
    A.e("v_lshl_add_u32 v13, v3, 5, v13     ; (16q + 4c)*2")
    A.e("v_add_u32 v12, v12, v13")
    A.e("s_lshl_b32 s21, s20, 10            ; 512w*2 bytes")
    A.e("v_add_u32 v12, s21, v12")
    A.e(f"v_add_u32 v13, {L_U1}, v12        ; y addr")
    A.e(f"v_add_u32 v12, {L_U0+32}, v12")
    for k in range(8):
        A.e(f"ds_read_b64_tr_b16 {vr(128+4*k,2)}, v13 offset:{128*k}")
        A.e(f"ds_read_b64_tr_b16 {vr(130+4*k,2)}, v12 offset:{128*k}")
        if k == 3: A.e("s_waitcnt lgkmcnt(2)")
    A.e("s_waitcnt lgkmcnt(0)")

def y_lists():
    T = Asm()
    srd(T, 56, 52, 2048*2560)
    T.e("s_lshl_b32 s21, s20, 9")
    T.e("v_add_u32 v164, s21, v1")
    T.e("s_movk_i32 s24, 2560")
    T.e("v_mul_u32_u24 v164, s24, v164")
    T.e("s_lshl_b32 s21, s47, 3")
    T.e("v_add_u32 v164, s21, v164")
    setup = [x.strip() for x in T.lines]
    per = []
    for k in range(8):
        L = []
        for dw in range(2):
            y = 128+4*k+dw; u = 130+4*k+dw
            L += [f"v_lshlrev_b32 v160, 16, v{u}", f"v_and_b32 v161, 0xffff0000, v{u}",
                  f"v_mul_f32 v160, s{72+2*dw}, v160", f"v_mul_f32 v161, s{73+2*dw}, v161",
                  f"v_cvt_pk_bf16_f32 v160, v160, v161", f"v_lshlrev_b32 v162, 16, v{y}", f"v_and_b32 v163, 0xffff0000, v{y}",
                  f"v_and_b32 v161, 0xffff0000, v160", f"v_lshlrev_b32 v160, 16, v160",
                  f"v_add_f32 v161, v161, v163", f"v_add_f32 v160, v160, v162", f"v_cvt_pk_bf16_f32 v{y}, v160, v161"]
        L += [f"s_mov_b32 s28, {k*64*2560}", f"buffer_store_dwordx2 {vr(128+4*k,2)}, v164, s[56:59], s28 offen"]
        per.append(L)
    return setup, per

def outproj_part(A, pfx):
    A.e("s_cmp_lg_u32 s20, 0")
    A.e(f"s_cbranch_scc1 {pfx}_nopoll")
    A.e("v_lshlrev_b32 v12, 2, v1")
    A.e(f"s_mov_b32 s76, {SPIN_MAX}")
    A.e("s_mov_b64 exec, 0xff")
    A.label(f"{pfx}_poll")
    A.e("buffer_load_dword v13, v12, s[68:71], 0 offen sc1")
    A.e("s_waitcnt vmcnt(0)")
    A.e("v_cmp_ne_u32 vcc, 0, v13")
    A.e("s_sub_u32 s76, s76, 1")
    A.e("s_cmp_eq_u32 s76, 0")
    A.e(f"s_cbranch_scc1 {pfx}_polldone")
    A.e("s_cmp_eq_u32 vcc_lo, 0xff")
    A.e(f"s_cbranch_scc1 {pfx}_polldone")
    A.e("s_sleep 1")
    A.e(f"s_branch {pfx}_poll")
    A.label(f"{pfx}_polldone")
    A.e("s_mov_b64 exec, -1")
    A.label(f"{pfx}_nopoll")
    A.e("s_waitcnt vmcnt(0)")
    A.e("s_barrier")
    stamp(A, 252)
    A.e("s_movk_i32 s27, 1280")
    A.e("v_lshrrev_b32 v12, 3, v1")
    A.e("v_and_b32 v13, 7, v1")
    A.e("v_xor_b32 v13, v13, v12")
    A.e("v_lshlrev_b32 v13, 4, v13")
    A.e("s_lshl_b32 s21, s20, 4")
    A.e("v_add_u32 v12, s21, v12")
    A.e("v_mad_u32_u24 v116, v12, s27, v13")
    A.e("v_add_u32 v117, 10240, v116")
    A.e("s_mul_i32 s21, s22, 81920")
    A.e(f"s_add_u32 s21, s21, {WS_O}")
    srd(A, 8, 4, 81920, add="s21")
    A.e("s_lshl_b32 s30, s20, 11")
    def xdma(c):
        b = XBUF[c % 6]
        A.e(f"s_add_u32 m0, s30, {b}")
        A.e(f"s_movk_i32 s28, {128*c}")
        A.e(f"buffer_load_dwordx4 v116, s[8:11], s28 offen lds")
        A.e(f"s_add_u32 m0, s30, {b+1024}")
        A.e("s_nop 0")
        A.e(f"buffer_load_dwordx4 v117, s[8:11], s28 offen lds")
    for c in range(6): xdma(c)
    A.e("s_lshl_b32 s21, s20, 4")
    A.e("v_add_u32 v12, s21, v2")
    A.e("v_lshlrev_b32 v12, 7, v12")
    A.e("v_and_b32 v13, 7, v2")
    A.e("v_xor_b32 v14, v13, v3")
    A.e("v_lshl_add_u32 v9, v14, 4, v12       ; ks=0")
    A.e("v_add_u32 v14, 4, v3")
    A.e("v_xor_b32 v14, v13, v14")
    A.e("v_lshl_add_u32 v10, v14, 4, v12      ; ks=1")
    A.e(f"v_add_u32 v17, 65536, v9")
    A.e(f"v_add_u32 v18, 65536, v10")
    A.e("v_lshrrev_b32 v12, 1, v3")
    A.e("v_lshlrev_b32 v12, 4, v12")
    A.e("v_and_b32 v13, 1, v3")
    A.e("v_lshl_add_u32 v12, v13, 2, v12")
    A.e("v_lshrrev_b32 v13, 2, v2")
    A.e("v_add_u32 v12, v12, v13")
    A.e("v_mul_u32_u24 v12, 160, v12")
    A.e("v_and_b32 v13, 3, v2")
    A.e("v_lshl_add_u32 v11, v13, 3, v12")
    A.e(f"v_add_u32 v15, {L_WA}, v11          ; chunks 0..4")
    A.e(f"v_add_u32 v16, {L_WB}, v11          ; chunks 5..9")
    ACC = 20
    for i in range(20): A.e(f"v_mov_b32 v{ACC+i}, 0")
    A.e("s_mul_i32 s21, s22, 163840")
    A.e("s_mul_i32 s26, s23, 160")
    A.e("s_add_u32 s21, s21, s26")
    A.e("s_add_u32 s21, s21, 1280")
    srd(A, 16, 52, "0", add="s21")
    A.e(f"s_sub_u32 s18, {2048*2560}, s21")
    A.e("s_lshl_b32 s21, s20, 4")
    A.e("s_movk_i32 s26, 2560")
    A.e(f"v_add_u32 v71, s21, v2")
    A.e("v_mul_u32_u24 v71, s26, v71")
    A.e("v_lshl_add_u32 v71, v3, 3, v71")
    WFB = [96, 40]; XF = [84, 88]
    def reads(kk):
        c, ks = kk >> 1, kk & 1; buf = kk & 1
        xb = XBUF[c % 6]
        if xb < 65536: xa, xo = 9+ks, xb
        else: xa, xo = 17+ks, xb-65536
        L = [f"ds_read_b128 {vr(XF[buf],4)}, v{xa} offset:{xo}"]
        wa = 15 if c < 5 else 16
        for mt in range(5):
            for h in range(2):
                off = (c % 5)*WCH + (32*ks + 8*h)*160 + 32*mt
                L.append(f"ds_read_b64_tr_b16 {vr(WFB[buf]+mt*4+h*2,2)}, v{wa} offset:{off}")
        return L
    def mms(kk):
        buf = kk & 1
        return [f"v_mfma_f32_16x16x32_bf16 {vr(ACC+4*mt,4)}, {vr(WFB[buf]+mt*4,4)}, {vr(XF[buf],4)}, {vr(ACC+4*mt,4)}" for mt in range(5)]
    for variant in ("c", "n"):
        if variant == "c":
            A.e("s_cmp_ge_u32 s3, 160")
            A.e(f"s_cbranch_scc1 {pfx}_gn")
            yl = y_lists()
            for x in yl[0]: A.e(x)
        else:
            A.label(f"{pfx}_gn")
            yl = None
        q = [f"X{c}" for c in range(6) for _ in range(2)]
        def wait_for(tag):
            idx = max(i for i, t in enumerate(q) if t == tag)
            A.e(f"s_waitcnt vmcnt({len(q)-1-idx})")
            del q[:idx+1]
        def rdX(kk):
            c, ks = kk >> 1, kk & 1
            xb = XBUF[c % 6]
            xa, xo = (9+ks, xb) if xb < 65536 else (17+ks, xb-65536)
            return f"ds_read_b128 {vr(XF[kk & 1],4)}, v{xa} offset:{xo}"
        def rdW(kk, mt):
            c, ks = kk >> 1, kk & 1
            wa = 15 if c < 5 else 16
            return [f"ds_read_b64_tr_b16 {vr(96+mt*4+h*2,2)}, v{wa} offset:{(c % 5)*WCH + (32*ks + 8*h)*160 + 32*mt}" for h in range(2)]
        lq = []
        def issue(x, tag): A.e(x); lq.append(tag)
        def lwait(tags):
            idx = [i for i, t in enumerate(lq) if t in tags]
            if not idx: return
            i = max(idx)
            A.e(f"s_waitcnt lgkmcnt({len(lq)-1-i})")
            del lq[:i+1]
        stamp(A, 252)
        wait_for("X0")
        stamp(A, 252)
        issue(rdX(0), "x0")
        for mt in range(5):
            for x in rdW(0, mt): issue(x, f"w0_{mt}")
        for kk in range(20):
            c = kk >> 1
            if kk == 10 and Cfg.STAMP:
                stamp(A, 252); lq.clear()
            if kk & 1 == 0 and 1 <= c <= 4:
                xdma(c+5); q += [f"X{c+5}"]*2
            for mt in range(5):
                lwait([f"x{kk}", f"w{kk}_{mt}"])
                A.e(f"v_mfma_f32_16x16x32_bf16 {vr(ACC+4*mt,4)}, {vr(96+mt*4,4)}, {vr(XF[kk & 1],4)}, {vr(ACC+4*mt,4)}")
                if kk+1 < 20:
                    if mt == 0:
                        c1 = (kk+1) >> 1
                        if (kk+1) & 1 == 0 and f"X{c1}" in q: wait_for(f"X{c1}")
                        issue(rdX(kk+1), f"x{kk+1}")
                    for x in rdW(kk+1, mt): issue(x, f"w{kk+1}_{mt}")
            if yl is not None and 2 <= kk < 18 and kk & 1 == 0:
                for x in yl[1][(kk-2) >> 1]: A.e(x)
                q.append("Y")
        if variant == "c":
            A.e(f"s_branch {pfx}_gdone")
    A.label(f"{pfx}_gdone")
    A.e("s_nop 7")
    stamp(A, 252)
    for mt in range(5):
        acc = ACC + 4*mt
        A.e(f"v_cvt_pk_bf16_f32 v{40+mt*2}, v{acc}, v{acc+1}")
        A.e(f"v_cvt_pk_bf16_f32 v{41+mt*2}, v{acc+2}, v{acc+3}")
        A.e(f"buffer_store_dwordx2 {vr(40+mt*2,2)}, v71, s[16:19], 0 offen offset:{32*mt}")
    if Cfg.STAMP:
        A.e("s_waitcnt vmcnt(0)")
        stamp(A, 252)
        A.e("s_mov_b32 s2, s3")
        stamp_out(A, 4, 4, STAMP_BASE, 252, 253)
    A.e("s_endpgm")
```

```python
from common import *
from gemm2 import lane_setup
LDS_KV = 51200 + 3*8192
def gemm_kv(A, pfx):
    XO = 51200
    A.e(f"s_load_dwordx2 s[4:5], s[0:1], {KA['x']}")
    A.e(f"s_load_dwordx2 s[6:7], s[0:1], {KA['wk']}")
    A.e(f"s_load_dwordx2 s[30:31], s[0:1], {KA['wv']}")
    A.e(f"s_load_dwordx2 s[24:25], s[0:1], {KA['ws']}")
    lane_setup(A)
    A.e("s_movk_i32 s27, 1280")
    A.e("v_lshlrev_b32 v6, 4, v1")
    A.e("v_lshrrev_b32 v12, 3, v1")
    A.e("v_and_b32 v13, 7, v1")
    A.e("v_xor_b32 v13, v13, v12")
    A.e("v_lshlrev_b32 v13, 4, v13")
    A.e("s_lshl_b32 s21, s20, 4")
    A.e("v_add_u32 v12, s21, v12")
    A.e("v_mad_u32_u24 v4, v12, s27, v13")
    A.e("v_add_u32 v5, 10240, v4")
    A.e("v_add_u32 v12, s21, v2")
    A.e("v_lshlrev_b32 v12, 7, v12")
    A.e(f"v_add_u32 v12, {XO}, v12")
    A.e("v_and_b32 v13, 7, v2")
    A.e("v_xor_b32 v14, v13, v3")
    A.e("v_lshl_add_u32 v7, v14, 4, v12       ; ks=0")
    A.e("v_add_u32 v14, 4, v3")
    A.e("v_xor_b32 v14, v13, v14")
    A.e("v_lshl_add_u32 v8, v14, 4, v12       ; ks=1")
    A.e("v_lshrrev_b32 v12, 2, v2")
    A.e("v_lshl_add_u32 v12, v3, 3, v12")
    A.e("v_mul_u32_u24 v12, 40, v12")
    A.e("v_and_b32 v13, 3, v2")
    A.e("v_lshl_add_u32 v11, v13, 3, v12")
    A.e("s_waitcnt lgkmcnt(0)")
    A.e("s_mul_i32 s21, s3, 81920")
    srd(A, 8, 4, 81920, add="s21")
    srd(A, 12, 6, 25600)
    srd(A, 36, 30, 25600)
    A.e("s_lshl_b32 s34, s20, 11")
    A.e(f"s_add_u32 s34, s34, {XO}")
    def xdma(c):
        b = (c % 3) * 8192
        A.e(f"s_add_u32 m0, s34, {b}")
        A.e(f"s_movk_i32 s28, {128*c}")
        A.e(f"buffer_load_dwordx4 v4, s[8:11], s28 offen lds")
        A.e(f"s_add_u32 m0, s34, {b+1024}")
        A.e("s_nop 0")
        A.e(f"buffer_load_dwordx4 v5, s[8:11], s28 offen lds")
    xdma(0)
    for which in range(2):
        sr_ = 12 if which == 0 else 36
        for i in range(7):
            if i < 6:
                A.e(f"s_add_u32 s28, s20, {4*i}")
                A.e("s_lshl_b32 s28, s28, 10")
                A.e(f"s_add_u32 m0, s28, {25600*which}")
                A.e("s_nop 0")
                A.e(f"buffer_load_dwordx4 v6, s[{sr_}:{sr_+3}], s28 offen lds")
            else:
                A.e("s_cmp_lg_u32 s20, 0")
                A.e(f"s_cbranch_scc1 {pfx}_wd{which}")
                A.e(f"s_movk_i32 s28, {24*1024}")
                A.e(f"s_mov_b32 m0, {24*1024 + 25600*which}")
                A.e("s_nop 0")
                A.e(f"buffer_load_dwordx4 v6, s[{sr_}:{sr_+3}], s28 offen lds")
        A.label(f"{pfx}_wd{which}")
    xdma(1)
    ACC = 20
    for i in range(16): A.e(f"v_mov_b32 v{ACC+i}, 0")
    A.e("s_lshr_b32 s21, s20, 1")
    A.e("s_lshl_b32 s26, s3, 1")
    A.e("s_add_u32 s21, s21, s26          ; T")
    A.e("s_and_b32 s26, s20, 1            ; u")
    srd(A, 16, 24, WS_VA + 64*2048)
    A.e("v_and_b32 v68, 1, v3             ; h")
    A.e("v_lshrrev_b32 v69, 1, v3         ; g>>1")
    A.e("s_lshl_b32 s28, s26, 4           ; 16u")
    A.e("v_add_u32 v70, s28, v2           ; key32")
    A.e("v_lshl_add_u32 v71, v68, 5, v70")
    A.e("v_lshlrev_b32 v71, 4, v71")
    A.e("v_lshl_add_u32 v71, v69, 3, v71")
    A.e("s_lshl_b32 s28, s21, 10")
    A.e(f"s_add_u32 s28, s28, {WS_KA}")
    A.e("v_add_u32 v12, s28, v71")
    A.e("v_lshlrev_b32 v71, 3, v70")
    A.e("s_lshl_b32 s28, s21, 9")
    A.e(f"s_add_u32 s28, s28, {WS_KB}")
    A.e("v_add_u32 v71, s28, v71")
    A.e("v_cmp_eq_u32 vcc, 0, v3")
    A.e("s_nop 1")
    A.e(f"v_cndmask_b32 v13, v19, v71, vcc")
    A.e("v_lshl_add_u32 v71, v68, 5, v2")
    A.e("v_lshlrev_b32 v71, 4, v71")
    A.e("v_lshl_add_u32 v71, v69, 3, v71")
    A.e("s_lshl_b32 s28, s21, 11")
    A.e("s_lshl_b32 s29, s26, 10")
    A.e("s_add_u32 s28, s28, s29")
    A.e(f"s_add_u32 s28, s28, {WS_VA}")
    A.e("v_add_u32 v14, s28, v71")
    A.e("v_add_u32 v15, 256, v14          ; nt'=1 (d+16)")
    A.e("v_cmp_gt_u32 vcc, 5, v2")
    A.e("s_nop 1")
    A.e("v_cndmask_b32 v15, v19, v15, vcc ; only d=16..20")
    A.e("s_lshl_b32 s28, s3, 7")
    A.e("s_add_u32 s28, s28, 0x1100000")
    A.e("s_add_u32 s40, s24, s28")
    A.e("s_addc_u32 s41, s25, 0")
    A.e("s_mov_b32 s42, 128")
    A.e("s_mov_b32 s43, 0x20000")
    A.e("v_lshlrev_b32 v72, 2, v0")
    A.e("v_mov_b32 v73, 0")
    A.e("buffer_store_dword v73, v72, s[40:43], 0 offen")
    WF = 40; XF = 84
    for c in range(10):
        A.e(f"s_waitcnt vmcnt({(3 if c == 0 else 2) if c < 9 else 0})")
        A.e("s_barrier")
        if c+2 < 10: xdma(c+2)
        b = (c % 3) * 8192
        for ks in range(2):
            A.e(f"ds_read_b128 {vr(XF+4*ks,4)}, v{7+ks} offset:{b}")
            for m in range(4):
                for h in range(2):
                    off = (64*c + 32*ks + 4*h)*40 + 32*(m & 1) + 25600*(m >> 1)
                    A.e(f"ds_read_b64_tr_b16 {vr(WF+(ks*4+m)*4+h*2,2)}, v11 offset:{off}")
        for ks in range(2):
            A.e(f"s_waitcnt lgkmcnt({9 if ks == 0 else 0})")
            for m in range(2):
                A.e(f"v_mfma_f32_16x16x32_bf16 {vr(ACC+4*m,4)}, {vr(WF+(ks*4+m)*4,4)}, {vr(XF+4*ks,4)}, {vr(ACC+4*m,4)}")
            for m in range(2,4):
                A.e(f"v_mfma_f32_16x16x32_bf16 {vr(ACC+4*m,4)}, {vr(XF+4*ks,4)}, {vr(WF+(ks*4+m)*4,4)}, {vr(ACC+4*m,4)}")
    A.e("s_nop 7")
    A.e("v_cvt_pk_bf16_f32 v76, v20, v21")
    A.e("v_cvt_pk_bf16_f32 v77, v22, v23")
    A.e("buffer_store_dwordx2 v[76:77], v12, s[16:19], 0 offen")
    A.e("v_cvt_pk_bf16_f32 v78, v24, v25")
    A.e("v_cvt_pk_bf16_f32 v79, v26, v27")
    A.e("buffer_store_dwordx2 v[78:79], v13, s[16:19], 0 offen")
    A.e("v_cvt_pk_bf16_f32 v80, v28, v29")
    A.e("v_cvt_pk_bf16_f32 v81, v30, v31")
    A.e("buffer_store_dwordx2 v[80:81], v14, s[16:19], 0 offen")
    A.e("v_cvt_pk_bf16_f32 v82, v32, v33")
    A.e("v_cvt_pk_bf16_f32 v83, v34, v35")
    A.e("v_cmp_eq_u32 vcc, 4, v2")
    A.e("v_mov_b32 v68, 0x3f803f80")
    A.e("s_nop 0")
    A.e("v_cndmask_b32 v82, v82, v68, vcc")
    A.e("v_cndmask_b32 v83, v83, v68, vcc")
    A.e("buffer_store_dwordx2 v[82:83], v15, s[16:19], 0 offen")
    A.e("s_endpgm")
```

```python
import sys
from common import *
import gemm3, kv64, attn4, ssm, k23, asmcheck
from gen_v2 import dispatch, write
def build(path):
    K1 = "proj_kernel"; K2 = "attn_kernel"
    body = Asm(); descs = []; launches = []
    kernel_begin(body, K1)
    n = dispatch(body, K1, [(224, "k1_q"), (32, "k1_kv"), (160, "k1_kgen"), (40, "k1_ut")])
    body.label("k1_kv"); kv64.gemm_kv(body, "k1kv")
    body.label("k1_q"); gemm3.gemm_big(body, "q", "k1q", STAMP_BASE + 0x100000)
    body.label("k1_kgen"); ssm.kgen_role(body, "k1g")
    body.label("k1_ut"); ssm.ut_role(body, "k1u")
    descs.append(kernel_desc(K1, 128, 128)); launches.append((K1, n, 256, kv64.LDS_KV))
    kernel_begin(body, K2)
    n = dispatch(body, K2, [(256, "k2_at")])
    body.label("k2_at"); k23.k23_role(body, "k2")
    if Cfg.STAMP: pass
    descs.append(kernel_desc(K2, 512, 256, 100)); launches.append((K2, n, 256, k23.LDS_K23))
    write(path, body, descs, launches, [K1, K2])
if __name__ == "__main__":
    if "stamp" in sys.argv: Cfg.STAMP = True
    build(sys.argv[1])
```

```python
import re, sys
TRANS = ("v_exp_f32","v_log_f32","v_rcp_f32","v_rsq_f32","v_sqrt_f32","v_sin_f32","v_cos_f32","v_exp_f16","v_rcp_iflag_f32")
def regs_of(tok):
    tok = tok.strip()
    tok = re.sub(r"^(neg|abs|sext)\((.*)\)$", r"\2", tok)
    tok = tok.lstrip("-").strip("|")
    m = re.match(r"^([vas])(\d+)$", tok)
    if m: return [(m.group(1), int(m.group(2)))]
    m = re.match(r"^([vas])\[(\d+):(\d+)\]$", tok)
    if m: return [(m.group(1), i) for i in range(int(m.group(2)), int(m.group(3))+1)]
    if tok == "vcc": return [("s",106),("s",107)]
    if tok == "vcc_lo": return [("s",106)]
    if tok == "vcc_hi": return [("s",107)]
    if tok == "exec": return [("s",126),("s",127)]
    if tok == "exec_lo": return [("s",126)]
    if tok == "exec_hi": return [("s",127)]
    if tok == "m0": return [("s",124)]
    return []
def split_ops(s):
    out=[];depth=0;cur=""
    for ch in s:
        if ch in "[(": depth+=1
        if ch in "])": depth-=1
        if ch=="," and depth==0: out.append(cur.strip()); cur=""
        else: cur+=ch
    if cur.strip(): out.append(cur.strip())
    return out
class I: pass
def mfma_passes(op):
    if "32x32x16" in op or "32x32x8" in op: return 8
    if "16x16x32" in op or "16x16x16" in op: return 4
    if "32x32x2" in op: return 16
    if "16x16x4" in op: return 8
    return 16
def parse(line):
    t = line.split(";")[0].split("//")[0].strip()
    if not t or t.startswith(".") : return None
    if t.endswith(":"):
        i=I(); i.kind="label"; i.name=t[:-1]; i.text=t; return i
    parts=t.split(None,1); op=parts[0]; rest=parts[1] if len(parts)>1 else ""
    i=I(); i.op=op; i.text=t; i.kind="other"; i.w=[]; i.r=[]
    ops=split_ops(rest)
    mods=""
    clean=[]
    for o in ops:
        p=o.split(None,1)
        clean.append(p[0]);
        if len(p)>1: mods+=" "+p[1]
    i.ops=clean; i.mods=mods
    R=lambda k: regs_of(clean[k]) if k<len(clean) else []
    base=op.replace("_e32","").replace("_e64","").replace("_sdwa","").replace("_dpp","")
    i.base=base
    if op.startswith("v_mfma"):
        i.kind="mfma"; i.w=R(0); i.a=R(1); i.b=R(2); i.c=R(3); i.r=i.a+i.b+i.c; i.passes=mfma_passes(op)
    elif op.startswith("v_cmp"):
        i.kind="valu"; i.w=R(0); i.r=R(1)+R(2)
        if op.startswith("v_cmpx"): i.w=i.w+[("s",126),("s",127)]
    elif base in ("v_readfirstlane_b32","v_readlane_b32"):
        i.kind="valu"; i.w=R(0); i.r=R(1)+R(2); i.rl=True
    elif base.startswith("v_permlane"):
        i.kind="valu"; i.w=R(0)+R(1); i.r=R(0)+R(1); i.perm=True
    elif op.startswith("v_"):
        i.kind="valu"; i.w=R(0); i.r=[]
        k0=1
        if base in ("v_add_co_u32","v_sub_co_u32","v_addc_co_u32","v_subb_co_u32","v_subrev_co_u32","v_mad_u64_u32","v_div_scale_f32"):
            i.w=R(0)+R(1); k0=2
        for k in range(k0,len(clean)): i.r+=R(k)
        if base in ("v_fmac_f32","v_pk_fmac_f16","v_dot2c_f32_bf16","v_writelane_b32","v_fmac_f16") or "UNUSED_PRESERVE" in mods or "d16" in op: i.r+=R(0)
        if base=="v_cndmask_b32" and len(clean)==3: i.r+=[("s",106),("s",107)]
        if "_dpp" in op or "row_" in mods or "quad_perm" in mods or "wave_" in mods: i.dpp=True
        i.trans = base in TRANS
    elif op.startswith("ds_"):
        i.kind="ds"
        if op.startswith("ds_read") or op.startswith("ds_bpermute") or op.startswith("ds_permute") or op.startswith("ds_swizzle") or "_rtn" in op:
            i.w=R(0); i.r=[]
            for k in range(1,len(clean)): i.r+=R(k)
            if "d16" in op: i.r+=R(0)
        else:
            for k in range(0,len(clean)): i.r+=R(k)
    elif op.startswith("buffer_") or op.startswith("global_") or op.startswith("flat_"):
        i.kind="vmem"
        islds = ("lds" in mods.split()) or ("_lds_" in op)
        i.islds=islds
        if op in ("buffer_wbl2","buffer_inv"):
            i.kind="vmemctl"
        elif "load" in op and not islds:
            i.w=R(0)
            for k in range(1,len(clean)): i.r+=R(k)
            if "d16" in op: i.r+=R(0)
        elif "load" in op and islds:
            for k in range(0,len(clean)): i.r+=R(k)
            i.r+=[("s",124)]
        elif "atomic" in op and "sc0" in mods.split():
            i.w=R(0)
            for k in range(1,len(clean)): i.r+=R(k)
        else:
            for k in range(0,len(clean)): i.r+=R(k)
            i.store=True
            if op.startswith("buffer_store"): i.data=R(0)
            elif op.startswith("global_store"): i.data=R(1)
            else: i.data=[]
            i.wide = ("x3" in op or "x4" in op)
    elif op.startswith("s_load") or op.startswith("s_buffer_load") or op in ("s_memtime","s_memrealtime"):
        i.kind="smem"; i.w=R(0)
        for k in range(1,len(clean)): i.r+=R(k)
    elif op=="s_waitcnt":
        i.kind="wait"; i.vm=None; i.lgkm=None
        m=re.search(r"vmcnt\((\d+)\)",t);
        if m: i.vm=int(m.group(1))
        m=re.search(r"lgkmcnt\((\d+)\)",t)
        if m: i.lgkm=int(m.group(1))
    elif op=="s_nop":
        i.kind="nop"; i.n=int(clean[0],0)+1
    elif op.startswith("s_cbranch") or op=="s_branch":
        i.kind="branch"; i.target=clean[0]
        if "vcc" in op: i.r=[("s",106),("s",107)]
        if "exec" in op: i.r=[("s",126),("s",127)]
    elif op=="s_endpgm": i.kind="end"
    elif op=="s_barrier": i.kind="barrier"
    elif op.startswith("s_"):
        i.kind="salu"
        if op.startswith("s_cmp") or op.startswith("s_bitcmp") or op in ("s_setprio","s_sleep","s_setreg_b32","s_sendmsg","s_setreg_imm32_b32"):
            for k in range(0,len(clean)): i.r+=R(k)
        else:
            i.w=R(0)
            for k in range(1,len(clean)): i.r+=R(k)
            if "saveexec" in op: i.w=i.w+[("s",126),("s",127)]; i.r+=[("s",126),("s",127)]
            if op in ("s_addk_i32","s_mulk_i32","s_cmov_b32"): i.r+=R(0)
    return i

def check_trace(tr, name, maxerr=40):
    errs=[]
    def err(idx,msg):
        if len(errs)<maxerr: errs.append(f"[{name}] @{idx}: {msg}\n      instr: {tr[idx].text}")
    pos=0
    lastw={}
    lastmf={}
    lastmfc={}
    laststore={}
    vmq=[]
    lgq=[]
    smem_out=set()
    m0pos=-100
    for idx,i in enumerate(tr):
        k=i.kind
        if k=="label": continue
        if k=="nop":
            pos+=i.n; continue
        reads=getattr(i,"r",[]); writes=getattr(i,"w",[])
        pend={}
        for q in vmq:
            for r in q: pend[r]="vmem"
        for q in lgq:
            for r in q: pend[r]="lds"
        for r in smem_out: pend[r]="smem"
        if k not in ("wait",):
            for r in reads:
                if r in pend: err(idx,f"reads {r} with outstanding {pend[r]} load")
            for r in writes:
                if r in pend and not (k in("vmem","ds") and pend[r] in ("vmem","lds") and ((k=="vmem")==(pend[r]=="vmem"))):
                    err(idx,f"writes {r} with outstanding {pend[r]} load")
        def dist(p): return pos-p-1
        if k=="mfma":
            for r in i.r:
                if r in lastw and lastw[r][1].kind=="valu" and dist(lastw[r][0])<2: err(idx,f"VALU write {r} -> MFMA read needs 2, has {dist(lastw[r][0])}")
            for r in i.a+i.b:
                if r in lastmf:
                    p,pi=lastmf[r]; need={2:5,4:8,8:12,16:20}[pi.passes]
                    if dist(p)<need: err(idx,f"MFMA D {r} -> MFMA A/B needs {need}, has {dist(p)}")
            for r in i.c:
                if r in lastmf:
                    p,pi=lastmf[r]
                    if pi.w==i.c and pi.passes==i.passes: need=0 if pi.passes>=4 else 2
                    else: need={2:4,4:6,8:10,16:18}[pi.passes]
                    if dist(p)<need: err(idx,f"MFMA D {r} -> MFMA C overlap needs {need}, has {dist(p)}")
            for r in i.w:
                if r in lastmf and r not in i.c:
                    p,pi=lastmf[r]; need={2:4,4:6,8:10,16:18}[pi.passes]
                    if dist(p)<need: err(idx,f"MFMA D {r} -> MFMA D WAW (conservative) needs {need}, has {dist(p)}")
            for r in [("s",126),("s",127)]:
                if r in lastw and lastw[r][1].kind=="valu" and dist(lastw[r][0])<4: err(idx,"VALU exec write -> MFMA needs 4")
        else:
            for r in reads+writes:
                if r in lastmf and k in ("valu","vmem","ds"):
                    p,pi=lastmf[r]; need={2:5,4:8,8:12,16:20}[pi.passes]
                    if dist(p)<need: err(idx,f"MFMA D {r} -> {k} access needs {need}, has {dist(p)}")
        if k=="valu":
            for r in writes:
                if r in lastmfc:
                    p,pi=lastmfc[r]; need={2:1,4:3,8:7,16:15}[pi.passes]
                    if dist(p)<need: err(idx,f"MFMA srcC read {r} -> VALU write needs {need}, has {dist(p)}")
                if r in laststore and dist(laststore[r])<2: err(idx,f"wide store data {r} -> VALU write needs 2")
            for r in reads:
                if r in lastw:
                    p,pi=lastw[r]
                    if pi.kind=="valu":
                        if getattr(pi,"trans",False) and not getattr(i,"trans",False) and r[0]=="v" and dist(p)<1: err(idx,f"trans {r} -> VALU needs 1")
                        if r[0]=="s" and r[1] not in (126,127) and dist(p)<2 and not (i.base in ("v_addc_co_u32","v_subb_co_u32")) : err(idx,f"VALU sgpr write {r} -> VALU read needs 2, has {dist(p)}")
                        if getattr(i,"rl",False) and r[0]=="v" and dist(p)<1: err(idx,f"VALU write {r} -> readlane needs 1")
                        if getattr(i,"rl",False) and r[0]=="s" and dist(p)<4: err(idx,f"VALU sgpr write {r} -> lane select needs 4")
                        if getattr(i,"dpp",False) and r[0]=="v" and dist(p)<2: err(idx,f"VALU write {r} -> DPP needs 2")
                        if getattr(i,"perm",False) and r[0]=="v" and dist(p)<2: err(idx,f"VALU write {r} -> permlane needs 2")
                        if ("SDWA" in pi.op.upper() or "op_sel" in pi.mods and not pi.base.startswith("v_pk")) and r[0]=="v" and dist(p)<1: err(idx,f"sdwa/opsel write {r} -> VALU needs 1")
            if getattr(i,"dpp",False):
                for r in [("s",126),("s",127)]:
                    if r in lastw and lastw[r][1].kind=="valu" and dist(lastw[r][0])<5: err(idx,"VALU exec write -> DPP needs 5")
        if k=="vmem":
            for r in reads:
                if r[0]=="s" and r in lastw and lastw[r][1].kind=="valu" and dist(lastw[r][0])<5: err(idx,f"VALU sgpr write {r} -> VMEM read needs 5")
            if getattr(i,"islds",False) and dist(m0pos)<1: err(idx,"m0 write -> LDS-DMA needs 1")
        if k in ("salu","branch") :
            pass
        if k=="wait":
            if i.vm is not None:
                while len(vmq)>i.vm: vmq.pop(0)
            if i.lgkm is not None:
                if i.lgkm==0: lgq=[]; smem_out=set()
                else:
                    if smem_out: err(idx,"counted lgkmcnt with SMEM outstanding")
                    while len(lgq)>i.lgkm: lgq.pop(0)
        elif k=="vmem":
            vmq.append(list(writes) if not getattr(i,"store",False) else [])
            if len(vmq)>63: err(idx,"more than 63 vmem outstanding")
            if getattr(i,"store",False) and i.wide:
                for r in i.data: laststore[r]=pos
        elif k=="ds":
            lgq.append(list(writes))
            if len(lgq)>15:
                pass
        elif k=="smem":
            for r in writes: smem_out.add(r)
        if k=="mfma":
            for r in i.w: lastmf[r]=(pos,i); lastw.pop(r,None)
            for r in i.c: lastmfc[r]=(pos,i)
        elif k in ("valu","salu"):
            for r in writes:
                lastw[r]=(pos,i); lastmf.pop(r,None)
            if k=="salu" and ("s",124) in writes: m0pos=pos
        elif k in ("vmem","ds","smem"):
            for r in writes: lastw.pop(r,None); lastmf.pop(r,None)
        pos+=1
    return errs

def traces(instrs, entry, maxvisit=2, maxpaths=64):
    labels={i.name:n for n,i in enumerate(instrs) if i.kind=="label"}
    out=[]
    stack=[(labels[entry],[],{})]
    while stack and len(out)<maxpaths:
        pc,tr,vis=stack.pop()
        tr=list(tr); vis=dict(vis)
        while True:
            if pc>=len(instrs): break
            i=instrs[pc]
            tr.append(i)
            if i.kind=="end": break
            if i.kind=="branch":
                tgt=labels.get(i.target)
                if tgt is None: raise Exception("unknown label "+i.target)
                if i.op=="s_branch":
                    c=vis.get(pc,0)
                    if c>=maxvisit: break
                    vis[pc]=c+1; pc=tgt; continue
                if tgt<=pc:
                    c=vis.get(pc,0)
                    if c<maxvisit-1:
                        vis[pc]=c+1; pc=tgt; continue
                    vis[pc]=0
                    pc+=1; continue
                else:
                    c=vis.get(pc,0)
                    if c<1:
                        v2=dict(vis); v2[pc]=1
                        stack.append((tgt,tr,v2))
                        vis[pc]=1
                    pc+=1; continue
            pc+=1
        out.append(tr)
    return out

def expand(text):
    return text
def check_text(text, entries):
    instrs=[x for x in (parse(l) for l in text.splitlines()) if x is not None]
    allerr=[]
    for e in entries:
        seen=set()
        for tr in traces(instrs,e):
            for m in check_trace(tr,e):
                key=m.split(":",1)[1]
                if key not in seen:
                    seen.add(key); allerr.append(m)
    return allerr
if __name__=="__main__":
    t=open(sys.argv[1]).read()
    ents=sys.argv[2:]
    for m in check_text(t,ents): print(m)

def trace_policy(instrs, entry, take):
    labels={i.name:n for n,i in enumerate(instrs) if i.kind=="label"}
    pc=labels[entry]; tr=[]; seen={}
    while pc<len(instrs):
        i=instrs[pc]; tr.append(i)
        if i.kind=="end": break
        if i.kind=="branch":
            tgt=labels[i.target]
            if i.op=="s_branch":
                if tgt<=pc and i.target.endswith("_p"):
                    pc+=1; continue
                pc=tgt; continue
            t = take(i.target) if callable(take) else (i.target in take)
            if i.target.endswith("_slow") and seen.get(("slow",pc),0): t=False
            if i.target.endswith("_slow"): seen[("slow",pc)]=1
            if tgt<=pc:
                c=seen.get(pc,0); seen[pc]=c+1
                if c<1 and t: pc=tgt; continue
                pc+=1; continue
            if t: pc=tgt; continue
        pc+=1
    return tr
def check_policies(text, entry, policies):
    instrs=[x for x in (parse(l) for l in text.splitlines()) if x is not None]
    out=[]; seen=set()
    for name,take in policies.items():
        tr=trace_policy(instrs,entry,take)
        for m in check_trace(tr,name):
            key=m.split(":",1)[1]
            if key not in seen: seen.add(key); out.append(m)
    return out
```

```python
import math
NAME = "concat_heads__ssm_conv_s4__grouped_kv_mqa__prompt"
KA = dict(u=0, are=8, aim=16, bre=24, bim=32, cre=40, cim=48, ldt=56, dsk=64, x=72, wq=80, wk=88, wv=96, wo=104, out=112, dbg=120, ws=128)
WS_KA = 0x000000
WS_KB = 0x010000
WS_VA = 0x020000
WS_Q  = 0x100000
QT = 1280
WS_O  = 0x400000
WS_UT = 0x700000
UT_ROW = 4160
WS_KR = 0xA00000
KR_ROW = 4608
WS_YT = 0xE00000
WS_END = 0x1100000
QSCALE = (20 ** -0.5) * math.log2(math.e)
import struct
def f2u(x): return struct.unpack("<I", struct.pack("<f", x))[0]

class Asm:
    def __init__(self):
        self.lines = []
    def __call__(self, s=""):
        for l in s.split("\n"):
            self.lines.append(l)
    def e(self, s):
        self.lines.append("    " + s)
    def label(self, s):
        self.lines.append(s + ":")
    def c(self, s):
        self.lines.append("    ; " + s)
    def text(self):
        return "\n".join(self.lines) + "\n"
def vr(b, n=1): return f"v{b}" if n == 1 else f"v[{b}:{b+n-1}]"
def ar(b, n=1): return f"a{b}" if n == 1 else f"a[{b}:{b+n-1}]"
def sr(b, n=1): return f"s{b}" if n == 1 else f"s[{b}:{b+n-1}]"

def srd(A, s, ptr_lo, nbytes, add=None):
    if add is None:
        A.e(f"s_mov_b32 s{s}, s{ptr_lo}")
        A.e(f"s_mov_b32 s{s+1}, s{ptr_lo+1}")
    else:
        A.e(f"s_add_u32 s{s}, s{ptr_lo}, {add}")
        A.e(f"s_addc_u32 s{s+1}, s{ptr_lo+1}, 0")
    A.e(f"s_mov_b32 s{s+2}, {nbytes}")
    A.e(f"s_mov_b32 s{s+3}, 0x20000")

def kernel_begin(A, name):
    A(".text")
    A(f".globl {name}")
    A(".p2align 8")
    A(f".type {name},@function")
    A.label(name)
def kernel_desc(name, nvgpr, accum, nsgpr=96):
    return f""".section .rodata,"a"
.p2align 6
.amdhsa_kernel {name}
  .amdhsa_next_free_vgpr {nvgpr}
  .amdhsa_next_free_sgpr {nsgpr}
  .amdhsa_accum_offset {accum}
  .amdhsa_group_segment_fixed_size 0
  .amdhsa_kernarg_size 136
  .amdhsa_user_sgpr_count 2
  .amdhsa_user_sgpr_kernarg_segment_ptr 1
  .amdhsa_system_sgpr_workgroup_id_x 1
  .amdhsa_float_denorm_mode_32 3
.end_amdhsa_kernel
"""

OOB = "0x80000000"

class Cfg: STAMP = False
def stamp_init(A, vreg=120):
    if not Cfg.STAMP: return
    A.e("s_mov_b32 s98, 0"); A.e(f"v_mov_b32 v{vreg}, 0")
    rstamp(A, 62, vreg)
def stamp(A, vreg=120):
    if not Cfg.STAMP: return
    A.e("s_memtime s[96:97]")
    A.e("s_mov_b32 s99, m0")
    A.e("s_waitcnt lgkmcnt(0)")
    A.e("s_mov_b32 m0, s98")
    A.e("s_nop 3")
    A.e(f"v_writelane_b32 v{vreg}, s96, m0")
    A.e("s_add_u32 s98, s98, 1")
    A.e("s_mov_b32 m0, s99")
def rstamp(A, lane, vreg=120):
    if not Cfg.STAMP: return
    A.e("s_memrealtime s[96:97]")
    A.e("s_waitcnt lgkmcnt(0)")
    A.e(f"v_writelane_b32 v{vreg}, s96, {lane}")
def stamp_out(A, wsreg, waves, base, vreg=120, tmp=121):
    if not Cfg.STAMP: return
    rstamp(A, 63, vreg)
    A.e(f"s_mul_i32 s100, s2, {waves}")
    A.e("s_add_u32 s100, s100, s20")
    A.e("s_lshl_b32 s100, s100, 8")
    A.e(f"s_add_u32 s100, s100, {base}")
    A.e(f"v_mbcnt_lo_u32_b32 v{tmp}, -1, 0")
    A.e(f"v_mbcnt_hi_u32_b32 v{tmp}, -1, v{tmp}")
    A.e(f"v_lshlrev_b32 v{tmp}, 2, v{tmp}")
    A.e(f"v_add_u32 v{tmp}, s100, v{tmp}")
    A.e(f"global_store_dword v{tmp}, v{vreg}, s[{wsreg}:{wsreg+1}]")
STAMP_BASE = 0x1200000
```

```python
from common import *
from sched import *
import math
LOG2E = math.log2(math.e)
GBUF = 18432; GXB = 8192
L_KR = 73728
L_KG = 55296; KGW = 25872
RA = 3
L_XR = 0; L_WKV = 81920; L_WR = 107520
L_QL = 0
L_PART = 0; PART = 3072
L_U0 = 92160; CS = 4160
L_WA = 108800; WCH = 10240
L_DUMMY = 160000
L_U1 = 64; L_WB = 16704
LDS_MEGA = 161024
def Wchunk(c): return (L_WA + c*WCH) if c < 5 else (L_WB + (c-5)*WCH)
XBUF = [L_KR, L_KR+8192, L_U0, L_U0+8192, L_U1, L_U1+8192]
WS_FLAG = 0x1100000
SPIN_MAX = 1 << 18
NCONV = 160
PU, PARE, PAIM, PBRE, PBIM, PCRE, PCIM, PLDT = 64, 66, 68, 70, 72, 74, 76, 78
PDSK, PX, PWQ, PWK, PWV, PWO, POUT, PDBG = 80, 82, 84, 86, 88, 90, 92, 94
PWS = 4
SA, SB, SC, SD, SE_, SF, SG, SH = 8, 12, 16, 40, 44, 48, 52, 56
VXD0, VXD1 = 200, 201
VWD = 202
VOUT = 205
VYO = 206
VOS, VOS2a, VOS2b = 207, 208, 209
VOG = 210
VTID16 = 213
VCU, VCK = 214, 215
VYS = 216
VYT, VUT = 217, 218
VUR = 219
VUW = 220
VRED = 221
VXF0, VXF1 = 222, 223
VWT = 224
VUD = 225
VQW = 226
VQR, VQRB = 231, 232
VXF0h, VXF1h, VWTh, VWTh2 = 233, 234, 235, 236
VSTAMP, VSTMP = 252, 253
S = [16, 32]; P = [48, 56]; O = [80, 96]; VW = 7; NT = 16
def QAr(tau): return vr(128+6*tau, 4)
def QBr(tau): return vr(132+6*tau, 2)
def KAr(t): return ar(4*t, 4)
def KBr(t): return ar(64+2*t, 2)
def VAr(t, u): return ar(96+8*t+4*u, 4)

def st(A): stamp(A, VSTAMP)

def prologue(A, pfx):
    A.e("s_load_dwordx16 s[64:79], s[0:1], 0")
    A.e("s_load_dwordx16 s[80:95], s[0:1], 64")
    A.e(f"s_load_dwordx2 s[4:5], s[0:1], 128")
    stamp_init(A, VSTAMP); st(A)
    A.e("v_and_b32 v1, 63, v0")
    A.e("v_lshrrev_b32 v12, 6, v0")
    A.e("v_lshlrev_b32 v4, 4, v1          ; lane*16")
    A.e("v_readfirstlane_b32 s20, v12")
    A.e("v_and_b32 v2, 15, v1")
    A.e("v_lshrrev_b32 v3, 4, v1")
    A.e("s_and_b32 s22, s3, 31            ; rb")
    A.e("s_lshr_b32 s23, s3, 5            ; hg")
    A.e("s_lshl_b32 s32, s20, 10          ; wave*1024")
    A.e("s_and_b32 s33, s3, 7")
    A.e("s_mul_i32 s33, s33, 20")
    A.e("s_lshr_b32 s34, s3, 3")
    A.e("s_add_u32 s33, s33, s34")
    A.e("s_min_u32 s33, s33, 159")
    A.e("s_lshl_b32 s34, s33, 2")
    A.e("s_add_u32 s34, s34, s20          ; channel d")
    A.e("s_movk_i32 s27, 1280")
    A.e("v_lshrrev_b32 v12, 3, v1")
    A.e("v_and_b32 v13, 7, v1")
    A.e("v_xor_b32 v13, v13, v12")
    A.e("v_lshlrev_b32 v13, 4, v13")
    A.e("s_lshl_b32 s21, s20, 4")
    A.e("v_add_u32 v12, s21, v12")
    A.e(f"v_mad_u32_u24 v{VXD0}, v12, s27, v13")
    A.e(f"v_add_u32 v{VXD1}, 10240, v{VXD0}")
    A.e("s_mov_b32 s26, 6554")
    for n in range(3):
        A.e(f"s_add_u32 s21, s20, {4*n}")
        A.e("s_lshl_b32 s21, s21, 6")
        A.e("v_add_u32 v12, s21, v1          ; p")
        A.e("v_mul_u32_u24 v13, s26, v12")
        A.e("v_lshrrev_b32 v13, 16, v13      ; rho")
        A.e("v_mul_u32_u24 v14, 10, v13")
        A.e("v_sub_u32 v14, v12, v14         ; cc")
        A.e("v_lshlrev_b32 v14, 4, v14")
        A.e("v_and_b32 v15, 0x33, v13")
        A.e("v_bfe_u32 v5, v13, 2, 1")
        A.e("v_lshl_or_b32 v15, v5, 3, v15")
        A.e("v_bfe_u32 v5, v13, 3, 1")
        A.e("v_lshl_or_b32 v15, v5, 2, v15")
        A.e(f"v_mad_u32_u24 v{VWD+n}, v15, s27, v14")
        if n == 2:
            A.e(f"v_mov_b32 v12, {OOB}")
            A.e("v_cmp_gt_u32 vcc, 64, v13")
            A.e("s_nop 1")
            A.e(f"v_cndmask_b32 v{VWD+2}, v12, v{VWD+2}, vcc")
    A.e("s_waitcnt lgkmcnt(0)")
    A.e("s_mul_i32 s21, s22, 81920")
    srd(A, SA, PX, 81920, add="s21")
    A.e("s_mul_i32 s21, s23, 160")
    srd(A, SD, PWQ, "0", add="s21")
    A.e(f"s_sub_u32 s{SD+2}, 819200, s21")

def addr_setup_items():
    T = Asm(); A = T
    A.e("s_lshl_b32 s21, s20, 4")
    A.e("v_add_u32 v12, s21, v2")
    A.e("v_lshlrev_b32 v12, 7, v12")
    A.e("v_and_b32 v13, 7, v2")
    A.e("v_xor_b32 v14, v13, v3")
    A.e(f"v_lshl_add_u32 v{VXF0}, v14, 4, v12")
    A.e("v_add_u32 v14, 4, v3")
    A.e("v_xor_b32 v14, v13, v14")
    A.e(f"v_lshl_add_u32 v{VXF1}, v14, 4, v12")
    A.e(f"v_add_u32 v{VXF0h}, 65536, v{VXF0}")
    A.e(f"v_add_u32 v{VXF1h}, 65536, v{VXF1}")
    A.e("v_lshrrev_b32 v12, 1, v3")
    A.e("v_lshlrev_b32 v12, 4, v12")
    A.e("v_and_b32 v13, 1, v3")
    A.e("v_lshl_add_u32 v12, v13, 2, v12")
    A.e("v_lshrrev_b32 v13, 2, v2")
    A.e("v_add_u32 v12, v12, v13")
    A.e("v_mul_u32_u24 v12, 160, v12")
    A.e("v_and_b32 v13, 3, v2")
    A.e(f"v_lshl_add_u32 v{VWT}, v13, 3, v12")
    A.e(f"v_add_u32 v{VWTh}, 65536, v{VWT}")
    A.e(f"v_add_u32 v{VWTh2}, 0x20000, v{VWT}")
    A.e("s_and_b32 s21, s20, 1")
    A.e("s_lshl_b32 s21, s21, 4")
    A.e("v_add_u32 v15, s21, v2          ; pos32")
    A.e("s_movk_i32 s26, 3277")
    A.e("s_lshr_b32 s24, s20, 1")
    A.e("s_mul_i32 s24, s24, 1280")
    for mt in range(5):
        A.e("v_lshlrev_b32 v12, 2, v3")
        A.e(f"v_add_u32 v12, {16*mt}, v12     ; c0")
        A.e("v_mul_u32_u24 v13, s26, v12")
        A.e("v_lshrrev_b32 v13, 16, v13      ; hl")
        A.e("v_mul_u32_u24 v14, 20, v13")
        A.e("v_sub_u32 v14, v12, v14         ; dim0")
        A.e("v_mul_u32_u24 v13, 2560, v13" if False else "v_mul_u32_u24 v13, 0xa00, v13")
        A.e("v_bfe_u32 v5, v14, 2, 1")
        A.e("v_lshlrev_b32 v5, 9, v5")
        A.e("v_lshrrev_b32 v6, 3, v14")
        A.e("v_lshl_add_u32 v5, v6, 3, v5")
        A.e("v_lshl_add_u32 v5, v15, 4, v5")
        A.e("v_lshlrev_b32 v6, 3, v15")
        A.e("v_add_u32 v6, 1024, v6")
        A.e("v_cmp_eq_u32 vcc, 16, v14")
        A.e("v_add_u32 v13, s24, v13")
        A.e("s_nop 0")
        A.e("v_cndmask_b32 v5, v5, v6, vcc")
        A.e(f"v_add_u32 v{VQW+mt}, v5, v13")
    A.e(f"v_mov_b32 v{VQR}, v4")
    A.e("v_and_b32 v12, 31, v1")
    A.e("v_lshlrev_b32 v12, 3, v12")
    A.e(f"v_add_u32 v{VQRB}, 1024, v12")
    A.e(f"v_mov_b32 v12, {OOB}")
    A.e("v_lshlrev_b32 v5, 3, v1")
    A.e("v_cmp_gt_u32 vcc, 32, v1")
    A.e("v_and_b32 v13, 31, v1")
    A.e("s_nop 0")
    A.e("v_cndmask_b32 v5, v12, v5, vcc")
    A.e("v_cmp_gt_u32 vcc, 21, v13")
    A.e("s_nop 1")
    A.e("v_cndmask_b32 v8, v12, v4, vcc")
    A.e(f"s_mul_i32 s21, s20, {6*PART}")
    A.e(f"v_add_u32 v{VRED}, s21, v4")
    A.e("v_and_b32 v13, 31, v1")
    A.e("v_mul_u32_u24 v13, 160, v13")
    A.e("v_lshrrev_b32 v14, 5, v1         ; h")
    A.e("v_lshl_add_u32 v13, v14, 3, v13")
    A.e("s_mul_i32 s24, s20, 40")
    A.e(f"v_add_u32 v{VOS}, s24, v13")
    A.e(f"v_mov_b32 v12, {L_DUMMY}")
    A.e(f"v_add_u32 v13, 32, v{VOS}")
    A.e("v_cmp_eq_u32 vcc, 0, v14")
    A.e(f"v_add_u32 v15, 5152, v{VOS}")
    A.e("s_nop 0")
    A.e(f"v_cndmask_b32 v{VOS2a}, v12, v13, vcc")
    A.e(f"v_cndmask_b32 v{VOS2b}, v12, v15, vcc")
    A.e("s_mov_b32 s26, 6554")
    A.e("s_movk_i32 s27, 1280")
    for i in range(3):
        A.e(f"v_add_u32 v14, {256*i}, v0")
        A.e("v_mul_u32_u24 v15, s26, v14")
        A.e("v_lshrrev_b32 v15, 16, v15")
        A.e("v_mul_u32_u24 v13, 10, v15")
        A.e("v_sub_u32 v13, v14, v13")
        A.e("v_lshlrev_b32 v13, 4, v13")
        A.e(f"v_mad_u32_u24 v{VOG+i}, v15, s27, v13")
    A.e(f"v_mov_b32 v12, {OOB}")
    A.e("v_cmp_gt_u32 vcc, 0x80, v0")
    A.e(f"v_lshlrev_b32 v{VTID16}, 4, v0")
    A.e("s_nop 0")
    A.e(f"v_cndmask_b32 v{VOG+2}, v12, v{VOG+2}, vcc")
    A.e("s_lshl_b32 s21, s20, 4")
    A.e("s_movk_i32 s26, 2560")
    A.e("v_add_u32 v13, s21, v2")
    A.e("v_mul_u32_u24 v13, s26, v13")
    A.e(f"v_lshl_add_u32 v{VOUT}, v3, 3, v13")
    A.e("s_lshl_b32 s21, s20, 9")
    A.e("v_add_u32 v13, s21, v1")
    A.e("v_mul_u32_u24 v13, s26, v13")
    A.e("s_lshl_b32 s21, s33, 3")
    A.e(f"v_add_u32 v{VYO}, s21, v13")
    A.e("v_add_u32 v12, 1, v2")
    A.e("v_and_b32 v12, 1, v12            ; cp")
    A.e("v_sub_u32 v13, v2, v12")
    A.e("v_add_u32 v13, 9, v13")
    A.e("v_and_b32 v14, 1, v3")
    A.e("v_lshlrev_b32 v14, 3, v14        ; 8(g&1)")
    A.e("v_sub_u32 v13, v13, v14")
    A.e("v_lshrrev_b32 v15, 1, v3         ; g>>1")
    A.e("v_lshl_add_u32 v13, v15, 4, v13")
    A.e("v_lshlrev_b32 v13, 1, v13")
    A.e("v_xor_b32 v12, 1, v12")
    A.e(f"s_mov_b32 s24, {L_U0 - L_U1}")
    A.e("v_mul_lo_u32 v12, v12, s24")
    A.e("v_add_u32 v13, v13, v12")
    A.e(f"s_mul_i32 s21, s20, {CS}")
    A.e(f"s_add_u32 s24, s21, {L_U1}")
    A.e(f"v_add_u32 v{VCU}, s24, v13")
    A.e(f"v_add_u32 v{VUW}, s21, v4")
    A.e("v_lshlrev_b32 v13, 4, v2")
    A.e("v_sub_u32 v13, 2040, v13")
    A.e("v_lshl_add_u32 v13, v15, 4, v13")
    A.e("v_sub_u32 v13, v13, v14")
    A.e("v_lshlrev_b32 v13, 1, v13")
    A.e("s_mul_i32 s24, s20, 4608")
    A.e(f"s_add_u32 s24, s24, {L_KR-3584}")
    A.e(f"v_add_u32 v{VCK}, s24, v13")
    A.e("v_lshlrev_b32 v13, 5, v2")
    A.e("v_lshl_add_u32 v13, v3, 3, v13")
    A.e(f"s_add_u32 s24, s21, {L_U1}")
    A.e(f"v_add_u32 v{VYS}, s24, v13")
    A.e("v_lshrrev_b32 v12, 2, v2")
    A.e(f"s_movk_i32 s24, {CS}")
    A.e("v_mul_u32_u24 v12, s24, v12")
    A.e("v_and_b32 v13, 3, v2")
    A.e("v_lshlrev_b32 v13, 3, v13")
    A.e("v_lshl_add_u32 v13, v3, 5, v13")
    A.e("v_add_u32 v12, v12, v13")
    A.e("s_lshl_b32 s21, s20, 10")
    A.e("v_add_u32 v12, s21, v12")
    A.e(f"v_add_u32 v{VYT}, {L_U1}, v12")
    A.e(f"v_add_u32 v{VUT}, {L_U0+32}, v12")
    A.e("s_lshr_b32 s21, s20, 1")
    A.e("s_mul_i32 s21, s21, 8320")
    A.e(f"s_add_u32 s21, s21, {L_U0}")
    A.e("v_lshlrev_b32 v13, 5, v1")
    A.e(f"v_add_u32 v{VUR}, s21, v13")
    A.e("s_movk_i32 s26, 1280")
    A.e("v_mul_u32_u24 v13, s26, v1")
    A.e("s_lshl_b32 s21, s33, 3")
    A.e("s_and_b32 s24, s20, 1")
    A.e("s_lshl_b32 s24, s24, 2")
    A.e("s_add_u32 s21, s21, s24")
    A.e(f"v_add_u32 v{VUD}, s21, v13")
    return [x.strip() for x in T.lines if x.strip()]

def wdma_ring(c, base):
    L = []
    for n in range(3):
        g = []
        if n == 0: g.append(f"s_mov_b32 s38, {64*1280*c}")
        if n < 2:
            g += [f"s_add_u32 m0, s32, {base + 4096*n}", "s_nop 0"]
        else:
            g += [f"s_add_u32 s39, s32, {base + 8192}", "s_cmp_lt_u32 s20, 2", f"s_cselect_b32 m0, s39, {L_DUMMY}", "s_nop 0"]
        g.append(f"buffer_load_dwordx4 v{VWD+n}, s[{SD}:{SD+3}], s38 offen lds")
        L.append(g)
    return L
def xdma(c, base, srd_=SA):
    return [[f"s_lshl_b32 s37, s20, 11", f"s_add_u32 m0, s37, {base}", f"s_movk_i32 s36, {128*c}",
             f"buffer_load_dwordx4 v{VXD0}, s[{srd_}:{srd_+3}], s36 offen lds"],
            [f"s_add_u32 m0, s37, {base+1024}", "s_nop 0",
             f"buffer_load_dwordx4 v{VXD1}, s[{srd_}:{srd_+3}], s36 offen lds"]]

GACC = 16; GWF = 36; GXF = [56, 60]
def gemm_rdX(kk, xb):
    ks = kk & 1
    if xb < 65536: a, o = (VXF0 if ks == 0 else VXF1), xb
    else: a, o = (VXF0h if ks == 0 else VXF1h), xb - 65536
    return It(f"ds_read_b128 {vr(GXF[kk & 1],4)}, v{a} offset:{o}", lds=f"x{kk}")
def gemm_rdW(kk, mt, wb):
    ks = kk & 1
    out = []
    for h in range(2):
        off = wb + (32*ks + 8*h)*160 + 32*mt
        a = VWT
        if off >= 131072: a, off = VWTh2, off - 131072
        elif off >= 65536: a, off = VWTh, off - 65536
        out.append(It(f"ds_read_b64_tr_b16 {vr(GWF+mt*4+h*2,2)}, v{a} offset:{off}", lds=f"w{kk}_{mt}"))
    return out
def gemm_mm(kk, mt):
    return It(f"v_mfma_f32_16x16x32_bf16 {vr(GACC+4*mt,4)}, {vr(GWF+mt*4,4)}, {vr(GXF[kk & 1],4)}, {vr(GACC+4*mt,4)}",
              needl=(f"x{kk}", f"w{kk}_{mt}"), w=2)
def gemm_items(xbase, wbase, sync, late=False):
    steps = []
    pre = list(sync(0)) + [gemm_rdX(0, xbase(0))]
    for mt in range(5): pre += gemm_rdW(0, mt, wbase(0))
    for kk in range(20):
        L = []
        c1 = (kk+1) >> 1
        boundary = (kk+1) & 1 == 0 and kk+1 < 20
        for mt in range(5):
            L.append(gemm_mm(kk, mt))
            if kk+1 < 20 and not (late and boundary):
                if mt == 0:
                    if boundary: L += list(sync(c1))
                    L.append(gemm_rdX(kk+1, xbase(c1)))
                L += gemm_rdW(kk+1, mt, wbase(c1))
        if late and boundary:
            L += list(sync(c1)) + [gemm_rdX(kk+1, xbase(c1))]
            for mt in range(5): L += gemm_rdW(kk+1, mt, wbase(c1))
        steps.append(L)
    return pre, steps

def rho(s, b):
    if s == 0: return b
    q = b >> s; rem = b & ((1 << s)-1); half = 1 << (s-1)
    if rem > half or (rem == half and (q & 1)): q += 1
    return q << s
KACC = 64
RS = 528
def kgen_setup_lines():
    T = Asm(); A = T
    A.e("v_lshlrev_b32 v12, 2, v1          ; lane*4")
    A.e("s_lshl_b32 s24, s34, 8           ; d*256")
    A.e("v_add_u32 v13, s24, v12")
    for k, s in enumerate((PARE, PAIM, PBRE, PBIM, PCRE, PCIM)):
        A.e(f"global_load_dword v{104+k}, v13, s[{s}:{s+1}]")
    A.e("s_lshl_b32 s24, s34, 1")
    A.e("v_mov_b32 v14, s24")
    A.e(f"global_load_ushort v110, v14, s[{PLDT}:{PLDT+1}]")
    A.e(f"s_mul_i32 s21, s20, {KGW}")
    A.e(f"s_add_u32 s21, s21, {L_KG}")
    A.e("v_lshlrev_b32 v14, 3, v1            ; lane*8")
    A.e("v_add_u32 v196, s21, v14")
    A.e(f"v_add_u32 v197, {33*RS}, v196")
    for s in range(4):
        for mt in range(2):
            dst = 112 + 2*s + mt
            A.e(f"v_add_u32 v15, {16*mt}, v2          ; b")
            if s > 0:
                half = 1 << (s-1)
                A.e(f"v_bfe_u32 v12, v15, {s}, 1")
                A.e(f"v_add3_u32 v15, v15, v12, {half-1}")
                A.e(f"v_lshrrev_b32 v15, {s}, v15")
                A.e(f"v_lshlrev_b32 v15, {s}, v15")
            A.e(f"v_mul_u32_u24 v15, {RS}, v15")
            A.e(f"v_lshl_add_u32 v15, v3, 4, v15")
            A.e(f"v_add_u32 v{dst}, s21, v15")
    for s in range(1, 4):
        for b in range(32):
            half = 1 << (s-1)
            assert (((b + half - 1 + ((b >> s) & 1)) >> s) << s) == rho(s, b)
    A.e(f"v_mul_u32_u24 v15, {RS}, v2")
    A.e("v_lshl_add_u32 v15, v3, 4, v15")
    A.e(f"v_add_u32 v15, {33*RS}, v15")
    A.e("v_add_u32 v111, s21, v15")
    for i in range(40): A.e(f"v_mov_b32 v{KACC+i}, 0")
    return [x.strip() for x in T.lines if x.strip()]

def kgen_parts():
    L = []
    a = lambda t, **k: L.append(It(t, **k))
    E1 = [120, 122]; E32 = [124, 126]
    C = [176, 178]; TM = [180, 182]
    PK = [184, 186]
    WC = [188, 190]
    a("v_lshlrev_b32 v110, 16, v110", needv=("kp",))
    a(f"v_mul_f32 v110, {hex(f2u(LOG2E))}, v110")
    a("v_exp_f32 v110, v110")
    a("s_nop 0")
    a("v_cvt_pk_bf16_f32 v110, v110, v110")
    a("v_lshlrev_b32 v110, 16, v110")
    for hf in range(2):
        for k in range(6):
            a(f"v_lshlrev_b32 v{176+k}, 16, v{104+k}" if hf == 0 else f"v_and_b32 v{176+k}, 0xffff0000, v{104+k}")
        ZR, ZI = 192, 193
        a(f"v_mul_f32 v{ZR}, v110, v176"); a(f"v_mul_f32 v{ZI}, v110, v177")
        a("v_mul_f32 v178, v110, v178"); a("v_mul_f32 v179, v110, v179")
        a(f"v_mul_f32 v{ZR}, {hex(f2u(LOG2E))}, v{ZR}"); a(f"v_mul_f32 v{ZI}, {hex(f2u(1/(2*math.pi)))}, v{ZI}")
        w = WC[hf]
        a(f"v_mul_f32 v{w}, v180, v178"); a(f"v_mul_f32 v{w+1}, v180, v179")
        a(f"v_fma_f32 v{w}, -v181, v179, v{w}"); a(f"v_fma_f32 v{w+1}, v181, v178, v{w+1}")
        for (m, dst) in ((1, E1[hf]), (32, E32[hf])):
            if m == 1:
                a(f"v_exp_f32 v182, v{ZR}"); a(f"v_fract_f32 v183, v{ZI}")
            else:
                lit = hex(f2u(float(m)))
                a(f"v_mul_f32 v182, {lit}, v{ZR}"); a(f"v_mul_f32 v183, {lit}, v{ZI}")
                a("v_exp_f32 v182, v182"); a("v_fract_f32 v183, v183")
            a("v_cos_f32 v194, v183"); a("v_sin_f32 v195, v183")
            a("s_nop 0")
            a(f"v_mul_f32 v{dst}, v182, v194"); a(f"v_mul_f32 v{dst+1}, v182, v195")
    for hf in range(2):
        a(f"v_mov_b32 v{C[hf]}, v{WC[hf]}"); a(f"v_mov_b32 v{C[hf]+1}, v{WC[hf]+1}")
    setup = L
    def cm(x, e, t):
        return (f"v_pk_mul_f32 v[{t}:{t+1}], v[{x}:{x+1}], v[{e}:{e+1}] op_sel:[0,0] op_sel_hi:[0,1]",
                f"v_pk_fma_f32 v[{x}:{x+1}], v[{x}:{x+1}], v[{e}:{e+1}], v[{t}:{t+1}] op_sel:[1,1,0] op_sel_hi:[1,0,1] neg_lo:[1,0,0]")
    rows = []
    def row(n, r, e, neg, waddr, stp, pre=()):
        pk = PK[n & 1]; sg = "-" if neg else ""
        R = [It(y) for y in pre]
        if stp: R += [It(cm(C[0], e[0], TM[0])[0]), It(cm(C[1], e[1], TM[1])[0])]
        R += [It(f"v_cvt_pk_bf16_f32 v{pk}, v{C[0]}, {sg}v{C[0]+1}"), It(f"v_cvt_pk_bf16_f32 v{pk+1}, v{C[1]}, {sg}v{C[1]+1}")]
        if stp: R += [It(cm(C[0], e[0], TM[0])[1]), It(cm(C[1], e[1], TM[1])[1])]
        R.append(It(f"ds_write_b64 v{waddr}, {vr(pk,2)} offset:{r*RS}", lds="kw"))
        rows.append(R)
    for j in range(33): row(j, j, E1, True, 196, j < 32)
    one = [f"v_mov_b32 v{C[0]}, 1.0", f"v_mov_b32 v{C[0]+1}, 0", f"v_mov_b32 v{C[1]}, 1.0", f"v_mov_b32 v{C[1]+1}, 0"]
    for nt in range(4):
        for r in range(16):
            row(33+16*nt+r, r, E32, False, 197, not (nt == 3 and r == 15), pre=(one if (nt == 0 and r == 0) else ()))
    AF, BF = 64, 32
    afr, bfr, mms = [], [], []
    for nt in range(4):
        variants = [(0,0),(0,1),(1,0),(1,1)] if nt == 0 else [((2 if nt == 1 else 3), 0), ((2 if nt == 1 else 3), 1)]
        tiles = [0,1,2,3] if nt == 0 else [2+2*nt, 3+2*nt]
        ra = []; mm = []
        tagnt = nt if nt < 3 else 2
        base = AF if nt != 1 else AF
        for ks in range(8):
            for vi, (s, mt) in enumerate(variants):
                r = base + (ks*len(variants) + vi)*4 + (64 if nt >= 2 else 0)
                if nt < 3: ra.append(It(f"ds_read_b128 {ar(r,4)}, v{112+2*s+mt} offset:{64*ks}", lds=f"ka{nt}"))
                acc = KACC + 4*tiles[vi]
                mm.append(It(f"v_mfma_f32_16x16x32_bf16 {vr(acc,4)}, {ar(r,4)}, {ar(BF+4*ks,4)}, {vr(acc,4)}",
                             needl=(f"kb{nt}_{ks}", f"ka{tagnt}"), w=2))
        afr.append(ra)
        bfr.append([It(f"ds_read_b128 {ar(BF+4*ks,4)}, v111 offset:{64*ks}", lds=f"kb{nt}_{ks}") for ks in range(8)])
        mms.append(mm)
    return setup, rows, afr, bfr, mms

def kgen_pack_lines():
    T = Asm(); A = T
    ACC = KACC
    A.e("v_cmp_gt_u32 vcc, 8, v2")
    A.e("s_nop 1")
    for i in range(8):
        A.e(f"v_cndmask_b32 v{ACC+i}, v{ACC+8+i}, v{ACC+i}, vcc")
    for nt in range(4):
        for mt in range(2):
            tile = mt if nt == 0 else 2+2*nt+mt
            acc = ACC + 4*tile
            b = 176 + 2*(nt*2+mt)
            A.e(f"v_cvt_pk_bf16_f32 v{b}, v{acc+3}, v{acc+2}")
            A.e(f"v_cvt_pk_bf16_f32 v{b+1}, v{acc+1}, v{acc}")
    return [x.strip() for x in T.lines if x.strip()]
def kgen_write_lines():
    T = Asm(); A = T
    A.e("s_mul_i32 s21, s20, 4608")
    A.e(f"s_add_u32 s21, s21, {L_KR}")
    A.e("v_lshlrev_b32 v15, 5, v2")
    A.e("v_lshl_add_u32 v15, v3, 2, v15    ; 32c + 4g")
    A.e("v_sub_u32 v15, 2044, v15")
    A.e("v_lshlrev_b32 v15, 1, v15")
    A.e(f"v_add_u32 v15, s21, v15")
    A.e(f"v_subrev_u32 v15, {(512*3+16)*2}, v15")
    for nt in range(4):
        for mt in range(2):
            b = 176 + 2*(nt*2+mt)
            A.e(f"ds_write_b64 v15, {vr(b,2)} offset:{(512*3+16)*2 - (512*nt+16*mt)*2}")
    A.e("v_mov_b32 v192, 0"); A.e("v_mov_b32 v193, 0")
    A.e("v_lshlrev_b32 v12, 3, v1")
    A.e(f"s_add_u32 s21, s21, 4096")
    A.e("v_add_u32 v12, s21, v12")
    A.e("ds_write_b64 v12, v[192:193]")
    return [x.strip() for x in T.lines if x.strip()]

def q_epilogue(A, q):
    A.e(f"s_mov_b32 s26, {hex(f2u(QSCALE))}")
    for mt in range(5):
        acc = GACC + 4*mt
        for i in range(4): A.e(f"v_mul_f32 v{acc+i}, s26, v{acc+i}")
        A.e(f"v_cvt_pk_bf16_f32 v{36+mt*2}, v{acc}, v{acc+1}")
        A.e(f"v_cvt_pk_bf16_f32 v{37+mt*2}, v{acc+2}, v{acc+3}")
        q.emit(It(f"ds_write_b64 v{VQW+mt}, {vr(36+mt*2,2)}", lds="qw"))

def front_a(A, pfx):
    q = Q(A)
    ks_lines = kgen_setup_lines()
    nload = 0
    for l in ks_lines:
        if l.startswith("global_load"): q.emit(It(l, vm="kp"))
        else: A.e(l)
    def chunk_dma(c):
        b = (c % RA) * GBUF
        return [It(g, vm=f"c{c}") for g in xdma(c, b) + wdma_ring(c, b + GXB)]
    setup = addr_setup_items()
    pro = []
    for c in range(3): pro += chunk_dma(c)
    safe = [i for i, l in enumerate(setup) if l.startswith("v_") and not l.startswith("v_cndmask") and i+1 < len(setup)
            and not setup[i+1].startswith("v_cndmask") and not setup[i+1].startswith("s_nop") and not l.startswith("v_cmp")
            and not setup[i+1].startswith("s_addc")]
    step = max(1, len(safe)//len(pro))
    pts = {safe[min(k*step, len(safe)-1)]: k for k in range(len(pro))}
    done = 0
    for i, l in enumerate(setup):
        A.e(l)
        if i in pts:
            q.emit(pro[pts[i]]); done += 1
    assert done == len(pro), (done, len(pro))
    for i in range(20): A.e(f"v_mov_b32 v{GACC+i}, 0")
    st(A)
    def sync(c):
        L = [It("s_barrier", needv=(f"c{c}",))]
        if c >= 1 and c+2 < 10: L += chunk_dma(c+2)
        return L
    pre, steps = gemm_items(lambda c: (c % RA)*GBUF, lambda c: (c % RA)*GBUF + GXB, sync, late=True)
    ksetup, rows, afr, bfr, mms = kgen_parts()
    q.run(ksetup)
    for r in rows[:10]: q.run(r)
    q.run(pre)
    st(A)
    pos = 10
    due = {49: 0, 65: 1, 81: 2, 97: 3}
    arow = {}
    for i, it in enumerate(afr[0]): arow.setdefault(33 + (i*16)//len(afr[0]), []).append(it)
    for i, it in enumerate(afr[2]): arow.setdefault(50 + (i*14)//len(afr[2]), []).append(it)
    for i, it in enumerate(afr[1]): arow.setdefault(49 + (i*8)//len(afr[1]), []).append(it)
    nrows = len(rows)
    bounds = [10 + ((kk+1)*(nrows-10) + 19)//20 for kk in range(20)]
    for kk in range(20):
        q.run(steps[kk])
        while pos < bounds[kk]:
            extra = arow.get(pos, [])
            R = rows[pos]
            q.run(R[:-1] + extra + R[-1:] if False else R + extra)
            pos += 1
            if pos in due:
                nt = due[pos]
                q.run(bfr[nt])
                q.run(mms[nt])
        if Cfg.STAMP and kk in (4, 9, 14): st(A); q.lq = []
    q.all_l()
    A.e("s_nop 7")
    st(A)
    for l in kgen_pack_lines(): A.e(l)
    q.all_l(); q.all_v()
    A.e("s_barrier")
    for l in kgen_write_lines():
        q.emit(It(l, lds="ko") if l.startswith("ds_") else It(l))
    q_epilogue(A, q)
    A.e("v_mov_b32 v192, 0"); A.e("v_mov_b32 v193, 0")
    A.e("s_and_b32 s21, s20, 1")
    A.e("s_mul_i32 s21, s21, 8320")
    A.e(f"s_add_u32 s21, s21, {L_U0}")
    A.e("v_and_b32 v12, 15, v1")
    A.e("v_lshlrev_b32 v12, 2, v12")
    A.e("v_lshrrev_b32 v13, 4, v1")
    A.e("v_and_b32 v13, 1, v13")
    A.e("v_mul_u32_u24 v13, 0x2040, v13        ; 8256")
    A.e("v_add3_u32 v12, v12, v13, s21")
    q.emit(It("ds_write_b32 v12, v192", lds="z"))
    return q

def front_b(A, pfx):
    q = Q(A)
    setup = addr_setup_items()
    A.e("s_cmp_eq_u32 s23, 5")
    A.e(f"s_cselect_b32 s24, s{PWK}, s{PWV}")
    A.e(f"s_cselect_b32 s25, s{PWK+1}, s{PWV+1}")
    A.e(f"s_mov_b32 s{SB}, s24"); A.e(f"s_mov_b32 s{SB+1}, s25"); A.e(f"s_mov_b32 s{SB+2}, 25600"); A.e(f"s_mov_b32 s{SB+3}, 0x20000")
    A.e("s_cmp_eq_u32 s23, 7")
    A.e(f"s_cbranch_scc1 {pfx}_b_nowkv")
    for i in range(7):
        if i < 6:
            A.e(f"s_add_u32 s28, s32, {4096*i}")
            A.e(f"s_add_u32 m0, s28, {L_WKV}")
            A.e("s_nop 0")
            A.e(f"buffer_load_dwordx4 v4, s[{SB}:{SB+3}], s28 offen lds")
        else:
            A.e("s_cmp_eq_u32 s20, 0")
            A.e(f"s_cselect_b32 m0, {L_WKV + 24*1024}, {L_DUMMY}" if False else f"s_mov_b32 s29, {L_WKV + 24*1024}")
            A.e(f"s_cselect_b32 m0, s29, {L_DUMMY}")
            A.e(f"s_mov_b32 s30, 0x7fff0000")
            A.e(f"s_cselect_b32 s28, {24*1024}, s30")
            A.e(f"buffer_load_dwordx4 v4, s[{SB}:{SB+3}], s28 offen lds")
    A.label(f"{pfx}_b_nowkv")
    pro = []
    for c in range(10): pro += [It(g, vm=f"x{c}") for g in xdma(c, L_XR + 8192*c)]
    for c in range(4): pro += [It(g, vm=f"w{c}") for g in wdma_ring(c, L_WR + WCH*c)]
    safe = [i for i, l in enumerate(setup) if l.startswith("v_") and not l.startswith("v_cndmask") and i+1 < len(setup)
            and not setup[i+1].startswith("v_cndmask") and not setup[i+1].startswith("s_nop") and not l.startswith("v_cmp")
            and not setup[i+1].startswith("s_addc")]
    step = max(1, len(safe)//len(pro))
    pts = {safe[min(k*step, len(safe)-1)]: k for k in range(len(pro))}
    for i, l in enumerate(setup):
        A.e(l)
        if i in pts: q.emit(pro[pts[i]])
    st(A)
    A.e("s_cmp_eq_u32 s23, 7")
    A.e(f"s_cbranch_scc1 {pfx}_b_nokv")
    KV, KW, KX = 64, 72, [104, 108]
    A.e("v_lshrrev_b32 v12, 2, v2")
    A.e("v_lshl_add_u32 v12, v3, 3, v12")
    A.e("v_mul_u32_u24 v12, 40, v12")
    A.e("v_and_b32 v13, 3, v2")
    A.e("v_lshl_add_u32 v12, v13, 3, v12")
    A.e(f"v_add_u32 v176, {L_WKV}, v12")
    for i in range(8): A.e(f"v_mov_b32 v{KV+i}, 0")
    vq_save = list(q.vq)
    q.wait_v(("x0",))
    A.e("s_barrier")
    def rds(kk):
        c, ks = kk >> 1, kk & 1; b = kk & 1
        xb = L_XR + 8192*c
        a, o = ((VXF0 if ks == 0 else VXF1), xb) if xb < 65536 else ((VXF0h if ks == 0 else VXF1h), xb-65536)
        out = [It(f"ds_read_b128 {vr(KX[b],4)}, v{a} offset:{o}", lds=f"kx{kk}", needv=(f"x{c}",))]
        for m in range(2):
            for h in range(2):
                out.append(It(f"ds_read_b64_tr_b16 {vr(KW+8*b+4*m+2*h,2)}, v176 offset:{(32*kk + 4*h)*40 + 32*m}", lds=f"kw{kk}"))
        return out
    for variant in ("k", "v"):
        if variant == "k":
            A.e("s_cmp_eq_u32 s23, 5")
            A.e(f"s_cbranch_scc0 {pfx}_b_vpart")
        else:
            A.label(f"{pfx}_b_vpart")
        qq = Q(A); qq.vq = list(q.vq)
        qq.run(rds(0))
        for kk in range(20):
            if kk+1 < 20: qq.run(rds(kk+1))
            b = kk & 1
            for m in range(2):
                if variant == "k": t = f"v_mfma_f32_16x16x32_bf16 {vr(KV+4*m,4)}, {vr(KW+8*b+4*m,4)}, {vr(KX[b],4)}, {vr(KV+4*m,4)}"
                else: t = f"v_mfma_f32_16x16x32_bf16 {vr(KV+4*m,4)}, {vr(KX[b],4)}, {vr(KW+8*b+4*m,4)}, {vr(KV+4*m,4)}"
                qq.emit(It(t, needl=(f"kx{kk}", f"kw{kk}")))
        A.e("s_lshr_b32 s21, s20, 1")
        A.e("s_lshl_b32 s26, s22, 1")
        A.e("s_add_u32 s21, s21, s26          ; T")
        A.e("s_and_b32 s26, s20, 1            ; u")
        srd(A, SC, PWS, WS_VA + 64*2048)
        A.e(f"v_mov_b32 v19 , {OOB}".replace(" ,", ","))
        A.e("v_and_b32 v12, 1, v3             ; h (g&1)")
        A.e("v_cmp_gt_u32 vcc, 2, v3")
        A.e(f"v_cvt_pk_bf16_f32 v112, v{KV}, v{KV+1}")
        A.e(f"v_cvt_pk_bf16_f32 v113, v{KV+2}, v{KV+3}")
        A.e(f"v_cvt_pk_bf16_f32 v116, v{KV+4}, v{KV+5}")
        A.e(f"v_cvt_pk_bf16_f32 v117, v{KV+6}, v{KV+7}")
        if variant == "v":
            A.e("s_mov_b64 s[28:29], vcc")
            A.e("v_cmp_eq_u32 vcc, 4, v2")
            A.e("v_mov_b32 v13, 0x3f803f80")
            A.e("s_nop 0")
            A.e("v_cndmask_b32 v116, v116, v13, vcc")
            A.e("v_cndmask_b32 v117, v117, v13, vcc")
            A.e("s_mov_b64 vcc, s[28:29]")
        A.e("v_mov_b32 v120, v112"); A.e("v_mov_b32 v121, v113")
        A.e("v_mov_b32 v122, v116"); A.e("v_mov_b32 v123, v117")
        A.e("s_nop 1")
        A.e("v_permlane32_swap_b32 v120, v114")
        A.e("v_permlane32_swap_b32 v121, v115")
        A.e("v_permlane32_swap_b32 v122, v118")
        A.e("v_permlane32_swap_b32 v123, v119")
        if variant == "k":
            A.e("s_lshl_b32 s28, s26, 4")
            A.e("v_add_u32 v14, s28, v2           ; key32")
            A.e("v_lshl_add_u32 v15, v12, 5, v14")
            A.e("v_lshlrev_b32 v15, 4, v15")
            A.e("s_lshl_b32 s28, s21, 10")
            A.e(f"s_add_u32 s28, s28, {WS_KA}")
            A.e("v_add_u32 v15, s28, v15")
            A.e("v_cndmask_b32 v15, v19, v15, vcc")
            A.e(f"buffer_store_dwordx4 v[112:115], v15, s[{SC}:{SC+3}], 0 offen sc1")
            A.e("v_lshlrev_b32 v14, 3, v14")
            A.e("s_lshl_b32 s28, s21, 9")
            A.e(f"s_add_u32 s28, s28, {WS_KB}")
            A.e("v_add_u32 v14, s28, v14")
            A.e("v_cmp_eq_u32 vcc, 0, v3")
            A.e("s_nop 1")
            A.e("v_cndmask_b32 v14, v19, v14, vcc")
            A.e(f"buffer_store_dwordx2 v[116:117], v14, s[{SC}:{SC+3}], 0 offen sc1")
            A.e("s_lshl_b32 s28, s22, 7")
            A.e(f"s_add_u32 s28, s28, {WS_FLAG}")
            srd(A, SE_, PWS, 128, add="s28")
            A.e("v_lshlrev_b32 v14, 2, v0")
            A.e("v_mov_b32 v13, 0")
            A.e(f"buffer_store_dword v13, v14, s[{SE_}:{SE_+3}], 0 offen sc1")
        else:
            A.e("v_lshl_add_u32 v15, v12, 5, v2")
            A.e("v_lshlrev_b32 v15, 4, v15")
            A.e("s_lshl_b32 s28, s21, 11")
            A.e("s_lshl_b32 s29, s26, 10")
            A.e("s_add_u32 s28, s28, s29")
            A.e(f"s_add_u32 s28, s28, {WS_VA}")
            A.e("v_add_u32 v15, s28, v15")
            A.e("v_add_u32 v14, 256, v15")
            A.e("v_cndmask_b32 v15, v19, v15, vcc")
            A.e("v_cndmask_b32 v14, v19, v14, vcc")
            A.e(f"buffer_store_dwordx4 v[112:115], v15, s[{SC}:{SC+3}], 0 offen sc1")
            A.e("v_cmp_gt_u32 vcc, 5, v2")
            A.e("s_nop 1")
            A.e("v_cndmask_b32 v14, v19, v14, vcc")
            A.e(f"buffer_store_dwordx4 v[116:119], v14, s[{SC}:{SC+3}], 0 offen sc1")
        A.e("s_waitcnt vmcnt(0)")
        A.e("s_barrier")
        A.e("s_cmp_lg_u32 s20, 0")
        A.e(f"s_cbranch_scc1 {pfx}_b_nf{variant}")
        srd(A, SE_, PDBG, 256)
        A.e("s_sub_u32 s28, s23, 5")
        A.e("s_lshl_b32 s28, s28, 5")
        A.e("s_add_u32 s28, s28, s22")
        A.e("s_lshl_b32 s28, s28, 2")
        A.e("v_mov_b32 v14, s28")
        A.e("v_mov_b32 v13, 1")
        A.e("s_mov_b64 exec, 1")
        A.e(f"buffer_store_dword v13, v14, s[{SE_}:{SE_+3}], 0 offen sc1")
        A.e("s_mov_b64 exec, -1")
        A.label(f"{pfx}_b_nf{variant}")
        if variant == "k": A.e(f"s_branch {pfx}_b_nokv")
    A.label(f"{pfx}_b_nokv")
    st(A)
    A.e("s_waitcnt vmcnt(0)")
    q.vq = []
    for i in range(20): A.e(f"v_mov_b32 v{GACC+i}, 0")
    def sync(c):
        L = [It("s_barrier", needv=(f"w{c}",))]
        if c >= 2 and c+2 < 10: L += [It(g, vm=f"w{c+2}") for g in wdma_ring(c+2, L_WR + WCH*((c+2) % 4))]
        return L
    pre, steps = gemm_items(lambda c: L_XR + 8192*c, lambda c: L_WR + WCH*(c % 4), sync)
    q.run(pre)
    for kk in range(20): q.run(steps[kk])
    q.all_l(); q.all_v()
    A.e("s_nop 4")
    st(A)
    A.e("s_barrier")
    q_epilogue(A, q)
    return q

def poll(A, pfx, name, srd_, nl, cmpmask):
    A.e("s_cmp_lg_u32 s20, 0")
    A.e(f"s_cbranch_scc1 {pfx}_{name}_np")
    A.e("v_lshlrev_b32 v12, 2, v1")
    A.e(f"s_mov_b32 s35, {SPIN_MAX}")
    if nl < 64: A.e(f"s_mov_b64 exec, {hex((1 << nl)-1)}")
    A.label(f"{pfx}_{name}_p")
    A.e(f"buffer_load_dword v13, v12, s[{srd_}:{srd_+3}], 0 offen sc1")
    A.e("s_waitcnt vmcnt(0)")
    A.e("v_cmp_ne_u32 vcc, 0, v13")
    A.e("s_sub_u32 s35, s35, 1")
    A.e("s_cmp_eq_u32 s35, 0")
    A.e(f"s_cbranch_scc1 {pfx}_{name}_d")
    if nl == 64:
        A.e("s_cmp_eq_u64 vcc, -1")
    else:
        A.e(f"s_cmp_eq_u32 vcc_lo, {hex((1 << nl)-1)}")
    A.e(f"s_cbranch_scc1 {pfx}_{name}_d")
    A.e("s_sleep 1")
    A.e(f"s_branch {pfx}_{name}_p")
    A.label(f"{pfx}_{name}_d")
    if nl < 64: A.e("s_mov_b64 exec, -1")
    A.label(f"{pfx}_{name}_np")

PREF_K, PREF_V = 6, 5
def step(A, tau, t, first=False, last=False, fillers=None, pre=None):
    cur = S[t & 1]; nxt = S[(t+1) & 1]
    Pc = P[t & 1]; Pp = P[(t+1) & 1]
    par = tau & 1
    if t < NT-1: nt, ntau = t+1, tau
    else: nt, ntau = 0, tau+1
    do_next = not (last and t == NT-1)
    M1 = f"v_mfma_f32_32x32x16_bf16 {vr(nxt,16)}, {KAr(nt)}, {QAr(ntau)}, 0" if do_next else None
    M2 = f"v_mfma_f32_32x32x8_bf16 {vr(nxt,16)}, {KBr(nt)}, {QBr(ntau)}, {vr(nxt,16)}" if do_next else None
    if t == 0: pt, op, c0 = NT-1, O[par ^ 1], None
    else:
        pt, op = t-1, O[par]
        c0 = "0" if t == 1 else None
    if t == 0 and first: PV0p = PVp = None
    else:
        PV0p = f"v_mfma_f32_32x32x16_bf16 {vr(op,16)}, {VAr(pt,0)}, {vr(Pp,4)}, {c0 or vr(op,16)}"
        PVp = f"v_mfma_f32_32x32x16_bf16 {vr(op,16)}, {VAr(pt,1)}, {vr(Pp+4,4)}, {vr(op,16)}"
    E = lambda i: f"v_exp_f32 v{cur+i}, v{cur+i}"
    C = lambda i: f"v_cvt_pk_bf16_f32 v{Pc+i}, v{cur+2*i}, v{cur+2*i+1}"
    seq = [E(0), M1, E(1), E(2), C(0), E(3), E(4), PV0p, C(1), E(5), E(6), C(2), E(7), M2, E(8), C(3), E(9), E(10), C(4), E(11),
           PVp, E(12), C(5), E(13), E(14), E(15), C(6), C(7)]
    seq = [x for x in seq if x]
    groups = list(fillers or [])
    if groups:
        epos = [i for i, x in enumerate(seq) if x.startswith("v_exp")]
        flat = []
        for g in groups:
            if any(y.startswith("s_cbranch") for y in g) or any("exec" in y for y in g): flat.append(g)
            elif any("m0" in y for y in g): flat.append(g)
            else: flat += [[y] for y in g]
        n = len(flat); out = []; k = 0
        for i, x in enumerate(seq):
            out.append(x)
            if i in epos:
                want = ((epos.index(i)+1)*n + len(epos)-1)//len(epos) if True else 0
                while k < min(want, n):
                    out += flat[k]; k += 1
        for g in flat[k:]: out += g
        seq = out
    for x in (pre or []): A.e(x)
    for x in seq:
        if x.endswith(":"): A.label(x[:-1])
        else: A.e(x)

def part_addr():
    return [["s_lshr_b32 s35, s37, 1", "s_sub_u32 s35, s20, s35", "s_sub_u32 s35, s35, 1", "s_and_b32 s35, s35, 3",
             "s_mul_i32 s36, s37, 3", "s_add_u32 s35, s35, s36", f"s_mul_i32 s35, s35, {PART}", f"v_add_u32 v{VW}, s35, v4",
             "s_add_u32 s37, s37, 1", "s_and_b32 s37, s37, 7"]]
def part_write(tau):
    par = (tau-1) & 1
    return [[f"ds_write_b128 v{VW}, {vr(O[par]+4*g,4)} offset:{1024*g}" for g in range(3)]]

def attention(A, pfx):
    srd(A, SE_, PDBG, 256)
    poll(A, pfx, "kv", SE_, 64, None)
    A.e("s_waitcnt lgkmcnt(0)")
    A.e("s_barrier")
    st(A)
    srd(A, SA, PWS, WS_VA + 64*2048)
    A.e("s_lshl_b32 s24, s20, 14          ; KA: T*1024")
    A.e(f"s_lshl_b32 s25, s20, 13         ; KB: T*512")
    A.e(f"s_add_u32 s25, s25, {WS_KB}")
    A.e("s_lshl_b32 s26, s20, 15          ; VA: T*2048")
    A.e(f"s_add_u32 s26, s26, {WS_VA}")
    def ldK(t): return [[f"s_add_u32 s27, s24, {1024*t}", f"buffer_load_dwordx4 {KAr(t)}, v4, s[{SA}:{SA+3}], s27 offen"],
                        [f"s_add_u32 s28, s25, {512*t}", f"buffer_load_dwordx2 {KBr(t)}, v5, s[{SA}:{SA+3}], s28 offen"]]
    def ldV(t): return [[f"s_add_u32 s29, s26, {2048*t}", f"buffer_load_dwordx4 {VAr(t,0)}, v8, s[{SA}:{SA+3}], s29 offen"],
                        [f"buffer_load_dwordx4 {VAr(t,1)}, v8, s[{SA}:{SA+3}], s29 offen offset:1024"]]
    PK, PVn = PREF_K, PREF_V
    for g in ldK(0)[0:2]:
        for x in g: A.e(x)
    for tau in range(8):
        A.e(f"v_mov_b32 v{132+6*tau}, 0"); A.e(f"v_mov_b32 v{133+6*tau}, 0")
    A.e("s_lshl_b32 s33, s20, 1" if False else "s_lshl_b32 s35, s20, 1")
    for tau in range(8):
        A.e(f"s_add_u32 s36, s35, {2+tau}")
        A.e("s_and_b32 s36, s36, 7")
        A.e("s_mul_i32 s36, s36, 1280")
        A.e(f"v_add_u32 v12, s36, v{VQR}")
        A.e(f"v_add_u32 v13, s36, v{VQRB}")
        A.e(f"ds_read_b128 {QAr(tau)}, v12")
        A.e("s_mov_b32 exec_hi, 0")
        A.e(f"ds_read_b64 {QBr(tau)}, v13")
        A.e("s_mov_b32 exec_hi, -1")
        if tau == 3:
            for g in ldV(0):
                for x in g: A.e(x)
            A.e("s_waitcnt lgkmcnt(4)")
    for t in range(1, PK):
        for g in ldK(t):
            for x in g: A.e(x)
        if t < PVn:
            for g in ldV(t):
                for x in g: A.e(x)
    A.e("s_add_u32 s37, s35, 2")
    A.e("s_and_b32 s37, s37, 7")
    A.e("s_mul_i32 s21, s23, 160")
    srd(A, SD, PWO, "0", add="s21")
    A.e(f"s_sub_u32 s{SD+2}, 819200, s21")
    srd(A, SF, PU, 2048*1280)
    A.e("s_waitcnt lgkmcnt(0)")
    A.e("s_barrier")
    order = ["K0", "V0"]
    for t in range(1, PK):
        order.append(f"K{t}")
        if t < PVn: order.append(f"V{t}")
    A.e(f"s_waitcnt vmcnt({2*(len(order)-1)})")
    st(A)
    A.e(f"v_mfma_f32_32x32x16_bf16 {vr(S[0],16)}, {KAr(0)}, {QAr(0)}, 0")
    A.e(f"v_mfma_f32_32x32x8_bf16 {vr(S[0],16)}, {KBr(0)}, {QBr(0)}, {vr(S[0],16)}")
    A.e("s_nop 7"); A.e("s_nop 3")
    for t in range(NT):
        fl = []; need = []
        if t+1 < NT: need.append(f"K{t+1}")
        if t >= 1: need.append(f"V{t-1}")
        idx = max(order.index(x) for x in need)
        nout = 2*(len(order) - 1 - idx)
        if t == NT-1: nout = 0
        new = []
        if t+PK < NT: fl += ldK(t+PK); new.append(f"K{t+PK}")
        if t+PVn < NT: fl += ldV(t+PVn); new.append(f"V{t+PVn}")
        step(A, 0, t, first=True, fillers=fl, pre=[f"s_waitcnt vmcnt({nout})"])
        order += new
    st(A)
    wl = []
    for c in range(5): wl += wdma_ring(c, Wchunk(c))
    def udma(n):
        lab = f"{pfx}_ud{n}"
        return [f"s_cbranch_vccnz {lab}", f"s_add_u32 m0, s62, {256*n}", f"s_add_u32 s63, s61, {64*1280*n}",
                f"buffer_load_dword v{VUD}, s[{SF}:{SF+3}], s63 offen lds", lab + ":"]
    for tau in range(1, 8):
        if tau == 2:
            A.e(f"s_cmp_ge_u32 s3, {NCONV}")
            A.e("s_cselect_b64 vcc, -1, 0")
            A.e("s_lshr_b32 s61, s20, 1")
            A.e("s_lshl_b32 s62, s61, 12          ; 16 blocks * 256 B")
            A.e(f"s_mul_i32 s61, s61, {16*64*1280}")
            A.e("s_and_b32 s21, s20, 1")
            A.e("s_mul_i32 s21, s21, 8320")
            A.e("s_add_u32 s62, s62, s21")
            A.e(f"s_add_u32 s62, s62, {L_U0+64}")
        for t in range(NT):
            fl = []
            if tau <= 6 and t == 1: fl += part_addr()
            if tau <= 6 and t == 3: fl += part_write(tau)
            if tau == 1 and t < 15: fl += [wl[t]]
            if 2 <= tau <= 5 and t in (5, 8, 11, 14): fl += [udma((tau-2)*4 + (t-5)//3)]
            step(A, tau, t, last=(tau == 7), fillers=fl)
        st(A)
    A.e("s_nop 1")
    par = 1; Pp = P[(NT-1) & 1]
    A.e(f"v_mfma_f32_32x32x16_bf16 {vr(O[par],16)}, {VAr(NT-1,0)}, {vr(Pp,4)}, {vr(O[par],16)}")
    A.e(f"v_mfma_f32_32x32x16_bf16 {vr(O[par],16)}, {VAr(NT-1,1)}, {vr(Pp+4,4)}, {vr(O[par],16)}")
    A.e("s_waitcnt vmcnt(0) lgkmcnt(0)")
    A.e("s_barrier")
    st(A)

def reduce_publish(A, pfx):
    RB = 176 - 48
    RB = 128
    def rdpart(jj):
        for sl in range(3):
            for g in range(3):
                A.e(f"ds_read_b128 {vr(RB + (jj*3+sl)*12 + 4*g, 4)}, v{VRED} offset:{(jj*3+sl)*PART + 1024*g}")
    rdpart(0)
    srd(A, SC, PWS, 2048*1280, add=WS_O)
    for jj in range(2):
        Of = O[jj]
        A.e("s_waitcnt lgkmcnt(0)")
        if jj == 0: rdpart(1)
        for sl in range(3):
            for r in range(12): A.e(f"v_add_f32 v{Of+r}, v{Of+r}, v{RB+(jj*3+sl)*12+r}")
        A.e(f"v_mov_b32 v28, v{Of+8}")
        A.e(f"v_mov_b32 v29, v{Of+8}")
        A.e("s_nop 1")
        A.e("v_permlane32_swap_b32 v28, v29")
        A.e("s_nop 1")
        A.e("v_rcp_f32 v29, v29")
        A.e("s_nop 0")
        for r in range(12): A.e(f"v_mul_f32 v{16+r}, v{Of+r}, v29")
        for g in range(3):
            A.e(f"v_cvt_pk_bf16_f32 v{32+6*jj+2*g}, v{16+4*g}, v{17+4*g}")
            A.e(f"v_cvt_pk_bf16_f32 v{33+6*jj+2*g}, v{18+4*g}, v{19+4*g}")
    A.e("s_barrier")
    for jj in range(2):
        A.e(f"ds_write_b64 v{VOS}, {vr(32+6*jj,2)} offset:{5120*jj}")
        A.e(f"ds_write_b64 v{VOS}, {vr(34+6*jj,2)} offset:{5120*jj+16}")
        A.e(f"ds_write_b64 v{VOS2a if jj == 0 else VOS2b}, {vr(36+6*jj,2)}")
    A.e("s_mul_i32 s24, s22, 81920")
    A.e("s_mul_i32 s25, s23, 160")
    A.e("s_add_u32 s24, s24, s25")
    A.e("s_waitcnt lgkmcnt(0)")
    A.e("s_barrier")
    for i in range(3):
        A.e(f"ds_read_b128 {vr(44+4*i,4)}, v{VTID16} offset:{4096*i}")
    for i in range(3):
        A.e(f"s_waitcnt lgkmcnt({2-i})")
        A.e(f"buffer_store_dwordx4 {vr(44+4*i,4)}, v{VOG+i}, s[{SC}:{SC+3}], s24 offen sc1")
    A.e("s_lshl_b32 s21, s22, 7")
    A.e(f"s_add_u32 s21, s21, {WS_FLAG}")
    srd(A, SE_, PWS, 128, add="s21")
    A.e("s_waitcnt vmcnt(0)")
    A.e("s_barrier")
    A.e("s_cmp_lg_u32 s20, 0")
    A.e(f"s_cbranch_scc1 {pfx}_noflag")
    A.e("s_lshl_b32 s21, s23, 2")
    A.e("v_mov_b32 v12, s21")
    A.e("v_mov_b32 v13, 1")
    A.e("s_mov_b64 exec, 1")
    A.e(f"buffer_store_dword v13, v12, s[{SE_}:{SE_+3}], 0 offen sc1")
    A.e("s_mov_b64 exec, -1")
    A.label(f"{pfx}_noflag")
    st(A)

def conv_part(A, pfx):
    for ps in range(5):
        b = 16 + 10*ps
        A.e(f"ds_read_b128 {vr(b,4)}, v{VUR} offset:{2048*ps}")
        A.e(f"ds_read_b128 {vr(b+4,4)}, v{VUR} offset:{2048*ps+16}")
        A.e(f"ds_read_b32 v{b+8}, v{VUR} offset:{2048*ps+32}")
    A.e("s_and_b32 s21, s20, 1")
    A.e("s_cmp_eq_u32 s21, 0")
    A.e("s_cselect_b32 s24, 0x05040100, 0x07060302" if False else "s_mov_b32 s25, 0x07060302")
    A.e("s_cselect_b32 s24, 0x05040100, s25")
    A.e(f"v_add_u32 v12, {L_U0}, v{VUW}")
    A.e("s_waitcnt lgkmcnt(0)")
    A.e("s_barrier")
    for ps in range(5):
        b = 16 + 10*ps
        if ps == 4: A.e("s_mov_b64 exec, 15")
        o = 72 + 8*(ps & 1)
        for i in range(4): A.e(f"v_perm_b32 v{o+i}, v{b+2*i+1}, v{b+2*i}, s24")
        for i in range(4): A.e(f"v_perm_b32 v{o+4+i}, v{b+2*i+2}, v{b+2*i+1}, s24")
        A.e(f"ds_write_b128 v12, {vr(o,4)} offset:{1024*ps}")
        A.e(f"ds_write_b128 v{VUW}, {vr(o+4,4)} offset:{L_U1+1024*ps}")
        if ps == 4: A.e("s_mov_b64 exec, -1")
    ACC = 16; BB = 64
    def Ar(c, i): return ar(32*c + 4*i, 4)
    def Ahalf(c, i, h): return ar(32*c + 4*i + 2*h, 2)
    for i in range(32): A.e(f"v_mov_b32 v{ACC+i}, 0")
    st(A)
    q = Q(A); q.lq = ["u"]*10
    def readsA(c):
        L = [It(f"v_add_u32 v11, {512*c}, v{VCU}")]
        for i in range(8):
            L.append(It(f"ds_read2_b32 {Ahalf(c,i,0)}, v11 offset0:{16*i} offset1:{16*i+1}", lds=f"a{c}"))
            L.append(It(f"ds_read2_b32 {Ahalf(c,i,1)}, v11 offset0:{16*i+2} offset1:{16*i+3}", lds=f"a{c}"))
        return L
    def readsB(D, buf):
        return [It(f"ds_read_b128 {vr(BB+32*buf+4*i,4)}, v{VCK} offset:{512*(7-D)+64*i}", lds=f"b{D}_{i}") for i in range(8)]
    q.run(readsB(7, 0) + readsA(0))
    for s_ in range(8):
        D = 7 - s_; buf = s_ & 1
        def mm(c, i):
            acc = ACC + 4*(c + D)
            return It(f"v_mfma_f32_16x16x32_bf16 {vr(acc,4)}, {Ar(c,i)}, {vr(BB+32*buf+4*i,4)}, {vr(acc,4)}", needl=(f"a{c}", f"b{D}_{i}"), w=2)
        Mold = [mm(c, i) for i in range(8) for c in range(s_)]
        Mnew = [mm(s_, i) for i in range(8)]
        R = (readsB(D-1, buf ^ 1) + readsA(s_+1)) if s_ < 7 else []
        if 2 <= s_ <= 6:
            W = [It(g, vm=f"W{s_+3}") for g in wdma_ring(s_+3, Wchunk(s_+3))]
            R = R[:6] + W + R[6:]
        q.run(merge(Mold + Mnew, R))
    q.all_l()
    A.e("s_nop 7")
    st(A)
    for B in range(8):
        acc = ACC + 4*B
        A.e(f"v_cvt_pk_bf16_f32 v{48+2*B}, v{acc}, v{acc+1}")
        A.e(f"v_cvt_pk_bf16_f32 v{49+2*B}, v{acc+2}, v{acc+3}")
        A.e(f"ds_write_b64 v{VYS}, {vr(48+2*B,2)} offset:{512*B}")
    A.e("s_lshl_b32 s21, s33, 3")
    A.e(f"s_load_dwordx2 s[38:39], s[{PDSK}:{PDSK+1}], s21")
    A.e("s_waitcnt lgkmcnt(0)")
    A.e("s_lshl_b32 s60, s38, 16")
    A.e("s_and_b32 s61, s38, 0xffff0000")
    A.e("s_lshl_b32 s62, s39, 16")
    A.e("s_and_b32 s63, s39, 0xffff0000")
    A.e("s_barrier")
    for k in range(8):
        A.e(f"ds_read_b64_tr_b16 {vr(128+4*k,2)}, v{VYT} offset:{128*k}")
        A.e(f"ds_read_b64_tr_b16 {vr(130+4*k,2)}, v{VUT} offset:{128*k}")
        if k == 3: A.e("s_waitcnt lgkmcnt(2)")
    A.e("s_waitcnt lgkmcnt(0)")

def y_lists():
    T = Asm(); srd(T, SH, POUT, 2048*2560)
    setup = [x.strip() for x in T.lines]
    per = []
    for k in range(8):
        L = []
        for dw in range(2):
            y = 128+4*k+dw; u = 130+4*k+dw
            L += [f"v_lshlrev_b32 v160, 16, v{u}", f"v_and_b32 v161, 0xffff0000, v{u}",
                  f"v_mul_f32 v160, s{60+2*dw}, v160", f"v_mul_f32 v161, s{61+2*dw}, v161",
                  f"v_cvt_pk_bf16_f32 v160, v160, v161", f"v_lshlrev_b32 v162, 16, v{y}", f"v_and_b32 v163, 0xffff0000, v{y}",
                  f"v_and_b32 v161, 0xffff0000, v160", f"v_lshlrev_b32 v160, 16, v160",
                  f"v_add_f32 v161, v161, v163", f"v_add_f32 v160, v160, v162", f"v_cvt_pk_bf16_f32 v{y}, v160, v161"]
        its = [It(x) for x in L] + [It([f"s_mov_b32 s28, {k*64*2560}", f"buffer_store_dwordx2 {vr(128+4*k,2)}, v{VYO}, s[{SH}:{SH+3}], s28 offen"], vm="Y")]
        per.append(its)
    return setup, per

def outproj_part(A, pfx):
    poll(A, pfx, "o", SE_, 8, None)
    A.e("s_waitcnt vmcnt(0)")
    A.e("s_barrier")
    st(A)
    A.e("s_mul_i32 s21, s22, 81920")
    A.e(f"s_add_u32 s21, s21, {WS_O}")
    srd(A, SA, PWS, 81920, add="s21")
    for variant in ("c", "n"):
        if variant == "c":
            A.e(f"s_cmp_ge_u32 s3, {NCONV}")
            A.e(f"s_cbranch_scc1 {pfx}_gn")
        else:
            A.label(f"{pfx}_gn")
        q = Q(A)
        for c in range(6): q.run([It(g, vm=f"X{c}") for g in xdma(c, XBUF[c])])
        for i in range(20): A.e(f"v_mov_b32 v{GACC+i}, 0")
        A.e("s_mul_i32 s21, s22, 163840")
        A.e("s_mul_i32 s26, s23, 160")
        A.e("s_add_u32 s21, s21, s26")
        A.e("s_add_u32 s21, s21, 1280")
        srd(A, SC, POUT, "0", add="s21")
        A.e(f"s_sub_u32 s{SC+2}, {2048*2560}, s21")
        yl = None
        if variant == "c":
            su, yl = y_lists()
            for x in su: A.e(x)
        def sync(c):
            L = [It("s_nop 0", needv=(f"X{c}",))]
            if 2 <= c <= 5: L += [It(g, vm=f"X{c+4}") for g in xdma(c+4, XBUF[(c+4) % 6])]
            return L
        pre, steps = gemm_items(lambda c: XBUF[c % 6], Wchunk, sync)
        q.run(pre)
        st(A)
        for kk in range(20):
            fl = yl[(kk-2)//2] if (yl is not None and 2 <= kk < 18 and kk % 2 == 0) else []
            q.run(merge(steps[kk], fl))
        q.all_l()
        if variant == "c": A.e(f"s_branch {pfx}_gdone")
    A.label(f"{pfx}_gdone")
    A.e("s_nop 7")
    st(A)
    for mt in range(5):
        acc = GACC + 4*mt
        A.e(f"v_cvt_pk_bf16_f32 v{40+mt*2}, v{acc}, v{acc+1}")
        A.e(f"v_cvt_pk_bf16_f32 v{41+mt*2}, v{acc+2}, v{acc+3}")
        A.e(f"buffer_store_dwordx2 {vr(40+mt*2,2)}, v{VOUT}, s[{SC}:{SC+3}], 0 offen offset:{32*mt}")
    if Cfg.STAMP:
        A.e("s_waitcnt vmcnt(0)")
        st(A)
        A.e("s_mov_b32 s2, s3")
        stamp_out(A, PWS, 4, STAMP_BASE, VSTAMP, VSTMP)
    A.e("s_endpgm")

def mega_role(A, pfx):
    prologue(A, pfx)
    A.e(f"s_cmp_ge_u32 s3, {NCONV}")
    A.e(f"s_cbranch_scc1 {pfx}_fb")
    q = front_a(A, pfx)
    A.e(f"s_branch {pfx}_fdone")
    A.label(f"{pfx}_fb")
    q = front_b(A, pfx)
    A.label(f"{pfx}_fdone")
    st(A)
    attention(A, pfx)
    reduce_publish(A, pfx)
    A.e(f"s_cmp_lt_u32 s3, {NCONV}")
    A.e(f"s_cbranch_scc1 {pfx}_conv")
    for c in range(5, 10):
        for g in wdma_ring(c, Wchunk(c)):
            for x in g: A.e(x)
    A.e(f"s_branch {pfx}_noconv")
    A.label(f"{pfx}_conv")
    conv_part(A, pfx)
    A.label(f"{pfx}_noconv")
    outproj_part(A, pfx)
```

```python
from common import *
class It:
    __slots__ = ("txt", "lds", "vm", "needl", "needv", "w")
    def __init__(self, txt, lds=None, vm=None, needl=(), needv=(), w=1):
        self.txt = txt if isinstance(txt, list) else [txt]
        self.lds = lds if (lds is None or isinstance(lds, list)) else [lds]
        self.vm = vm if (vm is None or isinstance(vm, list)) else [vm]
        self.needl = tuple(needl); self.needv = tuple(needv); self.w = w
class Q:
    def __init__(self, A):
        self.A = A; self.lq = []; self.vq = []
    def wait_l(self, tags):
        idx = [i for i, t in enumerate(self.lq) if t in tags]
        if not idx: return
        i = max(idx); n = len(self.lq) - 1 - i
        self.A.e(f"s_waitcnt lgkmcnt({min(n,15)})")
        if n <= 15: del self.lq[:i+1]
        else: del self.lq[:len(self.lq)-15]
    def wait_v(self, tags):
        idx = [i for i, t in enumerate(self.vq) if t in tags]
        if not idx: return
        i = max(idx); n = len(self.vq) - 1 - i
        assert n <= 63
        self.A.e(f"s_waitcnt vmcnt({n})")
        del self.vq[:i+1]
    def all_l(self):
        if self.lq: self.A.e("s_waitcnt lgkmcnt(0)"); self.lq = []
    def all_v(self):
        if self.vq: self.A.e("s_waitcnt vmcnt(0)"); self.vq = []
    def emit(self, it):
        if it.needv: self.wait_v(it.needv)
        if it.needl: self.wait_l(it.needl)
        if it.lds:
            if len(self.lq) + len(it.lds) > 15:
                keep = 15 - len(it.lds)
                self.A.e(f"s_waitcnt lgkmcnt({keep})")
                del self.lq[:len(self.lq)-keep]
        for l in it.txt:
            if l.endswith(":"): self.A.label(l[:-1])
            else: self.A.e(l)
        if it.lds: self.lq += it.lds
        if it.vm: self.vq += it.vm
    def run(self, items):
        for it in items: self.emit(it)
def merge(main, fill):
    if not fill: return list(main)
    if not main: return list(fill)
    tm = sum(x.w for x in main); tf = sum(x.w for x in fill)
    out = []; k = 0; am = 0; af = 0
    for m in main:
        out.append(m); am += m.w
        while k < len(fill) and (af + fill[k].w) * tm <= am * tf + 1e-9:
            out.append(fill[k]); af += fill[k].w; k += 1
    out += fill[k:]
    return out
def V(lines, w=None):
    return [It(l, w=(w or 1)) for l in lines]
def asm_lines(fn):
    T = Asm(); fn(T); return [x.strip() for x in T.lines if x.strip()]
```

```python
import sys
from common import *
import mega, asmcheck
def build(path):
    K = NAME + "_kernel"
    body = Asm()
    kernel_begin(body, K)
    body.e("s_mov_b32 s3, s2")
    body.e("s_cmp_lt_u32 s2, 256")
    body.e("s_cbranch_scc1 mega_go")
    body.e("s_endpgm")
    body.label("mega_go")
    mega.mega_role(body, "mg")
    hdr = open("cdna_kernels/" + NAME + ".s.ref").read().split("; Override launch")[0]
    out = hdr + f"; @launch grid=(256,1,1) block=(256,1,1) lds={mega.LDS_MEGA}\n"
    out += '.amdgcn_target "amdgcn-amd-amdhsa--gfx950"\n' + body.text() + kernel_desc(K, 512, 256, 102)
    open(path, "w").write(out)
    import re
    go = {"mega_go"}
    pol = {
      "A_w0": go | {"mg_conv", "mg_kv_d", "mg_o_d"},
      "A_w1": go | {"mg_conv", "mg_kv_np", "mg_o_np", "mg_noflag"},
      "B_k": (lambda t: t in go | {"mg_fb", "mg_kv_d", "mg_o_d", "mg_gn"} or t.startswith("mg_ud")),
      "B_v": (lambda t: t in go | {"mg_fb", "mg_b_vpart", "mg_b_nfv", "mg_kv_np", "mg_o_np", "mg_noflag", "mg_gn"} or t.startswith("mg_ud")),
      "B_n": (lambda t: t in go | {"mg_fb", "mg_b_nowkv", "mg_b_nokv", "mg_kv_d", "mg_o_d", "mg_gn"} or t.startswith("mg_ud")),
    }
    errs = asmcheck.check_policies(body.text(), K, pol)
    for e in errs[:30]: print(e)
    print("wrote", path, len(out), "bytes;", len(errs), "checker messages")
if __name__ == "__main__":
    if "stamp" in sys.argv: Cfg.STAMP = True
    build(sys.argv[1])
```

```python
from common import *
from sched import *
import math
LOG2E = math.log2(math.e)
GBUF = 18432; GXB = 8192
L_KR = 73728
L_KG = 55296; KGW = 25872
RA = 3
L_XR = 0; L_WKV = 81920; L_WR = 107520
L_QL = 0
L_PART = 0; PART = 3072
L_U0 = 92160; CS = 4160
L_WA = 108800; WCH = 10240
L_DUMMY = 160000
L_U1 = 64; L_WB = 16704
L_YS = 16896; YSC = 576; YSB = 4*YSC
LDS_MEGA = 161024
def Wchunk(c): return (L_WA + c*WCH) if c < 5 else (L_WB + (c-5)*WCH)
XBUF = [L_KR, L_KR+8192, L_U0, L_U0+8192, L_U1, L_U1+8192]
WS_FLAG = 0x1100000
SPIN_MAX = 1 << 18
NCONV = 160
PU, PARE, PAIM, PBRE, PBIM, PCRE, PCIM, PLDT = 64, 66, 68, 70, 72, 74, 76, 78
PDSK, PX, PWQ, PWK, PWV, PWO, POUT, PDBG = 80, 82, 84, 86, 88, 90, 92, 94
PWS = 4
SA, SB, SC, SD, SE_, SF, SG, SH = 8, 12, 16, 40, 44, 48, 52, 56
VXD0, VXD1 = 200, 201
VWD = 202
VOUT = 205
VYO = 206
VOS, VOS2a, VOS2b = 207, 208, 209
VOG = 210
VTID16 = 213
VCU, VCK = 214, 215
VYS = 216
VYT, VUT = 217, 218
VUR = 219
VUW = 220
VRED = 221
VXF0, VXF1 = 222, 223
VWT = 224
VUD = 225
VQW = 226
VQR, VQRB = 231, 232
VXF0h, VXF1h, VWTh, VWTh2 = 233, 234, 235, 236
VSTAMP, VSTMP = 252, 253
S = [16, 32]; P = [48, 56]; O = [80, 96]; VW = 7; NT = 16
def QAr(tau): return vr(128+6*tau, 4)
def QBr(tau): return vr(132+6*tau, 2)
def KAr(t): return ar(4*t, 4)
def KBr(t): return ar(64+2*t, 2)
def VAr(t, u): return ar(96+8*t+4*u, 4)

def st(A): stamp(A, VSTAMP)

def prologue(A, pfx):
    A.e("s_load_dwordx16 s[64:79], s[0:1], 0")
    A.e("s_load_dwordx16 s[80:95], s[0:1], 64")
    A.e(f"s_load_dwordx2 s[4:5], s[0:1], 128")
    stamp_init(A, VSTAMP); st(A)
    A.e("v_and_b32 v1, 63, v0")
    A.e("v_lshrrev_b32 v12, 6, v0")
    A.e("v_lshlrev_b32 v4, 4, v1          ; lane*16")
    A.e("v_readfirstlane_b32 s20, v12")
    A.e("v_and_b32 v2, 15, v1")
    A.e("v_lshrrev_b32 v3, 4, v1")
    A.e("s_mul_i32 s23, s3, 3277")
    A.e("s_lshr_b32 s23, s23, 16          ; w / 20")
    A.e("s_mul_i32 s22, s23, 20")
    A.e("s_sub_u32 s22, s3, s22           ; w % 20")
    A.e(f"s_sub_u32 s52, s3, {NCONV}        ; j")
    A.e("s_mul_i32 s24, s52, 5462")
    A.e("s_lshr_b32 s24, s24, 16          ; j / 12")
    A.e("s_mul_i32 s25, s24, 12")
    A.e("s_sub_u32 s25, s52, s25")
    A.e("s_add_u32 s25, s25, 20")
    A.e(f"s_cmp_ge_u32 s3, {NCONV}")
    A.e("s_cselect_b32 s22, s25, s22      ; rb")
    A.e("s_cselect_b32 s23, s24, s23      ; hg")
    A.e("s_lshr_b32 s53, s52, 5")
    A.e("s_min_u32 s53, s53, 2")
    A.e("s_cselect_b32 s53, s53, s53")
    A.e(f"s_cmp_lt_u32 s3, {NCONV}")
    A.e("s_cselect_b32 s53, 2, s53")
    A.e("s_and_b32 s54, s52, 31")
    A.e("s_cmp_lt_u32 s53, 2")
    A.e("s_cselect_b32 s54, s54, s22")
    A.e("s_lshl_b32 s32, s20, 10          ; wave*1024")
    A.e("s_and_b32 s33, s3, 7")
    A.e("s_mul_i32 s33, s33, 20")
    A.e("s_lshr_b32 s34, s3, 3")
    A.e("s_add_u32 s33, s33, s34")
    A.e("s_min_u32 s33, s33, 159")
    A.e("s_lshl_b32 s34, s33, 2")
    A.e("s_add_u32 s34, s34, s20          ; channel d")
    A.e("s_movk_i32 s27, 1280")
    A.e("v_lshrrev_b32 v12, 3, v1")
    A.e("v_and_b32 v13, 7, v1")
    A.e("v_xor_b32 v13, v13, v12")
    A.e("v_lshlrev_b32 v13, 4, v13")
    A.e("s_lshl_b32 s21, s20, 4")
    A.e("v_add_u32 v12, s21, v12")
    A.e(f"v_mad_u32_u24 v{VXD0}, v12, s27, v13")
    A.e(f"v_add_u32 v{VXD1}, 10240, v{VXD0}")
    A.e("s_mov_b32 s26, 6554")
    for n in range(3):
        A.e(f"s_add_u32 s21, s20, {4*n}")
        A.e("s_lshl_b32 s21, s21, 6")
        A.e("v_add_u32 v12, s21, v1          ; p")
        A.e("v_mul_u32_u24 v13, s26, v12")
        A.e("v_lshrrev_b32 v13, 16, v13      ; rho")
        A.e("v_mul_u32_u24 v14, 10, v13")
        A.e("v_sub_u32 v14, v12, v14         ; cc")
        A.e("v_lshlrev_b32 v14, 4, v14")
        A.e("v_and_b32 v15, 0x33, v13")
        A.e("v_bfe_u32 v5, v13, 2, 1")
        A.e("v_lshl_or_b32 v15, v5, 3, v15")
        A.e("v_bfe_u32 v5, v13, 3, 1")
        A.e("v_lshl_or_b32 v15, v5, 2, v15")
        A.e(f"v_mad_u32_u24 v{VWD+n}, v15, s27, v14")
        if n == 2:
            A.e(f"v_mov_b32 v12, {OOB}")
            A.e("v_cmp_gt_u32 vcc, 64, v13")
            A.e("s_nop 1")
            A.e(f"v_cndmask_b32 v{VWD+2}, v12, v{VWD+2}, vcc")
    A.e("s_waitcnt lgkmcnt(0)")
    A.e("s_mul_i32 s21, s54, 81920")
    srd(A, SA, PX, 81920, add="s21")
    A.e("s_mul_i32 s21, s23, 160")
    srd(A, SD, PWQ, "0", add="s21")
    A.e(f"s_sub_u32 s{SD+2}, 819200, s21")

def addr_setup_items():
    T = Asm(); A = T
    A.e("s_lshl_b32 s21, s20, 4")
    A.e("v_add_u32 v12, s21, v2")
    A.e("v_lshlrev_b32 v12, 7, v12")
    A.e("v_and_b32 v13, 7, v2")
    A.e("v_xor_b32 v14, v13, v3")
    A.e(f"v_lshl_add_u32 v{VXF0}, v14, 4, v12")
    A.e("v_add_u32 v14, 4, v3")
    A.e("v_xor_b32 v14, v13, v14")
    A.e(f"v_lshl_add_u32 v{VXF1}, v14, 4, v12")
    A.e(f"v_add_u32 v{VXF0h}, 65536, v{VXF0}")
    A.e(f"v_add_u32 v{VXF1h}, 65536, v{VXF1}")
    A.e("v_lshrrev_b32 v12, 1, v3")
    A.e("v_lshlrev_b32 v12, 4, v12")
    A.e("v_and_b32 v13, 1, v3")
    A.e("v_lshl_add_u32 v12, v13, 2, v12")
    A.e("v_lshrrev_b32 v13, 2, v2")
    A.e("v_add_u32 v12, v12, v13")
    A.e("v_mul_u32_u24 v12, 160, v12")
    A.e("v_and_b32 v13, 3, v2")
    A.e(f"v_lshl_add_u32 v{VWT}, v13, 3, v12")
    A.e(f"v_add_u32 v{VWTh}, 65536, v{VWT}")
    A.e(f"v_add_u32 v{VWTh2}, 0x20000, v{VWT}")
    A.e("s_and_b32 s21, s20, 1")
    A.e("s_lshl_b32 s21, s21, 4")
    A.e("v_add_u32 v15, s21, v2          ; pos32")
    A.e("s_movk_i32 s26, 3277")
    A.e("s_lshr_b32 s24, s20, 1")
    A.e("s_mul_i32 s24, s24, 1280")
    for mt in range(5):
        A.e("v_lshlrev_b32 v12, 2, v3")
        A.e(f"v_add_u32 v12, {16*mt}, v12     ; c0")
        A.e("v_mul_u32_u24 v13, s26, v12")
        A.e("v_lshrrev_b32 v13, 16, v13      ; hl")
        A.e("v_mul_u32_u24 v14, 20, v13")
        A.e("v_sub_u32 v14, v12, v14         ; dim0")
        A.e("v_mul_u32_u24 v13, 2560, v13" if False else "v_mul_u32_u24 v13, 0xa00, v13")
        A.e("v_bfe_u32 v5, v14, 2, 1")
        A.e("v_lshlrev_b32 v5, 9, v5")
        A.e("v_lshrrev_b32 v6, 3, v14")
        A.e("v_lshl_add_u32 v5, v6, 3, v5")
        A.e("v_lshl_add_u32 v5, v15, 4, v5")
        A.e("v_lshlrev_b32 v6, 3, v15")
        A.e("v_add_u32 v6, 1024, v6")
        A.e("v_cmp_eq_u32 vcc, 16, v14")
        A.e("v_add_u32 v13, s24, v13")
        A.e("s_nop 0")
        A.e("v_cndmask_b32 v5, v5, v6, vcc")
        A.e(f"v_add_u32 v{VQW+mt}, v5, v13")
    A.e(f"v_mov_b32 v{VQR}, v4")
    A.e("v_and_b32 v12, 31, v1")
    A.e("v_lshlrev_b32 v12, 3, v12")
    A.e(f"v_add_u32 v{VQRB}, 1024, v12")
    A.e(f"v_mov_b32 v12, {OOB}")
    A.e("v_lshlrev_b32 v5, 3, v1")
    A.e("v_cmp_gt_u32 vcc, 32, v1")
    A.e("v_and_b32 v13, 31, v1")
    A.e("s_nop 0")
    A.e("v_cndmask_b32 v5, v12, v5, vcc")
    A.e("v_cmp_gt_u32 vcc, 21, v13")
    A.e("s_nop 1")
    A.e("v_cndmask_b32 v8, v12, v4, vcc")
    A.e(f"s_mul_i32 s21, s20, {6*PART}")
    A.e(f"v_add_u32 v{VRED}, s21, v4")
    A.e("v_and_b32 v13, 31, v1")
    A.e("v_mul_u32_u24 v13, 160, v13")
    A.e("v_lshrrev_b32 v14, 5, v1         ; h")
    A.e("v_lshl_add_u32 v13, v14, 3, v13")
    A.e("s_mul_i32 s24, s20, 40")
    A.e(f"v_add_u32 v{VOS}, s24, v13")
    A.e(f"v_mov_b32 v12, {L_DUMMY}")
    A.e(f"v_add_u32 v13, 32, v{VOS}")
    A.e("v_cmp_eq_u32 vcc, 0, v14")
    A.e(f"v_add_u32 v15, 5152, v{VOS}")
    A.e("s_nop 0")
    A.e(f"v_cndmask_b32 v{VOS2a}, v12, v13, vcc")
    A.e(f"v_cndmask_b32 v{VOS2b}, v12, v15, vcc")
    A.e("s_mov_b32 s26, 6554")
    A.e("s_movk_i32 s27, 1280")
    for i in range(3):
        A.e(f"v_add_u32 v14, {256*i}, v0")
        A.e("v_mul_u32_u24 v15, s26, v14")
        A.e("v_lshrrev_b32 v15, 16, v15")
        A.e("v_mul_u32_u24 v13, 10, v15")
        A.e("v_sub_u32 v13, v14, v13")
        A.e("v_lshlrev_b32 v13, 4, v13")
        A.e(f"v_mad_u32_u24 v{VOG+i}, v15, s27, v13")
    A.e(f"v_mov_b32 v12, {OOB}")
    A.e("v_cmp_gt_u32 vcc, 0x80, v0")
    A.e(f"v_lshlrev_b32 v{VTID16}, 4, v0")
    A.e("s_nop 0")
    A.e(f"v_cndmask_b32 v{VOG+2}, v12, v{VOG+2}, vcc")
    A.e("s_lshl_b32 s21, s20, 4")
    A.e("s_movk_i32 s26, 2560")
    A.e("v_add_u32 v13, s21, v2")
    A.e("v_mul_u32_u24 v13, s26, v13")
    A.e(f"v_lshl_add_u32 v{VOUT}, v3, 3, v13")
    A.e("s_lshl_b32 s21, s20, 6")
    A.e("v_add_u32 v13, s21, v1")
    A.e("v_mul_u32_u24 v13, s26, v13")
    A.e("s_lshl_b32 s21, s33, 3")
    A.e(f"v_add_u32 v{VYO}, s21, v13")
    A.e("v_add_u32 v12, 1, v2")
    A.e("v_and_b32 v12, 1, v12            ; cp")
    A.e("v_sub_u32 v13, v2, v12")
    A.e("v_add_u32 v13, 9, v13")
    A.e("v_and_b32 v14, 1, v3")
    A.e("v_lshlrev_b32 v14, 3, v14        ; 8(g&1)")
    A.e("v_sub_u32 v13, v13, v14")
    A.e("v_lshrrev_b32 v15, 1, v3         ; g>>1")
    A.e("v_lshl_add_u32 v13, v15, 4, v13")
    A.e("v_lshlrev_b32 v13, 1, v13")
    A.e("v_xor_b32 v12, 1, v12")
    A.e(f"s_mov_b32 s24, {L_U0 - L_U1}")
    A.e("v_mul_lo_u32 v12, v12, s24")
    A.e("v_add_u32 v13, v13, v12")
    A.e(f"s_mul_i32 s21, s20, {CS}")
    A.e(f"s_add_u32 s24, s21, {L_U1}")
    A.e(f"v_add_u32 v{VCU}, s24, v13")
    A.e(f"v_add_u32 v{VUW}, s21, v4")
    A.e("v_lshlrev_b32 v13, 4, v2")
    A.e("v_sub_u32 v13, 2040, v13")
    A.e("v_lshl_add_u32 v13, v15, 4, v13")
    A.e("v_sub_u32 v13, v13, v14")
    A.e("v_lshlrev_b32 v13, 1, v13")
    A.e("s_mul_i32 s24, s20, 4608")
    A.e(f"s_add_u32 s24, s24, {L_KR-3584}")
    A.e(f"v_add_u32 v{VCK}, s24, v13")
    A.e("v_lshlrev_b32 v13, 5, v2")
    A.e("v_lshl_add_u32 v13, v3, 3, v13")
    A.e(f"s_mul_i32 s24, s20, {YSC}")
    A.e(f"s_add_u32 s24, s24, {L_YS}")
    A.e(f"v_add_u32 v{VYS}, s24, v13")
    A.e("v_and_b32 v13, 3, v2")
    A.e("v_lshlrev_b32 v13, 3, v13")
    A.e("v_lshl_add_u32 v13, v3, 5, v13")
    A.e("s_lshl_b32 s21, s20, 7")
    A.e("v_add_u32 v13, s21, v13")
    A.e("v_lshrrev_b32 v12, 2, v2")
    A.e(f"v_mul_u32_u24 v14, {YSC}, v12" if False else f"s_movk_i32 s24, {YSC}")
    A.e("v_mul_u32_u24 v14, s24, v12")
    A.e(f"v_add3_u32 v{VYT}, v14, v13, v13" if False else f"v_add_u32 v14, v14, v13")
    A.e(f"v_add_u32 v{VYT}, {L_YS}, v14")
    A.e(f"s_movk_i32 s24, {CS}")
    A.e("v_mul_u32_u24 v14, s24, v12")
    A.e("v_add_u32 v14, v14, v13")
    A.e(f"v_add_u32 v{VUT}, {L_U0+32}, v14")
    A.e("s_lshr_b32 s21, s20, 1")
    A.e("s_mul_i32 s21, s21, 8320")
    A.e(f"s_add_u32 s21, s21, {L_U0}")
    A.e("v_lshlrev_b32 v13, 5, v1")
    A.e(f"v_add_u32 v{VUR}, s21, v13")
    A.e("s_movk_i32 s26, 1280")
    A.e("v_mul_u32_u24 v13, s26, v1")
    A.e("s_lshl_b32 s21, s33, 3")
    A.e("s_and_b32 s24, s20, 1")
    A.e("s_lshl_b32 s24, s24, 2")
    A.e("s_add_u32 s21, s21, s24")
    A.e(f"v_add_u32 v{VUD}, s21, v13")
    return [x.strip() for x in T.lines if x.strip()]

def wdma_ring(c, base):
    L = []
    for n in range(3):
        g = []
        if n == 0: g.append(f"s_mov_b32 s38, {64*1280*c}")
        if n < 2:
            g += [f"s_add_u32 m0, s32, {base + 4096*n}", "s_nop 0"]
        else:
            g += [f"s_add_u32 s39, s32, {base + 8192}", "s_cmp_lt_u32 s20, 2", f"s_cselect_b32 m0, s39, {L_DUMMY}", "s_nop 0"]
        g.append(f"buffer_load_dwordx4 v{VWD+n}, s[{SD}:{SD+3}], s38 offen lds")
        L.append(g)
    return L
def xdma(c, base, srd_=SA):
    return [[f"s_lshl_b32 s37, s20, 11", f"s_add_u32 m0, s37, {base}", f"s_movk_i32 s36, {128*c}",
             f"buffer_load_dwordx4 v{VXD0}, s[{srd_}:{srd_+3}], s36 offen lds"],
            [f"s_add_u32 m0, s37, {base+1024}", "s_nop 0",
             f"buffer_load_dwordx4 v{VXD1}, s[{srd_}:{srd_+3}], s36 offen lds"]]

GACC = 16; GWF = 36; GXF = [56, 60]
def gemm_rdX(kk, xb):
    ks = kk & 1
    if xb < 65536: a, o = (VXF0 if ks == 0 else VXF1), xb
    else: a, o = (VXF0h if ks == 0 else VXF1h), xb - 65536
    return It(f"ds_read_b128 {vr(GXF[kk & 1],4)}, v{a} offset:{o}", lds=f"x{kk}")
def gemm_rdW(kk, mt, wb):
    ks = kk & 1
    out = []
    for h in range(2):
        off = wb + (32*ks + 8*h)*160 + 32*mt
        a = VWT
        if off >= 131072: a, off = VWTh2, off - 131072
        elif off >= 65536: a, off = VWTh, off - 65536
        out.append(It(f"ds_read_b64_tr_b16 {vr(GWF+mt*4+h*2,2)}, v{a} offset:{off}", lds=f"w{kk}_{mt}"))
    return out
def gemm_mm(kk, mt):
    return It(f"v_mfma_f32_16x16x32_bf16 {vr(GACC+4*mt,4)}, {vr(GWF+mt*4,4)}, {vr(GXF[kk & 1],4)}, {vr(GACC+4*mt,4)}",
              needl=(f"x{kk}", f"w{kk}_{mt}"), w=2)
def gemm_items(xbase, wbase, sync, late=False):
    steps = []
    pre = list(sync(0)) + [gemm_rdX(0, xbase(0))]
    for mt in range(5): pre += gemm_rdW(0, mt, wbase(0))
    for kk in range(20):
        L = []
        c1 = (kk+1) >> 1
        boundary = (kk+1) & 1 == 0 and kk+1 < 20
        for mt in range(5):
            L.append(gemm_mm(kk, mt))
            if kk+1 < 20 and not (late and boundary):
                if mt == 0:
                    if boundary: L += list(sync(c1))
                    L.append(gemm_rdX(kk+1, xbase(c1)))
                L += gemm_rdW(kk+1, mt, wbase(c1))
        if late and boundary:
            L += list(sync(c1)) + [gemm_rdX(kk+1, xbase(c1))]
            for mt in range(5): L += gemm_rdW(kk+1, mt, wbase(c1))
        steps.append(L)
    return pre, steps

def rho(s, b):
    if s == 0: return b
    q = b >> s; rem = b & ((1 << s)-1); half = 1 << (s-1)
    if rem > half or (rem == half and (q & 1)): q += 1
    return q << s
KACC = 64
RS = 528
def kgen_setup_lines():
    T = Asm(); A = T
    A.e("v_lshlrev_b32 v12, 2, v1          ; lane*4")
    A.e("s_lshl_b32 s24, s34, 8           ; d*256")
    A.e("v_add_u32 v13, s24, v12")
    for k, s in enumerate((PARE, PAIM, PBRE, PBIM, PCRE, PCIM)):
        A.e(f"global_load_dword v{104+k}, v13, s[{s}:{s+1}]")
    A.e("s_lshl_b32 s24, s34, 1")
    A.e("v_mov_b32 v14, s24")
    A.e(f"global_load_ushort v110, v14, s[{PLDT}:{PLDT+1}]")
    A.e(f"s_mul_i32 s21, s20, {KGW}")
    A.e(f"s_add_u32 s21, s21, {L_KG}")
    A.e("v_lshlrev_b32 v14, 3, v1            ; lane*8")
    A.e("v_add_u32 v196, s21, v14")
    A.e(f"v_add_u32 v197, {33*RS}, v196")
    for s in range(4):
        for mt in range(2):
            dst = 112 + 2*s + mt
            A.e(f"v_add_u32 v15, {16*mt}, v2          ; b")
            if s > 0:
                half = 1 << (s-1)
                A.e(f"v_bfe_u32 v12, v15, {s}, 1")
                A.e(f"v_add3_u32 v15, v15, v12, {half-1}")
                A.e(f"v_lshrrev_b32 v15, {s}, v15")
                A.e(f"v_lshlrev_b32 v15, {s}, v15")
            A.e(f"v_mul_u32_u24 v15, {RS}, v15")
            A.e(f"v_lshl_add_u32 v15, v3, 4, v15")
            A.e(f"v_add_u32 v{dst}, s21, v15")
    for s in range(1, 4):
        for b in range(32):
            half = 1 << (s-1)
            assert (((b + half - 1 + ((b >> s) & 1)) >> s) << s) == rho(s, b)
    A.e(f"v_mul_u32_u24 v15, {RS}, v2")
    A.e("v_lshl_add_u32 v15, v3, 4, v15")
    A.e(f"v_add_u32 v15, {33*RS}, v15")
    A.e("v_add_u32 v111, s21, v15")
    for i in range(40): A.e(f"v_mov_b32 v{KACC+i}, 0")
    return [x.strip() for x in T.lines if x.strip()]

def kgen_parts():
    L = []
    a = lambda t, **k: L.append(It(t, **k))
    E1 = [120, 122]; E32 = [124, 126]
    C = [176, 178]; TM = [180, 182]
    PK = [184, 186]
    WC = [188, 190]
    a("v_lshlrev_b32 v110, 16, v110", needv=("kp",))
    a(f"v_mul_f32 v110, {hex(f2u(LOG2E))}, v110")
    a("v_exp_f32 v110, v110")
    a("s_nop 0")
    a("v_cvt_pk_bf16_f32 v110, v110, v110")
    a("v_lshlrev_b32 v110, 16, v110")
    for hf in range(2):
        for k in range(6):
            a(f"v_lshlrev_b32 v{176+k}, 16, v{104+k}" if hf == 0 else f"v_and_b32 v{176+k}, 0xffff0000, v{104+k}")
        ZR, ZI = 192, 193
        a(f"v_mul_f32 v{ZR}, v110, v176"); a(f"v_mul_f32 v{ZI}, v110, v177")
        a("v_mul_f32 v178, v110, v178"); a("v_mul_f32 v179, v110, v179")
        a(f"v_mul_f32 v{ZR}, {hex(f2u(LOG2E))}, v{ZR}"); a(f"v_mul_f32 v{ZI}, {hex(f2u(1/(2*math.pi)))}, v{ZI}")
        w = WC[hf]
        a(f"v_mul_f32 v{w}, v180, v178"); a(f"v_mul_f32 v{w+1}, v180, v179")
        a(f"v_fma_f32 v{w}, -v181, v179, v{w}"); a(f"v_fma_f32 v{w+1}, v181, v178, v{w+1}")
        for (m, dst) in ((1, E1[hf]), (32, E32[hf])):
            if m == 1:
                a(f"v_exp_f32 v182, v{ZR}"); a(f"v_fract_f32 v183, v{ZI}")
            else:
                lit = hex(f2u(float(m)))
                a(f"v_mul_f32 v182, {lit}, v{ZR}"); a(f"v_mul_f32 v183, {lit}, v{ZI}")
                a("v_exp_f32 v182, v182"); a("v_fract_f32 v183, v183")
            a("v_cos_f32 v194, v183"); a("v_sin_f32 v195, v183")
            a("s_nop 0")
            a(f"v_mul_f32 v{dst}, v182, v194"); a(f"v_mul_f32 v{dst+1}, v182, v195")
    for hf in range(2):
        a(f"v_mov_b32 v{C[hf]}, v{WC[hf]}"); a(f"v_mov_b32 v{C[hf]+1}, v{WC[hf]+1}")
    setup = L
    def cm(x, e, t):
        return (f"v_pk_mul_f32 v[{t}:{t+1}], v[{x}:{x+1}], v[{e}:{e+1}] op_sel:[0,0] op_sel_hi:[0,1]",
                f"v_pk_fma_f32 v[{x}:{x+1}], v[{x}:{x+1}], v[{e}:{e+1}], v[{t}:{t+1}] op_sel:[1,1,0] op_sel_hi:[1,0,1] neg_lo:[1,0,0]")
    rows = []
    def row(n, r, e, neg, waddr, stp, pre=()):
        pk = PK[n & 1]; sg = "-" if neg else ""
        R = [It(y) for y in pre]
        if stp: R += [It(cm(C[0], e[0], TM[0])[0]), It(cm(C[1], e[1], TM[1])[0])]
        R += [It(f"v_cvt_pk_bf16_f32 v{pk}, v{C[0]}, {sg}v{C[0]+1}"), It(f"v_cvt_pk_bf16_f32 v{pk+1}, v{C[1]}, {sg}v{C[1]+1}")]
        if stp: R += [It(cm(C[0], e[0], TM[0])[1]), It(cm(C[1], e[1], TM[1])[1])]
        R.append(It(f"ds_write_b64 v{waddr}, {vr(pk,2)} offset:{r*RS}", lds="kw"))
        rows.append(R)
    for j in range(33): row(j, j, E1, True, 196, j < 32)
    one = [f"v_mov_b32 v{C[0]}, 1.0", f"v_mov_b32 v{C[0]+1}, 0", f"v_mov_b32 v{C[1]}, 1.0", f"v_mov_b32 v{C[1]+1}, 0"]
    for nt in range(4):
        for r in range(16):
            row(33+16*nt+r, r, E32, False, 197, not (nt == 3 and r == 15), pre=(one if (nt == 0 and r == 0) else ()))
    AF, BF = 64, 32
    afr, bfr, mms = [], [], []
    for nt in range(4):
        variants = [(0,0),(0,1),(1,0),(1,1)] if nt == 0 else [((2 if nt == 1 else 3), 0), ((2 if nt == 1 else 3), 1)]
        tiles = [0,1,2,3] if nt == 0 else [2+2*nt, 3+2*nt]
        ra = []; mm = []
        tagnt = nt if nt < 3 else 2
        base = AF if nt != 1 else AF
        for ks in range(8):
            for vi, (s, mt) in enumerate(variants):
                r = base + (ks*len(variants) + vi)*4 + (64 if nt >= 2 else 0)
                if nt < 3: ra.append(It(f"ds_read_b128 {ar(r,4)}, v{112+2*s+mt} offset:{64*ks}", lds=f"ka{nt}"))
                acc = KACC + 4*tiles[vi]
                mm.append(It(f"v_mfma_f32_16x16x32_bf16 {vr(acc,4)}, {ar(r,4)}, {ar(BF+4*ks,4)}, {vr(acc,4)}",
                             needl=(f"kb{nt}_{ks}", f"ka{tagnt}"), w=2))
        afr.append(ra)
        bfr.append([It(f"ds_read_b128 {ar(BF+4*ks,4)}, v111 offset:{64*ks}", lds=f"kb{nt}_{ks}") for ks in range(8)])
        mms.append(mm)
    return setup, rows, afr, bfr, mms

def kgen_pack_lines():
    T = Asm(); A = T
    ACC = KACC
    A.e("v_cmp_gt_u32 vcc, 8, v2")
    A.e("s_nop 1")
    for i in range(8):
        A.e(f"v_cndmask_b32 v{ACC+i}, v{ACC+8+i}, v{ACC+i}, vcc")
    for nt in range(4):
        for mt in range(2):
            tile = mt if nt == 0 else 2+2*nt+mt
            acc = ACC + 4*tile
            b = 176 + 2*(nt*2+mt)
            A.e(f"v_cvt_pk_bf16_f32 v{b}, v{acc+3}, v{acc+2}")
            A.e(f"v_cvt_pk_bf16_f32 v{b+1}, v{acc+1}, v{acc}")
    return [x.strip() for x in T.lines if x.strip()]
def kgen_write_lines():
    T = Asm(); A = T
    A.e("s_mul_i32 s21, s20, 4608")
    A.e(f"s_add_u32 s21, s21, {L_KR}")
    A.e("v_lshlrev_b32 v15, 5, v2")
    A.e("v_lshl_add_u32 v15, v3, 2, v15    ; 32c + 4g")
    A.e("v_sub_u32 v15, 2044, v15")
    A.e("v_lshlrev_b32 v15, 1, v15")
    A.e(f"v_add_u32 v15, s21, v15")
    A.e(f"v_subrev_u32 v15, {(512*3+16)*2}, v15")
    for nt in range(4):
        for mt in range(2):
            b = 176 + 2*(nt*2+mt)
            A.e(f"ds_write_b64 v15, {vr(b,2)} offset:{(512*3+16)*2 - (512*nt+16*mt)*2}")
    A.e("v_mov_b32 v192, 0"); A.e("v_mov_b32 v193, 0")
    A.e("v_lshlrev_b32 v12, 3, v1")
    A.e(f"s_add_u32 s21, s21, 4096")
    A.e("v_add_u32 v12, s21, v12")
    A.e("ds_write_b64 v12, v[192:193]")
    return [x.strip() for x in T.lines if x.strip()]

def q_epilogue(A, q):
    A.e(f"s_mov_b32 s26, {hex(f2u(QSCALE))}")
    for mt in range(5):
        acc = GACC + 4*mt
        for i in range(4): A.e(f"v_mul_f32 v{acc+i}, s26, v{acc+i}")
        A.e(f"v_cvt_pk_bf16_f32 v{36+mt*2}, v{acc}, v{acc+1}")
        A.e(f"v_cvt_pk_bf16_f32 v{37+mt*2}, v{acc+2}, v{acc+3}")
        q.emit(It(f"ds_write_b64 v{VQW+mt}, {vr(36+mt*2,2)}", lds="qw"))

def front_a(A, pfx):
    q = Q(A)
    ks_lines = kgen_setup_lines()
    nload = 0
    for l in ks_lines:
        if l.startswith("global_load"): q.emit(It(l, vm="kp"))
        else: A.e(l)
    def chunk_dma(c):
        b = (c % RA) * GBUF
        return [It(g, vm=f"c{c}") for g in xdma(c, b) + wdma_ring(c, b + GXB)]
    setup = addr_setup_items()
    pro = []
    for c in range(3): pro += chunk_dma(c)
    safe = [i for i, l in enumerate(setup) if l.startswith("v_") and not l.startswith("v_cndmask") and i+1 < len(setup)
            and not setup[i+1].startswith("v_cndmask") and not setup[i+1].startswith("s_nop") and not l.startswith("v_cmp")
            and not setup[i+1].startswith("s_addc")]
    step = max(1, len(safe)//len(pro))
    pts = {safe[min(k*step, len(safe)-1)]: k for k in range(len(pro))}
    done = 0
    for i, l in enumerate(setup):
        A.e(l)
        if i in pts:
            q.emit(pro[pts[i]]); done += 1
    assert done == len(pro), (done, len(pro))
    for i in range(20): A.e(f"v_mov_b32 v{GACC+i}, 0")
    st(A)
    def sync(c):
        L = [It("s_barrier", needv=(f"c{c}",))]
        if c >= 1 and c+2 < 10: L += chunk_dma(c+2)
        return L
    pre, steps = gemm_items(lambda c: (c % RA)*GBUF, lambda c: (c % RA)*GBUF + GXB, sync, late=True)
    ksetup, rows, afr, bfr, mms = kgen_parts()
    q.run(ksetup)
    for r in rows[:10]: q.run(r)
    q.run(pre)
    st(A)
    pos = 10
    due = {49: 0, 65: 1, 81: 2, 97: 3}
    arow = {}
    for i, it in enumerate(afr[0]): arow.setdefault(33 + (i*16)//len(afr[0]), []).append(it)
    for i, it in enumerate(afr[2]): arow.setdefault(50 + (i*14)//len(afr[2]), []).append(it)
    for i, it in enumerate(afr[1]): arow.setdefault(49 + (i*8)//len(afr[1]), []).append(it)
    nrows = len(rows)
    bounds = [min(nrows, 10 + ((kk+1)*(nrows-10) + 18)//19) for kk in range(20)]
    import os
    DET = Cfg.STAMP and os.environ.get('DET') == '1'
    pendk = None
    for kk in range(20):
        q.run(steps[kk])
        if DET and 1 <= kk <= 12: st(A)
        if pendk is not None:
            q.run(mms[pendk]); pendk = None
            if DET: st(A)
        while pos < bounds[kk]:
            extra = arow.get(pos, [])
            q.run(rows[pos] + extra)
            pos += 1
            if pos in due:
                q.run(bfr[due[pos]])
                pendk = due[pos]
                break
        if Cfg.STAMP and not DET and kk in (4, 9, 14): st(A); q.lq = []
        if DET and 0 <= kk <= 12: st(A)
    while pos < nrows or pendk is not None:
        if pendk is not None:
            q.run(mms[pendk]); pendk = None
        if pos < nrows:
            q.run(rows[pos] + arow.get(pos, [])); pos += 1
            if pos in due:
                q.run(bfr[due[pos]]); pendk = due[pos]
    q.all_l()
    A.e("s_nop 7")
    st(A)
    for l in kgen_pack_lines(): A.e(l)
    q.all_l(); q.all_v()
    A.e("s_barrier")
    for l in kgen_write_lines():
        q.emit(It(l, lds="ko") if l.startswith("ds_") else It(l))
    q_epilogue(A, q)
    A.e("v_mov_b32 v192, 0"); A.e("v_mov_b32 v193, 0")
    A.e("s_and_b32 s21, s20, 1")
    A.e("s_mul_i32 s21, s21, 8320")
    A.e(f"s_add_u32 s21, s21, {L_U0}")
    A.e("v_and_b32 v12, 15, v1")
    A.e("v_lshlrev_b32 v12, 2, v12")
    A.e("v_lshrrev_b32 v13, 4, v1")
    A.e("v_and_b32 v13, 1, v13")
    A.e("v_mul_u32_u24 v13, 0x2040, v13        ; 8256")
    A.e("v_add3_u32 v12, v12, v13, s21")
    q.emit(It("ds_write_b32 v12, v192", lds="z"))
    return q

def front_b(A, pfx):
    q = Q(A)
    setup = addr_setup_items()
    A.e("s_cmp_eq_u32 s53, 0")
    A.e(f"s_cselect_b32 s24, s{PWK}, s{PWV}")
    A.e(f"s_cselect_b32 s25, s{PWK+1}, s{PWV+1}")
    A.e(f"s_mov_b32 s{SB}, s24"); A.e(f"s_mov_b32 s{SB+1}, s25"); A.e(f"s_mov_b32 s{SB+2}, 25600"); A.e(f"s_mov_b32 s{SB+3}, 0x20000")
    A.e("s_cmp_eq_u32 s53, 2")
    A.e(f"s_cbranch_scc1 {pfx}_b_nowkv")
    for i in range(7):
        if i < 6:
            A.e(f"s_add_u32 s28, s32, {4096*i}")
            A.e(f"s_add_u32 m0, s28, {L_WKV}")
            A.e("s_nop 0")
            A.e(f"buffer_load_dwordx4 v4, s[{SB}:{SB+3}], s28 offen lds")
        else:
            A.e("s_cmp_eq_u32 s20, 0")
            A.e(f"s_cselect_b32 m0, {L_WKV + 24*1024}, {L_DUMMY}" if False else f"s_mov_b32 s29, {L_WKV + 24*1024}")
            A.e(f"s_cselect_b32 m0, s29, {L_DUMMY}")
            A.e(f"s_mov_b32 s30, 0x7fff0000")
            A.e(f"s_cselect_b32 s28, {24*1024}, s30")
            A.e(f"buffer_load_dwordx4 v4, s[{SB}:{SB+3}], s28 offen lds")
    A.label(f"{pfx}_b_nowkv")
    pro = []
    for c in range(10): pro += [It(g, vm=f"x{c}") for g in xdma(c, L_XR + 8192*c)]
    for c in range(4): pro += [It(g, vm=f"w{c}") for g in wdma_ring(c, L_WR + WCH*c)]
    safe = [i for i, l in enumerate(setup) if l.startswith("v_") and not l.startswith("v_cndmask") and i+1 < len(setup)
            and not setup[i+1].startswith("v_cndmask") and not setup[i+1].startswith("s_nop") and not l.startswith("v_cmp")
            and not setup[i+1].startswith("s_addc")]
    step = max(1, len(safe)//len(pro))
    pts = {safe[min(k*step, len(safe)-1)]: k for k in range(len(pro))}
    for i, l in enumerate(setup):
        A.e(l)
        if i in pts: q.emit(pro[pts[i]])
    st(A)
    A.e("s_cmp_eq_u32 s53, 2")
    A.e(f"s_cbranch_scc1 {pfx}_b_nokv")
    KV, KW, KX = 64, 72, [104, 108]
    A.e("v_lshrrev_b32 v12, 2, v2")
    A.e("v_lshl_add_u32 v12, v3, 3, v12")
    A.e("v_mul_u32_u24 v12, 40, v12")
    A.e("v_and_b32 v13, 3, v2")
    A.e("v_lshl_add_u32 v12, v13, 3, v12")
    A.e(f"v_add_u32 v176, {L_WKV}, v12")
    for i in range(8): A.e(f"v_mov_b32 v{KV+i}, 0")
    vq_save = list(q.vq)
    q.wait_v(("x0",))
    A.e("s_barrier")
    def rds(kk):
        c, ks = kk >> 1, kk & 1; b = kk & 1
        xb = L_XR + 8192*c
        a, o = ((VXF0 if ks == 0 else VXF1), xb) if xb < 65536 else ((VXF0h if ks == 0 else VXF1h), xb-65536)
        out = [It(f"ds_read_b128 {vr(KX[b],4)}, v{a} offset:{o}", lds=f"kx{kk}", needv=(f"x{c}",))]
        for m in range(2):
            for h in range(2):
                out.append(It(f"ds_read_b64_tr_b16 {vr(KW+8*b+4*m+2*h,2)}, v176 offset:{(32*kk + 4*h)*40 + 32*m}", lds=f"kw{kk}"))
        return out
    for variant in ("k", "v"):
        if variant == "k":
            A.e("s_cmp_eq_u32 s53, 0")
            A.e(f"s_cbranch_scc0 {pfx}_b_vpart")
        else:
            A.label(f"{pfx}_b_vpart")
        qq = Q(A); qq.vq = list(q.vq)
        qq.run(rds(0))
        for kk in range(20):
            if kk+1 < 20: qq.run(rds(kk+1))
            b = kk & 1
            for m in range(2):
                if variant == "k": t = f"v_mfma_f32_16x16x32_bf16 {vr(KV+4*m,4)}, {vr(KW+8*b+4*m,4)}, {vr(KX[b],4)}, {vr(KV+4*m,4)}"
                else: t = f"v_mfma_f32_16x16x32_bf16 {vr(KV+4*m,4)}, {vr(KX[b],4)}, {vr(KW+8*b+4*m,4)}, {vr(KV+4*m,4)}"
                qq.emit(It(t, needl=(f"kx{kk}", f"kw{kk}")))
        A.e("s_lshr_b32 s21, s20, 1")
        A.e("s_lshl_b32 s26, s54, 1")
        A.e("s_add_u32 s21, s21, s26          ; T")
        A.e("s_and_b32 s26, s20, 1            ; u")
        srd(A, SC, PWS, WS_VA + 64*2048)
        A.e(f"v_mov_b32 v19 , {OOB}".replace(" ,", ","))
        A.e("v_and_b32 v12, 1, v3             ; h (g&1)")
        A.e("v_cmp_gt_u32 vcc, 2, v3")
        A.e(f"v_cvt_pk_bf16_f32 v112, v{KV}, v{KV+1}")
        A.e(f"v_cvt_pk_bf16_f32 v113, v{KV+2}, v{KV+3}")
        A.e(f"v_cvt_pk_bf16_f32 v116, v{KV+4}, v{KV+5}")
        A.e(f"v_cvt_pk_bf16_f32 v117, v{KV+6}, v{KV+7}")
        if variant == "v":
            A.e("s_mov_b64 s[28:29], vcc")
            A.e("v_cmp_eq_u32 vcc, 4, v2")
            A.e("v_mov_b32 v13, 0x3f803f80")
            A.e("s_nop 0")
            A.e("v_cndmask_b32 v116, v116, v13, vcc")
            A.e("v_cndmask_b32 v117, v117, v13, vcc")
            A.e("s_mov_b64 vcc, s[28:29]")
        A.e("v_mov_b32 v120, v112"); A.e("v_mov_b32 v121, v113")
        A.e("v_mov_b32 v122, v116"); A.e("v_mov_b32 v123, v117")
        A.e("s_nop 1")
        A.e("v_permlane32_swap_b32 v120, v114")
        A.e("v_permlane32_swap_b32 v121, v115")
        A.e("v_permlane32_swap_b32 v122, v118")
        A.e("v_permlane32_swap_b32 v123, v119")
        if variant == "k":
            A.e("s_lshl_b32 s28, s26, 4")
            A.e("v_add_u32 v14, s28, v2           ; key32")
            A.e("v_lshl_add_u32 v15, v12, 5, v14")
            A.e("v_lshlrev_b32 v15, 4, v15")
            A.e("s_lshl_b32 s28, s21, 10")
            A.e(f"s_add_u32 s28, s28, {WS_KA}")
            A.e("v_add_u32 v15, s28, v15")
            A.e("v_cndmask_b32 v15, v19, v15, vcc")
            A.e(f"buffer_store_dwordx4 v[112:115], v15, s[{SC}:{SC+3}], 0 offen sc1")
            A.e("v_lshlrev_b32 v14, 3, v14")
            A.e("s_lshl_b32 s28, s21, 9")
            A.e(f"s_add_u32 s28, s28, {WS_KB}")
            A.e("v_add_u32 v14, s28, v14")
            A.e("v_cmp_eq_u32 vcc, 0, v3")
            A.e("s_nop 1")
            A.e("v_cndmask_b32 v14, v19, v14, vcc")
            A.e(f"buffer_store_dwordx2 v[116:117], v14, s[{SC}:{SC+3}], 0 offen sc1")
            A.e("s_lshl_b32 s28, s54, 7")
            A.e(f"s_add_u32 s28, s28, {WS_FLAG}")
            srd(A, SE_, PWS, 128, add="s28")
            A.e("v_lshlrev_b32 v14, 2, v0")
            A.e("v_mov_b32 v13, 0")
            A.e(f"buffer_store_dword v13, v14, s[{SE_}:{SE_+3}], 0 offen sc1")
        else:
            A.e("v_lshl_add_u32 v15, v12, 5, v2")
            A.e("v_lshlrev_b32 v15, 4, v15")
            A.e("s_lshl_b32 s28, s21, 11")
            A.e("s_lshl_b32 s29, s26, 10")
            A.e("s_add_u32 s28, s28, s29")
            A.e(f"s_add_u32 s28, s28, {WS_VA}")
            A.e("v_add_u32 v15, s28, v15")
            A.e("v_add_u32 v14, 256, v15")
            A.e("v_cndmask_b32 v15, v19, v15, vcc")
            A.e("v_cndmask_b32 v14, v19, v14, vcc")
            A.e(f"buffer_store_dwordx4 v[112:115], v15, s[{SC}:{SC+3}], 0 offen sc1")
            A.e("v_cmp_gt_u32 vcc, 5, v2")
            A.e("s_nop 1")
            A.e("v_cndmask_b32 v14, v19, v14, vcc")
            A.e(f"buffer_store_dwordx4 v[116:119], v14, s[{SC}:{SC+3}], 0 offen sc1")
        A.e("s_waitcnt vmcnt(0)")
        A.e("s_barrier")
        A.e("s_cmp_lg_u32 s20, 0")
        A.e(f"s_cbranch_scc1 {pfx}_b_nf{variant}")
        srd(A, SE_, PDBG, 256)
        A.e("s_lshl_b32 s28, s52, 2")
        A.e("v_mov_b32 v14, s28")
        A.e("v_mov_b32 v13, 1")
        A.e("s_mov_b64 exec, 1")
        A.e(f"buffer_store_dword v13, v14, s[{SE_}:{SE_+3}], 0 offen sc1")
        A.e("s_mov_b64 exec, -1")
        A.label(f"{pfx}_b_nf{variant}")
        if variant == "k": A.e(f"s_branch {pfx}_b_ownx")
    A.label(f"{pfx}_b_ownx")
    A.e("s_mul_i32 s21, s22, 81920")
    srd(A, SA, PX, 81920, add="s21")
    for c in range(10):
        for g in xdma(c, L_XR + 8192*c):
            for x in g: A.e(x)
    A.label(f"{pfx}_b_nokv")
    st(A)
    A.e("s_waitcnt vmcnt(0)")
    q.vq = []
    for i in range(20): A.e(f"v_mov_b32 v{GACC+i}, 0")
    def sync(c):
        L = [It("s_barrier", needv=(f"w{c}",))]
        if c >= 2 and c+2 < 10: L += [It(g, vm=f"w{c+2}") for g in wdma_ring(c+2, L_WR + WCH*((c+2) % 4))]
        return L
    pre, steps = gemm_items(lambda c: L_XR + 8192*c, lambda c: L_WR + WCH*(c % 4), sync)
    q.run(pre)
    for kk in range(20): q.run(steps[kk])
    q.all_l(); q.all_v()
    A.e("s_nop 4")
    st(A)
    A.e("s_barrier")
    q_epilogue(A, q)
    return q

def poll(A, pfx, name, srd_, nl, cmpmask):
    A.e("s_cmp_lg_u32 s20, 0")
    A.e(f"s_cbranch_scc1 {pfx}_{name}_np")
    A.e("v_lshlrev_b32 v12, 2, v1")
    A.e(f"s_mov_b32 s35, {SPIN_MAX}")
    if nl < 64: A.e(f"s_mov_b64 exec, {hex((1 << nl)-1)}")
    A.label(f"{pfx}_{name}_p")
    A.e(f"buffer_load_dword v13, v12, s[{srd_}:{srd_+3}], 0 offen sc1")
    A.e("s_waitcnt vmcnt(0)")
    A.e("v_cmp_ne_u32 vcc, 0, v13")
    A.e("s_sub_u32 s35, s35, 1")
    A.e("s_cmp_eq_u32 s35, 0")
    A.e(f"s_cbranch_scc1 {pfx}_{name}_d")
    if nl == 64:
        A.e("s_cmp_eq_u64 vcc, -1")
    else:
        A.e(f"s_cmp_eq_u32 vcc_lo, {hex((1 << nl)-1)}")
    A.e(f"s_cbranch_scc1 {pfx}_{name}_d")
    A.e("s_sleep 1")
    A.e(f"s_branch {pfx}_{name}_p")
    A.label(f"{pfx}_{name}_d")
    if nl < 64: A.e("s_mov_b64 exec, -1")
    A.label(f"{pfx}_{name}_np")

PREF_K, PREF_V = 6, 5
def step(A, tau, t, first=False, last=False, fillers=None, pre=None):
    cur = S[t & 1]; nxt = S[(t+1) & 1]
    Pc = P[t & 1]; Pp = P[(t+1) & 1]
    par = tau & 1
    if t < NT-1: nt, ntau = t+1, tau
    else: nt, ntau = 0, tau+1
    do_next = not (last and t == NT-1)
    M1 = f"v_mfma_f32_32x32x16_bf16 {vr(nxt,16)}, {KAr(nt)}, {QAr(ntau)}, 0" if do_next else None
    M2 = f"v_mfma_f32_32x32x8_bf16 {vr(nxt,16)}, {KBr(nt)}, {QBr(ntau)}, {vr(nxt,16)}" if do_next else None
    if t == 0: pt, op, c0 = NT-1, O[par ^ 1], None
    else:
        pt, op = t-1, O[par]
        c0 = "0" if t == 1 else None
    if t == 0 and first: PV0p = PVp = None
    else:
        PV0p = f"v_mfma_f32_32x32x16_bf16 {vr(op,16)}, {VAr(pt,0)}, {vr(Pp,4)}, {c0 or vr(op,16)}"
        PVp = f"v_mfma_f32_32x32x16_bf16 {vr(op,16)}, {VAr(pt,1)}, {vr(Pp+4,4)}, {vr(op,16)}"
    E = lambda i: f"v_exp_f32 v{cur+i}, v{cur+i}"
    C = lambda i: f"v_cvt_pk_bf16_f32 v{Pc+i}, v{cur+2*i}, v{cur+2*i+1}"
    seq = [E(0), M1, E(1), E(2), C(0), E(3), E(4), PV0p, C(1), E(5), E(6), C(2), E(7), M2, E(8), C(3), E(9), E(10), C(4), E(11),
           PVp, E(12), C(5), E(13), E(14), E(15), C(6), C(7)]
    seq = [x for x in seq if x]
    groups = list(fillers or [])
    if groups:
        epos = [i for i, x in enumerate(seq) if x.startswith("v_exp")]
        flat = []
        for g in groups:
            if any(y.startswith("s_cbranch") for y in g) or any("exec" in y for y in g): flat.append(g)
            elif any("m0" in y for y in g): flat.append(g)
            else: flat += [[y] for y in g]
        n = len(flat); out = []; k = 0
        for i, x in enumerate(seq):
            out.append(x)
            if i in epos:
                want = ((epos.index(i)+1)*n + len(epos)-1)//len(epos) if True else 0
                while k < min(want, n):
                    out += flat[k]; k += 1
        for g in flat[k:]: out += g
        seq = out
    for x in (pre or []): A.e(x)
    for x in seq:
        if x.endswith(":"): A.label(x[:-1])
        else: A.e(x)

def part_addr():
    return [["s_lshr_b32 s35, s37, 1", "s_sub_u32 s35, s20, s35", "s_sub_u32 s35, s35, 1", "s_and_b32 s35, s35, 3",
             "s_mul_i32 s36, s37, 3", "s_add_u32 s35, s35, s36", f"s_mul_i32 s35, s35, {PART}", f"v_add_u32 v{VW}, s35, v4",
             "s_add_u32 s37, s37, 1", "s_and_b32 s37, s37, 7"]]
def part_write(tau):
    par = (tau-1) & 1
    return [[f"ds_write_b128 v{VW}, {vr(O[par]+4*g,4)} offset:{1024*g}" for g in range(3)]]

def attention(A, pfx):
    srd(A, SE_, PDBG, 256)
    poll(A, pfx, "kv", SE_, 64, None)
    A.e("s_waitcnt lgkmcnt(0)")
    A.e("s_barrier")
    st(A)
    srd(A, SA, PWS, WS_VA + 64*2048)
    A.e("s_lshl_b32 s24, s20, 14          ; KA: T*1024")
    A.e(f"s_lshl_b32 s25, s20, 13         ; KB: T*512")
    A.e(f"s_add_u32 s25, s25, {WS_KB}")
    A.e("s_lshl_b32 s26, s20, 15          ; VA: T*2048")
    A.e(f"s_add_u32 s26, s26, {WS_VA}")
    def ldK(t): return [[f"s_add_u32 s27, s24, {1024*t}", f"buffer_load_dwordx4 {KAr(t)}, v4, s[{SA}:{SA+3}], s27 offen"],
                        [f"s_add_u32 s28, s25, {512*t}", f"buffer_load_dwordx2 {KBr(t)}, v5, s[{SA}:{SA+3}], s28 offen"]]
    def ldV(t): return [[f"s_add_u32 s29, s26, {2048*t}", f"buffer_load_dwordx4 {VAr(t,0)}, v8, s[{SA}:{SA+3}], s29 offen"],
                        [f"buffer_load_dwordx4 {VAr(t,1)}, v8, s[{SA}:{SA+3}], s29 offen offset:1024"]]
    PK, PVn = PREF_K, PREF_V
    for g in ldK(0)[0:2]:
        for x in g: A.e(x)
    for tau in range(8):
        A.e(f"v_mov_b32 v{132+6*tau}, 0"); A.e(f"v_mov_b32 v{133+6*tau}, 0")
    A.e("s_lshl_b32 s33, s20, 1" if False else "s_lshl_b32 s35, s20, 1")
    for tau in range(8):
        A.e(f"s_add_u32 s36, s35, {2+tau}")
        A.e("s_and_b32 s36, s36, 7")
        A.e("s_mul_i32 s36, s36, 1280")
        A.e(f"v_add_u32 v12, s36, v{VQR}")
        A.e(f"v_add_u32 v13, s36, v{VQRB}")
        A.e(f"ds_read_b128 {QAr(tau)}, v12")
        A.e("s_mov_b32 exec_hi, 0")
        A.e(f"ds_read_b64 {QBr(tau)}, v13")
        A.e("s_mov_b32 exec_hi, -1")
        if tau == 3:
            for g in ldV(0):
                for x in g: A.e(x)
            A.e("s_waitcnt lgkmcnt(4)")
    for t in range(1, PK):
        for g in ldK(t):
            for x in g: A.e(x)
        if t < PVn:
            for g in ldV(t):
                for x in g: A.e(x)
    A.e("s_add_u32 s37, s35, 2")
    A.e("s_and_b32 s37, s37, 7")
    A.e("s_mul_i32 s21, s23, 160")
    srd(A, SD, PWO, "0", add="s21")
    A.e(f"s_sub_u32 s{SD+2}, 819200, s21")
    srd(A, SF, PU, 2048*1280)
    A.e("s_waitcnt lgkmcnt(0)")
    A.e("s_barrier")
    order = ["K0", "V0"]
    for t in range(1, PK):
        order.append(f"K{t}")
        if t < PVn: order.append(f"V{t}")
    A.e(f"s_waitcnt vmcnt({2*(len(order)-1)})")
    st(A)
    A.e(f"v_mfma_f32_32x32x16_bf16 {vr(S[0],16)}, {KAr(0)}, {QAr(0)}, 0")
    A.e(f"v_mfma_f32_32x32x8_bf16 {vr(S[0],16)}, {KBr(0)}, {QBr(0)}, {vr(S[0],16)}")
    A.e("s_nop 7"); A.e("s_nop 3")
    for t in range(NT):
        fl = []; need = []
        if t+1 < NT: need.append(f"K{t+1}")
        if t >= 1: need.append(f"V{t-1}")
        idx = max(order.index(x) for x in need)
        nout = 2*(len(order) - 1 - idx)
        if t == NT-1: nout = 0
        new = []
        if t+PK < NT: fl += ldK(t+PK); new.append(f"K{t+PK}")
        if t+PVn < NT: fl += ldV(t+PVn); new.append(f"V{t+PVn}")
        step(A, 0, t, first=True, fillers=fl, pre=[f"s_waitcnt vmcnt({nout})"])
        order += new
    st(A)
    wl = []
    for c in range(8): wl += wdma_ring(c, BWchunk(c))
    def bg(n):
        L = []
        la, lb = f"{pfx}_bga{n}", f"{pfx}_bgb{n}"
        if n < 16:
            L += [f"s_cbranch_vccnz {la}", f"s_add_u32 m0, s62, {256*n}", f"s_add_u32 s63, s61, {64*1280*n}",
                  f"buffer_load_dword v{VUD}, s[{SF}:{SF+3}], s63 offen lds", f"s_branch {lb}", la + ":"] + wl[n] + [lb + ":"]
        else:
            L += [f"s_cbranch_vccz {lb}"] + wl[n] + [lb + ":"]
        return L
    A.e(f"s_cmp_ge_u32 s3, {NCONV}")
    A.e("s_cselect_b64 vcc, -1, 0")
    A.e("s_lshr_b32 s61, s20, 1")
    A.e("s_lshl_b32 s62, s61, 12          ; 16 blocks * 256 B")
    A.e(f"s_mul_i32 s61, s61, {16*64*1280}")
    A.e("s_and_b32 s21, s20, 1")
    A.e("s_mul_i32 s21, s21, 8320")
    A.e("s_add_u32 s62, s62, s21")
    A.e(f"s_add_u32 s62, s62, {L_U0+64}")
    for tau in range(1, 8):
        for t in range(NT):
            fl = []
            if tau <= 6 and t == 1: fl += part_addr()
            if tau <= 6 and t == 3: fl += part_write(tau)
            if tau <= 6 and t in (5, 8, 11, 14): fl += [bg((tau-1)*4 + (t-5)//3)]
            step(A, tau, t, last=(tau == 7), fillers=fl)
        st(A)
    A.e("s_nop 1")
    par = 1; Pp = P[(NT-1) & 1]
    A.e(f"v_mfma_f32_32x32x16_bf16 {vr(O[par],16)}, {VAr(NT-1,0)}, {vr(Pp,4)}, {vr(O[par],16)}")
    A.e(f"v_mfma_f32_32x32x16_bf16 {vr(O[par],16)}, {VAr(NT-1,1)}, {vr(Pp+4,4)}, {vr(O[par],16)}")
    A.e("s_waitcnt vmcnt(0) lgkmcnt(0)")
    A.e("s_barrier")
    st(A)

def reduce_publish(A, pfx):
    RB = 176 - 48
    RB = 128
    def rdpart(jj):
        for sl in range(3):
            for g in range(3):
                A.e(f"ds_read_b128 {vr(RB + (jj*3+sl)*12 + 4*g, 4)}, v{VRED} offset:{(jj*3+sl)*PART + 1024*g}")
    rdpart(0)
    srd(A, SC, PWS, 2048*1280, add=WS_O)
    for jj in range(2):
        Of = O[jj]
        A.e("s_waitcnt lgkmcnt(0)")
        if jj == 0: rdpart(1)
        for sl in range(3):
            for r in range(12): A.e(f"v_add_f32 v{Of+r}, v{Of+r}, v{RB+(jj*3+sl)*12+r}")
        A.e(f"v_mov_b32 v28, v{Of+8}")
        A.e(f"v_mov_b32 v29, v{Of+8}")
        A.e("s_nop 1")
        A.e("v_permlane32_swap_b32 v28, v29")
        A.e("s_nop 1")
        A.e("v_rcp_f32 v29, v29")
        A.e("s_nop 0")
        for r in range(12): A.e(f"v_mul_f32 v{16+r}, v{Of+r}, v29")
        for g in range(3):
            A.e(f"v_cvt_pk_bf16_f32 v{32+6*jj+2*g}, v{16+4*g}, v{17+4*g}")
            A.e(f"v_cvt_pk_bf16_f32 v{33+6*jj+2*g}, v{18+4*g}, v{19+4*g}")
    A.e("s_barrier")
    for jj in range(2):
        A.e(f"ds_write_b64 v{VOS}, {vr(32+6*jj,2)} offset:{5120*jj}")
        A.e(f"ds_write_b64 v{VOS}, {vr(34+6*jj,2)} offset:{5120*jj+16}")
        A.e(f"ds_write_b64 v{VOS2a if jj == 0 else VOS2b}, {vr(36+6*jj,2)}")
    A.e("s_mul_i32 s24, s22, 81920")
    A.e("s_mul_i32 s25, s23, 160")
    A.e("s_add_u32 s24, s24, s25")
    A.e("s_waitcnt lgkmcnt(0)")
    A.e("s_barrier")
    for i in range(3):
        A.e(f"ds_read_b128 {vr(44+4*i,4)}, v{VTID16} offset:{4096*i}")
    for i in range(3):
        A.e(f"s_waitcnt lgkmcnt({2-i})")
        A.e(f"buffer_store_dwordx4 {vr(44+4*i,4)}, v{VOG+i}, s[{SC}:{SC+3}], s24 offen sc1")
    A.e("s_lshl_b32 s21, s22, 7")
    A.e(f"s_add_u32 s21, s21, {WS_FLAG}")
    srd(A, SE_, PWS, 128, add="s21")
    A.e("s_waitcnt vmcnt(0)")
    A.e("s_barrier")
    A.e("s_cmp_lg_u32 s20, 0")
    A.e(f"s_cbranch_scc1 {pfx}_noflag")
    A.e("s_lshl_b32 s21, s23, 2")
    A.e("v_mov_b32 v12, s21")
    A.e("v_mov_b32 v13, 1")
    A.e("s_mov_b64 exec, 1")
    A.e(f"buffer_store_dword v13, v12, s[{SE_}:{SE_+3}], 0 offen sc1")
    A.e("s_mov_b64 exec, -1")
    A.label(f"{pfx}_noflag")
    st(A)

def conv_part(A, pfx):
    for ps in range(5):
        b = 16 + 10*ps
        A.e(f"ds_read_b128 {vr(b,4)}, v{VUR} offset:{2048*ps}")
        A.e(f"ds_read_b128 {vr(b+4,4)}, v{VUR} offset:{2048*ps+16}")
        A.e(f"ds_read_b32 v{b+8}, v{VUR} offset:{2048*ps+32}")
    A.e("s_and_b32 s21, s20, 1")
    A.e("s_cmp_eq_u32 s21, 0")
    A.e("s_cselect_b32 s24, 0x05040100, 0x07060302" if False else "s_mov_b32 s25, 0x07060302")
    A.e("s_cselect_b32 s24, 0x05040100, s25")
    A.e(f"v_add_u32 v12, {L_U0}, v{VUW}")
    A.e("s_waitcnt lgkmcnt(0)")
    A.e("s_barrier")
    for ps in range(5):
        b = 16 + 10*ps
        if ps == 4: A.e("s_mov_b64 exec, 15")
        o = 72 + 8*(ps & 1)
        for i in range(4): A.e(f"v_perm_b32 v{o+i}, v{b+2*i+1}, v{b+2*i}, s24")
        for i in range(4): A.e(f"v_perm_b32 v{o+4+i}, v{b+2*i+2}, v{b+2*i+1}, s24")
        A.e(f"ds_write_b128 v12, {vr(o,4)} offset:{1024*ps}")
        A.e(f"ds_write_b128 v{VUW}, {vr(o+4,4)} offset:{L_U1+1024*ps}")
        if ps == 4: A.e("s_mov_b64 exec, -1")
    ACC = 16; AB = 64
    def Br(D, i): return ar(32*D + 4*i, 4)
    def Ar(c, i): return vr(AB + 32*(c & 1) + 4*i, 4)
    def Ahalf(c, i, h): return vr(AB + 32*(c & 1) + 4*i + 2*h, 2)
    for i in range(32): A.e(f"v_mov_b32 v{ACC+i}, 0")
    A.e("s_lshl_b32 s21, s33, 3")
    A.e(f"s_load_dwordx2 s[38:39], s[{PDSK}:{PDSK+1}], s21")
    srd(A, SH, POUT, 2048*2560)
    A.e("s_waitcnt lgkmcnt(0)")
    A.e("s_lshl_b32 s60, s38, 16")
    A.e("s_and_b32 s61, s38, 0xffff0000")
    A.e("s_lshl_b32 s62, s39, 16")
    A.e("s_and_b32 s63, s39, 0xffff0000")
    st(A)
    q = Q(A)
    def readsA(c):
        L = [It(f"v_add_u32 v11, {512*c}, v{VCU}")]
        for i in range(8):
            L.append(It(f"ds_read2_b32 {Ahalf(c,i,0)}, v11 offset0:{16*i} offset1:{16*i+1}", lds=f"a{c}_{i}"))
            L.append(It(f"ds_read2_b32 {Ahalf(c,i,1)}, v11 offset0:{16*i+2} offset1:{16*i+3}", lds=f"a{c}_{i}"))
        return L
    def readsB(D):
        return [It(f"ds_read_b128 {Br(D,i)}, v{VCK} offset:{512*(7-D)+64*i}", lds=f"b{D}_{i}") for i in range(8)]
    def mm(c, D, i):
        acc = ACC + 4*(c + D)
        return It(f"v_mfma_f32_16x16x32_bf16 {vr(acc,4)}, {Ar(c,i)}, {Br(D,i)}, {vr(acc,4)}", needl=(f"a{c}_{i}", f"b{D}_{i}"), w=2)
    def flush(B):
        acc = ACC + 4*B; bo = (B & 1)*YSB
        L = [It(f"v_cvt_pk_bf16_f32 v48, v{acc}, v{acc+1}"), It(f"v_cvt_pk_bf16_f32 v49, v{acc+2}, v{acc+3}"),
             It(f"ds_write_b64 v{VYS}, v[48:49] offset:{bo}", lds=f"yw{B}"),
             It("s_barrier", needl=(f"yw{B}",)),
             It(f"ds_read_b64_tr_b16 v[50:51], v{VYT} offset:{bo}", lds=f"yr{B}"),
             It(f"ds_read_b64_tr_b16 v[52:53], v{VUT} offset:{512*B}", lds=f"yr{B}")]
        V_ = []
        for dw in range(2):
            y = 50+dw; u = 52+dw
            V_ += [f"v_lshlrev_b32 v54, 16, v{u}", f"v_and_b32 v55, 0xffff0000, v{u}",
                   f"v_mul_f32 v54, s{60+2*dw}, v54", f"v_mul_f32 v55, s{61+2*dw}, v55",
                   f"v_cvt_pk_bf16_f32 v54, v54, v55", f"v_lshlrev_b32 v56, 16, v{y}", f"v_and_b32 v57, 0xffff0000, v{y}",
                   f"v_and_b32 v55, 0xffff0000, v54", f"v_lshlrev_b32 v54, 16, v54",
                   f"v_add_f32 v55, v55, v57", f"v_add_f32 v54, v54, v56", f"v_cvt_pk_bf16_f32 v{58+2*(B & 1)+dw}, v54, v55"]
        L += [It(V_[0], needl=(f"yr{B}",))] + [It(x) for x in V_[1:]]
        L.append(It([f"s_mov_b32 s28, {B*256*2560}", f"buffer_store_dwordx2 {vr(58+2*(B & 1),2)}, v{VYO}, s[{SH}:{SH+3}], s28 offen"], vm="Y"))
        return L
    q.run(readsA(0) + readsB(0))
    for c in range(8):
        if c == 0:
            for D in range(8):
                M = [mm(0, D, i) for i in range(8)]
                R = readsB(D+1) if D < 7 else readsA(1)
                q.run(merge(M, R))
        else:
            M = [mm(c, D, i) for i in range(8) for D in range(8-c)]
            R = readsA(c+1) if c < 7 else []
            F = flush(c-1)
            head = M[:5]; rest = M[5:]
            q.run(head)
            q.run(merge(rest, F + R) if len(rest) >= 8 else rest + F + R)
    A.e("s_nop 7")
    q.run(flush(7))
    st(A)
    finish(A)

BW0 = 73728
def BWchunk(c): return (BW0 + c*WCH) if c < 8 else (16704 + (c-8)*WCH)
BXBUF = [0, 8192, 37184, 37184+8192, 37184+16384, 37184+24576]

def finish(A):
    if Cfg.STAMP:
        A.e("s_waitcnt vmcnt(0)")
        st(A)
        A.e("s_mov_b32 s2, s3")
        stamp_out(A, PWS, 4, STAMP_BASE, VSTAMP, VSTMP)
    A.e("s_endpgm")

def outproj_b(A, pfx):
    A.e("s_mov_b32 s60, s22")
    A.e("s_sub_u32 s61, s22, 20")
    A.e("s_add_u32 s62, s61, 12")
    A.e("s_cmp_lt_u32 s62, 20")
    A.e("s_cselect_b32 s63, 3, 2")
    A.e("s_cselect_b32 s62, s62, s61")
    q = Q(A)
    for c in (8, 9): q.run([It(g, vm=f"W{c}") for g in wdma_ring(c, BWchunk(c))])
    srd(A, SE_, PWS, 32*128, add=WS_FLAG)
    def wait_flags(name, regs):
        nl = 8*len(regs)
        A.e("s_cmp_lg_u32 s20, 0")
        A.e(f"s_cbranch_scc1 {pfx}_{name}_np")
        A.e(f"v_mov_b32 v14, s{regs[0]}")
        if len(regs) > 1:
            A.e("v_lshrrev_b32 v13, 3, v1")
            A.e("v_cmp_eq_u32 vcc, 1, v13")
            A.e(f"v_mov_b32 v15, s{regs[1]}")
            A.e("s_nop 0")
            A.e("v_cndmask_b32 v14, v14, v15, vcc")
        A.e("v_and_b32 v12, 7, v1")
        A.e("v_lshlrev_b32 v12, 2, v12")
        A.e("v_lshl_add_u32 v12, v14, 7, v12")
        A.e(f"s_mov_b32 s35, {SPIN_MAX}")
        A.e(f"s_mov_b64 exec, {hex((1 << nl)-1)}")
        A.label(f"{pfx}_{name}_p")
        A.e(f"buffer_load_dword v13, v12, s[{SE_}:{SE_+3}], 0 offen sc1")
        A.e("s_waitcnt vmcnt(0)")
        A.e("v_cmp_ne_u32 vcc, 0, v13")
        A.e("s_sub_u32 s35, s35, 1")
        A.e("s_cmp_eq_u32 s35, 0")
        A.e(f"s_cbranch_scc1 {pfx}_{name}_d")
        A.e(f"s_cmp_eq_u32 vcc_lo, {hex((1 << nl)-1)}")
        A.e(f"s_cbranch_scc1 {pfx}_{name}_d")
        A.e("s_sleep 1")
        A.e(f"s_branch {pfx}_{name}_p")
        A.label(f"{pfx}_{name}_d")
        A.e("s_mov_b64 exec, -1")
        A.label(f"{pfx}_{name}_np")
        A.e("s_waitcnt vmcnt(0)")
        A.e("s_barrier")
    wait_flags("o", [60])
    q.vq = []
    st(A)
    srd(A, SA, PWS, 2048*1280, add=WS_O)
    srd(A, SC, POUT, 2048*2560)
    for t in range(3): A.e(f"s_mul_i32 s{56+t}, s{60+t}, 81920")
    A.e("s_lshl_b32 s59, s20, 11")
    ACC = [16, 36]; WF = 56; XF = [[76, 80], [84, 88]]
    def xld(t, c, buf):
        return [It([f"s_add_u32 s36, s{56+t}, {128*c}", f"s_add_u32 m0, s59, {BXBUF[buf]}", "s_nop 0",
                    f"buffer_load_dwordx4 v{VXD0}, s[{SA}:{SA+3}], s36 offen lds"], vm=f"X{t}_{c}"),
                It([f"s_add_u32 m0, s59, {BXBUF[buf]+1024}", "s_nop 0",
                    f"buffer_load_dwordx4 v{VXD1}, s[{SA}:{SA+3}], s36 offen lds"], vm=f"X{t}_{c}")]
    def rdX(slot, kk, buf):
        ks = kk & 1; xb = BXBUF[buf]
        a, o = ((VXF0 if ks == 0 else VXF1), xb) if xb < 65536 else ((VXF0h if ks == 0 else VXF1h), xb-65536)
        return It(f"ds_read_b128 {vr(XF[slot][kk & 1],4)}, v{a} offset:{o}", lds=f"x{slot}_{kk}")
    def rdW(kk, mt):
        c, ks = kk >> 1, kk & 1; out = []
        for h in range(2):
            off = BWchunk(c) + (32*ks + 8*h)*160 + 32*mt
            a = VWT
            if off >= 131072: a, off = VWTh2, off - 131072
            elif off >= 65536: a, off = VWTh, off - 65536
            out.append(It(f"ds_read_b64_tr_b16 {vr(WF+mt*4+h*2,2)}, v{a} offset:{off}", lds=f"w{kk}_{mt}"))
        return out
    def pack(slot, base):
        for mt in range(5):
            acc = ACC[slot] + 4*mt
            r = base + 2*mt
            A.e(f"v_cvt_pk_bf16_f32 v{r}, v{acc}, v{acc+1}")
            A.e(f"v_cvt_pk_bf16_f32 v{r+1}, v{acc+2}, v{acc+3}")
    def store(base, t):
        A.e(f"s_mul_i32 s21, s{60+t}, 163840")
        A.e("s_add_u32 s21, s21, s55")
        for mt in range(5):
            q.emit(It(f"buffer_store_dwordx2 {vr(base+2*mt,2)}, v{VOUT}, s[{SC}:{SC+3}], s21 offen offset:{32*mt}", vm="S"))
    A.e("s_mul_i32 s55, s23, 160")
    A.e("s_add_u32 s55, s55, 1280")
    free = list(range(6)); where = {}
    pending = []
    def pump():
        out = []
        while free and pending:
            t, c = pending.pop(0); b = free.pop(0); where[(t, c)] = b
            out += xld(t, c, b)
        return out
    def run_pass(tiles):
        n = len(tiles)
        free[:] = list(range(6)); pending[:] = [(t, c) for c in range(10) for t in tiles]
        for sl in range(n):
            for i in range(20): A.e(f"v_mov_b32 v{ACC[sl]+i}, 0")
        def sync(c):
            L = []
            if c >= 1:
                for t in tiles: free.append(where[(t, c-1)])
            L += pump()
            L.append(It("s_nop 0", needv=tuple(f"X{t}_{c}" for t in tiles)))
            return L
        q.run(sync(0))
        for sl, t in enumerate(tiles): q.emit(rdX(sl, 0, where[(t, 0)]))
        for mt in range(5): q.run(rdW(0, mt))
        for kk in range(20):
            c1 = (kk+1) >> 1
            for mt in range(5):
                for sl in range(n):
                    q.emit(It(f"v_mfma_f32_16x16x32_bf16 {vr(ACC[sl]+4*mt,4)}, {vr(WF+4*mt,4)}, {vr(XF[sl][kk & 1],4)}, {vr(ACC[sl]+4*mt,4)}",
                              needl=(f"x{sl}_{kk}", f"w{kk}_{mt}")))
                if kk+1 < 20:
                    if mt == 0:
                        if (kk+1) & 1 == 0: q.run(sync(c1))
                        for sl, t in enumerate(tiles): q.emit(rdX(sl, kk+1, where[(t, c1)]))
                    q.run(rdW(kk+1, mt))
        for t in tiles: free.append(where[(t, 9)])
        q.all_l()
        A.e("s_nop 7")
    run_pass([0])
    pack(0, 92)
    store(92, 0)
    st(A)
    wait_flags("o2", [61, 62])
    q.vq = []
    st(A)
    A.e("s_cmp_eq_u32 s63, 2")
    A.e(f"s_cbranch_scc1 {pfx}_b2")
    q = Q(A)
    run_pass([1, 2])
    st(A)
    pack(0, 92); pack(1, 102)
    store(92, 1); store(102, 2)
    finish(A)
    A.label(f"{pfx}_b2")
    q = Q(A)
    run_pass([1])
    st(A)
    pack(0, 92)
    store(92, 1)
    finish(A)

def mega_role(A, pfx):
    prologue(A, pfx)
    A.e(f"s_cmp_ge_u32 s3, {NCONV}")
    A.e(f"s_cbranch_scc1 {pfx}_fb")
    q = front_a(A, pfx)
    A.e(f"s_branch {pfx}_fdone")
    A.label(f"{pfx}_fb")
    q = front_b(A, pfx)
    A.label(f"{pfx}_fdone")
    st(A)
    attention(A, pfx)
    reduce_publish(A, pfx)
    A.e(f"s_cmp_ge_u32 s3, {NCONV}")
    A.e(f"s_cbranch_scc1 {pfx}_bback")
    conv_part(A, pfx)
    A.label(f"{pfx}_bback")
    outproj_b(A, pfx)
```

```python
from common import *
class It:
    __slots__ = ("txt", "lds", "vm", "needl", "needv", "w")
    def __init__(self, txt, lds=None, vm=None, needl=(), needv=(), w=1):
        self.txt = txt if isinstance(txt, list) else [txt]
        self.lds = lds if (lds is None or isinstance(lds, list)) else [lds]
        self.vm = vm if (vm is None or isinstance(vm, list)) else [vm]
        self.needl = tuple(needl); self.needv = tuple(needv); self.w = w
class Q:
    def __init__(self, A):
        self.A = A; self.lq = []; self.vq = []
    def wait_l(self, tags):
        idx = [i for i, t in enumerate(self.lq) if t in tags]
        if not idx: return
        i = max(idx); n = len(self.lq) - 1 - i
        self.A.e(f"s_waitcnt lgkmcnt({min(n,15)})")
        del self.lq[:i+1]
    def wait_v(self, tags):
        idx = [i for i, t in enumerate(self.vq) if t in tags]
        if not idx: return
        i = max(idx); n = len(self.vq) - 1 - i
        assert n <= 63
        self.A.e(f"s_waitcnt vmcnt({n})")
        del self.vq[:i+1]
    def all_l(self):
        if self.lq: self.A.e("s_waitcnt lgkmcnt(0)"); self.lq = []
    def all_v(self):
        if self.vq: self.A.e("s_waitcnt vmcnt(0)"); self.vq = []
    def emit(self, it):
        if it.needv: self.wait_v(it.needv)
        if it.needl: self.wait_l(it.needl)
        for l in it.txt:
            if l.endswith(":"): self.A.label(l[:-1])
            else: self.A.e(l)
        if it.lds: self.lq += it.lds
        if it.vm: self.vq += it.vm
    def run(self, items):
        for it in items: self.emit(it)
def merge(main, fill):
    if not fill: return list(main)
    if not main: return list(fill)
    tm = sum(x.w for x in main); tf = sum(x.w for x in fill)
    out = []; k = 0; am = 0; af = 0
    for m in main:
        out.append(m); am += m.w
        while k < len(fill) and (af + fill[k].w) * tm <= am * tf + 1e-9:
            out.append(fill[k]); af += fill[k].w; k += 1
    out += fill[k:]
    return out
def V(lines, w=None):
    return [It(l, w=(w or 1)) for l in lines]
def asm_lines(fn):
    T = Asm(); fn(T); return [x.strip() for x in T.lines if x.strip()]
```

```python
import sys
from common import *
import mega, asmcheck
def build(path):
    K = NAME + "_kernel"
    body = Asm()
    kernel_begin(body, K)
    body.e("s_mov_b32 s3, s2")
    body.e("s_cmp_lt_u32 s2, 256")
    body.e("s_cbranch_scc1 mega_go")
    body.e("s_endpgm")
    body.label("mega_go")
    mega.mega_role(body, "mg")
    hdr = open("cdna_kernels/" + NAME + ".s.ref").read().split("; Override launch")[0]
    out = hdr + f"; @launch grid=(256,1,1) block=(256,1,1) lds={mega.LDS_MEGA}\n"
    out += '.amdgcn_target "amdgcn-amd-amdhsa--gfx950"\n' + body.text() + kernel_desc(K, 512, 256, 102)
    open(path, "w").write(out)
    import re
    go = {"mega_go"}
    pol = {
      "A_w0": (lambda t: t in go | {"mg_kv_d"} or t.startswith("mg_bgb")),
      "A_w1": (lambda t: t in go | {"mg_kv_np", "mg_noflag"} or t.startswith("mg_bgb")),
      "B_k": (lambda t: t in go | {"mg_fb", "mg_kv_d", "mg_o_d", "mg_o2_d", "mg_bback"} or t.startswith("mg_bga")),
      "B_v": (lambda t: t in go | {"mg_fb", "mg_b_vpart", "mg_b_nfv", "mg_kv_np", "mg_o_np", "mg_o2_np", "mg_noflag", "mg_bback", "mg_b2"} or t.startswith("mg_bga")),
      "B_n": (lambda t: t in go | {"mg_fb", "mg_b_nowkv", "mg_b_nokv", "mg_kv_d", "mg_o_d", "mg_o2_d", "mg_bback"} or t.startswith("mg_bga")),
    }
    errs = asmcheck.check_policies(body.text(), K, pol)
    for e in errs[:30]: print(e)
    print("wrote", path, len(out), "bytes;", len(errs), "checker messages")
if __name__ == "__main__":
    if "stamp" in sys.argv: Cfg.STAMP = True
    build(sys.argv[1])
```

```python
from common import *
from sched import *
import math
LOG2E = math.log2(math.e)
GBUF = 18432; GXB = 8192
L_KR = 73728
L_KG = 55296; KGW = 25872
RA = 3
L_XR = 0; L_WKV = 81920; L_WR = 107520
L_QL = 0
L_PART = 0; PART = 3072
L_U0 = 92160; CS = 4160
L_WA = 108800; WCH = 10240
L_DUMMY = 160000
L_U1 = 64; L_WB = 16704
L_YS = 16896; YSC = 576; YSB = 4*YSC
LDS_MEGA = 161024
def Wchunk(c): return (L_WA + c*WCH) if c < 5 else (L_WB + (c-5)*WCH)
XBUF = [L_KR, L_KR+8192, L_U0, L_U0+8192, L_U1, L_U1+8192]
WS_FLAG = 0x1100000
SPIN_MAX = 1 << 18
NCONV = 160
PU, PARE, PAIM, PBRE, PBIM, PCRE, PCIM, PLDT = 64, 66, 68, 70, 72, 74, 76, 78
PDSK, PX, PWQ, PWK, PWV, PWO, POUT, PDBG = 80, 82, 84, 86, 88, 90, 92, 94
PWS = 4
SA, SB, SC, SD, SE_, SF, SG, SH = 8, 12, 16, 40, 44, 48, 52, 56
VXD0, VXD1 = 200, 201
VWD = 202
VOUT = 205
VYO = 206
VOS, VOS2a, VOS2b = 207, 208, 209
VOG = 210
VTID16 = 213
VCU, VCK = 214, 215
VYS = 216
VYT, VUT = 217, 218
VUR = 219
VUW = 220
VRED = 221
VXF0, VXF1 = 222, 223
VWT = 224
VUD = 225
VQW = 226
VQR, VQRB = 231, 232
VXF0h, VXF1h, VWTh, VWTh2 = 233, 234, 235, 236
VSTAMP, VSTMP = 252, 253
S = [16, 32]; P = [48, 56]; O = [80, 96]; VW = 7; NT = 16
def QAr(tau): return vr(128+6*tau, 4)
def QBr(tau): return vr(132+6*tau, 2)
def KAr(t): return ar(4*t, 4)
def KBr(t): return ar(64+2*t, 2)
def VAr(t, u): return ar(96+8*t+4*u, 4)

def st(A): stamp(A, VSTAMP)

PREFETCH = True
CODE_BYTES = 80*1024
def prefetch(A, pfx):
    A.e("s_getpc_b64 s[24:25]")
    A.label(f"{pfx}_pc")
    A.e("s_lshr_b32 s26, s3, 3")
    A.e("s_lshl_b32 s26, s26, 2")
    A.e("s_add_u32 s26, s26, s20          ; slice 0..127")
    A.e("s_mul_i32 s26, s26, 768")
    A.e("v_min_u32 v12, 5, v1")
    A.e("v_lshlrev_b32 v12, 7, v12")
    A.e("v_add_u32 v12, s26, v12")
    A.e(f"v_min_u32 v12, {pfx}_end-{pfx}_pc-4, v12")
    A.e("global_load_dword v249, v12, s[24:25]")
    A.e("s_lshl_b32 s26, s3, 2")
    A.e("s_add_u32 s26, s26, s20")
    A.e("s_lshl_b32 s26, s26, 6")
    A.e("v_add_u32 v12, s26, v1           ; slot")
    A.e("v_lshlrev_b32 v13, 7, v12")
    srd(A, SB, PX, 2048*1280)
    A.e(f"buffer_load_dword v250, v13, s[{SB}:{SB+3}], 0 offen")
    A.e("v_subrev_u32 v13, 0x280000, v13")
    srd(A, SB, PWQ, 819200)
    A.e(f"buffer_load_dword v251, v13, s[{SB}:{SB+3}], 0 offen")
def prologue(A, pfx):
    A.e("s_load_dwordx16 s[64:79], s[0:1], 0")
    A.e("s_load_dwordx16 s[80:95], s[0:1], 64")
    A.e(f"s_load_dwordx2 s[4:5], s[0:1], 128")
    stamp_init(A, VSTAMP); st(A)
    A.e("v_and_b32 v1, 63, v0")
    A.e("v_lshrrev_b32 v12, 6, v0")
    A.e("v_lshlrev_b32 v4, 4, v1          ; lane*16")
    A.e("v_readfirstlane_b32 s20, v12")
    A.e("v_and_b32 v2, 15, v1")
    A.e("v_lshrrev_b32 v3, 4, v1")
    A.e("s_mul_i32 s23, s3, 3277")
    A.e("s_lshr_b32 s23, s23, 16          ; w / 20")
    A.e("s_mul_i32 s22, s23, 20")
    A.e("s_sub_u32 s22, s3, s22           ; w % 20")
    A.e(f"s_sub_u32 s52, s3, {NCONV}        ; j")
    A.e("s_mul_i32 s24, s52, 5462")
    A.e("s_lshr_b32 s24, s24, 16          ; j / 12")
    A.e("s_mul_i32 s25, s24, 12")
    A.e("s_sub_u32 s25, s52, s25")
    A.e("s_add_u32 s25, s25, 20")
    A.e(f"s_cmp_ge_u32 s3, {NCONV}")
    A.e("s_cselect_b32 s22, s25, s22      ; rb")
    A.e("s_cselect_b32 s23, s24, s23      ; hg")
    A.e("s_lshr_b32 s53, s52, 5")
    A.e("s_min_u32 s53, s53, 2")
    A.e("s_cselect_b32 s53, s53, s53")
    A.e(f"s_cmp_lt_u32 s3, {NCONV}")
    A.e("s_cselect_b32 s53, 2, s53")
    A.e("s_and_b32 s54, s52, 31")
    A.e("s_cmp_lt_u32 s53, 2")
    A.e("s_cselect_b32 s54, s54, s22")
    A.e("s_lshl_b32 s32, s20, 10          ; wave*1024")
    A.e("s_and_b32 s33, s3, 7")
    A.e("s_mul_i32 s33, s33, 20")
    A.e("s_lshr_b32 s34, s3, 3")
    A.e("s_add_u32 s33, s33, s34")
    A.e("s_min_u32 s33, s33, 159")
    A.e("s_lshl_b32 s34, s33, 2")
    A.e("s_add_u32 s34, s34, s20          ; channel d")
    A.e("s_movk_i32 s27, 1280")
    A.e("v_lshrrev_b32 v12, 3, v1")
    A.e("v_and_b32 v13, 7, v1")
    A.e("v_xor_b32 v13, v13, v12")
    A.e("v_lshlrev_b32 v13, 4, v13")
    A.e("s_lshl_b32 s21, s20, 4")
    A.e("v_add_u32 v12, s21, v12")
    A.e(f"v_mad_u32_u24 v{VXD0}, v12, s27, v13")
    A.e(f"v_add_u32 v{VXD1}, 10240, v{VXD0}")
    A.e("s_mov_b32 s26, 6554")
    for n in range(3):
        A.e(f"s_add_u32 s21, s20, {4*n}")
        A.e("s_lshl_b32 s21, s21, 6")
        A.e("v_add_u32 v12, s21, v1          ; p")
        A.e("v_mul_u32_u24 v13, s26, v12")
        A.e("v_lshrrev_b32 v13, 16, v13      ; rho")
        A.e("v_mul_u32_u24 v14, 10, v13")
        A.e("v_sub_u32 v14, v12, v14         ; cc")
        A.e("v_lshlrev_b32 v14, 4, v14")
        A.e("v_and_b32 v15, 0x33, v13")
        A.e("v_bfe_u32 v5, v13, 2, 1")
        A.e("v_lshl_or_b32 v15, v5, 3, v15")
        A.e("v_bfe_u32 v5, v13, 3, 1")
        A.e("v_lshl_or_b32 v15, v5, 2, v15")
        A.e(f"v_mad_u32_u24 v{VWD+n}, v15, s27, v14")
        if n == 2:
            A.e(f"v_mov_b32 v12, {OOB}")
            A.e("v_cmp_gt_u32 vcc, 64, v13")
            A.e("s_nop 1")
            A.e(f"v_cndmask_b32 v{VWD+2}, v12, v{VWD+2}, vcc")
    A.e("s_waitcnt lgkmcnt(0)")
    if PREFETCH: prefetch(A, pfx)
    A.e("s_mul_i32 s21, s54, 81920")
    srd(A, SA, PX, 81920, add="s21")
    A.e("s_mul_i32 s21, s23, 160")
    srd(A, SD, PWQ, "0", add="s21")
    A.e(f"s_sub_u32 s{SD+2}, 819200, s21")

def addr_setup_items():
    T = Asm(); A = T
    A.e("s_lshl_b32 s21, s20, 4")
    A.e("v_add_u32 v12, s21, v2")
    A.e("v_lshlrev_b32 v12, 7, v12")
    A.e("v_and_b32 v13, 7, v2")
    A.e("v_xor_b32 v14, v13, v3")
    A.e(f"v_lshl_add_u32 v{VXF0}, v14, 4, v12")
    A.e("v_add_u32 v14, 4, v3")
    A.e("v_xor_b32 v14, v13, v14")
    A.e(f"v_lshl_add_u32 v{VXF1}, v14, 4, v12")
    A.e(f"v_add_u32 v{VXF0h}, 65536, v{VXF0}")
    A.e(f"v_add_u32 v{VXF1h}, 65536, v{VXF1}")
    A.e("v_lshrrev_b32 v12, 1, v3")
    A.e("v_lshlrev_b32 v12, 4, v12")
    A.e("v_and_b32 v13, 1, v3")
    A.e("v_lshl_add_u32 v12, v13, 2, v12")
    A.e("v_lshrrev_b32 v13, 2, v2")
    A.e("v_add_u32 v12, v12, v13")
    A.e("v_mul_u32_u24 v12, 160, v12")
    A.e("v_and_b32 v13, 3, v2")
    A.e(f"v_lshl_add_u32 v{VWT}, v13, 3, v12")
    A.e(f"v_add_u32 v{VWTh}, 65536, v{VWT}")
    A.e(f"v_add_u32 v{VWTh2}, 0x20000, v{VWT}")
    A.e("s_and_b32 s21, s20, 1")
    A.e("s_lshl_b32 s21, s21, 4")
    A.e("v_add_u32 v15, s21, v2          ; pos32")
    A.e("s_movk_i32 s26, 3277")
    A.e("s_lshr_b32 s24, s20, 1")
    A.e("s_mul_i32 s24, s24, 1280")
    for mt in range(5):
        A.e("v_lshlrev_b32 v12, 2, v3")
        A.e(f"v_add_u32 v12, {16*mt}, v12     ; c0")
        A.e("v_mul_u32_u24 v13, s26, v12")
        A.e("v_lshrrev_b32 v13, 16, v13      ; hl")
        A.e("v_mul_u32_u24 v14, 20, v13")
        A.e("v_sub_u32 v14, v12, v14         ; dim0")
        A.e("v_mul_u32_u24 v13, 2560, v13" if False else "v_mul_u32_u24 v13, 0xa00, v13")
        A.e("v_bfe_u32 v5, v14, 2, 1")
        A.e("v_lshlrev_b32 v5, 9, v5")
        A.e("v_lshrrev_b32 v6, 3, v14")
        A.e("v_lshl_add_u32 v5, v6, 3, v5")
        A.e("v_lshl_add_u32 v5, v15, 4, v5")
        A.e("v_lshlrev_b32 v6, 3, v15")
        A.e("v_add_u32 v6, 1024, v6")
        A.e("v_cmp_eq_u32 vcc, 16, v14")
        A.e("v_add_u32 v13, s24, v13")
        A.e("s_nop 0")
        A.e("v_cndmask_b32 v5, v5, v6, vcc")
        A.e(f"v_add_u32 v{VQW+mt}, v5, v13")
    A.e(f"v_mov_b32 v{VQR}, v4")
    A.e("v_and_b32 v12, 31, v1")
    A.e("v_lshlrev_b32 v12, 3, v12")
    A.e(f"v_add_u32 v{VQRB}, 1024, v12")
    A.e(f"v_mov_b32 v12, {OOB}")
    A.e("v_lshlrev_b32 v5, 3, v1")
    A.e("v_cmp_gt_u32 vcc, 32, v1")
    A.e("v_and_b32 v13, 31, v1")
    A.e("s_nop 0")
    A.e("v_cndmask_b32 v5, v12, v5, vcc")
    A.e("v_cmp_gt_u32 vcc, 21, v13")
    A.e("s_nop 1")
    A.e("v_cndmask_b32 v8, v12, v4, vcc")
    A.e(f"s_mul_i32 s21, s20, {6*PART}")
    A.e(f"v_add_u32 v{VRED}, s21, v4")
    A.e("v_and_b32 v13, 31, v1")
    A.e("v_mul_u32_u24 v13, 160, v13")
    A.e("v_lshrrev_b32 v14, 5, v1         ; h")
    A.e("v_lshl_add_u32 v13, v14, 3, v13")
    A.e("s_mul_i32 s24, s20, 40")
    A.e(f"v_add_u32 v{VOS}, s24, v13")
    A.e(f"v_mov_b32 v12, {L_DUMMY}")
    A.e(f"v_add_u32 v13, 32, v{VOS}")
    A.e("v_cmp_eq_u32 vcc, 0, v14")
    A.e(f"v_add_u32 v15, 5152, v{VOS}")
    A.e("s_nop 0")
    A.e(f"v_cndmask_b32 v{VOS2a}, v12, v13, vcc")
    A.e(f"v_cndmask_b32 v{VOS2b}, v12, v15, vcc")
    A.e("s_mov_b32 s26, 6554")
    A.e("s_movk_i32 s27, 1280")
    for i in range(3):
        A.e(f"v_add_u32 v14, {256*i}, v0")
        A.e("v_mul_u32_u24 v15, s26, v14")
        A.e("v_lshrrev_b32 v15, 16, v15")
        A.e("v_mul_u32_u24 v13, 10, v15")
        A.e("v_sub_u32 v13, v14, v13")
        A.e("v_lshlrev_b32 v13, 4, v13")
        A.e(f"v_mad_u32_u24 v{VOG+i}, v15, s27, v13")
    A.e(f"v_mov_b32 v12, {OOB}")
    A.e("v_cmp_gt_u32 vcc, 0x80, v0")
    A.e(f"v_lshlrev_b32 v{VTID16}, 4, v0")
    A.e("s_nop 0")
    A.e(f"v_cndmask_b32 v{VOG+2}, v12, v{VOG+2}, vcc")
    A.e("s_lshl_b32 s21, s20, 4")
    A.e("s_movk_i32 s26, 2560")
    A.e("v_add_u32 v13, s21, v2")
    A.e("v_mul_u32_u24 v13, s26, v13")
    A.e(f"v_lshl_add_u32 v{VOUT}, v3, 3, v13")
    A.e("s_lshl_b32 s21, s20, 6")
    A.e("v_add_u32 v13, s21, v1")
    A.e("v_mul_u32_u24 v13, s26, v13")
    A.e("s_lshl_b32 s21, s33, 3")
    A.e(f"v_add_u32 v{VYO}, s21, v13")
    A.e("v_add_u32 v12, 1, v2")
    A.e("v_and_b32 v12, 1, v12            ; cp")
    A.e("v_sub_u32 v13, v2, v12")
    A.e("v_add_u32 v13, 9, v13")
    A.e("v_and_b32 v14, 1, v3")
    A.e("v_lshlrev_b32 v14, 3, v14        ; 8(g&1)")
    A.e("v_sub_u32 v13, v13, v14")
    A.e("v_lshrrev_b32 v15, 1, v3         ; g>>1")
    A.e("v_lshl_add_u32 v13, v15, 4, v13")
    A.e("v_lshlrev_b32 v13, 1, v13")
    A.e("v_xor_b32 v12, 1, v12")
    A.e(f"s_mov_b32 s24, {L_U0 - L_U1}")
    A.e("v_mul_lo_u32 v12, v12, s24")
    A.e("v_add_u32 v13, v13, v12")
    A.e(f"s_mul_i32 s21, s20, {CS}")
    A.e(f"s_add_u32 s24, s21, {L_U1}")
    A.e(f"v_add_u32 v{VCU}, s24, v13")
    A.e(f"v_add_u32 v{VUW}, s21, v4")
    A.e("v_lshlrev_b32 v13, 4, v2")
    A.e("v_sub_u32 v13, 2040, v13")
    A.e("v_lshl_add_u32 v13, v15, 4, v13")
    A.e("v_sub_u32 v13, v13, v14")
    A.e("v_lshlrev_b32 v13, 1, v13")
    A.e("s_mul_i32 s24, s20, 4608")
    A.e(f"s_add_u32 s24, s24, {L_KR-3584}")
    A.e(f"v_add_u32 v{VCK}, s24, v13")
    A.e("v_lshlrev_b32 v13, 5, v2")
    A.e("v_lshl_add_u32 v13, v3, 3, v13")
    A.e(f"s_mul_i32 s24, s20, {YSC}")
    A.e(f"s_add_u32 s24, s24, {L_YS}")
    A.e(f"v_add_u32 v{VYS}, s24, v13")
    A.e("v_and_b32 v13, 3, v2")
    A.e("v_lshlrev_b32 v13, 3, v13")
    A.e("v_lshl_add_u32 v13, v3, 5, v13")
    A.e("s_lshl_b32 s21, s20, 7")
    A.e("v_add_u32 v13, s21, v13")
    A.e("v_lshrrev_b32 v12, 2, v2")
    A.e(f"v_mul_u32_u24 v14, {YSC}, v12" if False else f"s_movk_i32 s24, {YSC}")
    A.e("v_mul_u32_u24 v14, s24, v12")
    A.e(f"v_add3_u32 v{VYT}, v14, v13, v13" if False else f"v_add_u32 v14, v14, v13")
    A.e(f"v_add_u32 v{VYT}, {L_YS}, v14")
    A.e(f"s_movk_i32 s24, {CS}")
    A.e("v_mul_u32_u24 v14, s24, v12")
    A.e("v_add_u32 v14, v14, v13")
    A.e(f"v_add_u32 v{VUT}, {L_U0+32}, v14")
    A.e("s_lshr_b32 s21, s20, 1")
    A.e("s_mul_i32 s21, s21, 8320")
    A.e(f"s_add_u32 s21, s21, {L_U0}")
    A.e("v_lshlrev_b32 v13, 5, v1")
    A.e(f"v_add_u32 v{VUR}, s21, v13")
    A.e("s_movk_i32 s26, 1280")
    A.e("v_mul_u32_u24 v13, s26, v1")
    A.e("s_lshl_b32 s21, s33, 3")
    A.e("s_and_b32 s24, s20, 1")
    A.e("s_lshl_b32 s24, s24, 2")
    A.e("s_add_u32 s21, s21, s24")
    A.e(f"v_add_u32 v{VUD}, s21, v13")
    return [x.strip() for x in T.lines if x.strip()]

def wdma_ring(c, base):
    L = []
    for n in range(3):
        g = []
        if n == 0: g.append(f"s_mov_b32 s38, {64*1280*c}")
        if n < 2:
            g += [f"s_add_u32 m0, s32, {base + 4096*n}", "s_nop 0"]
        else:
            g += [f"s_add_u32 s39, s32, {base + 8192}", "s_cmp_lt_u32 s20, 2", f"s_cselect_b32 m0, s39, {L_DUMMY}", "s_nop 0"]
        g.append(f"buffer_load_dwordx4 v{VWD+n}, s[{SD}:{SD+3}], s38 offen lds")
        L.append(g)
    return L
def xdma(c, base, srd_=SA):
    return [[f"s_lshl_b32 s37, s20, 11", f"s_add_u32 m0, s37, {base}", f"s_movk_i32 s36, {128*c}",
             f"buffer_load_dwordx4 v{VXD0}, s[{srd_}:{srd_+3}], s36 offen lds"],
            [f"s_add_u32 m0, s37, {base+1024}", "s_nop 0",
             f"buffer_load_dwordx4 v{VXD1}, s[{srd_}:{srd_+3}], s36 offen lds"]]

GACC = 16; GWF = 36; GXF = [56, 60]
def gemm_rdX(kk, xb):
    ks = kk & 1
    if xb < 65536: a, o = (VXF0 if ks == 0 else VXF1), xb
    else: a, o = (VXF0h if ks == 0 else VXF1h), xb - 65536
    return It(f"ds_read_b128 {vr(GXF[kk & 1],4)}, v{a} offset:{o}", lds=f"x{kk}")
def gemm_rdW(kk, mt, wb):
    ks = kk & 1
    out = []
    for h in range(2):
        off = wb + (32*ks + 8*h)*160 + 32*mt
        a = VWT
        if off >= 131072: a, off = VWTh2, off - 131072
        elif off >= 65536: a, off = VWTh, off - 65536
        out.append(It(f"ds_read_b64_tr_b16 {vr(GWF+mt*4+h*2,2)}, v{a} offset:{off}", lds=f"w{kk}_{mt}"))
    return out
def gemm_mm(kk, mt):
    return It(f"v_mfma_f32_16x16x32_bf16 {vr(GACC+4*mt,4)}, {vr(GWF+mt*4,4)}, {vr(GXF[kk & 1],4)}, {vr(GACC+4*mt,4)}",
              needl=(f"x{kk}", f"w{kk}_{mt}"), w=2)
def gemm_items(xbase, wbase, sync, late=False):
    steps = []
    pre = list(sync(0)) + [gemm_rdX(0, xbase(0))]
    for mt in range(5): pre += gemm_rdW(0, mt, wbase(0))
    for kk in range(20):
        L = []
        c1 = (kk+1) >> 1
        boundary = (kk+1) & 1 == 0 and kk+1 < 20
        for mt in range(5):
            L.append(gemm_mm(kk, mt))
            if kk+1 < 20 and not (late and boundary):
                if mt == 0:
                    if boundary: L += list(sync(c1))
                    L.append(gemm_rdX(kk+1, xbase(c1)))
                L += gemm_rdW(kk+1, mt, wbase(c1))
        if late and boundary:
            L += list(sync(c1)) + [gemm_rdX(kk+1, xbase(c1))]
            for mt in range(5): L += gemm_rdW(kk+1, mt, wbase(c1))
        steps.append(L)
    return pre, steps

def rho(s, b):
    if s == 0: return b
    q = b >> s; rem = b & ((1 << s)-1); half = 1 << (s-1)
    if rem > half or (rem == half and (q & 1)): q += 1
    return q << s
KACC = 64
RS = 528
def kgen_setup_lines():
    T = Asm(); A = T
    A.e("v_lshlrev_b32 v12, 2, v1          ; lane*4")
    A.e("s_lshl_b32 s24, s34, 8           ; d*256")
    A.e("v_add_u32 v13, s24, v12")
    for k, s in enumerate((PARE, PAIM, PBRE, PBIM, PCRE, PCIM)):
        A.e(f"global_load_dword v{104+k}, v13, s[{s}:{s+1}]")
    A.e("s_lshl_b32 s24, s34, 1")
    A.e("v_mov_b32 v14, s24")
    A.e(f"global_load_ushort v110, v14, s[{PLDT}:{PLDT+1}]")
    A.e(f"s_mul_i32 s21, s20, {KGW}")
    A.e(f"s_add_u32 s21, s21, {L_KG}")
    A.e("v_lshlrev_b32 v14, 3, v1            ; lane*8")
    A.e("v_add_u32 v196, s21, v14")
    A.e(f"v_add_u32 v197, {33*RS}, v196")
    for s in range(4):
        for mt in range(2):
            dst = 112 + 2*s + mt
            A.e(f"v_add_u32 v15, {16*mt}, v2          ; b")
            if s > 0:
                half = 1 << (s-1)
                A.e(f"v_bfe_u32 v12, v15, {s}, 1")
                A.e(f"v_add3_u32 v15, v15, v12, {half-1}")
                A.e(f"v_lshrrev_b32 v15, {s}, v15")
                A.e(f"v_lshlrev_b32 v15, {s}, v15")
            A.e(f"v_mul_u32_u24 v15, {RS}, v15")
            A.e(f"v_lshl_add_u32 v15, v3, 4, v15")
            A.e(f"v_add_u32 v{dst}, s21, v15")
    for s in range(1, 4):
        for b in range(32):
            half = 1 << (s-1)
            assert (((b + half - 1 + ((b >> s) & 1)) >> s) << s) == rho(s, b)
    A.e(f"v_mul_u32_u24 v15, {RS}, v2")
    A.e("v_lshl_add_u32 v15, v3, 4, v15")
    A.e(f"v_add_u32 v15, {33*RS}, v15")
    A.e("v_add_u32 v111, s21, v15")
    for i in range(40): A.e(f"v_mov_b32 v{KACC+i}, 0")
    return [x.strip() for x in T.lines if x.strip()]

def kgen_parts():
    L = []
    a = lambda t, **k: L.append(It(t, **k))
    E1 = [120, 122]; E32 = [124, 126]
    C = [176, 178]; TM = [180, 182]
    PK = [184, 186]
    WC = [188, 190]
    a("v_lshlrev_b32 v110, 16, v110", needv=("kp",))
    a(f"v_mul_f32 v110, {hex(f2u(LOG2E))}, v110")
    a("v_exp_f32 v110, v110")
    a("s_nop 0")
    a("v_cvt_pk_bf16_f32 v110, v110, v110")
    a("v_lshlrev_b32 v110, 16, v110")
    for hf in range(2):
        for k in range(6):
            a(f"v_lshlrev_b32 v{176+k}, 16, v{104+k}" if hf == 0 else f"v_and_b32 v{176+k}, 0xffff0000, v{104+k}")
        ZR, ZI = 192, 193
        a(f"v_mul_f32 v{ZR}, v110, v176"); a(f"v_mul_f32 v{ZI}, v110, v177")
        a("v_mul_f32 v178, v110, v178"); a("v_mul_f32 v179, v110, v179")
        a(f"v_mul_f32 v{ZR}, {hex(f2u(LOG2E))}, v{ZR}"); a(f"v_mul_f32 v{ZI}, {hex(f2u(1/(2*math.pi)))}, v{ZI}")
        w = WC[hf]
        a(f"v_mul_f32 v{w}, v180, v178"); a(f"v_mul_f32 v{w+1}, v180, v179")
        a(f"v_fma_f32 v{w}, -v181, v179, v{w}"); a(f"v_fma_f32 v{w+1}, v181, v178, v{w+1}")
        for (m, dst) in ((1, E1[hf]), (32, E32[hf])):
            if m == 1:
                a(f"v_exp_f32 v182, v{ZR}"); a(f"v_fract_f32 v183, v{ZI}")
            else:
                lit = hex(f2u(float(m)))
                a(f"v_mul_f32 v182, {lit}, v{ZR}"); a(f"v_mul_f32 v183, {lit}, v{ZI}")
                a("v_exp_f32 v182, v182"); a("v_fract_f32 v183, v183")
            a("v_cos_f32 v194, v183"); a("v_sin_f32 v195, v183")
            a("s_nop 0")
            a(f"v_mul_f32 v{dst}, v182, v194"); a(f"v_mul_f32 v{dst+1}, v182, v195")
    for hf in range(2):
        a(f"v_mov_b32 v{C[hf]}, v{WC[hf]}"); a(f"v_mov_b32 v{C[hf]+1}, v{WC[hf]+1}")
    setup = L
    def cm(x, e, t):
        return (f"v_pk_mul_f32 v[{t}:{t+1}], v[{x}:{x+1}], v[{e}:{e+1}] op_sel:[0,0] op_sel_hi:[0,1]",
                f"v_pk_fma_f32 v[{x}:{x+1}], v[{x}:{x+1}], v[{e}:{e+1}], v[{t}:{t+1}] op_sel:[1,1,0] op_sel_hi:[1,0,1] neg_lo:[1,0,0]")
    rows = []
    def row(n, r, e, neg, waddr, stp, pre=()):
        pk = PK[n & 1]; sg = "-" if neg else ""
        R = [It(y) for y in pre]
        if stp: R += [It(cm(C[0], e[0], TM[0])[0]), It(cm(C[1], e[1], TM[1])[0])]
        R += [It(f"v_cvt_pk_bf16_f32 v{pk}, v{C[0]}, {sg}v{C[0]+1}"), It(f"v_cvt_pk_bf16_f32 v{pk+1}, v{C[1]}, {sg}v{C[1]+1}")]
        if stp: R += [It(cm(C[0], e[0], TM[0])[1]), It(cm(C[1], e[1], TM[1])[1])]
        R.append(It(f"ds_write_b64 v{waddr}, {vr(pk,2)} offset:{r*RS}", lds="kw"))
        rows.append(R)
    for j in range(33): row(j, j, E1, True, 196, j < 32)
    one = [f"v_mov_b32 v{C[0]}, 1.0", f"v_mov_b32 v{C[0]+1}, 0", f"v_mov_b32 v{C[1]}, 1.0", f"v_mov_b32 v{C[1]+1}, 0"]
    for nt in range(4):
        for r in range(16):
            row(33+16*nt+r, r, E32, False, 197, not (nt == 3 and r == 15), pre=(one if (nt == 0 and r == 0) else ()))
    AF, BF = 64, 32
    afr, bfr, mms = [], [], []
    for nt in range(4):
        variants = [(0,0),(0,1),(1,0),(1,1)] if nt == 0 else [((2 if nt == 1 else 3), 0), ((2 if nt == 1 else 3), 1)]
        tiles = [0,1,2,3] if nt == 0 else [2+2*nt, 3+2*nt]
        ra = []; mm = []
        tagnt = nt if nt < 3 else 2
        base = AF if nt != 1 else AF
        for ks in range(8):
            for vi, (s, mt) in enumerate(variants):
                r = base + (ks*len(variants) + vi)*4 + (64 if nt >= 2 else 0)
                if nt < 3: ra.append(It(f"ds_read_b128 {ar(r,4)}, v{112+2*s+mt} offset:{64*ks}", lds=f"ka{nt}"))
                acc = KACC + 4*tiles[vi]
                mm.append(It(f"v_mfma_f32_16x16x32_bf16 {vr(acc,4)}, {ar(r,4)}, {ar(BF+4*ks,4)}, {vr(acc,4)}",
                             needl=(f"kb{nt}_{ks}", f"ka{tagnt}"), w=2))
        afr.append(ra)
        bfr.append([It(f"ds_read_b128 {ar(BF+4*ks,4)}, v111 offset:{64*ks}", lds=f"kb{nt}_{ks}") for ks in range(8)])
        mms.append(mm)
    return setup, rows, afr, bfr, mms

def kgen_pack_lines():
    T = Asm(); A = T
    ACC = KACC
    A.e("v_cmp_gt_u32 vcc, 8, v2")
    A.e("s_nop 1")
    for i in range(8):
        A.e(f"v_cndmask_b32 v{ACC+i}, v{ACC+8+i}, v{ACC+i}, vcc")
    for nt in range(4):
        for mt in range(2):
            tile = mt if nt == 0 else 2+2*nt+mt
            acc = ACC + 4*tile
            b = 176 + 2*(nt*2+mt)
            A.e(f"v_cvt_pk_bf16_f32 v{b}, v{acc+3}, v{acc+2}")
            A.e(f"v_cvt_pk_bf16_f32 v{b+1}, v{acc+1}, v{acc}")
    return [x.strip() for x in T.lines if x.strip()]
def kgen_write_lines():
    T = Asm(); A = T
    A.e("s_mul_i32 s21, s20, 4608")
    A.e(f"s_add_u32 s21, s21, {L_KR}")
    A.e("v_lshlrev_b32 v15, 5, v2")
    A.e("v_lshl_add_u32 v15, v3, 2, v15    ; 32c + 4g")
    A.e("v_sub_u32 v15, 2044, v15")
    A.e("v_lshlrev_b32 v15, 1, v15")
    A.e(f"v_add_u32 v15, s21, v15")
    A.e(f"v_subrev_u32 v15, {(512*3+16)*2}, v15")
    for nt in range(4):
        for mt in range(2):
            b = 176 + 2*(nt*2+mt)
            A.e(f"ds_write_b64 v15, {vr(b,2)} offset:{(512*3+16)*2 - (512*nt+16*mt)*2}")
    A.e("v_mov_b32 v192, 0"); A.e("v_mov_b32 v193, 0")
    A.e("v_lshlrev_b32 v12, 3, v1")
    A.e(f"s_add_u32 s21, s21, 4096")
    A.e("v_add_u32 v12, s21, v12")
    A.e("ds_write_b64 v12, v[192:193]")
    return [x.strip() for x in T.lines if x.strip()]

def q_epilogue(A, q):
    A.e(f"s_mov_b32 s26, {hex(f2u(QSCALE))}")
    for mt in range(5):
        acc = GACC + 4*mt
        for i in range(4): A.e(f"v_mul_f32 v{acc+i}, s26, v{acc+i}")
        A.e(f"v_cvt_pk_bf16_f32 v{36+mt*2}, v{acc}, v{acc+1}")
        A.e(f"v_cvt_pk_bf16_f32 v{37+mt*2}, v{acc+2}, v{acc+3}")
        q.emit(It(f"ds_write_b64 v{VQW+mt}, {vr(36+mt*2,2)}", lds="qw"))

def front_a(A, pfx):
    q = Q(A)
    ks_lines = kgen_setup_lines()
    nload = 0
    for l in ks_lines:
        if l.startswith("global_load"): q.emit(It(l, vm="kp"))
        else: A.e(l)
    def chunk_dma(c):
        b = (c % RA) * GBUF
        return [It(g, vm=f"c{c}") for g in xdma(c, b) + wdma_ring(c, b + GXB)]
    setup = addr_setup_items()
    pro = []
    for c in range(3): pro += chunk_dma(c)
    safe = [i for i, l in enumerate(setup) if l.startswith("v_") and not l.startswith("v_cndmask") and i+1 < len(setup)
            and not setup[i+1].startswith("v_cndmask") and not setup[i+1].startswith("s_nop") and not l.startswith("v_cmp")
            and not setup[i+1].startswith("s_addc")]
    step = max(1, len(safe)//len(pro))
    pts = {safe[min(k*step, len(safe)-1)]: k for k in range(len(pro))}
    done = 0
    for i, l in enumerate(setup):
        A.e(l)
        if i in pts:
            q.emit(pro[pts[i]]); done += 1
    assert done == len(pro), (done, len(pro))
    for i in range(20): A.e(f"v_mov_b32 v{GACC+i}, 0")
    st(A)
    def sync(c):
        L = [It("s_barrier", needv=(f"c{c}",))]
        if c >= 1 and c+2 < 10: L += chunk_dma(c+2)
        return L
    pre, steps = gemm_items(lambda c: (c % RA)*GBUF, lambda c: (c % RA)*GBUF + GXB, sync, late=True)
    ksetup, rows, afr, bfr, mms = kgen_parts()
    q.run(ksetup)
    for r in rows[:10]: q.run(r)
    q.run(pre)
    st(A)
    pos = 10
    due = {49: 0, 65: 1, 81: 2, 97: 3}
    arow = {}
    for i, it in enumerate(afr[0]): arow.setdefault(33 + (i*16)//len(afr[0]), []).append(it)
    for i, it in enumerate(afr[2]): arow.setdefault(50 + (i*14)//len(afr[2]), []).append(it)
    for i, it in enumerate(afr[1]): arow.setdefault(49 + (i*8)//len(afr[1]), []).append(it)
    nrows = len(rows)
    bounds = [min(nrows, 10 + ((kk+1)*(nrows-10) + 18)//19) for kk in range(20)]
    import os
    DET = Cfg.STAMP and os.environ.get('DET') == '1'
    pendk = None
    for kk in range(20):
        q.run(steps[kk])
        if DET and 1 <= kk <= 12: st(A)
        if pendk is not None:
            q.run(mms[pendk]); pendk = None
            if DET: st(A)
        while pos < bounds[kk]:
            extra = arow.get(pos, [])
            q.run(rows[pos] + extra)
            pos += 1
            if pos in due:
                q.run(bfr[due[pos]])
                pendk = due[pos]
                break
        if Cfg.STAMP and not DET and kk in (4, 9, 14): st(A); q.lq = []
        if DET and 0 <= kk <= 12: st(A)
    while pos < nrows or pendk is not None:
        if pendk is not None:
            q.run(mms[pendk]); pendk = None
        if pos < nrows:
            q.run(rows[pos] + arow.get(pos, [])); pos += 1
            if pos in due:
                q.run(bfr[due[pos]]); pendk = due[pos]
    q.all_l()
    A.e("s_nop 7")
    st(A)
    for l in kgen_pack_lines(): A.e(l)
    q.all_l(); q.all_v()
    A.e("s_barrier")
    for l in kgen_write_lines():
        q.emit(It(l, lds="ko") if l.startswith("ds_") else It(l))
    q_epilogue(A, q)
    A.e("v_mov_b32 v192, 0"); A.e("v_mov_b32 v193, 0")
    A.e("s_and_b32 s21, s20, 1")
    A.e("s_mul_i32 s21, s21, 8320")
    A.e(f"s_add_u32 s21, s21, {L_U0}")
    A.e("v_and_b32 v12, 15, v1")
    A.e("v_lshlrev_b32 v12, 2, v12")
    A.e("v_lshrrev_b32 v13, 4, v1")
    A.e("v_and_b32 v13, 1, v13")
    A.e("v_mul_u32_u24 v13, 0x2040, v13        ; 8256")
    A.e("v_add3_u32 v12, v12, v13, s21")
    q.emit(It("ds_write_b32 v12, v192", lds="z"))
    return q

def front_b(A, pfx):
    q = Q(A)
    setup = addr_setup_items()
    A.e("s_cmp_eq_u32 s53, 0")
    A.e(f"s_cselect_b32 s24, s{PWK}, s{PWV}")
    A.e(f"s_cselect_b32 s25, s{PWK+1}, s{PWV+1}")
    A.e(f"s_mov_b32 s{SB}, s24"); A.e(f"s_mov_b32 s{SB+1}, s25"); A.e(f"s_mov_b32 s{SB+2}, 25600"); A.e(f"s_mov_b32 s{SB+3}, 0x20000")
    A.e("s_cmp_eq_u32 s53, 2")
    A.e(f"s_cbranch_scc1 {pfx}_b_nowkv")
    for i in range(7):
        if i < 6:
            A.e(f"s_add_u32 s28, s32, {4096*i}")
            A.e(f"s_add_u32 m0, s28, {L_WKV}")
            A.e("s_nop 0")
            A.e(f"buffer_load_dwordx4 v4, s[{SB}:{SB+3}], s28 offen lds")
        else:
            A.e("s_cmp_eq_u32 s20, 0")
            A.e(f"s_cselect_b32 m0, {L_WKV + 24*1024}, {L_DUMMY}" if False else f"s_mov_b32 s29, {L_WKV + 24*1024}")
            A.e(f"s_cselect_b32 m0, s29, {L_DUMMY}")
            A.e(f"s_mov_b32 s30, 0x7fff0000")
            A.e(f"s_cselect_b32 s28, {24*1024}, s30")
            A.e(f"buffer_load_dwordx4 v4, s[{SB}:{SB+3}], s28 offen lds")
    A.label(f"{pfx}_b_nowkv")
    pro = []
    for c in range(10): pro += [It(g, vm=f"x{c}") for g in xdma(c, L_XR + 8192*c)]
    for c in range(4): pro += [It(g, vm=f"w{c}") for g in wdma_ring(c, L_WR + WCH*c)]
    safe = [i for i, l in enumerate(setup) if l.startswith("v_") and not l.startswith("v_cndmask") and i+1 < len(setup)
            and not setup[i+1].startswith("v_cndmask") and not setup[i+1].startswith("s_nop") and not l.startswith("v_cmp")
            and not setup[i+1].startswith("s_addc")]
    step = max(1, len(safe)//len(pro))
    pts = {safe[min(k*step, len(safe)-1)]: k for k in range(len(pro))}
    for i, l in enumerate(setup):
        A.e(l)
        if i in pts: q.emit(pro[pts[i]])
    st(A)
    A.e("s_cmp_eq_u32 s53, 2")
    A.e(f"s_cbranch_scc1 {pfx}_b_nokv")
    KV, KW, KX = 64, 72, [104, 108]
    A.e("v_lshrrev_b32 v12, 2, v2")
    A.e("v_lshl_add_u32 v12, v3, 3, v12")
    A.e("v_mul_u32_u24 v12, 40, v12")
    A.e("v_and_b32 v13, 3, v2")
    A.e("v_lshl_add_u32 v12, v13, 3, v12")
    A.e(f"v_add_u32 v176, {L_WKV}, v12")
    for i in range(8): A.e(f"v_mov_b32 v{KV+i}, 0")
    vq_save = list(q.vq)
    q.wait_v(("x0",))
    A.e("s_barrier")
    def rds(kk):
        c, ks = kk >> 1, kk & 1; b = kk & 1
        xb = L_XR + 8192*c
        a, o = ((VXF0 if ks == 0 else VXF1), xb) if xb < 65536 else ((VXF0h if ks == 0 else VXF1h), xb-65536)
        out = [It(f"ds_read_b128 {vr(KX[b],4)}, v{a} offset:{o}", lds=f"kx{kk}", needv=(f"x{c}",))]
        for m in range(2):
            for h in range(2):
                out.append(It(f"ds_read_b64_tr_b16 {vr(KW+8*b+4*m+2*h,2)}, v176 offset:{(32*kk + 4*h)*40 + 32*m}", lds=f"kw{kk}"))
        return out
    for variant in ("k", "v"):
        if variant == "k":
            A.e("s_cmp_eq_u32 s53, 0")
            A.e(f"s_cbranch_scc0 {pfx}_b_vpart")
        else:
            A.label(f"{pfx}_b_vpart")
        qq = Q(A); qq.vq = list(q.vq)
        qq.run(rds(0))
        for kk in range(20):
            if kk+1 < 20: qq.run(rds(kk+1))
            b = kk & 1
            for m in range(2):
                if variant == "k": t = f"v_mfma_f32_16x16x32_bf16 {vr(KV+4*m,4)}, {vr(KW+8*b+4*m,4)}, {vr(KX[b],4)}, {vr(KV+4*m,4)}"
                else: t = f"v_mfma_f32_16x16x32_bf16 {vr(KV+4*m,4)}, {vr(KX[b],4)}, {vr(KW+8*b+4*m,4)}, {vr(KV+4*m,4)}"
                qq.emit(It(t, needl=(f"kx{kk}", f"kw{kk}")))
        A.e("s_lshr_b32 s21, s20, 1")
        A.e("s_lshl_b32 s26, s54, 1")
        A.e("s_add_u32 s21, s21, s26          ; T")
        A.e("s_and_b32 s26, s20, 1            ; u")
        srd(A, SC, PWS, WS_VA + 64*2048)
        A.e(f"v_mov_b32 v19 , {OOB}".replace(" ,", ","))
        A.e("v_and_b32 v12, 1, v3             ; h (g&1)")
        A.e("v_cmp_gt_u32 vcc, 2, v3")
        A.e(f"v_cvt_pk_bf16_f32 v112, v{KV}, v{KV+1}")
        A.e(f"v_cvt_pk_bf16_f32 v113, v{KV+2}, v{KV+3}")
        A.e(f"v_cvt_pk_bf16_f32 v116, v{KV+4}, v{KV+5}")
        A.e(f"v_cvt_pk_bf16_f32 v117, v{KV+6}, v{KV+7}")
        if variant == "v":
            A.e("s_mov_b64 s[28:29], vcc")
            A.e("v_cmp_eq_u32 vcc, 4, v2")
            A.e("v_mov_b32 v13, 0x3f803f80")
            A.e("s_nop 0")
            A.e("v_cndmask_b32 v116, v116, v13, vcc")
            A.e("v_cndmask_b32 v117, v117, v13, vcc")
            A.e("s_mov_b64 vcc, s[28:29]")
        A.e("v_mov_b32 v120, v112"); A.e("v_mov_b32 v121, v113")
        A.e("v_mov_b32 v122, v116"); A.e("v_mov_b32 v123, v117")
        A.e("s_nop 1")
        A.e("v_permlane32_swap_b32 v120, v114")
        A.e("v_permlane32_swap_b32 v121, v115")
        A.e("v_permlane32_swap_b32 v122, v118")
        A.e("v_permlane32_swap_b32 v123, v119")
        if variant == "k":
            A.e("s_lshl_b32 s28, s26, 4")
            A.e("v_add_u32 v14, s28, v2           ; key32")
            A.e("v_lshl_add_u32 v15, v12, 5, v14")
            A.e("v_lshlrev_b32 v15, 4, v15")
            A.e("s_lshl_b32 s28, s21, 10")
            A.e(f"s_add_u32 s28, s28, {WS_KA}")
            A.e("v_add_u32 v15, s28, v15")
            A.e("v_cndmask_b32 v15, v19, v15, vcc")
            A.e(f"buffer_store_dwordx4 v[112:115], v15, s[{SC}:{SC+3}], 0 offen sc1")
            A.e("v_lshlrev_b32 v14, 3, v14")
            A.e("s_lshl_b32 s28, s21, 9")
            A.e(f"s_add_u32 s28, s28, {WS_KB}")
            A.e("v_add_u32 v14, s28, v14")
            A.e("v_cmp_eq_u32 vcc, 0, v3")
            A.e("s_nop 1")
            A.e("v_cndmask_b32 v14, v19, v14, vcc")
            A.e(f"buffer_store_dwordx2 v[116:117], v14, s[{SC}:{SC+3}], 0 offen sc1")
            A.e("s_lshl_b32 s28, s54, 7")
            A.e(f"s_add_u32 s28, s28, {WS_FLAG}")
            srd(A, SE_, PWS, 128, add="s28")
            A.e("v_lshlrev_b32 v14, 2, v0")
            A.e("v_mov_b32 v13, 0")
            A.e(f"buffer_store_dword v13, v14, s[{SE_}:{SE_+3}], 0 offen sc1")
        else:
            A.e("v_lshl_add_u32 v15, v12, 5, v2")
            A.e("v_lshlrev_b32 v15, 4, v15")
            A.e("s_lshl_b32 s28, s21, 11")
            A.e("s_lshl_b32 s29, s26, 10")
            A.e("s_add_u32 s28, s28, s29")
            A.e(f"s_add_u32 s28, s28, {WS_VA}")
            A.e("v_add_u32 v15, s28, v15")
            A.e("v_add_u32 v14, 256, v15")
            A.e("v_cndmask_b32 v15, v19, v15, vcc")
            A.e("v_cndmask_b32 v14, v19, v14, vcc")
            A.e(f"buffer_store_dwordx4 v[112:115], v15, s[{SC}:{SC+3}], 0 offen sc1")
            A.e("v_cmp_gt_u32 vcc, 5, v2")
            A.e("s_nop 1")
            A.e("v_cndmask_b32 v14, v19, v14, vcc")
            A.e(f"buffer_store_dwordx4 v[116:119], v14, s[{SC}:{SC+3}], 0 offen sc1")
        A.e("s_waitcnt vmcnt(0)")
        A.e("s_barrier")
        A.e("s_cmp_lg_u32 s20, 0")
        A.e(f"s_cbranch_scc1 {pfx}_b_nf{variant}")
        srd(A, SE_, PDBG, 256)
        A.e("s_lshl_b32 s28, s52, 2")
        A.e("v_mov_b32 v14, s28")
        A.e("v_mov_b32 v13, 1")
        A.e("s_mov_b64 exec, 1")
        A.e(f"buffer_store_dword v13, v14, s[{SE_}:{SE_+3}], 0 offen sc1")
        A.e("s_mov_b64 exec, -1")
        A.label(f"{pfx}_b_nf{variant}")
        if variant == "k": A.e(f"s_branch {pfx}_b_ownx")
    A.label(f"{pfx}_b_ownx")
    A.e("s_mul_i32 s21, s22, 81920")
    srd(A, SA, PX, 81920, add="s21")
    for c in range(10):
        for g in xdma(c, L_XR + 8192*c):
            for x in g: A.e(x)
    A.label(f"{pfx}_b_nokv")
    st(A)
    A.e("s_waitcnt vmcnt(0)")
    q.vq = []
    for i in range(20): A.e(f"v_mov_b32 v{GACC+i}, 0")
    def sync(c):
        L = [It("s_barrier", needv=(f"w{c}",))]
        if c >= 2 and c+2 < 10: L += [It(g, vm=f"w{c+2}") for g in wdma_ring(c+2, L_WR + WCH*((c+2) % 4))]
        return L
    pre, steps = gemm_items(lambda c: L_XR + 8192*c, lambda c: L_WR + WCH*(c % 4), sync)
    q.run(pre)
    for kk in range(20): q.run(steps[kk])
    q.all_l(); q.all_v()
    A.e("s_nop 4")
    st(A)
    A.e("s_barrier")
    q_epilogue(A, q)
    return q

def poll(A, pfx, name, srd_, nl, cmpmask):
    A.e("s_cmp_lg_u32 s20, 0")
    A.e(f"s_cbranch_scc1 {pfx}_{name}_np")
    A.e("v_lshlrev_b32 v12, 2, v1")
    A.e(f"s_mov_b32 s35, {SPIN_MAX}")
    if nl < 64: A.e(f"s_mov_b64 exec, {hex((1 << nl)-1)}")
    A.label(f"{pfx}_{name}_p")
    A.e(f"buffer_load_dword v13, v12, s[{srd_}:{srd_+3}], 0 offen sc1")
    A.e("s_waitcnt vmcnt(0)")
    A.e("v_cmp_ne_u32 vcc, 0, v13")
    A.e("s_sub_u32 s35, s35, 1")
    A.e("s_cmp_eq_u32 s35, 0")
    A.e(f"s_cbranch_scc1 {pfx}_{name}_d")
    if nl == 64:
        A.e("s_cmp_eq_u64 vcc, -1")
    else:
        A.e(f"s_cmp_eq_u32 vcc_lo, {hex((1 << nl)-1)}")
    A.e(f"s_cbranch_scc1 {pfx}_{name}_d")
    A.e("s_sleep 1")
    A.e(f"s_branch {pfx}_{name}_p")
    A.label(f"{pfx}_{name}_d")
    if nl < 64: A.e("s_mov_b64 exec, -1")
    A.label(f"{pfx}_{name}_np")

PREF_K, PREF_V = 6, 5
def step(A, tau, t, first=False, last=False, fillers=None, pre=None):
    cur = S[t & 1]; nxt = S[(t+1) & 1]
    Pc = P[t & 1]; Pp = P[(t+1) & 1]
    par = tau & 1
    if t < NT-1: nt, ntau = t+1, tau
    else: nt, ntau = 0, tau+1
    do_next = not (last and t == NT-1)
    M1 = f"v_mfma_f32_32x32x16_bf16 {vr(nxt,16)}, {KAr(nt)}, {QAr(ntau)}, 0" if do_next else None
    M2 = f"v_mfma_f32_32x32x8_bf16 {vr(nxt,16)}, {KBr(nt)}, {QBr(ntau)}, {vr(nxt,16)}" if do_next else None
    if t == 0: pt, op, c0 = NT-1, O[par ^ 1], None
    else:
        pt, op = t-1, O[par]
        c0 = "0" if t == 1 else None
    if t == 0 and first: PV0p = PVp = None
    else:
        PV0p = f"v_mfma_f32_32x32x16_bf16 {vr(op,16)}, {VAr(pt,0)}, {vr(Pp,4)}, {c0 or vr(op,16)}"
        PVp = f"v_mfma_f32_32x32x16_bf16 {vr(op,16)}, {VAr(pt,1)}, {vr(Pp+4,4)}, {vr(op,16)}"
    E = lambda i: f"v_exp_f32 v{cur+i}, v{cur+i}"
    C = lambda i: f"v_cvt_pk_bf16_f32 v{Pc+i}, v{cur+2*i}, v{cur+2*i+1}"
    seq = [E(0), M1, E(1), E(2), C(0), E(3), E(4), PV0p, C(1), E(5), E(6), C(2), E(7), M2, E(8), C(3), E(9), E(10), C(4), E(11),
           PVp, E(12), C(5), E(13), E(14), E(15), C(6), C(7)]
    seq = [x for x in seq if x]
    groups = list(fillers or [])
    if groups:
        epos = [i for i, x in enumerate(seq) if x.startswith("v_exp")]
        flat = []
        for g in groups:
            if any(y.startswith("s_cbranch") for y in g) or any("exec" in y for y in g): flat.append(g)
            elif any("m0" in y for y in g): flat.append(g)
            else: flat += [[y] for y in g]
        n = len(flat); out = []; k = 0
        for i, x in enumerate(seq):
            out.append(x)
            if i in epos:
                want = ((epos.index(i)+1)*n + len(epos)-1)//len(epos) if True else 0
                while k < min(want, n):
                    out += flat[k]; k += 1
        for g in flat[k:]: out += g
        seq = out
    for x in (pre or []): A.e(x)
    for x in seq:
        if x.endswith(":"): A.label(x[:-1])
        else: A.e(x)

def part_addr():
    return [["s_lshr_b32 s35, s37, 1", "s_sub_u32 s35, s20, s35", "s_sub_u32 s35, s35, 1", "s_and_b32 s35, s35, 3",
             "s_mul_i32 s36, s37, 3", "s_add_u32 s35, s35, s36", f"s_mul_i32 s35, s35, {PART}", f"v_add_u32 v{VW}, s35, v4",
             "s_add_u32 s37, s37, 1", "s_and_b32 s37, s37, 7"]]
def part_write(tau):
    par = (tau-1) & 1
    return [[f"ds_write_b128 v{VW}, {vr(O[par]+4*g,4)} offset:{1024*g}" for g in range(3)]]

def attention(A, pfx):
    srd(A, SE_, PDBG, 256)
    poll(A, pfx, "kv", SE_, 64, None)
    A.e("s_waitcnt lgkmcnt(0)")
    A.e("s_barrier")
    st(A)
    srd(A, SA, PWS, WS_VA + 64*2048)
    A.e("s_lshl_b32 s24, s20, 14          ; KA: T*1024")
    A.e(f"s_lshl_b32 s25, s20, 13         ; KB: T*512")
    A.e(f"s_add_u32 s25, s25, {WS_KB}")
    A.e("s_lshl_b32 s26, s20, 15          ; VA: T*2048")
    A.e(f"s_add_u32 s26, s26, {WS_VA}")
    def ldK(t): return [[f"s_add_u32 s27, s24, {1024*t}", f"buffer_load_dwordx4 {KAr(t)}, v4, s[{SA}:{SA+3}], s27 offen"],
                        [f"s_add_u32 s28, s25, {512*t}", f"buffer_load_dwordx2 {KBr(t)}, v5, s[{SA}:{SA+3}], s28 offen"]]
    def ldV(t): return [[f"s_add_u32 s29, s26, {2048*t}", f"buffer_load_dwordx4 {VAr(t,0)}, v8, s[{SA}:{SA+3}], s29 offen"],
                        [f"buffer_load_dwordx4 {VAr(t,1)}, v8, s[{SA}:{SA+3}], s29 offen offset:1024"]]
    PK, PVn = PREF_K, PREF_V
    for g in ldK(0)[0:2]:
        for x in g: A.e(x)
    for tau in range(8):
        A.e(f"v_mov_b32 v{132+6*tau}, 0"); A.e(f"v_mov_b32 v{133+6*tau}, 0")
    A.e("s_lshl_b32 s33, s20, 1" if False else "s_lshl_b32 s35, s20, 1")
    for tau in range(8):
        A.e(f"s_add_u32 s36, s35, {2+tau}")
        A.e("s_and_b32 s36, s36, 7")
        A.e("s_mul_i32 s36, s36, 1280")
        A.e(f"v_add_u32 v12, s36, v{VQR}")
        A.e(f"v_add_u32 v13, s36, v{VQRB}")
        A.e(f"ds_read_b128 {QAr(tau)}, v12")
        A.e("s_mov_b32 exec_hi, 0")
        A.e(f"ds_read_b64 {QBr(tau)}, v13")
        A.e("s_mov_b32 exec_hi, -1")
        if tau == 3:
            for g in ldV(0):
                for x in g: A.e(x)
            A.e("s_waitcnt lgkmcnt(4)")
    for t in range(1, PK):
        for g in ldK(t):
            for x in g: A.e(x)
        if t < PVn:
            for g in ldV(t):
                for x in g: A.e(x)
    A.e("s_add_u32 s37, s35, 2")
    A.e("s_and_b32 s37, s37, 7")
    A.e("s_mul_i32 s21, s23, 160")
    srd(A, SD, PWO, "0", add="s21")
    A.e(f"s_sub_u32 s{SD+2}, 819200, s21")
    srd(A, SF, PU, 2048*1280)
    A.e("s_waitcnt lgkmcnt(0)")
    A.e("s_barrier")
    order = ["K0", "V0"]
    for t in range(1, PK):
        order.append(f"K{t}")
        if t < PVn: order.append(f"V{t}")
    A.e(f"s_waitcnt vmcnt({2*(len(order)-1)})")
    st(A)
    A.e(f"v_mfma_f32_32x32x16_bf16 {vr(S[0],16)}, {KAr(0)}, {QAr(0)}, 0")
    A.e(f"v_mfma_f32_32x32x8_bf16 {vr(S[0],16)}, {KBr(0)}, {QBr(0)}, {vr(S[0],16)}")
    A.e("s_nop 7"); A.e("s_nop 3")
    for t in range(NT):
        fl = []; need = []
        if t+1 < NT: need.append(f"K{t+1}")
        if t >= 1: need.append(f"V{t-1}")
        idx = max(order.index(x) for x in need)
        nout = 2*(len(order) - 1 - idx)
        if t == NT-1: nout = 0
        new = []
        if t+PK < NT: fl += ldK(t+PK); new.append(f"K{t+PK}")
        if t+PVn < NT: fl += ldV(t+PVn); new.append(f"V{t+PVn}")
        step(A, 0, t, first=True, fillers=fl, pre=[f"s_waitcnt vmcnt({nout})"])
        order += new
    st(A)
    wl = []
    for c in range(8): wl += wdma_ring(c, BWchunk(c))
    def bg(n):
        L = []
        la, lb = f"{pfx}_bga{n}", f"{pfx}_bgb{n}"
        if n < 16:
            L += [f"s_cbranch_vccnz {la}", f"s_add_u32 m0, s62, {256*n}", f"s_add_u32 s63, s61, {64*1280*n}",
                  f"buffer_load_dword v{VUD}, s[{SF}:{SF+3}], s63 offen lds", f"s_branch {lb}", la + ":"] + wl[n] + [lb + ":"]
        else:
            L += [f"s_cbranch_vccz {lb}"] + wl[n] + [lb + ":"]
        return L
    A.e(f"s_cmp_ge_u32 s3, {NCONV}")
    A.e("s_cselect_b64 vcc, -1, 0")
    A.e("s_lshr_b32 s61, s20, 1")
    A.e("s_lshl_b32 s62, s61, 12          ; 16 blocks * 256 B")
    A.e(f"s_mul_i32 s61, s61, {16*64*1280}")
    A.e("s_and_b32 s21, s20, 1")
    A.e("s_mul_i32 s21, s21, 8320")
    A.e("s_add_u32 s62, s62, s21")
    A.e(f"s_add_u32 s62, s62, {L_U0+64}")
    for tau in range(1, 8):
        for t in range(NT):
            fl = []
            if tau <= 6 and t == 1: fl += part_addr()
            if tau <= 6 and t == 3: fl += part_write(tau)
            if tau <= 6 and t in (5, 8, 11, 14): fl += [bg((tau-1)*4 + (t-5)//3)]
            step(A, tau, t, last=(tau == 7), fillers=fl)
        st(A)
    A.e("s_nop 1")
    par = 1; Pp = P[(NT-1) & 1]
    A.e(f"v_mfma_f32_32x32x16_bf16 {vr(O[par],16)}, {VAr(NT-1,0)}, {vr(Pp,4)}, {vr(O[par],16)}")
    A.e(f"v_mfma_f32_32x32x16_bf16 {vr(O[par],16)}, {VAr(NT-1,1)}, {vr(Pp+4,4)}, {vr(O[par],16)}")
    A.e("s_waitcnt vmcnt(0) lgkmcnt(0)")
    A.e("s_barrier")
    st(A)

def reduce_publish(A, pfx):
    RB = 176 - 48
    RB = 128
    def rdpart(jj):
        for sl in range(3):
            for g in range(3):
                A.e(f"ds_read_b128 {vr(RB + (jj*3+sl)*12 + 4*g, 4)}, v{VRED} offset:{(jj*3+sl)*PART + 1024*g}")
    rdpart(0)
    srd(A, SC, PWS, 2048*1280, add=WS_O)
    for jj in range(2):
        Of = O[jj]
        A.e("s_waitcnt lgkmcnt(0)")
        if jj == 0: rdpart(1)
        for sl in range(3):
            for r in range(12): A.e(f"v_add_f32 v{Of+r}, v{Of+r}, v{RB+(jj*3+sl)*12+r}")
        A.e(f"v_mov_b32 v28, v{Of+8}")
        A.e(f"v_mov_b32 v29, v{Of+8}")
        A.e("s_nop 1")
        A.e("v_permlane32_swap_b32 v28, v29")
        A.e("s_nop 1")
        A.e("v_rcp_f32 v29, v29")
        A.e("s_nop 0")
        for r in range(12): A.e(f"v_mul_f32 v{16+r}, v{Of+r}, v29")
        for g in range(3):
            A.e(f"v_cvt_pk_bf16_f32 v{32+6*jj+2*g}, v{16+4*g}, v{17+4*g}")
            A.e(f"v_cvt_pk_bf16_f32 v{33+6*jj+2*g}, v{18+4*g}, v{19+4*g}")
    A.e("s_barrier")
    for jj in range(2):
        A.e(f"ds_write_b64 v{VOS}, {vr(32+6*jj,2)} offset:{5120*jj}")
        A.e(f"ds_write_b64 v{VOS}, {vr(34+6*jj,2)} offset:{5120*jj+16}")
        A.e(f"ds_write_b64 v{VOS2a if jj == 0 else VOS2b}, {vr(36+6*jj,2)}")
    A.e("s_mul_i32 s24, s22, 81920")
    A.e("s_mul_i32 s25, s23, 160")
    A.e("s_add_u32 s24, s24, s25")
    A.e("s_waitcnt lgkmcnt(0)")
    A.e("s_barrier")
    for i in range(3):
        A.e(f"ds_read_b128 {vr(44+4*i,4)}, v{VTID16} offset:{4096*i}")
    for i in range(3):
        A.e(f"s_waitcnt lgkmcnt({2-i})")
        A.e(f"buffer_store_dwordx4 {vr(44+4*i,4)}, v{VOG+i}, s[{SC}:{SC+3}], s24 offen sc1")
    A.e("s_lshl_b32 s21, s22, 7")
    A.e(f"s_add_u32 s21, s21, {WS_FLAG}")
    srd(A, SE_, PWS, 128, add="s21")
    A.e("s_waitcnt vmcnt(0)")
    A.e("s_barrier")
    A.e("s_cmp_lg_u32 s20, 0")
    A.e(f"s_cbranch_scc1 {pfx}_noflag")
    A.e("s_lshl_b32 s21, s23, 2")
    A.e("v_mov_b32 v12, s21")
    A.e("v_mov_b32 v13, 1")
    A.e("s_mov_b64 exec, 1")
    A.e(f"buffer_store_dword v13, v12, s[{SE_}:{SE_+3}], 0 offen sc1")
    A.e("s_mov_b64 exec, -1")
    A.label(f"{pfx}_noflag")
    st(A)

def conv_part(A, pfx):
    for ps in range(5):
        b = 16 + 10*ps
        A.e(f"ds_read_b128 {vr(b,4)}, v{VUR} offset:{2048*ps}")
        A.e(f"ds_read_b128 {vr(b+4,4)}, v{VUR} offset:{2048*ps+16}")
        A.e(f"ds_read_b32 v{b+8}, v{VUR} offset:{2048*ps+32}")
    A.e("s_and_b32 s21, s20, 1")
    A.e("s_cmp_eq_u32 s21, 0")
    A.e("s_cselect_b32 s24, 0x05040100, 0x07060302" if False else "s_mov_b32 s25, 0x07060302")
    A.e("s_cselect_b32 s24, 0x05040100, s25")
    A.e(f"v_add_u32 v12, {L_U0}, v{VUW}")
    A.e("s_waitcnt lgkmcnt(0)")
    A.e("s_barrier")
    for ps in range(5):
        b = 16 + 10*ps
        if ps == 4: A.e("s_mov_b64 exec, 15")
        o = 72 + 8*(ps & 1)
        for i in range(4): A.e(f"v_perm_b32 v{o+i}, v{b+2*i+1}, v{b+2*i}, s24")
        for i in range(4): A.e(f"v_perm_b32 v{o+4+i}, v{b+2*i+2}, v{b+2*i+1}, s24")
        A.e(f"ds_write_b128 v12, {vr(o,4)} offset:{1024*ps}")
        A.e(f"ds_write_b128 v{VUW}, {vr(o+4,4)} offset:{L_U1+1024*ps}")
        if ps == 4: A.e("s_mov_b64 exec, -1")
    ACC = 16; AB = 64
    def Br(D, i): return ar(32*D + 4*i, 4)
    def Ar(c, i): return vr(AB + 32*(c & 1) + 4*i, 4)
    def Ahalf(c, i, h): return vr(AB + 32*(c & 1) + 4*i + 2*h, 2)
    for i in range(32): A.e(f"v_mov_b32 v{ACC+i}, 0")
    A.e("s_lshl_b32 s21, s33, 3")
    A.e(f"s_load_dwordx2 s[38:39], s[{PDSK}:{PDSK+1}], s21")
    srd(A, SH, POUT, 2048*2560)
    A.e("s_waitcnt lgkmcnt(0)")
    A.e("s_lshl_b32 s60, s38, 16")
    A.e("s_and_b32 s61, s38, 0xffff0000")
    A.e("s_lshl_b32 s62, s39, 16")
    A.e("s_and_b32 s63, s39, 0xffff0000")
    st(A)
    q = Q(A)
    def readsA(c):
        L = [It(f"v_add_u32 v11, {512*c}, v{VCU}")]
        for i in range(8):
            L.append(It(f"ds_read2_b32 {Ahalf(c,i,0)}, v11 offset0:{16*i} offset1:{16*i+1}", lds=f"a{c}_{i}"))
            L.append(It(f"ds_read2_b32 {Ahalf(c,i,1)}, v11 offset0:{16*i+2} offset1:{16*i+3}", lds=f"a{c}_{i}"))
        return L
    def readsB(D):
        return [It(f"ds_read_b128 {Br(D,i)}, v{VCK} offset:{512*(7-D)+64*i}", lds=f"b{D}_{i}") for i in range(8)]
    def mm(c, D, i):
        acc = ACC + 4*(c + D)
        return It(f"v_mfma_f32_16x16x32_bf16 {vr(acc,4)}, {Ar(c,i)}, {Br(D,i)}, {vr(acc,4)}", needl=(f"a{c}_{i}", f"b{D}_{i}"), w=2)
    def flush(B):
        acc = ACC + 4*B; bo = (B & 1)*YSB
        L = [It(f"v_cvt_pk_bf16_f32 v48, v{acc}, v{acc+1}"), It(f"v_cvt_pk_bf16_f32 v49, v{acc+2}, v{acc+3}"),
             It(f"ds_write_b64 v{VYS}, v[48:49] offset:{bo}", lds=f"yw{B}"),
             It("s_barrier", needl=(f"yw{B}",)),
             It(f"ds_read_b64_tr_b16 v[50:51], v{VYT} offset:{bo}", lds=f"yr{B}"),
             It(f"ds_read_b64_tr_b16 v[52:53], v{VUT} offset:{512*B}", lds=f"yr{B}")]
        V_ = []
        for dw in range(2):
            y = 50+dw; u = 52+dw
            V_ += [f"v_lshlrev_b32 v54, 16, v{u}", f"v_and_b32 v55, 0xffff0000, v{u}",
                   f"v_mul_f32 v54, s{60+2*dw}, v54", f"v_mul_f32 v55, s{61+2*dw}, v55",
                   f"v_cvt_pk_bf16_f32 v54, v54, v55", f"v_lshlrev_b32 v56, 16, v{y}", f"v_and_b32 v57, 0xffff0000, v{y}",
                   f"v_and_b32 v55, 0xffff0000, v54", f"v_lshlrev_b32 v54, 16, v54",
                   f"v_add_f32 v55, v55, v57", f"v_add_f32 v54, v54, v56", f"v_cvt_pk_bf16_f32 v{58+2*(B & 1)+dw}, v54, v55"]
        L += [It(V_[0], needl=(f"yr{B}",))] + [It(x) for x in V_[1:]]
        L.append(It([f"s_mov_b32 s28, {B*256*2560}", f"buffer_store_dwordx2 {vr(58+2*(B & 1),2)}, v{VYO}, s[{SH}:{SH+3}], s28 offen"], vm="Y"))
        return L
    q.run(readsA(0) + readsB(0))
    for c in range(8):
        if c == 0:
            for D in range(8):
                M = [mm(0, D, i) for i in range(8)]
                R = readsB(D+1) if D < 7 else readsA(1)
                q.run(merge(M, R))
        else:
            M = [mm(c, D, i) for i in range(8) for D in range(8-c)]
            R = readsA(c+1) if c < 7 else []
            F = flush(c-1)
            head = M[:5]; rest = M[5:]
            q.run(head)
            q.run(merge(rest, F + R) if len(rest) >= 8 else rest + F + R)
    A.e("s_nop 7")
    q.run(flush(7))
    st(A)
    finish(A)

BW0 = 73728
def BWchunk(c): return (BW0 + c*WCH) if c < 8 else (16704 + (c-8)*WCH)
BXBUF = [0, 8192, 37184, 37184+8192, 37184+16384, 37184+24576]

def finish(A):
    if Cfg.STAMP:
        A.e("s_waitcnt vmcnt(0)")
        st(A)
        A.e("s_mov_b32 s2, s3")
        stamp_out(A, PWS, 4, STAMP_BASE, VSTAMP, VSTMP)
    A.e("s_endpgm")

def outproj_b(A, pfx):
    A.e("s_mov_b32 s60, s22")
    A.e("s_sub_u32 s61, s22, 20")
    A.e("s_add_u32 s62, s61, 12")
    A.e("s_cmp_lt_u32 s62, 20")
    A.e("s_cselect_b32 s63, 3, 2")
    A.e("s_cselect_b32 s62, s62, s61")
    q = Q(A)
    for c in (8, 9): q.run([It(g, vm=f"W{c}") for g in wdma_ring(c, BWchunk(c))])
    srd(A, SE_, PWS, 32*128, add=WS_FLAG)
    def wait_flags(name, regs):
        nl = 8*len(regs)
        A.e("s_cmp_lg_u32 s20, 0")
        A.e(f"s_cbranch_scc1 {pfx}_{name}_np")
        A.e(f"v_mov_b32 v14, s{regs[0]}")
        if len(regs) > 1:
            A.e("v_lshrrev_b32 v13, 3, v1")
            A.e("v_cmp_eq_u32 vcc, 1, v13")
            A.e(f"v_mov_b32 v15, s{regs[1]}")
            A.e("s_nop 0")
            A.e("v_cndmask_b32 v14, v14, v15, vcc")
        A.e("v_and_b32 v12, 7, v1")
        A.e("v_lshlrev_b32 v12, 2, v12")
        A.e("v_lshl_add_u32 v12, v14, 7, v12")
        A.e(f"s_mov_b32 s35, {SPIN_MAX}")
        A.e(f"s_mov_b64 exec, {hex((1 << nl)-1)}")
        A.label(f"{pfx}_{name}_p")
        A.e(f"buffer_load_dword v13, v12, s[{SE_}:{SE_+3}], 0 offen sc1")
        A.e("s_waitcnt vmcnt(0)")
        A.e("v_cmp_ne_u32 vcc, 0, v13")
        A.e("s_sub_u32 s35, s35, 1")
        A.e("s_cmp_eq_u32 s35, 0")
        A.e(f"s_cbranch_scc1 {pfx}_{name}_d")
        A.e(f"s_cmp_eq_u32 vcc_lo, {hex((1 << nl)-1)}")
        A.e(f"s_cbranch_scc1 {pfx}_{name}_d")
        A.e("s_sleep 1")
        A.e(f"s_branch {pfx}_{name}_p")
        A.label(f"{pfx}_{name}_d")
        A.e("s_mov_b64 exec, -1")
        A.label(f"{pfx}_{name}_np")
        A.e("s_waitcnt vmcnt(0)")
        A.e("s_barrier")
    wait_flags("o", [60])
    q.vq = []
    st(A)
    srd(A, SA, PWS, 2048*1280, add=WS_O)
    srd(A, SC, POUT, 2048*2560)
    for t in range(3): A.e(f"s_mul_i32 s{56+t}, s{60+t}, 81920")
    A.e("s_lshl_b32 s59, s20, 11")
    ACC = [16, 36]; WF = 56; XF = [[76, 80], [84, 88]]
    def xld(t, c, buf):
        return [It([f"s_add_u32 s36, s{56+t}, {128*c}", f"s_add_u32 m0, s59, {BXBUF[buf]}", "s_nop 0",
                    f"buffer_load_dwordx4 v{VXD0}, s[{SA}:{SA+3}], s36 offen lds"], vm=f"X{t}_{c}"),
                It([f"s_add_u32 m0, s59, {BXBUF[buf]+1024}", "s_nop 0",
                    f"buffer_load_dwordx4 v{VXD1}, s[{SA}:{SA+3}], s36 offen lds"], vm=f"X{t}_{c}")]
    def rdX(slot, kk, buf):
        ks = kk & 1; xb = BXBUF[buf]
        a, o = ((VXF0 if ks == 0 else VXF1), xb) if xb < 65536 else ((VXF0h if ks == 0 else VXF1h), xb-65536)
        return It(f"ds_read_b128 {vr(XF[slot][kk & 1],4)}, v{a} offset:{o}", lds=f"x{slot}_{kk}")
    def rdW(kk, mt):
        c, ks = kk >> 1, kk & 1; out = []
        for h in range(2):
            off = BWchunk(c) + (32*ks + 8*h)*160 + 32*mt
            a = VWT
            if off >= 131072: a, off = VWTh2, off - 131072
            elif off >= 65536: a, off = VWTh, off - 65536
            out.append(It(f"ds_read_b64_tr_b16 {vr(WF+mt*4+h*2,2)}, v{a} offset:{off}", lds=f"w{kk}_{mt}"))
        return out
    def pack(slot, base):
        for mt in range(5):
            acc = ACC[slot] + 4*mt
            r = base + 2*mt
            A.e(f"v_cvt_pk_bf16_f32 v{r}, v{acc}, v{acc+1}")
            A.e(f"v_cvt_pk_bf16_f32 v{r+1}, v{acc+2}, v{acc+3}")
    def store(base, t):
        A.e(f"s_mul_i32 s21, s{60+t}, 163840")
        A.e("s_add_u32 s21, s21, s55")
        for mt in range(5):
            q.emit(It(f"buffer_store_dwordx2 {vr(base+2*mt,2)}, v{VOUT}, s[{SC}:{SC+3}], s21 offen offset:{32*mt}", vm="S"))
    A.e("s_mul_i32 s55, s23, 160")
    A.e("s_add_u32 s55, s55, 1280")
    free = list(range(6)); where = {}
    pending = []
    def pump():
        out = []
        while free and pending:
            t, c = pending.pop(0); b = free.pop(0); where[(t, c)] = b
            out += xld(t, c, b)
        return out
    def run_pass(tiles):
        n = len(tiles)
        free[:] = list(range(6)); pending[:] = [(t, c) for c in range(10) for t in tiles]
        for sl in range(n):
            for i in range(20): A.e(f"v_mov_b32 v{ACC[sl]+i}, 0")
        def sync(c):
            L = []
            if c >= 1:
                for t in tiles: free.append(where[(t, c-1)])
            L += pump()
            L.append(It("s_nop 0", needv=tuple(f"X{t}_{c}" for t in tiles)))
            return L
        q.run(sync(0))
        for sl, t in enumerate(tiles): q.emit(rdX(sl, 0, where[(t, 0)]))
        for mt in range(5): q.run(rdW(0, mt))
        for kk in range(20):
            c1 = (kk+1) >> 1
            for mt in range(5):
                for sl in range(n):
                    q.emit(It(f"v_mfma_f32_16x16x32_bf16 {vr(ACC[sl]+4*mt,4)}, {vr(WF+4*mt,4)}, {vr(XF[sl][kk & 1],4)}, {vr(ACC[sl]+4*mt,4)}",
                              needl=(f"x{sl}_{kk}", f"w{kk}_{mt}")))
                if kk+1 < 20:
                    if mt == 0:
                        if (kk+1) & 1 == 0: q.run(sync(c1))
                        for sl, t in enumerate(tiles): q.emit(rdX(sl, kk+1, where[(t, c1)]))
                    q.run(rdW(kk+1, mt))
        for t in tiles: free.append(where[(t, 9)])
        q.all_l()
        A.e("s_nop 7")
    run_pass([0])
    pack(0, 92)
    store(92, 0)
    st(A)
    wait_flags("o2", [61, 62])
    q.vq = []
    st(A)
    A.e("s_cmp_eq_u32 s63, 2")
    A.e(f"s_cbranch_scc1 {pfx}_b2")
    q = Q(A)
    run_pass([1, 2])
    st(A)
    pack(0, 92); pack(1, 102)
    store(92, 1); store(102, 2)
    finish(A)
    A.label(f"{pfx}_b2")
    q = Q(A)
    run_pass([1])
    st(A)
    pack(0, 92)
    store(92, 1)
    finish(A)

def mega_role(A, pfx):
    prologue(A, pfx)
    A.e(f"s_cmp_ge_u32 s3, {NCONV}")
    A.e(f"s_cbranch_scc1 {pfx}_fb")
    q = front_a(A, pfx)
    A.e(f"s_branch {pfx}_fdone")
    A.label(f"{pfx}_fb")
    q = front_b(A, pfx)
    A.label(f"{pfx}_fdone")
    st(A)
    attention(A, pfx)
    reduce_publish(A, pfx)
    A.e(f"s_cmp_ge_u32 s3, {NCONV}")
    A.e(f"s_cbranch_scc1 {pfx}_bback")
    conv_part(A, pfx)
    A.label(f"{pfx}_bback")
    outproj_b(A, pfx)
    A.label(f"{pfx}_end")
    A.e("s_endpgm")
```

```python
from common import *
from sched import *
import math
LOG2E = math.log2(math.e)
GBUF = 18432; GXB = 8192
L_KR = 73728
L_KG = 0; KGW = 25872
RA = 3
L_XR = 0; L_WKV = 81920; L_WR = 107520
L_QL = 104448
L_PART = 0; PART = 3072
L_U0 = 92160; CS = 4160
L_WA = 108800; WCH = 10240
L_DUMMY = 160000
L_U1 = 64; L_WB = 16704
L_YS = 16896; YSC = 576; YSB = 4*YSC
LDS_MEGA = 161024
def Wchunk(c): return (L_WA + c*WCH) if c < 5 else (L_WB + (c-5)*WCH)
XBUF = [L_KR, L_KR+8192, L_U0, L_U0+8192, L_U1, L_U1+8192]
WS_FLAG = 0x1100000
SPIN_MAX = 1 << 18
NCONV = 160
PU, PARE, PAIM, PBRE, PBIM, PCRE, PCIM, PLDT = 64, 66, 68, 70, 72, 74, 76, 78
PDSK, PX, PWQ, PWK, PWV, PWO, POUT, PDBG = 80, 82, 84, 86, 88, 90, 92, 94
PWS = 4
SA, SB, SC, SD, SE_, SF, SG, SH = 8, 12, 16, 40, 44, 48, 52, 56
VXD0, VXD1 = 200, 201
VWD = 202
VOUT = 205
VYO = 206
VOS, VOS2a, VOS2b = 207, 208, 209
VOG = 210
VTID16 = 213
VCU, VCK = 214, 215
VYS = 216
VYT, VUT = 217, 218
VUR = 219
VUW = 220
VRED = 221
VXF0, VXF1 = 222, 223
VWT = 224
VUD = 225
VQW = 226
VQR, VQRB = 231, 232
VXF0h, VXF1h, VWTh, VWTh2 = 233, 234, 235, 236
VUP = 237
VPA = 238
VSTAMP, VSTMP = 252, 253
S = [16, 32]; P = [48, 56]; O = [80, 96]; VW = 7; NT = 16
def QAr(tau): return vr(128+6*tau, 4)
def QBr(tau): return vr(132+6*tau, 2)
def KAr(t): return ar(4*t, 4)
def KBr(t): return ar(64+2*t, 2)
def VAr(t, u): return ar(96+8*t+4*u, 4)

def st(A): stamp(A, VSTAMP)

PREFETCH = True
CODE_BYTES = 80*1024
def prefetch(A, pfx):
    A.e("s_getpc_b64 s[24:25]")
    A.label(f"{pfx}_pc")
    A.e("s_lshr_b32 s26, s3, 3")
    A.e("s_lshl_b32 s26, s26, 2")
    A.e("s_add_u32 s26, s26, s20          ; slice 0..127")
    A.e("s_mul_i32 s26, s26, 768")
    A.e("v_min_u32 v12, 5, v1")
    A.e("v_lshlrev_b32 v12, 7, v12")
    A.e("v_add_u32 v12, s26, v12")
    A.e(f"v_min_u32 v12, {pfx}_end-{pfx}_pc-4, v12")
    A.e("global_load_dword v249, v12, s[24:25]")
    A.e("s_lshl_b32 s26, s3, 2")
    A.e("s_add_u32 s26, s26, s20")
    A.e("s_lshl_b32 s26, s26, 6")
    A.e("v_add_u32 v12, s26, v1           ; slot")
    A.e("v_lshlrev_b32 v13, 7, v12")
    srd(A, SB, PX, 2048*1280)
    A.e(f"buffer_load_dword v250, v13, s[{SB}:{SB+3}], 0 offen")
    A.e("v_subrev_u32 v13, 0x280000, v13")
    srd(A, SB, PWQ, 819200)
    A.e(f"buffer_load_dword v251, v13, s[{SB}:{SB+3}], 0 offen")
def prologue(A, pfx):
    A.e("s_load_dwordx16 s[64:79], s[0:1], 0")
    A.e("s_load_dwordx16 s[80:95], s[0:1], 64")
    A.e(f"s_load_dwordx2 s[4:5], s[0:1], 128")
    stamp_init(A, VSTAMP); st(A)
    A.e("v_and_b32 v1, 63, v0")
    A.e("v_lshrrev_b32 v12, 6, v0")
    A.e("v_lshlrev_b32 v4, 4, v1          ; lane*16")
    A.e("v_readfirstlane_b32 s20, v12")
    A.e("v_and_b32 v2, 15, v1")
    A.e("v_lshrrev_b32 v3, 4, v1")
    A.e("s_mul_i32 s23, s3, 3277")
    A.e("s_lshr_b32 s23, s23, 16          ; w / 20")
    A.e("s_mul_i32 s22, s23, 20")
    A.e("s_sub_u32 s22, s3, s22           ; w % 20")
    A.e(f"s_sub_u32 s52, s3, {NCONV}        ; j")
    A.e("s_mul_i32 s24, s52, 5462")
    A.e("s_lshr_b32 s24, s24, 16          ; j / 12")
    A.e("s_mul_i32 s25, s24, 12")
    A.e("s_sub_u32 s25, s52, s25")
    A.e("s_add_u32 s25, s25, 20")
    A.e(f"s_cmp_ge_u32 s3, {NCONV}")
    A.e("s_cselect_b32 s22, s25, s22      ; rb")
    A.e("s_cselect_b32 s23, s24, s23      ; hg")
    A.e("s_lshr_b32 s53, s52, 5")
    A.e("s_min_u32 s53, s53, 2")
    A.e("s_cselect_b32 s53, s53, s53")
    A.e(f"s_cmp_lt_u32 s3, {NCONV}")
    A.e("s_cselect_b32 s53, 2, s53")
    A.e("s_and_b32 s54, s52, 31")
    A.e("s_cmp_lt_u32 s53, 2")
    A.e("s_cselect_b32 s54, s54, s22")
    A.e("s_lshl_b32 s32, s20, 10          ; wave*1024")
    A.e("s_and_b32 s33, s3, 7")
    A.e("s_mul_i32 s33, s33, 20")
    A.e("s_lshr_b32 s34, s3, 3")
    A.e("s_add_u32 s33, s33, s34")
    A.e("s_min_u32 s33, s33, 159")
    A.e("s_lshl_b32 s34, s33, 2")
    A.e("s_add_u32 s34, s34, s20          ; channel d")
    A.e("s_movk_i32 s27, 1280")
    A.e("v_lshrrev_b32 v12, 3, v1")
    A.e("v_and_b32 v13, 7, v1")
    A.e("v_xor_b32 v13, v13, v12")
    A.e("v_lshlrev_b32 v13, 4, v13")
    A.e("s_lshl_b32 s21, s20, 4")
    A.e("v_add_u32 v12, s21, v12")
    A.e(f"v_mad_u32_u24 v{VXD0}, v12, s27, v13")
    A.e(f"v_add_u32 v{VXD1}, 10240, v{VXD0}")
    A.e("s_mov_b32 s26, 6554")
    for n in range(3):
        A.e(f"s_add_u32 s21, s20, {4*n}")
        A.e("s_lshl_b32 s21, s21, 6")
        A.e("v_add_u32 v12, s21, v1          ; p")
        A.e("v_mul_u32_u24 v13, s26, v12")
        A.e("v_lshrrev_b32 v13, 16, v13      ; rho")
        A.e("v_mul_u32_u24 v14, 10, v13")
        A.e("v_sub_u32 v14, v12, v14         ; cc")
        A.e("v_lshlrev_b32 v14, 4, v14")
        A.e("v_and_b32 v15, 0x33, v13")
        A.e("v_bfe_u32 v5, v13, 2, 1")
        A.e("v_lshl_or_b32 v15, v5, 3, v15")
        A.e("v_bfe_u32 v5, v13, 3, 1")
        A.e("v_lshl_or_b32 v15, v5, 2, v15")
        A.e(f"v_mad_u32_u24 v{VWD+n}, v15, s27, v14")
        if n == 2:
            A.e(f"v_mov_b32 v12, {OOB}")
            A.e("v_cmp_gt_u32 vcc, 64, v13")
            A.e("s_nop 1")
            A.e(f"v_cndmask_b32 v{VWD+2}, v12, v{VWD+2}, vcc")
    A.e("s_waitcnt lgkmcnt(0)")
    if PREFETCH: prefetch(A, pfx)
    A.e("s_mul_i32 s21, s54, 81920")
    srd(A, SA, PX, 81920, add="s21")
    A.e("s_mul_i32 s21, s23, 160")
    srd(A, SD, PWQ, "0", add="s21")
    A.e(f"s_sub_u32 s{SD+2}, 819200, s21")

def addr_setup_items(part="front"):
    T = Asm(); A = T
    A.e("s_lshl_b32 s21, s20, 4")
    A.e("v_add_u32 v12, s21, v2")
    A.e("v_lshlrev_b32 v12, 7, v12")
    A.e("v_and_b32 v13, 7, v2")
    A.e("v_xor_b32 v14, v13, v3")
    A.e(f"v_lshl_add_u32 v{VXF0}, v14, 4, v12")
    A.e("v_add_u32 v14, 4, v3")
    A.e("v_xor_b32 v14, v13, v14")
    A.e(f"v_lshl_add_u32 v{VXF1}, v14, 4, v12")
    A.e(f"v_add_u32 v{VXF0h}, 65536, v{VXF0}")
    A.e(f"v_add_u32 v{VXF1h}, 65536, v{VXF1}")
    A.e("v_lshrrev_b32 v12, 1, v3")
    A.e("v_lshlrev_b32 v12, 4, v12")
    A.e("v_and_b32 v13, 1, v3")
    A.e("v_lshl_add_u32 v12, v13, 2, v12")
    A.e("v_lshrrev_b32 v13, 2, v2")
    A.e("v_add_u32 v12, v12, v13")
    A.e("v_mul_u32_u24 v12, 160, v12")
    A.e("v_and_b32 v13, 3, v2")
    A.e(f"v_lshl_add_u32 v{VWT}, v13, 3, v12")
    A.e(f"v_add_u32 v{VWTh}, 65536, v{VWT}")
    A.e(f"v_add_u32 v{VWTh2}, 0x20000, v{VWT}")
    A.e("s_and_b32 s21, s20, 1")
    A.e("s_lshl_b32 s21, s21, 4")
    A.e("v_add_u32 v15, s21, v2          ; pos32")
    A.e("s_movk_i32 s26, 3277")
    A.e("s_lshr_b32 s24, s20, 1")
    A.e("s_mul_i32 s24, s24, 1280")
    A.e(f"s_mov_b32 s25, {L_QL}")
    for mt in range(5):
        A.e("v_lshlrev_b32 v12, 2, v3")
        A.e(f"v_add_u32 v12, {16*mt}, v12     ; c0")
        A.e("v_mul_u32_u24 v13, s26, v12")
        A.e("v_lshrrev_b32 v13, 16, v13      ; hl")
        A.e("v_mul_u32_u24 v14, 20, v13")
        A.e("v_sub_u32 v14, v12, v14         ; dim0")
        A.e("v_mul_u32_u24 v13, 2560, v13" if False else "v_mul_u32_u24 v13, 0xa00, v13")
        A.e("v_bfe_u32 v5, v14, 2, 1")
        A.e("v_lshlrev_b32 v5, 9, v5")
        A.e("v_lshrrev_b32 v6, 3, v14")
        A.e("v_lshl_add_u32 v5, v6, 3, v5")
        A.e("v_lshl_add_u32 v5, v15, 4, v5")
        A.e("v_lshlrev_b32 v6, 3, v15")
        A.e("v_add_u32 v6, 1024, v6")
        A.e("v_cmp_eq_u32 vcc, 16, v14")
        A.e("v_add_u32 v13, s24, v13")
        A.e("s_nop 0")
        A.e("v_cndmask_b32 v5, v5, v6, vcc")
        A.e(f"v_add3_u32 v{VQW+mt}, v5, v13, s25")
    A.e(f"v_mov_b32 v{VQR}, v4")
    A.e("v_and_b32 v12, 31, v1")
    A.e("v_lshlrev_b32 v12, 3, v12")
    A.e(f"v_add_u32 v{VQRB}, 1024, v12")
    A.e(f"v_mov_b32 v12, {OOB}")
    A.e("v_lshlrev_b32 v5, 3, v1")
    A.e("v_cmp_gt_u32 vcc, 32, v1")
    A.e("v_and_b32 v13, 31, v1")
    A.e("s_nop 0")
    A.e("v_cndmask_b32 v5, v12, v5, vcc")
    A.e("v_cmp_gt_u32 vcc, 21, v13")
    A.e("s_nop 1")
    A.e("v_cndmask_b32 v8, v12, v4, vcc")
    if part == "front": return [x.strip() for x in T.lines if x.strip()]
    T.lines.clear()
    A.e(f"s_mul_i32 s21, s20, {6*PART}")
    A.e(f"v_add_u32 v{VRED}, s21, v4")
    A.e("v_and_b32 v13, 31, v1")
    A.e("v_mul_u32_u24 v13, 160, v13")
    A.e("v_lshrrev_b32 v14, 5, v1         ; h")
    A.e("v_lshl_add_u32 v13, v14, 3, v13")
    A.e("s_mul_i32 s24, s20, 40")
    A.e(f"v_add_u32 v{VOS}, s24, v13")
    A.e(f"v_mov_b32 v12, {L_DUMMY}")
    A.e(f"v_add_u32 v13, 32, v{VOS}")
    A.e("v_cmp_eq_u32 vcc, 0, v14")
    A.e(f"v_add_u32 v15, 5152, v{VOS}")
    A.e("s_nop 0")
    A.e(f"v_cndmask_b32 v{VOS2a}, v12, v13, vcc")
    A.e(f"v_cndmask_b32 v{VOS2b}, v12, v15, vcc")
    A.e("s_mov_b32 s26, 6554")
    A.e("s_movk_i32 s27, 1280")
    for i in range(3):
        A.e(f"v_add_u32 v14, {256*i}, v0")
        A.e("v_mul_u32_u24 v15, s26, v14")
        A.e("v_lshrrev_b32 v15, 16, v15")
        A.e("v_mul_u32_u24 v13, 10, v15")
        A.e("v_sub_u32 v13, v14, v13")
        A.e("v_lshlrev_b32 v13, 4, v13")
        A.e(f"v_mad_u32_u24 v{VOG+i}, v15, s27, v13")
    A.e(f"v_mov_b32 v12, {OOB}")
    A.e("v_cmp_gt_u32 vcc, 0x80, v0")
    A.e(f"v_lshlrev_b32 v{VTID16}, 4, v0")
    A.e("s_nop 0")
    A.e(f"v_cndmask_b32 v{VOG+2}, v12, v{VOG+2}, vcc")
    A.e("s_lshl_b32 s21, s20, 4")
    A.e("s_movk_i32 s26, 2560")
    A.e("v_add_u32 v13, s21, v2")
    A.e("v_mul_u32_u24 v13, s26, v13")
    A.e(f"v_lshl_add_u32 v{VOUT}, v3, 3, v13")
    A.e("s_lshl_b32 s21, s20, 6")
    A.e("v_add_u32 v13, s21, v1")
    A.e("v_mul_u32_u24 v13, s26, v13")
    A.e("s_lshl_b32 s21, s33, 3")
    A.e(f"v_add_u32 v{VYO}, s21, v13")
    A.e("v_add_u32 v12, 1, v2")
    A.e("v_and_b32 v12, 1, v12            ; cp")
    A.e("v_sub_u32 v13, v2, v12")
    A.e("v_add_u32 v13, 9, v13")
    A.e("v_and_b32 v14, 1, v3")
    A.e("v_lshlrev_b32 v14, 3, v14        ; 8(g&1)")
    A.e("v_sub_u32 v13, v13, v14")
    A.e("v_lshrrev_b32 v15, 1, v3         ; g>>1")
    A.e("v_lshl_add_u32 v13, v15, 4, v13")
    A.e("v_lshlrev_b32 v13, 1, v13")
    A.e("v_xor_b32 v12, 1, v12")
    A.e(f"s_mov_b32 s24, {L_U0 - L_U1}")
    A.e("v_mul_lo_u32 v12, v12, s24")
    A.e("v_add_u32 v13, v13, v12")
    A.e(f"s_mul_i32 s21, s20, {CS}")
    A.e(f"s_add_u32 s24, s21, {L_U1}")
    A.e(f"v_add_u32 v{VCU}, s24, v13")
    A.e(f"v_add_u32 v{VUW}, s21, v4")
    A.e("v_lshlrev_b32 v13, 4, v2")
    A.e("v_sub_u32 v13, 2040, v13")
    A.e("v_lshl_add_u32 v13, v15, 4, v13")
    A.e("v_sub_u32 v13, v13, v14")
    A.e("v_lshlrev_b32 v13, 1, v13")
    A.e("s_mul_i32 s24, s20, 4608")
    A.e(f"s_add_u32 s24, s24, {L_KR-3584}")
    A.e(f"v_add_u32 v{VCK}, s24, v13")
    A.e("v_lshlrev_b32 v13, 5, v2")
    A.e("v_lshl_add_u32 v13, v3, 3, v13")
    A.e(f"s_mul_i32 s24, s20, {YSC}")
    A.e(f"s_add_u32 s24, s24, {L_YS}")
    A.e(f"v_add_u32 v{VYS}, s24, v13")
    A.e("v_and_b32 v13, 3, v2")
    A.e("v_lshlrev_b32 v13, 3, v13")
    A.e("v_lshl_add_u32 v13, v3, 5, v13")
    A.e("s_lshl_b32 s21, s20, 7")
    A.e("v_add_u32 v13, s21, v13")
    A.e("v_lshrrev_b32 v12, 2, v2")
    A.e(f"v_mul_u32_u24 v14, {YSC}, v12" if False else f"s_movk_i32 s24, {YSC}")
    A.e("v_mul_u32_u24 v14, s24, v12")
    A.e(f"v_add3_u32 v{VYT}, v14, v13, v13" if False else f"v_add_u32 v14, v14, v13")
    A.e(f"v_add_u32 v{VYT}, {L_YS}, v14")
    A.e(f"s_movk_i32 s24, {CS}")
    A.e("v_mul_u32_u24 v14, s24, v12")
    A.e("v_add_u32 v14, v14, v13")
    A.e(f"v_add_u32 v{VUT}, {L_U0+32}, v14")
    A.e("s_lshr_b32 s21, s20, 1")
    A.e("s_mul_i32 s21, s21, 8320")
    A.e(f"s_add_u32 s21, s21, {L_U0}")
    A.e("v_lshlrev_b32 v13, 5, v1")
    A.e(f"v_add_u32 v{VUR}, s21, v13")
    A.e("s_movk_i32 s26, 1280")
    A.e("v_mul_u32_u24 v13, s26, v1")
    A.e("s_lshl_b32 s21, s33, 3")
    A.e(f"v_add_u32 v{VUD}, s21, v13")
    A.e("s_lshl_b32 s21, s20, 11")
    A.e(f"s_add_u32 s21, s21, {L_U0+64}")
    A.e("v_lshlrev_b32 v13, 2, v1")
    A.e(f"v_add_u32 v{VUP}, s21, v13")
    return [x.strip() for x in T.lines if x.strip()]

def wdma_ring(c, base):
    L = []
    for n in range(3):
        g = []
        if n == 0: g.append(f"s_mov_b32 s38, {64*1280*c}")
        if n < 2:
            g += [f"s_add_u32 m0, s32, {base + 4096*n}", "s_nop 0"]
        else:
            g += [f"s_add_u32 s39, s32, {base + 8192}", "s_cmp_lt_u32 s20, 2", f"s_cselect_b32 m0, s39, {L_DUMMY}", "s_nop 0"]
        g.append(f"buffer_load_dwordx4 v{VWD+n}, s[{SD}:{SD+3}], s38 offen lds")
        L.append(g)
    return L
def xdma(c, base, srd_=SA):
    return [[f"s_lshl_b32 s37, s20, 11", f"s_add_u32 m0, s37, {base}", f"s_movk_i32 s36, {128*c}",
             f"buffer_load_dwordx4 v{VXD0}, s[{srd_}:{srd_+3}], s36 offen lds"],
            [f"s_add_u32 m0, s37, {base+1024}", "s_nop 0",
             f"buffer_load_dwordx4 v{VXD1}, s[{srd_}:{srd_+3}], s36 offen lds"]]

GACC = 16; GWF = 36; GXF = [56, 60]
def gemm_rdX(kk, xb):
    ks = kk & 1
    if xb < 65536: a, o = (VXF0 if ks == 0 else VXF1), xb
    else: a, o = (VXF0h if ks == 0 else VXF1h), xb - 65536
    return It(f"ds_read_b128 {vr(GXF[kk & 1],4)}, v{a} offset:{o}", lds=f"x{kk}")
def gemm_rdW(kk, mt, wb):
    ks = kk & 1
    out = []
    for h in range(2):
        off = wb + (32*ks + 8*h)*160 + 32*mt
        a = VWT
        if off >= 131072: a, off = VWTh2, off - 131072
        elif off >= 65536: a, off = VWTh, off - 65536
        out.append(It(f"ds_read_b64_tr_b16 {vr(GWF+mt*4+h*2,2)}, v{a} offset:{off}", lds=f"w{kk}_{mt}"))
    return out
def gemm_mm(kk, mt):
    return It(f"v_mfma_f32_16x16x32_bf16 {vr(GACC+4*mt,4)}, {vr(GWF+mt*4,4)}, {vr(GXF[kk & 1],4)}, {vr(GACC+4*mt,4) if kk else '0'}",
              needl=(f"x{kk}", f"w{kk}_{mt}"), w=2)
def gemm_items(xbase, wbase, sync, loads=None):
    steps = []
    spread = list(loads(0)) if loads else []
    pre = list(sync(0)) + [gemm_rdX(0, xbase(0))]
    for mt in range(5): pre += gemm_rdW(0, mt, wbase(0))
    for kk in range(20):
        L = []
        c1 = (kk+1) >> 1
        boundary = (kk+1) & 1 == 0 and kk+1 < 20
        for mt in range(5):
            L.append(gemm_mm(kk, mt))
            if kk+1 < 20:
                if mt == 0:
                    if boundary:
                        L += spread; spread = []
                        L += list(sync(c1))
                        if loads: spread = list(loads(c1))
                    L.append(gemm_rdX(kk+1, xbase(c1)))
                L += gemm_rdW(kk+1, mt, wbase(c1))
            if spread and mt in (1, 2, 3): L.append(spread.pop(0))
        steps.append(L)
    assert not spread
    return pre, steps

def rho(s, b):
    if s == 0: return b
    q = b >> s; rem = b & ((1 << s)-1); half = 1 << (s-1)
    if rem > half or (rem == half and (q & 1)): q += 1
    return q << s
KACC = 64
RS = 528
def kgen_setup_lines():
    T = Asm(); A = T
    A.e("v_lshlrev_b32 v12, 2, v1          ; lane*4")
    A.e("s_lshl_b32 s24, s34, 8           ; d*256")
    A.e("v_add_u32 v13, s24, v12")
    for k, s in enumerate((PARE, PAIM, PBRE, PBIM, PCRE, PCIM)):
        A.e(f"global_load_dword v{104+k}, v13, s[{s}:{s+1}]")
    A.e("s_lshl_b32 s24, s34, 1")
    A.e("v_mov_b32 v14, s24")
    A.e(f"global_load_ushort v110, v14, s[{PLDT}:{PLDT+1}]")
    A.e(f"global_load_ushort v198, v14, s[{PDSK}:{PDSK+1}]")
    A.e(f"s_mul_i32 s21, s20, {KGW}")
    A.e(f"s_add_u32 s21, s21, {L_KG}")
    A.e("v_lshlrev_b32 v14, 3, v1            ; lane*8")
    A.e("v_add_u32 v196, s21, v14")
    A.e(f"v_add_u32 v197, {33*RS}, v196")
    for s in range(4):
        for mt in range(2):
            dst = 112 + 2*s + mt
            A.e(f"v_add_u32 v15, {16*mt}, v2          ; b")
            if s > 0:
                half = 1 << (s-1)
                A.e(f"v_bfe_u32 v12, v15, {s}, 1")
                A.e(f"v_add3_u32 v15, v15, v12, {half-1}")
                A.e(f"v_lshrrev_b32 v15, {s}, v15")
                A.e(f"v_lshlrev_b32 v15, {s}, v15")
            A.e(f"v_mul_u32_u24 v15, {RS}, v15")
            A.e(f"v_lshl_add_u32 v15, v3, 4, v15")
            A.e(f"v_add_u32 v{dst}, s21, v15")
    for s in range(1, 4):
        for b in range(32):
            half = 1 << (s-1)
            assert (((b + half - 1 + ((b >> s) & 1)) >> s) << s) == rho(s, b)
    A.e(f"v_mul_u32_u24 v15, {RS}, v2")
    A.e("v_lshl_add_u32 v15, v3, 4, v15")
    A.e(f"v_add_u32 v15, {33*RS}, v15")
    A.e("v_add_u32 v111, s21, v15")
    return [x.strip() for x in T.lines if x.strip()]

def kgen_parts():
    L = []
    a = lambda t, **k: L.append(It(t, **k))
    E1 = [120, 122]; E32 = [124, 126]
    C = [176, 178]; TM = [180, 182]
    PK = [184, 186]
    WC = [188, 190]
    a("v_lshlrev_b32 v110, 16, v110", needv=("kp",))
    a(f"v_mul_f32 v110, {hex(f2u(LOG2E))}, v110")
    a("v_exp_f32 v110, v110")
    a("s_nop 0")
    a("v_cvt_pk_bf16_f32 v110, v110, v110")
    a("v_lshlrev_b32 v110, 16, v110")
    for hf in range(2):
        for k in range(6):
            a(f"v_lshlrev_b32 v{176+k}, 16, v{104+k}" if hf == 0 else f"v_and_b32 v{176+k}, 0xffff0000, v{104+k}")
        ZR, ZI = 192, 193
        a(f"v_mul_f32 v{ZR}, v110, v176"); a(f"v_mul_f32 v{ZI}, v110, v177")
        a("v_mul_f32 v178, v110, v178"); a("v_mul_f32 v179, v110, v179")
        a(f"v_mul_f32 v{ZR}, {hex(f2u(LOG2E))}, v{ZR}"); a(f"v_mul_f32 v{ZI}, {hex(f2u(1/(2*math.pi)))}, v{ZI}")
        w = WC[hf]
        a(f"v_mul_f32 v{w}, v180, v178"); a(f"v_mul_f32 v{w+1}, v180, v179")
        a(f"v_fma_f32 v{w}, -v181, v179, v{w}"); a(f"v_fma_f32 v{w+1}, v181, v178, v{w+1}")
        for (m, dst) in ((1, E1[hf]), (32, E32[hf])):
            if m == 1:
                a(f"v_exp_f32 v182, v{ZR}"); a(f"v_fract_f32 v183, v{ZI}")
            else:
                lit = hex(f2u(float(m)))
                a(f"v_mul_f32 v182, {lit}, v{ZR}"); a(f"v_mul_f32 v183, {lit}, v{ZI}")
                a("v_exp_f32 v182, v182"); a("v_fract_f32 v183, v183")
            a("v_cos_f32 v194, v183"); a("v_sin_f32 v195, v183")
            a("s_nop 0")
            a(f"v_mul_f32 v{dst}, v182, v194"); a(f"v_mul_f32 v{dst+1}, v182, v195")
    for hf in range(2):
        a(f"v_mov_b32 v{C[hf]}, v{WC[hf]}"); a(f"v_mov_b32 v{C[hf]+1}, v{WC[hf]+1}")
    setup = L
    def cm(x, e, t):
        return (f"v_pk_mul_f32 v[{t}:{t+1}], v[{x}:{x+1}], v[{e}:{e+1}] op_sel:[0,0] op_sel_hi:[0,1]",
                f"v_pk_fma_f32 v[{x}:{x+1}], v[{x}:{x+1}], v[{e}:{e+1}], v[{t}:{t+1}] op_sel:[1,1,0] op_sel_hi:[1,0,1] neg_lo:[1,0,0]")
    rows = []
    def row(n, r, e, neg, waddr, stp, pre=()):
        pk = PK[n & 1]; sg = "-" if neg else ""
        R = [It(y) for y in pre]
        if stp: R += [It(cm(C[0], e[0], TM[0])[0]), It(cm(C[1], e[1], TM[1])[0])]
        R += [It(f"v_cvt_pk_bf16_f32 v{pk}, v{C[0]}, {sg}v{C[0]+1}"), It(f"v_cvt_pk_bf16_f32 v{pk+1}, v{C[1]}, {sg}v{C[1]+1}")]
        if stp: R += [It(cm(C[0], e[0], TM[0])[1]), It(cm(C[1], e[1], TM[1])[1])]
        R.append(It(f"ds_write_b64 v{waddr}, {vr(pk,2)} offset:{r*RS}", lds="kw"))
        rows.append(R)
    for j in range(33): row(j, j, E1, True, 196, j < 32)
    one = [f"v_mov_b32 v{C[0]}, 1.0", f"v_mov_b32 v{C[0]+1}, 0", f"v_mov_b32 v{C[1]}, 1.0", f"v_mov_b32 v{C[1]+1}, 0"]
    for nt in range(4):
        for r in range(16):
            row(33+16*nt+r, r, E32, False, 197, not (nt == 3 and r == 15), pre=(one if (nt == 0 and r == 0) else ()))
    BF = 224
    def slot(n): return vr(16 + 4*n, 4) if n < 12 else vr(128 + 4*(n-12), 4)
    afr, bfr, mms = [], [], []
    for nt in range(4):
        variants = [(0,0),(0,1),(1,0),(1,1)] if nt == 0 else [((2 if nt == 1 else 3), 0), ((2 if nt == 1 else 3), 1)]
        tiles = [0,1,2,3] if nt == 0 else [2+2*nt, 3+2*nt]
        nv = len(variants)
        ra = []; mm = []
        tagnt = nt if nt < 3 else 2
        def rd(ks, vi):
            s_, mt = variants[vi]
            return It(f"ds_read_b128 {slot((ks*nv + vi) % 16)}, v{112+2*s_+mt} offset:{64*ks}", lds=f"ka{tagnt}_{ks}_{vi}")
        for ks in range(8):
            for vi in range(nv):
                n = ks*nv + vi
                if nt < 3 and n < 16: ra.append(rd(ks, vi))
                acc = KACC + 4*tiles[vi]
                mm.append(It(f"v_mfma_f32_16x16x32_bf16 {vr(acc,4)}, {slot(n % 16)}, {ar(BF+4*ks,4)}, {vr(acc,4) if ks else '0'}",
                             needl=(f"kb{nt}_{ks}", f"ka{tagnt}_{ks}_{vi}"), w=2))
                if nt == 0 and n < 16: mm.append(rd(ks+4, vi))
        afr.append(ra)
        bfr.append([It(f"ds_read_b128 {ar(BF+4*ks,4)}, v111 offset:{64*ks}", lds=f"kb{nt}_{ks}") for ks in range(8)])
        mms.append(mm)
    return setup, rows, afr, bfr, mms

def kgen_pack_lines():
    T = Asm(); A = T
    ACC = KACC
    A.e("v_lshlrev_b32 v198, 16, v198")
    A.e("v_cmp_eq_u32 vcc, 0, v1")
    A.e("s_nop 1")
    A.e("v_cndmask_b32 v198, 0, v198, vcc")
    A.e(f"v_add_f32 v{ACC}, v{ACC}, v198")
    A.e("v_cmp_gt_u32 vcc, 8, v2")
    A.e("s_nop 1")
    for i in range(8):
        A.e(f"v_cndmask_b32 v{ACC+i}, v{ACC+8+i}, v{ACC+i}, vcc")
    for nt in range(4):
        for mt in range(2):
            tile = mt if nt == 0 else 2+2*nt+mt
            acc = ACC + 4*tile
            b = 176 + 2*(nt*2+mt)
            A.e(f"v_cvt_pk_bf16_f32 v{b}, v{acc+3}, v{acc+2}")
            A.e(f"v_cvt_pk_bf16_f32 v{b+1}, v{acc+1}, v{acc}")
    return [x.strip() for x in T.lines if x.strip()]
def kgen_write_lines():
    T = Asm(); A = T
    A.e("s_mul_i32 s21, s20, 4608")
    A.e(f"s_add_u32 s21, s21, {L_KR}")
    A.e("v_lshlrev_b32 v15, 5, v2")
    A.e("v_lshl_add_u32 v15, v3, 2, v15    ; 32c + 4g")
    A.e("v_sub_u32 v15, 2044, v15")
    A.e("v_lshlrev_b32 v15, 1, v15")
    A.e(f"v_add_u32 v15, s21, v15")
    A.e(f"v_subrev_u32 v15, {(512*3+16)*2}, v15")
    for nt in range(4):
        for mt in range(2):
            b = 176 + 2*(nt*2+mt)
            A.e(f"ds_write_b64 v15, {vr(b,2)} offset:{(512*3+16)*2 - (512*nt+16*mt)*2}")
    A.e("v_mov_b32 v192, 0"); A.e("v_mov_b32 v193, 0")
    A.e("v_lshlrev_b32 v12, 3, v1")
    A.e(f"s_add_u32 s21, s21, 4096")
    A.e("v_add_u32 v12, s21, v12")
    A.e("ds_write_b64 v12, v[192:193]")
    return [x.strip() for x in T.lines if x.strip()]

def q_epilogue(A, q):
    A.e(f"s_mov_b32 s26, {hex(f2u(QSCALE))}")
    for mt in range(5):
        acc = GACC + 4*mt
        for i in range(4): A.e(f"v_mul_f32 v{acc+i}, s26, v{acc+i}")
        A.e(f"v_cvt_pk_bf16_f32 v{36+mt*2}, v{acc}, v{acc+1}")
        A.e(f"v_cvt_pk_bf16_f32 v{37+mt*2}, v{acc+2}, v{acc+3}")
        q.emit(It(f"ds_write_b64 v{VQW+mt}, {vr(36+mt*2,2)}", lds="qw"))

def weave_setup(A, q, setup, pro):
    safe = [i for i, l in enumerate(setup) if l.startswith("v_") and not l.startswith("v_cndmask") and i+1 < len(setup)
            and not setup[i+1].startswith("v_cndmask") and not setup[i+1].startswith("s_nop") and not l.startswith("v_cmp")
            and not setup[i+1].startswith("s_addc")]
    step = max(1, len(safe)//len(pro))
    pts = {safe[min(k*step, len(safe)-1)]: k for k in range(len(pro))}
    done = 0
    for i, l in enumerate(setup):
        A.e(l)
        if i in pts: q.emit(pro[pts[i]]); done += 1
    assert done == len(pro), (done, len(pro))

def X_items(c): return [It(g, vm=f"x{c}") for g in xdma(c, L_XR + 8192*c)]
def W_items(c): return [It(g, vm=f"w{c}") for g in wdma_ring(c, L_WR + WCH*(c % 4))]

def front(A, pfx):
    setup = addr_setup_items()
    A.e("s_cmp_lt_u32 s53, 2")
    A.e(f"s_cbranch_scc1 {pfx}_kvpro")
    q = Q(A)
    A.e(f"s_cmp_ge_u32 s3, {NCONV}")
    A.e(f"s_cbranch_scc1 {pfx}_nokp")
    for l in kgen_setup_lines(): A.e(l)
    A.label(f"{pfx}_nokp")
    pro = []
    for c in range(4): pro += X_items(c) + W_items(c)
    weave_setup(A, q, setup, pro)
    qcommon = q
    st(A)
    A.e(f"s_branch {pfx}_qgemm")
    A.label(f"{pfx}_kvpro")
    q = Q(A)
    A.e("s_cmp_eq_u32 s53, 0")
    A.e(f"s_cselect_b32 s24, s{PWK}, s{PWV}")
    A.e(f"s_cselect_b32 s25, s{PWK+1}, s{PWV+1}")
    A.e(f"s_mov_b32 s{SB}, s24"); A.e(f"s_mov_b32 s{SB+1}, s25"); A.e(f"s_mov_b32 s{SB+2}, 25600"); A.e(f"s_mov_b32 s{SB+3}, 0x20000")
    for i in range(7):
        if i < 6:
            A.e(f"s_add_u32 s28, s32, {4096*i}")
            A.e(f"s_add_u32 m0, s28, {L_WKV}")
            A.e("s_nop 0")
            A.e(f"buffer_load_dwordx4 v4, s[{SB}:{SB+3}], s28 offen lds")
        else:
            A.e("s_cmp_eq_u32 s20, 0")
            A.e(f"s_mov_b32 s29, {L_WKV + 24*1024}")
            A.e(f"s_cselect_b32 m0, s29, {L_DUMMY}")
            A.e(f"s_mov_b32 s30, 0x7fff0000")
            A.e(f"s_cselect_b32 s28, {24*1024}, s30")
            A.e(f"buffer_load_dwordx4 v4, s[{SB}:{SB+3}], s28 offen lds")
    pro = []
    for c in range(10): pro += X_items(c)
    weave_setup(A, q, setup, pro)
    st(A)
    KV, KW, KX = 64, 72, [104, 108]
    A.e("v_lshrrev_b32 v12, 2, v2")
    A.e("v_lshl_add_u32 v12, v3, 3, v12")
    A.e("v_mul_u32_u24 v12, 40, v12")
    A.e("v_and_b32 v13, 3, v2")
    A.e("v_lshl_add_u32 v12, v13, 3, v12")
    A.e(f"v_add_u32 v176, {L_WKV}, v12")
    for i in range(8): A.e(f"v_mov_b32 v{KV+i}, 0")
    q.wait_v(("x0",))
    A.e("s_barrier")
    def rds(kk):
        c, ks = kk >> 1, kk & 1; b = kk & 1
        xb = L_XR + 8192*c
        a, o = ((VXF0 if ks == 0 else VXF1), xb) if xb < 65536 else ((VXF0h if ks == 0 else VXF1h), xb-65536)
        out = [It(f"ds_read_b128 {vr(KX[b],4)}, v{a} offset:{o}", lds=f"kx{kk}", needv=(f"x{c}",))]
        for m in range(2):
            for h in range(2):
                out.append(It(f"ds_read_b64_tr_b16 {vr(KW+8*b+4*m+2*h,2)}, v176 offset:{(32*kk + 4*h)*40 + 32*m}", lds=f"kw{kk}"))
        return out
    for variant in ("k", "v"):
        if variant == "k":
            A.e("s_cmp_eq_u32 s53, 0")
            A.e(f"s_cbranch_scc0 {pfx}_b_vpart")
        else:
            A.label(f"{pfx}_b_vpart")
        qq = Q(A); qq.vq = list(q.vq)
        qq.run(rds(0))
        wq_first = [x for c in range(4) for x in W_items(c)]
        for kk in range(20):
            if kk+1 < 20: qq.run(rds(kk+1))
            if kk >= 8: qq.emit(wq_first.pop(0))
            b = kk & 1
            for m in range(2):
                if variant == "k": t = f"v_mfma_f32_16x16x32_bf16 {vr(KV+4*m,4)}, {vr(KW+8*b+4*m,4)}, {vr(KX[b],4)}, {vr(KV+4*m,4)}"
                else: t = f"v_mfma_f32_16x16x32_bf16 {vr(KV+4*m,4)}, {vr(KX[b],4)}, {vr(KW+8*b+4*m,4)}, {vr(KV+4*m,4)}"
                qq.emit(It(t, needl=(f"kx{kk}", f"kw{kk}")))
        A.e("s_lshr_b32 s21, s20, 1")
        A.e("s_lshl_b32 s26, s54, 1")
        A.e("s_add_u32 s21, s21, s26          ; T")
        A.e("s_and_b32 s26, s20, 1            ; u")
        srd(A, SC, PWS, WS_VA + 64*2048)
        A.e(f"v_mov_b32 v19 , {OOB}".replace(" ,", ","))
        A.e("v_and_b32 v12, 1, v3             ; h (g&1)")
        A.e("v_cmp_gt_u32 vcc, 2, v3")
        A.e(f"v_cvt_pk_bf16_f32 v112, v{KV}, v{KV+1}")
        A.e(f"v_cvt_pk_bf16_f32 v113, v{KV+2}, v{KV+3}")
        A.e(f"v_cvt_pk_bf16_f32 v116, v{KV+4}, v{KV+5}")
        A.e(f"v_cvt_pk_bf16_f32 v117, v{KV+6}, v{KV+7}")
        if variant == "v":
            A.e("s_mov_b64 s[28:29], vcc")
            A.e("v_cmp_eq_u32 vcc, 4, v2")
            A.e("v_mov_b32 v13, 0x3f803f80")
            A.e("s_nop 0")
            A.e("v_cndmask_b32 v116, v116, v13, vcc")
            A.e("v_cndmask_b32 v117, v117, v13, vcc")
            A.e("s_mov_b64 vcc, s[28:29]")
        A.e("v_mov_b32 v120, v112"); A.e("v_mov_b32 v121, v113")
        A.e("v_mov_b32 v122, v116"); A.e("v_mov_b32 v123, v117")
        A.e("s_nop 1")
        A.e("v_permlane32_swap_b32 v120, v114")
        A.e("v_permlane32_swap_b32 v121, v115")
        A.e("v_permlane32_swap_b32 v122, v118")
        A.e("v_permlane32_swap_b32 v123, v119")
        if variant == "k":
            A.e("s_lshl_b32 s28, s26, 4")
            A.e("v_add_u32 v14, s28, v2           ; key32")
            A.e("v_lshl_add_u32 v15, v12, 5, v14")
            A.e("v_lshlrev_b32 v15, 4, v15")
            A.e("s_lshl_b32 s28, s21, 10")
            A.e(f"s_add_u32 s28, s28, {WS_KA}")
            A.e("v_add_u32 v15, s28, v15")
            A.e("v_cndmask_b32 v15, v19, v15, vcc")
            A.e(f"buffer_store_dwordx4 v[112:115], v15, s[{SC}:{SC+3}], 0 offen sc1")
            A.e("v_lshlrev_b32 v14, 3, v14")
            A.e("s_lshl_b32 s28, s21, 9")
            A.e(f"s_add_u32 s28, s28, {WS_KB}")
            A.e("v_add_u32 v14, s28, v14")
            A.e("v_cmp_eq_u32 vcc, 0, v3")
            A.e("s_nop 1")
            A.e("v_cndmask_b32 v14, v19, v14, vcc")
            A.e(f"buffer_store_dwordx2 v[116:117], v14, s[{SC}:{SC+3}], 0 offen sc1")
            A.e("s_lshl_b32 s28, s54, 7")
            A.e(f"s_add_u32 s28, s28, {WS_FLAG}")
            srd(A, SE_, PWS, 128, add="s28")
            A.e("v_lshlrev_b32 v14, 2, v0")
            A.e("v_mov_b32 v13, 0")
            A.e(f"buffer_store_dword v13, v14, s[{SE_}:{SE_+3}], 0 offen sc1")
        else:
            A.e("v_lshl_add_u32 v15, v12, 5, v2")
            A.e("v_lshlrev_b32 v15, 4, v15")
            A.e("s_lshl_b32 s28, s21, 11")
            A.e("s_lshl_b32 s29, s26, 10")
            A.e("s_add_u32 s28, s28, s29")
            A.e(f"s_add_u32 s28, s28, {WS_VA}")
            A.e("v_add_u32 v15, s28, v15")
            A.e("v_add_u32 v14, 256, v15")
            A.e("v_cndmask_b32 v15, v19, v15, vcc")
            A.e("v_cndmask_b32 v14, v19, v14, vcc")
            A.e(f"buffer_store_dwordx4 v[112:115], v15, s[{SC}:{SC+3}], 0 offen sc1")
            A.e("v_cmp_gt_u32 vcc, 5, v2")
            A.e("s_nop 1")
            A.e("v_cndmask_b32 v14, v19, v14, vcc")
            A.e(f"buffer_store_dwordx4 v[116:119], v14, s[{SC}:{SC+3}], 0 offen sc1")
        A.e("s_waitcnt vmcnt(0)")
        A.e("s_barrier")
        A.e("s_cmp_lg_u32 s20, 0")
        A.e(f"s_cbranch_scc1 {pfx}_b_nf{variant}")
        srd(A, SE_, PDBG, 256)
        A.e("s_lshl_b32 s28, s52, 2")
        A.e("v_mov_b32 v14, s28")
        A.e("v_mov_b32 v13, 1")
        A.e("s_mov_b64 exec, 1")
        A.e(f"buffer_store_dword v13, v14, s[{SE_}:{SE_+3}], 0 offen sc1")
        A.e("s_mov_b64 exec, -1")
        A.label(f"{pfx}_b_nf{variant}")
        if variant == "k": A.e(f"s_branch {pfx}_b_ownx")
    A.label(f"{pfx}_b_ownx")
    A.e("s_mul_i32 s21, s22, 81920")
    srd(A, SA, PX, 81920, add="s21")
    for c in range(4):
        for g in xdma(c, L_XR + 8192*c):
            for x in g: A.e(x)
    A.e("s_waitcnt vmcnt(0)")
    st(A)
    A.label(f"{pfx}_qgemm")
    q = qcommon
    def sync(c): return [It("s_barrier", needv=(f"x{c}", f"w{c}"))]
    def loads(c):
        L = []
        if c+4 < 10: L += X_items(c+4)
        if c >= 2 and c+2 < 10: L += W_items(c+2)
        return L
    pre, steps = gemm_items(lambda c: L_XR + 8192*c, lambda c: L_WR + WCH*(c % 4), sync, loads)
    q.run(pre)
    late = [It(x) for x in part_addr_lines() + addr_setup_items("late")]
    grp = []; cur = []
    for it in late:
        cur.append(it)
        t = it.txt[0]
        if not (t.startswith("v_cmp") or t.startswith("s_nop") or (len(cur) > 1 and cur[-2].txt[0].startswith("v_cmp"))
                or (len(cur) > 2 and cur[-3].txt[0].startswith("v_cmp")) or (len(cur) > 3 and cur[-4].txt[0].startswith("v_cmp"))):
            grp.append(It([y for c in cur for y in c.txt], w=len(cur))); cur = []
    if cur: grp.append(It([y for c in cur for y in c.txt], w=len(cur)))
    per = (len(grp) + 17)//18
    for kk in range(20):
        q.run(merge(steps[kk], grp[kk*per:(kk+1)*per]))
    q.all_l(); q.all_v()
    A.e("s_nop 4")
    st(A)
    A.e("s_barrier")
    q_epilogue(A, q)
    srd(A, SE_, PDBG, 256)
    poll(A, pfx, "kv", SE_, 64, None)
    A.e("s_waitcnt lgkmcnt(0)")
    A.e("s_barrier")
    st(A)

def poll(A, pfx, name, srd_, nl, cmpmask):
    A.e("s_cmp_lg_u32 s20, 0")
    A.e(f"s_cbranch_scc1 {pfx}_{name}_np")
    A.e("v_lshlrev_b32 v12, 2, v1")
    A.e(f"s_mov_b32 s35, {SPIN_MAX}")
    if nl < 64: A.e(f"s_mov_b64 exec, {hex((1 << nl)-1)}")
    A.label(f"{pfx}_{name}_p")
    A.e(f"buffer_load_dword v13, v12, s[{srd_}:{srd_+3}], 0 offen sc1")
    A.e("s_waitcnt vmcnt(0)")
    A.e("v_cmp_ne_u32 vcc, 0, v13")
    A.e("s_sub_u32 s35, s35, 1")
    A.e("s_cmp_eq_u32 s35, 0")
    A.e(f"s_cbranch_scc1 {pfx}_{name}_d")
    if nl == 64:
        A.e("s_cmp_eq_u64 vcc, -1")
    else:
        A.e(f"s_cmp_eq_u32 vcc_lo, {hex((1 << nl)-1)}")
    A.e(f"s_cbranch_scc1 {pfx}_{name}_d")
    A.e("s_sleep 1")
    A.e(f"s_branch {pfx}_{name}_p")
    A.label(f"{pfx}_{name}_d")
    if nl < 64: A.e("s_mov_b64 exec, -1")
    A.label(f"{pfx}_{name}_np")

PREF_K, PREF_V = 6, 5
def step(A, tau, t, first=False, last=False, fillers=None, pre=None):
    cur = S[t & 1]; nxt = S[(t+1) & 1]
    Pc = P[t & 1]; Pp = P[(t+1) & 1]
    par = tau & 1
    if t < NT-1: nt, ntau = t+1, tau
    else: nt, ntau = 0, tau+1
    do_next = not (last and t == NT-1)
    M1 = f"v_mfma_f32_32x32x16_bf16 {vr(nxt,16)}, {KAr(nt)}, {QAr(ntau)}, 0" if do_next else None
    M2 = f"v_mfma_f32_32x32x8_bf16 {vr(nxt,16)}, {KBr(nt)}, {QBr(ntau)}, {vr(nxt,16)}" if do_next else None
    if t == 0: pt, op, c0 = NT-1, O[par ^ 1], None
    else:
        pt, op = t-1, O[par]
        c0 = "0" if t == 1 else None
    if t == 0 and first: PV0p = PVp = None
    else:
        PV0p = f"v_mfma_f32_32x32x16_bf16 {vr(op,16)}, {VAr(pt,0)}, {vr(Pp,4)}, {c0 or vr(op,16)}"
        PVp = f"v_mfma_f32_32x32x16_bf16 {vr(op,16)}, {VAr(pt,1)}, {vr(Pp+4,4)}, {vr(op,16)}"
    E = lambda i: f"v_exp_f32 v{cur+i}, v{cur+i}"
    C = lambda i: f"v_cvt_pk_bf16_f32 v{Pc+i}, v{cur+2*i}, v{cur+2*i+1}"
    seq = [E(0), M1, E(1), E(2), C(0), E(3), E(4), PV0p, C(1), E(5), E(6), C(2), E(7), M2, E(8), C(3), E(9), E(10), C(4), E(11),
           PVp, E(12), C(5), E(13), E(14), E(15), C(6), C(7)]
    seq = [x for x in seq if x]
    groups = list(fillers or [])
    if groups:
        epos = [i for i, x in enumerate(seq) if x.startswith("v_exp")]
        flat = []
        for g in groups:
            if any(y.startswith("s_cbranch") for y in g) or any("exec" in y for y in g): flat.append(g)
            elif any("m0" in y for y in g): flat.append(g)
            else: flat += [[y] for y in g]
        n = len(flat); out = []; k = 0
        for i, x in enumerate(seq):
            out.append(x)
            if i in epos:
                want = ((epos.index(i)+1)*n + len(epos)-1)//len(epos) if True else 0
                while k < min(want, n):
                    out += flat[k]; k += 1
        for g in flat[k:]: out += g
        seq = out
    for x in (pre or []): A.e(x)
    for x in seq:
        if x.endswith(":"): A.label(x[:-1])
        else: A.e(x)

def part_addr_lines():
    L = []
    for tau in range(1, 7):
        L += ["s_lshl_b32 s28, s20, 1", f"s_add_u32 s28, s28, {1+tau}", "s_and_b32 s28, s28, 7",
              "s_lshr_b32 s29, s28, 1", "s_sub_u32 s29, s20, s29", "s_sub_u32 s29, s29, 1", "s_and_b32 s29, s29, 3",
              "s_mul_i32 s28, s28, 3", "s_add_u32 s28, s28, s29", f"s_mul_i32 s28, s28, {PART}", f"v_add_u32 v{VPA+tau-1}, s28, v4"]
    return L
def part_write(tau):
    par = (tau-1) & 1
    return [[f"ds_write_b128 v{VPA+tau-1}, {vr(O[par]+4*g,4)} offset:{1024*g}"] for g in range(3)]

def kv_load_groups():
    def ldK(t): return [[f"s_add_u32 s27, s44, {1024*t}", f"buffer_load_dwordx4 {KAr(t)}, v4, s[{SA}:{SA+3}], s27 offen"],
                        [f"s_add_u32 s28, s45, {512*t}", f"buffer_load_dwordx2 {KBr(t)}, v5, s[{SA}:{SA+3}], s28 offen"]]
    def ldV(t): return [[f"s_add_u32 s29, s46, {2048*t}", f"buffer_load_dwordx4 {VAr(t,0)}, v8, s[{SA}:{SA+3}], s29 offen"],
                        [f"buffer_load_dwordx4 {VAr(t,1)}, v8, s[{SA}:{SA+3}], s29 offen offset:1024"]]
    return ldK, ldV

def q_reads(A):
    for tau in range(8):
        A.e(f"v_mov_b32 v{132+6*tau}, 0"); A.e(f"v_mov_b32 v{133+6*tau}, 0")
    A.e("s_lshl_b32 s35, s20, 1")
    for tau in range(8):
        A.e(f"s_add_u32 s36, s35, {2+tau}")
        A.e("s_and_b32 s36, s36, 7")
        A.e("s_mul_i32 s36, s36, 1280")
        A.e(f"s_add_u32 s36, s36, {L_QL}")
        A.e(f"v_add_u32 v12, s36, v{VQR}")
        A.e(f"v_add_u32 v13, s36, v{VQRB}")
        A.e(f"ds_read_b128 {QAr(tau)}, v12")
        A.e("s_mov_b32 exec_hi, 0")
        A.e(f"ds_read_b64 {QBr(tau)}, v13")
        A.e("s_mov_b32 exec_hi, -1")

def late_setup(A):
    A.e("s_mul_i32 s21, s23, 160")
    srd(A, SD, PWO, "0", add="s21")
    A.e(f"s_sub_u32 s{SD+2}, 819200, s21")
    srd(A, SF, PU, 2048*1280)

def first_scores(A):
    A.e(f"v_mfma_f32_32x32x16_bf16 {vr(S[0],16)}, {KAr(0)}, {QAr(0)}, 0")
    A.e(f"v_mfma_f32_32x32x8_bf16 {vr(S[0],16)}, {KBr(0)}, {QBr(0)}, {vr(S[0],16)}")
    A.e("s_nop 7"); A.e("s_nop 3")

def kgen_phase(A, pfx):
    q = Q(A)
    ldK, ldV = kv_load_groups()
    kv = []
    for t in range(NT): kv += [It(g, vm="kv") for g in ldK(t) + ldV(t)]
    ksetup, rows, afr, bfr, mms = kgen_parts()
    q.vq = []
    q.run([It(x.txt) for x in ksetup])
    due = {49: 0, 65: 1, 81: 2, 97: 3}
    arow = {}
    for i, it in enumerate(afr[0]): arow.setdefault(33 + i, []).append(it)
    for i, it in enumerate(afr[1]): arow.setdefault(49 + i, []).append(it)
    for i, it in enumerate(afr[2]): arow.setdefault(65 + i, []).append(it)
    k = 0
    for pos, R in enumerate(rows):
        q.run(R + arow.get(pos, []))
        want = min(len(kv), ((pos+1)*len(kv) + 79)//80)
        while k < want:
            if k == 40: A.e("s_waitcnt vmcnt(24)")
            q.emit(kv[k]); k += 1
        if pos+1 in due:
            nt = due[pos+1]
            q.run(bfr[nt])
            q.run(mms[nt])
    q.all_l()
    A.e("s_nop 7")
    st(A)
    for l in kgen_pack_lines(): A.e(l)
    A.e("s_barrier")
    for l in kgen_write_lines(): A.e(l)
    q_reads(A)
    late_setup(A)
    A.e("s_waitcnt lgkmcnt(0)")
    A.e("s_barrier")
    A.e("v_mov_b32 v192, 0")
    A.e("s_and_b32 s21, s20, 1")
    A.e("s_mul_i32 s21, s21, 8320")
    A.e(f"s_add_u32 s21, s21, {L_U0}")
    A.e("v_and_b32 v12, 15, v1")
    A.e("v_lshlrev_b32 v12, 2, v12")
    A.e("v_lshrrev_b32 v13, 4, v1")
    A.e("v_and_b32 v13, 1, v13")
    A.e("v_mul_u32_u24 v13, 0x2040, v13        ; 8256")
    A.e("v_add3_u32 v12, v12, v13, s21")
    A.e("ds_write_b32 v12, v192")
    A.e("s_waitcnt vmcnt(0)")
    st(A)
    first_scores(A)
    for t in range(NT): step(A, 0, t, first=True)

def b_transition(A, pfx):
    ldK, ldV = kv_load_groups()
    PK, PVn = PREF_K, PREF_V
    for g in ldK(0) + ldV(0):
        for x in g: A.e(x)
    q_reads(A)
    for t in range(1, PK):
        for g in ldK(t):
            for x in g: A.e(x)
        if t < PVn:
            for g in ldV(t):
                for x in g: A.e(x)
    late_setup(A)
    A.e("s_waitcnt lgkmcnt(0)")
    A.e("s_barrier")
    order = ["K0", "V0"]
    for t in range(1, PK):
        order.append(f"K{t}")
        if t < PVn: order.append(f"V{t}")
    A.e(f"s_waitcnt vmcnt({2*(len(order)-1)})")
    st(A)
    first_scores(A)
    for t in range(NT):
        fl = []; need = []
        if t+1 < NT: need.append(f"K{t+1}")
        if t >= 1: need.append(f"V{t-1}")
        idx = max(order.index(x) for x in need)
        nout = 2*(len(order) - 1 - idx)
        if t == NT-1: nout = 0
        new = []
        if t+PK < NT: fl += ldK(t+PK); new.append(f"K{t+PK}")
        if t+PVn < NT: fl += ldV(t+PVn); new.append(f"V{t+PVn}")
        step(A, 0, t, first=True, fillers=fl, pre=[f"s_waitcnt vmcnt({nout})"])
        order += new

def attention(A, pfx):
    srd(A, SA, PWS, WS_VA + 64*2048)
    A.e("s_lshl_b32 s44, s20, 14          ; KA: T*1024")
    A.e(f"s_lshl_b32 s45, s20, 13         ; KB: T*512")
    A.e(f"s_add_u32 s45, s45, {WS_KB}")
    A.e("s_lshl_b32 s46, s20, 15          ; VA: T*2048")
    A.e(f"s_add_u32 s46, s46, {WS_VA}")
    A.e(f"s_cmp_ge_u32 s3, {NCONV}")
    A.e(f"s_cbranch_scc1 {pfx}_btr")
    kgen_phase(A, pfx)
    A.e(f"s_branch {pfx}_tau1")
    A.label(f"{pfx}_btr")
    b_transition(A, pfx)
    A.label(f"{pfx}_tau1")
    st(A)
    wl = []
    for c in range(8): wl += wdma_ring(c, BWchunk(c))
    def bg(n):
        L = []
        la, lb = f"{pfx}_bga{n}", f"{pfx}_bgb{n}"
        if n < 8:
            L += [f"s_cbranch_vccnz {la}", f"s_add_u32 s63, s61, {64*1280*n}",
                  f"buffer_load_dwordx2 {vr(176+2*n,2)}, v{VUD}, s[{SF}:{SF+3}], s63 offen", f"s_branch {lb}", la + ":"] + wl[n] + [lb + ":"]
        elif 12 <= n < 20:
            k = n - 12
            L += [f"s_cbranch_vccnz {la}"] + (["s_waitcnt vmcnt(0)"] if k == 0 else []) + \
                 [f"ds_write_b32 v{VUP}, v{176+2*k} offset:{256*k}", f"ds_write_b32 v{VUP}, v{177+2*k} offset:{8320+256*k}",
                  f"s_branch {lb}", la + ":"] + wl[n] + [lb + ":"]
        else:
            L += [f"s_cbranch_vccz {lb}"] + wl[n] + [lb + ":"]
        return L
    A.e(f"s_cmp_ge_u32 s3, {NCONV}")
    A.e("s_cselect_b64 vcc, -1, 0")
    A.e(f"s_mul_i32 s61, s20, {512*1280}")
    for tau in range(1, 8):
        for t in range(NT):
            fl = []
            if tau <= 6 and t in (3, 4, 6): fl += [part_write(tau)[(3, 4, 6).index(t)]]
            if tau <= 6 and t in (5, 8, 11, 14): fl += [bg((tau-1)*4 + (t-5)//3)]
            step(A, tau, t, last=(tau == 7), fillers=fl)
        st(A)
    A.e("s_nop 1")
    par = 1; Pp = P[(NT-1) & 1]
    A.e(f"v_mfma_f32_32x32x16_bf16 {vr(O[par],16)}, {VAr(NT-1,0)}, {vr(Pp,4)}, {vr(O[par],16)}")
    A.e(f"v_mfma_f32_32x32x16_bf16 {vr(O[par],16)}, {VAr(NT-1,1)}, {vr(Pp+4,4)}, {vr(O[par],16)}")
    A.e("s_waitcnt vmcnt(0) lgkmcnt(0)")
    A.e("s_barrier")
    st(A)

def reduce_publish(A, pfx):
    RB = 176 - 48
    RB = 128
    def rdpart(jj):
        for sl in range(3):
            for g in range(3):
                A.e(f"ds_read_b128 {vr(RB + (jj*3+sl)*12 + 4*g, 4)}, v{VRED} offset:{(jj*3+sl)*PART + 1024*g}")
    rdpart(0)
    srd(A, SC, PWS, 2048*1280, add=WS_O)
    for jj in range(2):
        Of = O[jj]
        A.e("s_waitcnt lgkmcnt(0)")
        if jj == 0: rdpart(1)
        for sl in range(3):
            for r in range(12): A.e(f"v_add_f32 v{Of+r}, v{Of+r}, v{RB+(jj*3+sl)*12+r}")
        A.e(f"v_mov_b32 v28, v{Of+8}")
        A.e(f"v_mov_b32 v29, v{Of+8}")
        A.e("s_nop 1")
        A.e("v_permlane32_swap_b32 v28, v29")
        A.e("s_nop 1")
        A.e("v_rcp_f32 v29, v29")
        A.e("s_nop 0")
        for r in range(12): A.e(f"v_mul_f32 v{16+r}, v{Of+r}, v29")
        for g in range(3):
            A.e(f"v_cvt_pk_bf16_f32 v{32+6*jj+2*g}, v{16+4*g}, v{17+4*g}")
            A.e(f"v_cvt_pk_bf16_f32 v{33+6*jj+2*g}, v{18+4*g}, v{19+4*g}")
    A.e("s_barrier")
    for jj in range(2):
        A.e(f"ds_write_b64 v{VOS}, {vr(32+6*jj,2)} offset:{5120*jj}")
        A.e(f"ds_write_b64 v{VOS}, {vr(34+6*jj,2)} offset:{5120*jj+16}")
        A.e(f"ds_write_b64 v{VOS2a if jj == 0 else VOS2b}, {vr(36+6*jj,2)}")
    A.e("s_mul_i32 s24, s22, 81920")
    A.e("s_mul_i32 s25, s23, 160")
    A.e("s_add_u32 s24, s24, s25")
    A.e("s_waitcnt lgkmcnt(0)")
    A.e("s_barrier")
    for i in range(3):
        A.e(f"ds_read_b128 {vr(44+4*i,4)}, v{VTID16} offset:{4096*i}")
    for i in range(3):
        A.e(f"s_waitcnt lgkmcnt({2-i})")
        A.e(f"buffer_store_dwordx4 {vr(44+4*i,4)}, v{VOG+i}, s[{SC}:{SC+3}], s24 offen sc1")
    A.e("s_lshl_b32 s21, s22, 7")
    A.e(f"s_add_u32 s21, s21, {WS_FLAG}")
    srd(A, SE_, PWS, 128, add="s21")
    A.e(f"s_cmp_ge_u32 s3, {NCONV}")
    A.e(f"s_cbranch_scc1 {pfx}_nouprep")
    u_prep(A)
    A.label(f"{pfx}_nouprep")
    A.e("s_waitcnt vmcnt(0)")
    A.e("s_barrier")
    A.e("s_cmp_lg_u32 s20, 0")
    A.e(f"s_cbranch_scc1 {pfx}_noflag")
    A.e("s_lshl_b32 s21, s23, 2")
    A.e("v_mov_b32 v12, s21")
    A.e("v_mov_b32 v13, 1")
    A.e("s_mov_b64 exec, 1")
    A.e(f"buffer_store_dword v13, v12, s[{SE_}:{SE_+3}], 0 offen sc1")
    A.e("s_mov_b64 exec, -1")
    A.label(f"{pfx}_noflag")
    st(A)

def u_prep(A):
    for ps in range(5):
        b = 64 + 10*ps
        A.e(f"ds_read_b128 {vr(b,4)}, v{VUR} offset:{2048*ps}")
        A.e(f"ds_read_b128 {vr(b+4,4)}, v{VUR} offset:{2048*ps+16}")
        A.e(f"ds_read_b32 v{b+8}, v{VUR} offset:{2048*ps+32}")
    A.e("s_and_b32 s21, s20, 1")
    A.e("s_cmp_eq_u32 s21, 0")
    A.e("s_mov_b32 s25, 0x07060302")
    A.e("s_cselect_b32 s26, 0x05040100, s25")
    A.e(f"v_add_u32 v12, {L_U0}, v{VUW}")
    A.e("s_waitcnt lgkmcnt(0)")
    A.e("s_barrier")
    for ps in range(5):
        b = 64 + 10*ps
        if ps == 4: A.e("s_mov_b64 exec, 15")
        o = 116 + 8*(ps & 1)
        for i in range(4): A.e(f"v_perm_b32 v{o+i}, v{b+2*i+1}, v{b+2*i}, s26")
        for i in range(4): A.e(f"v_perm_b32 v{o+4+i}, v{b+2*i+2}, v{b+2*i+1}, s26")
        A.e(f"ds_write_b128 v12, {vr(o,4)} offset:{1024*ps}")
        A.e(f"ds_write_b128 v{VUW}, {vr(o+4,4)} offset:{L_U1+1024*ps}")
        if ps == 4: A.e("s_mov_b64 exec, -1")

def conv_part(A, pfx):
    ACC = 16; AB = 64
    def Br(D, i): return ar(32*D + 4*i, 4)
    def Ar(c, i): return vr(AB + 32*(c & 1) + 4*i, 4)
    def Ahalf(c, i, h): return vr(AB + 32*(c & 1) + 4*i + 2*h, 2)
    srd(A, SH, POUT, 2048*2560)
    A.e("s_waitcnt lgkmcnt(0)")
    st(A)
    q = Q(A)
    def readsA(c):
        L = [It(f"v_add_u32 v11, {512*c}, v{VCU}")]
        for i in range(8):
            L.append(It(f"ds_read2_b32 {Ahalf(c,i,0)}, v11 offset0:{16*i} offset1:{16*i+1}", lds=f"a{c}_{i}"))
            L.append(It(f"ds_read2_b32 {Ahalf(c,i,1)}, v11 offset0:{16*i+2} offset1:{16*i+3}", lds=f"a{c}_{i}"))
        return L
    def readsB(D):
        return [It(f"ds_read_b128 {Br(D,i)}, v{VCK} offset:{512*(7-D)+64*i}", lds=f"b{D}_{i}") for i in range(8)]
    def mm(c, D, i):
        acc = ACC + 4*(c + D)
        first = (c == 0 and i == 0)
        return It(f"v_mfma_f32_16x16x32_bf16 {vr(acc,4)}, {Ar(c,i)}, {Br(D,i)}, {'0' if first else vr(acc,4)}", needl=(f"a{c}_{i}", f"b{D}_{i}"), w=2)
    def flush1(B):
        acc = ACC + 4*B; bo = (B & 1)*YSB
        return [It(f"v_cvt_pk_bf16_f32 v48, v{acc}, v{acc+1}"), It(f"v_cvt_pk_bf16_f32 v49, v{acc+2}, v{acc+3}"),
                It(f"ds_write_b64 v{VYS}, v[48:49] offset:{bo}", lds=f"yw{B}")]
    def flush2(B):
        bo = (B & 1)*YSB; r = 50 + 2*(B & 1)
        return [It("s_barrier", needl=(f"yw{B}",)),
                It(f"ds_read_b64_tr_b16 {vr(r,2)}, v{VYT} offset:{bo}", lds=f"yr{B}")]
    def flush3(B):
        r = 50 + 2*(B & 1)
        return [It([f"s_mov_b32 s28, {B*256*2560}", f"buffer_store_dwordx2 {vr(r,2)}, v{VYO}, s[{SH}:{SH+3}], s28 offen"], vm="Y", needl=(f"yr{B}",))]
    q.run(readsA(0) + readsB(0))
    for c in range(8):
        if c == 0:
            for D in range(8):
                M = [mm(0, D, i) for i in range(8)]
                R = readsB(D+1) if D < 7 else readsA(1)
                q.run(merge(M, R))
        else:
            M = [mm(c, D, i) for i in range(8) for D in range(8-c)]
            R = readsA(c+1) if c < 7 else []
            n = len(M); h1 = min(5, n); h2 = max(h1, n//2);
            q.run(M[:h1])
            if c == 7: A.e("s_nop 2")
            q.run(flush1(c-1))
            q.run(merge(M[h1:h2], R[:len(R)//2]))
            q.run(flush2(c-1))
            q.run(merge(M[h2:], R[len(R)//2:]))
            q.run(flush3(c-1))
        import os
        if Cfg.STAMP and os.environ.get("DETC") == "1": st(A); q.lq = []
    A.e("s_nop 7")
    q.run(flush1(7) + flush2(7) + flush3(7))
    st(A)
    finish(A)

BW0 = 73728
def BWchunk(c): return (BW0 + c*WCH) if c < 8 else (16704 + (c-8)*WCH)
BXBUF = [0, 8192, 37184, 37184+8192, 37184+16384, 37184+24576]

def finish(A):
    if Cfg.STAMP:
        A.e("s_waitcnt vmcnt(0)")
        st(A)
        A.e("s_mov_b32 s2, s3")
        stamp_out(A, PWS, 4, STAMP_BASE, VSTAMP, VSTMP)
    A.e("s_endpgm")

def outproj_b(A, pfx):
    A.e("s_mov_b32 s60, s22")
    A.e("s_sub_u32 s61, s22, 20")
    A.e("s_add_u32 s62, s61, 12")
    A.e("s_cmp_lt_u32 s62, 20")
    A.e("s_cselect_b32 s63, 3, 2")
    A.e("s_cselect_b32 s62, s62, s61")
    q = Q(A)
    for c in (8, 9): q.run([It(g, vm=f"W{c}") for g in wdma_ring(c, BWchunk(c))])
    srd(A, SE_, PWS, 32*128, add=WS_FLAG)
    def wait_flags(name, regs):
        nl = 8*len(regs)
        A.e("s_cmp_lg_u32 s20, 0")
        A.e(f"s_cbranch_scc1 {pfx}_{name}_np")
        A.e(f"v_mov_b32 v14, s{regs[0]}")
        if len(regs) > 1:
            A.e("v_lshrrev_b32 v13, 3, v1")
            A.e("v_cmp_eq_u32 vcc, 1, v13")
            A.e(f"v_mov_b32 v15, s{regs[1]}")
            A.e("s_nop 0")
            A.e("v_cndmask_b32 v14, v14, v15, vcc")
        A.e("v_and_b32 v12, 7, v1")
        A.e("v_lshlrev_b32 v12, 2, v12")
        A.e("v_lshl_add_u32 v12, v14, 7, v12")
        A.e(f"s_mov_b32 s35, {SPIN_MAX}")
        A.e(f"s_mov_b64 exec, {hex((1 << nl)-1)}")
        A.label(f"{pfx}_{name}_p")
        A.e(f"buffer_load_dword v13, v12, s[{SE_}:{SE_+3}], 0 offen sc1")
        A.e("s_waitcnt vmcnt(0)")
        A.e("v_cmp_ne_u32 vcc, 0, v13")
        A.e("s_sub_u32 s35, s35, 1")
        A.e("s_cmp_eq_u32 s35, 0")
        A.e(f"s_cbranch_scc1 {pfx}_{name}_d")
        A.e(f"s_cmp_eq_u32 vcc_lo, {hex((1 << nl)-1)}")
        A.e(f"s_cbranch_scc1 {pfx}_{name}_d")
        A.e("s_sleep 1")
        A.e(f"s_branch {pfx}_{name}_p")
        A.label(f"{pfx}_{name}_d")
        A.e("s_mov_b64 exec, -1")
        A.label(f"{pfx}_{name}_np")
        A.e("s_waitcnt vmcnt(0)")
        A.e("s_barrier")
    wait_flags("o", [60])
    q.vq = []
    st(A)
    srd(A, SA, PWS, 2048*1280, add=WS_O)
    srd(A, SC, POUT, 2048*2560)
    for t in range(3): A.e(f"s_mul_i32 s{56+t}, s{60+t}, 81920")
    A.e("s_lshl_b32 s59, s20, 11")
    ACC = [16, 36]; WF = 56; XF = [[76, 80], [84, 88]]
    def xld(t, c, buf):
        return [It([f"s_add_u32 s36, s{56+t}, {128*c}", f"s_add_u32 m0, s59, {BXBUF[buf]}", "s_nop 0",
                    f"buffer_load_dwordx4 v{VXD0}, s[{SA}:{SA+3}], s36 offen lds"], vm=f"X{t}_{c}"),
                It([f"s_add_u32 m0, s59, {BXBUF[buf]+1024}", "s_nop 0",
                    f"buffer_load_dwordx4 v{VXD1}, s[{SA}:{SA+3}], s36 offen lds"], vm=f"X{t}_{c}")]
    def rdX(slot, kk, buf):
        ks = kk & 1; xb = BXBUF[buf]
        a, o = ((VXF0 if ks == 0 else VXF1), xb) if xb < 65536 else ((VXF0h if ks == 0 else VXF1h), xb-65536)
        return It(f"ds_read_b128 {vr(XF[slot][kk & 1],4)}, v{a} offset:{o}", lds=f"x{slot}_{kk}")
    def rdW(kk, mt):
        c, ks = kk >> 1, kk & 1; out = []
        for h in range(2):
            off = BWchunk(c) + (32*ks + 8*h)*160 + 32*mt
            a = VWT
            if off >= 131072: a, off = VWTh2, off - 131072
            elif off >= 65536: a, off = VWTh, off - 65536
            out.append(It(f"ds_read_b64_tr_b16 {vr(WF+mt*4+h*2,2)}, v{a} offset:{off}", lds=f"w{kk}_{mt}"))
        return out
    def pack(slot, base):
        for mt in range(5):
            acc = ACC[slot] + 4*mt
            r = base + 2*mt
            A.e(f"v_cvt_pk_bf16_f32 v{r}, v{acc}, v{acc+1}")
            A.e(f"v_cvt_pk_bf16_f32 v{r+1}, v{acc+2}, v{acc+3}")
    def store(base, t):
        A.e(f"s_mul_i32 s21, s{60+t}, 163840")
        A.e("s_add_u32 s21, s21, s55")
        for mt in range(5):
            q.emit(It(f"buffer_store_dwordx2 {vr(base+2*mt,2)}, v{VOUT}, s[{SC}:{SC+3}], s21 offen offset:{32*mt}", vm="S"))
    A.e("s_mul_i32 s55, s23, 160")
    A.e("s_add_u32 s55, s55, 1280")
    free = list(range(6)); where = {}
    pending = []
    def pump():
        out = []
        while free and pending:
            t, c = pending.pop(0); b = free.pop(0); where[(t, c)] = b
            out += xld(t, c, b)
        return out
    def run_pass(tiles):
        n = len(tiles)
        free[:] = list(range(6)); pending[:] = [(t, c) for c in range(10) for t in tiles]
        spread = []
        def sync(c):
            if c >= 1:
                for t in tiles: free.append(where[(t, c-1)])
            new_loads = pump()
            if c == 0:
                return new_loads + [It("s_nop 0", needv=tuple(f"X{t}_{c}" for t in tiles))]
            spread.extend(new_loads)
            return [It("s_nop 0", needv=tuple(f"X{t}_{c}" for t in tiles))]
        q.run(sync(0))
        for sl, t in enumerate(tiles): q.emit(rdX(sl, 0, where[(t, 0)]))
        for mt in range(5): q.run(rdW(0, mt))
        for kk in range(20):
            c1 = (kk+1) >> 1
            for mt in range(5):
                for sl in range(n):
                    q.emit(It(f"v_mfma_f32_16x16x32_bf16 {vr(ACC[sl]+4*mt,4)}, {vr(WF+4*mt,4)}, {vr(XF[sl][kk & 1],4)}, {vr(ACC[sl]+4*mt,4) if kk else '0'}",
                              needl=(f"x{sl}_{kk}", f"w{kk}_{mt}")))
                if spread and mt in (1, 3): q.emit(spread.pop(0))
                if kk+1 < 20:
                    if mt == 0:
                        if (kk+1) & 1 == 0:
                            while spread: q.emit(spread.pop(0))
                            q.run(sync(c1))
                        for sl, t in enumerate(tiles): q.emit(rdX(sl, kk+1, where[(t, c1)]))
                    q.run(rdW(kk+1, mt))
        assert not spread
        for t in tiles: free.append(where[(t, 9)])
        q.all_l()
        A.e("s_nop 7")
    run_pass([0])
    pack(0, 92)
    store(92, 0)
    st(A)
    wait_flags("o2", [61, 62])
    q.vq = []
    st(A)
    A.e("s_cmp_eq_u32 s63, 2")
    A.e(f"s_cbranch_scc1 {pfx}_b2")
    q = Q(A)
    run_pass([1, 2])
    st(A)
    pack(0, 92); pack(1, 102)
    store(92, 1); store(102, 2)
    finish(A)
    A.label(f"{pfx}_b2")
    q = Q(A)
    run_pass([1])
    st(A)
    pack(0, 92)
    store(92, 1)
    finish(A)

def mega_role(A, pfx):
    prologue(A, pfx)
    front(A, pfx)
    attention(A, pfx)
    reduce_publish(A, pfx)
    A.e(f"s_cmp_ge_u32 s3, {NCONV}")
    A.e(f"s_cbranch_scc1 {pfx}_bback")
    conv_part(A, pfx)
    A.label(f"{pfx}_bback")
    outproj_b(A, pfx)
    A.label(f"{pfx}_end")
    A.e("s_endpgm")
```

```python
import sys
from common import *
import mega, asmcheck
def build(path):
    K = NAME + "_kernel"
    body = Asm()
    kernel_begin(body, K)
    body.e("s_mov_b32 s3, s2")
    body.e("s_cmp_lt_u32 s2, 256")
    body.e("s_cbranch_scc1 mega_go")
    body.e("s_endpgm")
    body.label("mega_go")
    mega.mega_role(body, "mg")
    hdr = open("cdna_kernels/" + NAME + ".s.ref").read().split("; Override launch")[0]
    out = hdr + f"; @launch grid=(256,1,1) block=(256,1,1) lds={mega.LDS_MEGA}\n"
    out += '.amdgcn_target "amdgcn-amd-amdhsa--gfx950"\n' + body.text() + kernel_desc(K, 512, 256, 102)
    open(path, "w").write(out)
    import re
    go = {"mega_go"}
    pol = {
      "A_w0": (lambda t: t in go | {"mg_qgemm", "mg_kv_d", "mg_safe"} or t.startswith("mg_bgb")),
      "A_w1": (lambda t: t in go | {"mg_qgemm", "mg_kv_d", "mg_noflag", "mg_no3rd"} or t.startswith("mg_bgb")),
      "B_k": (lambda t: t in go | {"mg_kvpro", "mg_kv_d", "mg_o_d", "mg_o2_d", "mg_btr", "mg_bback"} or t.startswith("mg_bga")),
      "B_v": (lambda t: t in go | {"mg_kvpro", "mg_b_vpart", "mg_b_nfv", "mg_kv_d", "mg_o_np", "mg_o2_np", "mg_noflag", "mg_btr", "mg_bback", "mg_b2"} or t.startswith("mg_bga")),
      "B_n": (lambda t: t in go | {"mg_nokp", "mg_noks", "mg_kv_d", "mg_o_d", "mg_o2_d", "mg_btr", "mg_bback"} or t.startswith("mg_bga")),
      "A_slow": (lambda t: t in go | {"mg_qgemm", "mg_kv_d", "mg_slow", "mg_sl_loop"} or t.startswith("mg_bgb")),
      "A_slow1": (lambda t: t in go | {"mg_qgemm", "mg_kv_d", "mg_slow", "mg_sl_nodump", "mg_sl_next", "mg_noflag", "mg_no3rd"} or t.startswith("mg_bgb")),
    }
    errs = asmcheck.check_policies(body.text(), K, pol)
    for e in errs[:30]: print(e)
    print("wrote", path, len(out), "bytes;", len(errs), "checker messages")
if __name__ == "__main__":
    if "stamp" in sys.argv: Cfg.STAMP = True
    build(sys.argv[1])
```

```python
from common import *
from sched import *
import math
LOG2E = math.log2(math.e)
GBUF = 18432; GXB = 8192
L_KR = 73728
L_KG = 0; KGW = 25872
RA = 3
L_XR = 0; L_WKV = 81920; L_WR = 107520
L_QL = 104448
L_PART = 0; PART = 3072
L_U0 = 92160; CS = 4160
L_WA = 108800; WCH = 10240
L_DUMMY = 160000
L_U1 = 64; L_WB = 16704
L_YS = 16896; YSC = 576; YSB = 4*YSC
LDS_MEGA = 161024
def Wchunk(c): return (L_WA + c*WCH) if c < 5 else (L_WB + (c-5)*WCH)
XBUF = [L_KR, L_KR+8192, L_U0, L_U0+8192, L_U1, L_U1+8192]
WS_FLAG = 0x1100000
SPIN_MAX = 1 << 18
NCONV = 160
PU, PARE, PAIM, PBRE, PBIM, PCRE, PCIM, PLDT = 64, 66, 68, 70, 72, 74, 76, 78
PDSK, PX, PWQ, PWK, PWV, PWO, POUT, PDBG = 80, 82, 84, 86, 88, 90, 92, 94
PWS = 4
SA, SB, SC, SD, SE_, SF, SG, SH = 8, 12, 16, 40, 44, 48, 52, 56
VXD0, VXD1 = 200, 201
VWD = 202
VOUT = 205
VYO = 206
VOS, VOS2a, VOS2b = 207, 208, 209
VOG = 210
VTID16 = 213
VCU, VCK = 214, 215
VYS = 216
VYT, VUT = 217, 218
VUR = 219
VUW = 220
VRED = 221
VXF0, VXF1 = 222, 223
VWT = 224
VUD = 225
VQW = 226
VQR, VQRB = 231, 232
VXF0h, VXF1h, VWTh, VWTh2 = 233, 234, 235, 236
VUP = 237
VPA = 238
VSTAMP, VSTMP = 252, 253
S = [16, 32]; P = [48, 56]; O = [80, 96]; VW = 7; NT = 16
def QAr(tau): return vr(128+6*tau, 4)
def QBr(tau): return vr(132+6*tau, 2)
def KAr(t): return ar(4*t, 4)
def KBr(t): return ar(64+2*t, 2)
def VAr(t, u): return ar(96+8*t+4*u, 4)

def st(A): stamp(A, VSTAMP)

PREFETCH = True
CODE_BYTES = 80*1024
def prefetch(A, pfx):
    A.e("s_getpc_b64 s[24:25]")
    A.label(f"{pfx}_pc")
    A.e("s_lshr_b32 s26, s3, 3")
    A.e("s_lshl_b32 s26, s26, 2")
    A.e("s_add_u32 s26, s26, s20          ; slice 0..127")
    A.e("s_mul_i32 s26, s26, 768")
    A.e("v_min_u32 v12, 5, v1")
    A.e("v_lshlrev_b32 v12, 7, v12")
    A.e("v_add_u32 v12, s26, v12")
    A.e(f"v_min_u32 v12, mg_end-{pfx}_pc-4, v12")
    A.e("global_load_dword v249, v12, s[24:25]")
    A.e("s_lshl_b32 s26, s3, 2")
    A.e("s_add_u32 s26, s26, s20")
    A.e("s_lshl_b32 s26, s26, 6")
    A.e("v_add_u32 v12, s26, v1           ; slot")
    A.e("v_lshlrev_b32 v13, 7, v12")
    srd(A, SB, PX, 2048*1280)
    A.e(f"buffer_load_dword v250, v13, s[{SB}:{SB+3}], 0 offen")
    A.e("v_subrev_u32 v13, 0x280000, v13")
    srd(A, SB, PWQ, 819200)
    A.e(f"buffer_load_dword v251, v13, s[{SB}:{SB+3}], 0 offen")
def prologue(A, pfx):
    A.e("s_load_dwordx16 s[64:79], s[0:1], 0")
    A.e("s_load_dwordx16 s[80:95], s[0:1], 64")
    A.e(f"s_load_dwordx2 s[4:5], s[0:1], 128")
    stamp_init(A, VSTAMP); st(A)
    A.e("v_and_b32 v1, 63, v0")
    A.e("v_lshrrev_b32 v12, 6, v0")
    A.e("v_lshlrev_b32 v4, 4, v1          ; lane*16")
    A.e("v_readfirstlane_b32 s20, v12")
    A.e("v_and_b32 v2, 15, v1")
    A.e("v_lshrrev_b32 v3, 4, v1")
    A.e("s_mul_i32 s23, s3, 3277")
    A.e("s_lshr_b32 s23, s23, 16          ; w / 20")
    A.e("s_mul_i32 s22, s23, 20")
    A.e("s_sub_u32 s22, s3, s22           ; w % 20")
    A.e(f"s_sub_u32 s52, s3, {NCONV}        ; j")
    A.e("s_mul_i32 s24, s52, 5462")
    A.e("s_lshr_b32 s24, s24, 16          ; j / 12")
    A.e("s_mul_i32 s25, s24, 12")
    A.e("s_sub_u32 s25, s52, s25")
    A.e("s_add_u32 s25, s25, 20")
    A.e(f"s_cmp_ge_u32 s3, {NCONV}")
    A.e("s_cselect_b32 s22, s25, s22      ; rb")
    A.e("s_cselect_b32 s23, s24, s23      ; hg")
    A.e("s_lshr_b32 s53, s52, 5")
    A.e("s_min_u32 s53, s53, 2")
    A.e("s_cselect_b32 s53, s53, s53")
    A.e(f"s_cmp_lt_u32 s3, {NCONV}")
    A.e("s_cselect_b32 s53, 2, s53")
    A.e("s_and_b32 s54, s52, 31")
    A.e("s_cmp_lt_u32 s53, 2")
    A.e("s_cselect_b32 s54, s54, s22")
    A.e("s_lshl_b32 s32, s20, 10          ; wave*1024")
    A.e("s_lshl_b32 s31, s20, 11          ; wave*2048")
    A.e("s_and_b32 s33, s3, 7")
    A.e("s_mul_i32 s33, s33, 20")
    A.e("s_lshr_b32 s34, s3, 3")
    A.e("s_add_u32 s33, s33, s34")
    A.e("s_min_u32 s33, s33, 159")
    A.e("s_lshl_b32 s34, s33, 2")
    A.e("s_add_u32 s34, s34, s20          ; channel d")
    A.e("s_movk_i32 s27, 1280")
    A.e("v_lshrrev_b32 v12, 3, v1")
    A.e("v_and_b32 v13, 7, v1")
    A.e("v_xor_b32 v13, v13, v12")
    A.e("v_lshlrev_b32 v13, 4, v13")
    A.e("s_lshl_b32 s21, s20, 4")
    A.e("v_add_u32 v12, s21, v12")
    A.e(f"v_mad_u32_u24 v{VXD0}, v12, s27, v13")
    A.e(f"v_add_u32 v{VXD1}, 10240, v{VXD0}")
    A.e("s_mov_b32 s26, 6554")
    for n in range(3):
        A.e(f"s_add_u32 s21, s20, {4*n}")
        A.e("s_lshl_b32 s21, s21, 6")
        A.e("v_add_u32 v12, s21, v1          ; p")
        A.e("v_mul_u32_u24 v13, s26, v12")
        A.e("v_lshrrev_b32 v13, 16, v13      ; rho")
        A.e("v_mul_u32_u24 v14, 10, v13")
        A.e("v_sub_u32 v14, v12, v14         ; cc")
        A.e("v_lshlrev_b32 v14, 4, v14")
        A.e("v_and_b32 v15, 0x33, v13")
        A.e("v_bfe_u32 v5, v13, 2, 1")
        A.e("v_lshl_or_b32 v15, v5, 3, v15")
        A.e("v_bfe_u32 v5, v13, 3, 1")
        A.e("v_lshl_or_b32 v15, v5, 2, v15")
        A.e(f"v_mad_u32_u24 v{VWD+n}, v15, s27, v14")
        if n == 2:
            A.e(f"v_mov_b32 v12, {OOB}")
            A.e("v_cmp_gt_u32 vcc, 64, v13")
            A.e("s_nop 1")
            A.e(f"v_cndmask_b32 v{VWD+2}, v12, v{VWD+2}, vcc")
    for l in addr_setup_items(): A.e(l)
    A.e("s_waitcnt lgkmcnt(0)")
    A.e("s_mul_i32 s21, s54, 81920")
    srd(A, SA, PX, 81920, add="s21")
    A.e("s_mul_i32 s21, s23, 160")
    srd(A, SD, PWQ, "0", add="s21")
    A.e(f"s_sub_u32 s{SD+2}, 819200, s21")

def addr_setup_items(part="front"):
    T = Asm(); A = T
    A.e("s_lshl_b32 s21, s20, 4")
    A.e("v_add_u32 v12, s21, v2")
    A.e("v_lshlrev_b32 v12, 7, v12")
    A.e("v_and_b32 v13, 7, v2")
    A.e("v_xor_b32 v14, v13, v3")
    A.e(f"v_lshl_add_u32 v{VXF0}, v14, 4, v12")
    A.e("v_add_u32 v14, 4, v3")
    A.e("v_xor_b32 v14, v13, v14")
    A.e(f"v_lshl_add_u32 v{VXF1}, v14, 4, v12")
    A.e(f"v_add_u32 v{VXF0h}, 65536, v{VXF0}")
    A.e(f"v_add_u32 v{VXF1h}, 65536, v{VXF1}")
    A.e("v_lshrrev_b32 v12, 1, v3")
    A.e("v_lshlrev_b32 v12, 4, v12")
    A.e("v_and_b32 v13, 1, v3")
    A.e("v_lshl_add_u32 v12, v13, 2, v12")
    A.e("v_lshrrev_b32 v13, 2, v2")
    A.e("v_add_u32 v12, v12, v13")
    A.e("v_mul_u32_u24 v12, 160, v12")
    A.e("v_and_b32 v13, 3, v2")
    A.e(f"v_lshl_add_u32 v{VWT}, v13, 3, v12")
    A.e(f"v_add_u32 v{VWTh}, 65536, v{VWT}")
    A.e(f"v_add_u32 v{VWTh2}, 0x20000, v{VWT}")
    A.e("s_and_b32 s21, s20, 1")
    A.e("s_lshl_b32 s21, s21, 4")
    A.e("v_add_u32 v15, s21, v2          ; pos32")
    A.e("s_lshr_b32 s24, s20, 1")
    A.e("s_mul_i32 s24, s24, 1280")
    A.e(f"s_add_u32 s24, s24, {L_QL}")
    A.e("v_lshlrev_b32 v14, 3, v15        ; 8*pos32")
    A.e("v_add_u32 v14, s24, v14")
    A.e("v_lshlrev_b32 v13, 4, v3")
    A.e("v_and_b32 v13, 16, v13")
    A.e("v_cmp_lt_u32 vcc, 1, v3          ; g >= 2")
    for mt in range(5):
        cs = []; isb = []
        for g in range(4):
            c0 = 16*mt + 4*g; hl, d0 = divmod(c0, 20)
            if d0 < 16: cs.append(hl*2560 + ((d0 >> 2) & 1)*512 + (d0 >> 3)*8); isb.append(0)
            else: cs.append(hl*2560 + 1024); isb.append(1)
        enc = [c | (0 if b else 0x8000) for c, b in zip(cs, isb)]
        assert all(c < 0x8000 for c in cs)
        A.e(f"v_mov_b32 v12, {hex(enc[0] | (enc[1] << 16))}")
        A.e(f"v_mov_b32 v6, {hex(enc[2] | (enc[3] << 16))}")
        A.e("v_cndmask_b32 v12, v12, v6, vcc")
        A.e("v_lshrrev_b32 v12, v13, v12")
        A.e("v_bfe_u32 v6, v12, 15, 1")
        A.e("v_and_b32 v12, 0x7fff, v12")
        A.e("v_mul_u32_u24 v6, v6, v15")
        A.e("v_lshl_add_u32 v6, v6, 3, v14")
        A.e(f"v_add_u32 v{VQW+mt}, v6, v12")
    A.e(f"v_mov_b32 v{VQR}, v4")
    A.e("v_and_b32 v12, 31, v1")
    A.e("v_lshlrev_b32 v12, 3, v12")
    A.e(f"v_add_u32 v{VQRB}, 1024, v12")
    A.e(f"v_mov_b32 v12, {OOB}")
    A.e("v_lshlrev_b32 v5, 3, v1")
    A.e("v_cmp_gt_u32 vcc, 32, v1")
    A.e("v_and_b32 v13, 31, v1")
    A.e("s_nop 0")
    A.e("v_cndmask_b32 v5, v12, v5, vcc")
    A.e("v_cmp_gt_u32 vcc, 21, v13")
    A.e("s_nop 1")
    A.e("v_cndmask_b32 v8, v12, v4, vcc")
    if part == "front": return [x.strip() for x in T.lines if x.strip()]
    T.lines.clear()
    A.e(f"s_mul_i32 s21, s20, {6*PART}")
    A.e(f"v_add_u32 v{VRED}, s21, v4")
    A.e("v_and_b32 v13, 31, v1")
    A.e("v_mul_u32_u24 v13, 160, v13")
    A.e("v_lshrrev_b32 v14, 5, v1         ; h")
    A.e("v_lshl_add_u32 v13, v14, 3, v13")
    A.e("s_mul_i32 s24, s20, 40")
    A.e(f"v_add_u32 v{VOS}, s24, v13")
    A.e(f"v_mov_b32 v12, {L_DUMMY}")
    A.e(f"v_add_u32 v13, 32, v{VOS}")
    A.e("v_cmp_eq_u32 vcc, 0, v14")
    A.e(f"v_add_u32 v15, 5152, v{VOS}")
    A.e("s_nop 0")
    A.e(f"v_cndmask_b32 v{VOS2a}, v12, v13, vcc")
    A.e(f"v_cndmask_b32 v{VOS2b}, v12, v15, vcc")
    A.e("v_lshrrev_b32 v13, 4, v1")
    A.e("v_mul_u32_u24 v13, 0x5000, v13       ; (row >> 4) * 20480")
    A.e("v_and_b32 v14, 15, v1")
    A.e(f"v_lshl_add_u32 v{VOG}, v14, 4, v13")
    A.e("v_mul_u32_u24 v13, 160, v1")
    A.e("s_lshl_b32 s24, s20, 4")
    A.e(f"v_add_u32 v{VTID16}, s24, v13")
    A.e("s_lshl_b32 s21, s20, 4")
    A.e("s_movk_i32 s26, 2560")
    A.e("v_add_u32 v13, s21, v2")
    A.e("v_mul_u32_u24 v13, s26, v13")
    A.e(f"v_lshl_add_u32 v{VOUT}, v3, 3, v13")
    A.e("s_lshl_b32 s21, s20, 6")
    A.e("v_add_u32 v13, s21, v1")
    A.e("v_mul_u32_u24 v13, s26, v13")
    A.e("s_lshl_b32 s21, s33, 3")
    A.e(f"v_add_u32 v{VYO}, s21, v13")
    A.e("v_add_u32 v12, 1, v2")
    A.e("v_and_b32 v12, 1, v12            ; cp")
    A.e("v_sub_u32 v13, v2, v12")
    A.e("v_add_u32 v13, 9, v13")
    A.e("v_and_b32 v14, 1, v3")
    A.e("v_lshlrev_b32 v14, 3, v14        ; 8(g&1)")
    A.e("v_sub_u32 v13, v13, v14")
    A.e("v_lshrrev_b32 v15, 1, v3         ; g>>1")
    A.e("v_lshl_add_u32 v13, v15, 4, v13")
    A.e("v_lshlrev_b32 v13, 1, v13")
    A.e("v_xor_b32 v12, 1, v12")
    A.e(f"s_mov_b32 s24, {L_U0 - L_U1}")
    A.e("v_mul_lo_u32 v12, v12, s24")
    A.e("v_add_u32 v13, v13, v12")
    A.e(f"s_mul_i32 s21, s20, {CS}")
    A.e(f"s_add_u32 s24, s21, {L_U1}")
    A.e(f"v_add_u32 v{VCU}, s24, v13")
    A.e(f"v_add_u32 v{VUW}, s21, v4")
    A.e("v_lshlrev_b32 v13, 4, v2")
    A.e("v_sub_u32 v13, 2040, v13")
    A.e("v_lshl_add_u32 v13, v15, 4, v13")
    A.e("v_sub_u32 v13, v13, v14")
    A.e("v_lshlrev_b32 v13, 1, v13")
    A.e("s_mul_i32 s24, s20, 4608")
    A.e(f"s_add_u32 s24, s24, {L_KR-3584}")
    A.e(f"v_add_u32 v{VCK}, s24, v13")
    A.e("v_lshlrev_b32 v13, 5, v2")
    A.e("v_lshl_add_u32 v13, v3, 3, v13")
    A.e(f"s_mul_i32 s24, s20, {YSC}")
    A.e(f"s_add_u32 s24, s24, {L_YS}")
    A.e(f"v_add_u32 v{VYS}, s24, v13")
    A.e("v_and_b32 v13, 3, v2")
    A.e("v_lshlrev_b32 v13, 3, v13")
    A.e("v_lshl_add_u32 v13, v3, 5, v13")
    A.e("s_lshl_b32 s21, s20, 7")
    A.e("v_add_u32 v13, s21, v13")
    A.e("v_lshrrev_b32 v12, 2, v2")
    A.e(f"v_mul_u32_u24 v14, {YSC}, v12" if False else f"s_movk_i32 s24, {YSC}")
    A.e("v_mul_u32_u24 v14, s24, v12")
    A.e(f"v_add3_u32 v{VYT}, v14, v13, v13" if False else f"v_add_u32 v14, v14, v13")
    A.e(f"v_add_u32 v{VYT}, {L_YS}, v14")
    A.e(f"s_movk_i32 s24, {CS}")
    A.e("v_mul_u32_u24 v14, s24, v12")
    A.e("v_add_u32 v14, v14, v13")
    A.e(f"v_add_u32 v{VUT}, {L_U0+32}, v14")
    A.e("s_lshr_b32 s21, s20, 1")
    A.e("s_mul_i32 s21, s21, 8320")
    A.e(f"s_add_u32 s21, s21, {L_U0}")
    A.e("v_lshlrev_b32 v13, 5, v1")
    A.e(f"v_add_u32 v{VUR}, s21, v13")
    A.e("s_movk_i32 s26, 1280")
    A.e("v_mul_u32_u24 v13, s26, v1")
    A.e("s_lshl_b32 s21, s33, 3")
    A.e(f"v_add_u32 v{VUD}, s21, v13")
    A.e("s_lshl_b32 s21, s20, 11")
    A.e(f"s_add_u32 s21, s21, {L_U0+64}")
    A.e("v_lshlrev_b32 v13, 2, v1")
    A.e(f"v_add_u32 v{VUP}, s21, v13")
    return [x.strip() for x in T.lines if x.strip()]

def wdma_ring(c, base):
    L = []
    for n in range(3):
        g = []
        if n < 2:
            g += [f"s_add_u32 m0, s32, {base + 4096*n}", f"s_mov_b32 s38, {64*1280*c}" if n == 0 else "s_nop 0"]
        else:
            g += [f"s_add_u32 s39, s32, {base + 8192}", "s_cmp_lt_u32 s20, 2", f"s_cselect_b32 m0, s39, {L_DUMMY}", "s_nop 0"]
        g.append(f"buffer_load_dwordx4 v{VWD+n}, s[{SD}:{SD+3}], s38 offen lds")
        L.append(g)
    return L
def xdma(c, base, srd_=SA):
    return [[f"s_add_u32 m0, s31, {base}", f"s_movk_i32 s36, {128*c}",
             f"buffer_load_dwordx4 v{VXD0}, s[{srd_}:{srd_+3}], s36 offen lds"],
            [f"s_add_u32 m0, s31, {base+1024}", "s_nop 0",
             f"buffer_load_dwordx4 v{VXD1}, s[{srd_}:{srd_+3}], s36 offen lds"]]

GACC = 16; GWF = 36; GXF = [56, 60]
def gemm_rdX(kk, xb):
    ks = kk & 1
    if xb < 65536: a, o = (VXF0 if ks == 0 else VXF1), xb
    else: a, o = (VXF0h if ks == 0 else VXF1h), xb - 65536
    return It(f"ds_read_b128 {vr(GXF[kk & 1],4)}, v{a} offset:{o}", lds=f"x{kk}")
def gemm_rdW(kk, mt, wb):
    ks = kk & 1
    out = []
    for h in range(2):
        off = wb + (32*ks + 8*h)*160 + 32*mt
        a = VWT
        if off >= 131072: a, off = VWTh2, off - 131072
        elif off >= 65536: a, off = VWTh, off - 65536
        out.append(It(f"ds_read_b64_tr_b16 {vr(GWF+mt*4+h*2,2)}, v{a} offset:{off}", lds=f"w{kk}_{mt}"))
    return out
def gemm_need(kk, mt, xt):
    if mt == 0: return tuple(xt) + (f"w{kk}_0", f"w{kk}_1", f"w{kk}_2")
    if mt == 3: return (f"w{kk}_3", f"w{kk}_4")
    return ()
def gemm_mm(kk, mt):
    return It(f"v_mfma_f32_16x16x32_bf16 {vr(GACC+4*mt,4)}, {vr(GWF+mt*4,4)}, {vr(GXF[kk & 1],4)}, {vr(GACC+4*mt,4) if kk else '0'}",
              needl=gemm_need(kk, mt, (f"x{kk}",)), w=2)
def gemm_items(xbase, wbase, sync, loads=None):
    steps = []
    spread = list(loads(0)) if loads else []
    pre = list(sync(0)) + [gemm_rdX(0, xbase(0))]
    for mt in range(5): pre += gemm_rdW(0, mt, wbase(0))
    for kk in range(20):
        L = []
        c1 = (kk+1) >> 1
        boundary = (kk+1) & 1 == 0 and kk+1 < 20
        for mt in range(5):
            L.append(gemm_mm(kk, mt))
            if kk+1 < 20:
                if mt == 0:
                    if boundary:
                        L += spread; spread = []
                        L += list(sync(c1))
                        if loads: spread = list(loads(c1))
                    L.append(gemm_rdX(kk+1, xbase(c1)))
                L += gemm_rdW(kk+1, mt, wbase(c1))
            if spread and mt in (1, 2, 3): L.append(spread.pop(0))
        steps.append(L)
    assert not spread
    return pre, steps

def rho(s, b):
    if s == 0: return b
    q = b >> s; rem = b & ((1 << s)-1); half = 1 << (s-1)
    if rem > half or (rem == half and (q & 1)): q += 1
    return q << s
KACC = 64
RS = 528
def kgen_setup_lines():
    T = Asm(); A = T
    A.e("v_lshlrev_b32 v12, 2, v1          ; lane*4")
    A.e("s_lshl_b32 s24, s34, 8           ; d*256")
    A.e("v_add_u32 v13, s24, v12")
    for k, s in enumerate((PARE, PAIM, PBRE, PBIM, PCRE, PCIM)):
        A.e(f"global_load_dword v{104+k}, v13, s[{s}:{s+1}]")
    A.e("s_lshl_b32 s24, s34, 1")
    A.e("v_mov_b32 v14, s24")
    A.e(f"global_load_ushort v110, v14, s[{PLDT}:{PLDT+1}]")
    A.e(f"global_load_ushort v198, v14, s[{PDSK}:{PDSK+1}]")
    A.e(f"s_mul_i32 s21, s20, {KGW}")
    A.e(f"s_add_u32 s21, s21, {L_KG}")
    A.e("v_lshlrev_b32 v14, 3, v1            ; lane*8")
    A.e("v_add_u32 v196, s21, v14")
    A.e(f"v_add_u32 v197, {33*RS}, v196")
    for s in range(4):
        for mt in range(2):
            dst = 112 + 2*s + mt
            A.e(f"v_add_u32 v15, {16*mt}, v2          ; b")
            if s > 0:
                half = 1 << (s-1)
                A.e(f"v_bfe_u32 v12, v15, {s}, 1")
                A.e(f"v_add3_u32 v15, v15, v12, {half-1}")
                A.e(f"v_lshrrev_b32 v15, {s}, v15")
                A.e(f"v_lshlrev_b32 v15, {s}, v15")
            A.e(f"v_mul_u32_u24 v15, {RS}, v15")
            A.e(f"v_lshl_add_u32 v15, v3, 4, v15")
            A.e(f"v_add_u32 v{dst}, s21, v15")
    for s in range(1, 4):
        for b in range(32):
            half = 1 << (s-1)
            assert (((b + half - 1 + ((b >> s) & 1)) >> s) << s) == rho(s, b)
    A.e(f"v_mul_u32_u24 v15, {RS}, v2")
    A.e("v_lshl_add_u32 v15, v3, 4, v15")
    A.e(f"v_add_u32 v15, {33*RS}, v15")
    A.e("v_add_u32 v111, s21, v15")
    return [x.strip() for x in T.lines if x.strip()]

def kgen_parts():
    L = []
    a = lambda t, **k: L.append(It(t, **k))
    E1 = [120, 122]; E32 = [124, 126]
    C = [176, 178]; TM = [180, 182]
    PK = [184, 186]
    WC = [188, 190]
    a("v_lshlrev_b32 v110, 16, v110", needv=("kp",))
    a(f"v_mul_f32 v110, {hex(f2u(LOG2E))}, v110")
    a("v_exp_f32 v110, v110")
    a("s_nop 0")
    a("v_cvt_pk_bf16_f32 v110, v110, v110")
    a("v_lshlrev_b32 v110, 16, v110")
    for hf in range(2):
        for k in range(6):
            a(f"v_lshlrev_b32 v{176+k}, 16, v{104+k}" if hf == 0 else f"v_and_b32 v{176+k}, 0xffff0000, v{104+k}")
        ZR, ZI = 192, 193
        a(f"v_mul_f32 v{ZR}, v110, v176"); a(f"v_mul_f32 v{ZI}, v110, v177")
        a("v_mul_f32 v178, v110, v178"); a("v_mul_f32 v179, v110, v179")
        a(f"v_mul_f32 v{ZR}, {hex(f2u(LOG2E))}, v{ZR}"); a(f"v_mul_f32 v{ZI}, {hex(f2u(1/(2*math.pi)))}, v{ZI}")
        w = WC[hf]
        a(f"v_mul_f32 v{w}, v180, v178"); a(f"v_mul_f32 v{w+1}, v180, v179")
        a(f"v_fma_f32 v{w}, -v181, v179, v{w}"); a(f"v_fma_f32 v{w+1}, v181, v178, v{w+1}")
        for (m, dst) in ((1, E1[hf]), (32, E32[hf])):
            if m == 1:
                a(f"v_exp_f32 v182, v{ZR}"); a(f"v_fract_f32 v183, v{ZI}")
            else:
                lit = hex(f2u(float(m)))
                a(f"v_mul_f32 v182, {lit}, v{ZR}"); a(f"v_mul_f32 v183, {lit}, v{ZI}")
                a("v_exp_f32 v182, v182"); a("v_fract_f32 v183, v183")
            a("v_cos_f32 v194, v183"); a("v_sin_f32 v195, v183")
            a("s_nop 0")
            a(f"v_mul_f32 v{dst}, v182, v194"); a(f"v_mul_f32 v{dst+1}, v182, v195")
    for hf in range(2):
        a(f"v_mov_b32 v{C[hf]}, v{WC[hf]}"); a(f"v_mov_b32 v{C[hf]+1}, v{WC[hf]+1}")
    setup = L
    def cm(x, e, t):
        return (f"v_pk_mul_f32 v[{t}:{t+1}], v[{x}:{x+1}], v[{e}:{e+1}] op_sel:[0,0] op_sel_hi:[0,1]",
                f"v_pk_fma_f32 v[{x}:{x+1}], v[{x}:{x+1}], v[{e}:{e+1}], v[{t}:{t+1}] op_sel:[1,1,0] op_sel_hi:[1,0,1] neg_lo:[1,0,0]")
    rows = []
    def row(n, r, e, neg, waddr, stp, pre=()):
        pk = PK[n & 1]; sg = "-" if neg else ""
        R = [It(y) for y in pre]
        if stp: R += [It(cm(C[0], e[0], TM[0])[0]), It(cm(C[1], e[1], TM[1])[0])]
        R += [It(f"v_cvt_pk_bf16_f32 v{pk}, v{C[0]}, {sg}v{C[0]+1}"), It(f"v_cvt_pk_bf16_f32 v{pk+1}, v{C[1]}, {sg}v{C[1]+1}")]
        if stp: R += [It(cm(C[0], e[0], TM[0])[1]), It(cm(C[1], e[1], TM[1])[1])]
        R.append(It(f"ds_write_b64 v{waddr}, {vr(pk,2)} offset:{r*RS}", lds="kw"))
        rows.append(R)
    for j in range(33): row(j, j, E1, True, 196, j < 32)
    one = [f"v_mov_b32 v{C[0]}, 1.0", f"v_mov_b32 v{C[0]+1}, 0", f"v_mov_b32 v{C[1]}, 1.0", f"v_mov_b32 v{C[1]+1}, 0"]
    for nt in range(4):
        for r in range(16):
            row(33+16*nt+r, r, E32, False, 197, not (nt == 3 and r == 15), pre=(one if (nt == 0 and r == 0) else ()))
    BF = 224
    NS = 12
    def slot(n): return vr(16 + 4*(n % NS), 4)
    afr, bfr, mms = [], [], []
    for nt in range(4):
        variants = [(0,0),(0,1),(1,0),(1,1)] if nt == 0 else [((2 if nt == 1 else 3), 0), ((2 if nt == 1 else 3), 1)]
        tiles = [0,1,2,3] if nt == 0 else [2+2*nt, 3+2*nt]
        nv = len(variants); tot = 8*nv
        ra = []; mm = []
        def rd(n):
            ks, vi = divmod(n, nv); s_, mt = variants[vi]
            return It(f"ds_read_b128 {slot(n)}, v{112+2*s_+mt} offset:{64*ks}", lds=f"ka{nt}_{n}")
        for n in range(tot):
            ks, vi = divmod(n, nv)
            if n < NS: ra.append(rd(n))
            acc = KACC + 4*tiles[vi]
            mm.append(It(f"v_mfma_f32_16x16x32_bf16 {vr(acc,4)}, {slot(n)}, {ar(BF+4*ks,4)}, {vr(acc,4) if ks else '0'}",
                         needl=(f"kb{nt}_{ks}", f"ka{nt}_{n}"), w=2))
            if n + NS < tot: mm.append(rd(n + NS))
        afr.append(ra)
        bfr.append([It(f"ds_read_b128 {ar(BF+4*ks,4)}, v111 offset:{64*ks}", lds=f"kb{nt}_{ks}") for ks in range(8)])
        mms.append(mm)
    return setup, rows, afr, bfr, mms

def kgen_pack_lines():
    T = Asm(); A = T
    ACC = KACC
    A.e("v_lshlrev_b32 v198, 16, v198")
    A.e("v_cmp_eq_u32 vcc, 0, v1")
    A.e("s_nop 1")
    A.e("v_cndmask_b32 v198, 0, v198, vcc")
    A.e(f"v_add_f32 v{ACC}, v{ACC}, v198")
    A.e("v_cmp_gt_u32 vcc, 8, v2")
    A.e("s_nop 1")
    for i in range(8):
        A.e(f"v_cndmask_b32 v{ACC+i}, v{ACC+8+i}, v{ACC+i}, vcc")
    for nt in range(4):
        for mt in range(2):
            tile = mt if nt == 0 else 2+2*nt+mt
            acc = ACC + 4*tile
            b = 176 + 2*(nt*2+mt)
            A.e(f"v_cvt_pk_bf16_f32 v{b}, v{acc+3}, v{acc+2}")
            A.e(f"v_cvt_pk_bf16_f32 v{b+1}, v{acc+1}, v{acc}")
    return [x.strip() for x in T.lines if x.strip()]
def kgen_write_lines():
    T = Asm(); A = T
    A.e("s_mul_i32 s21, s20, 4608")
    A.e(f"s_add_u32 s21, s21, {L_KR}")
    A.e("v_lshlrev_b32 v15, 5, v2")
    A.e("v_lshl_add_u32 v15, v3, 2, v15    ; 32c + 4g")
    A.e("v_sub_u32 v15, 2044, v15")
    A.e("v_lshlrev_b32 v15, 1, v15")
    A.e(f"v_add_u32 v15, s21, v15")
    A.e(f"v_subrev_u32 v15, {(512*3+16)*2}, v15")
    for nt in range(4):
        for mt in range(2):
            b = 176 + 2*(nt*2+mt)
            A.e(f"ds_write_b64 v15, {vr(b,2)} offset:{(512*3+16)*2 - (512*nt+16*mt)*2}")
    A.e("v_mov_b32 v192, 0"); A.e("v_mov_b32 v193, 0")
    A.e("v_lshlrev_b32 v12, 3, v1")
    A.e(f"s_add_u32 s21, s21, 4096")
    A.e("v_add_u32 v12, s21, v12")
    A.e("ds_write_b64 v12, v[192:193]")
    return [x.strip() for x in T.lines if x.strip()]

def q_epilogue(A, q):
    A.e(f"s_mov_b32 s26, {hex(f2u(QSCALE))}")
    for mt in range(5):
        acc = GACC + 4*mt
        for i in range(4): A.e(f"v_mul_f32 v{acc+i}, s26, v{acc+i}")
        A.e(f"v_cvt_pk_bf16_f32 v{36+mt*2}, v{acc}, v{acc+1}")
        A.e(f"v_cvt_pk_bf16_f32 v{37+mt*2}, v{acc+2}, v{acc+3}")
        q.emit(It(f"ds_write_b64 v{VQW+mt}, {vr(36+mt*2,2)}", lds="qw"))

def weave_setup(A, q, setup, pro):
    safe = [i for i, l in enumerate(setup) if l.startswith("v_") and not l.startswith("v_cndmask") and i+1 < len(setup)
            and not setup[i+1].startswith("v_cndmask") and not setup[i+1].startswith("s_nop") and not l.startswith("v_cmp")
            and not setup[i+1].startswith("s_addc")]
    step = max(1, len(safe)//len(pro))
    pts = {safe[min(k*step, len(safe)-1)]: k for k in range(len(pro))}
    done = 0
    for i, l in enumerate(setup):
        A.e(l)
        if i in pts: q.emit(pro[pts[i]]); done += 1
    assert done == len(pro), (done, len(pro))

def X_items(c): return [It(g, vm=f"x{c}") for g in xdma(c, L_XR + 8192*c)]
def W_items(c): return [It(g, vm=f"w{c}") for g in wdma_ring(c, L_WR + WCH*(c % 4))]

def front(A, pfx):
    A.e("s_cmp_lt_u32 s53, 2")
    A.e(f"s_cbranch_scc1 {pfx}_kvpro")
    q = Q(A)
    q.run(X_items(0) + W_items(0))
    A.e(f"s_cmp_ge_u32 s3, {NCONV}")
    A.e(f"s_cbranch_scc1 {pfx}_nokp")
    for l in kgen_setup_lines(): A.e(l)
    A.label(f"{pfx}_nokp")
    if PREFETCH: prefetch(A, pfx + "a")
    for c in range(1, 4): q.run(X_items(c) + W_items(c))
    qcommon = q
    st(A)
    A.e(f"s_branch {pfx}_qgemm")
    A.label(f"{pfx}_kvpro")
    q = Q(A)
    A.e("s_cmp_eq_u32 s53, 0")
    A.e(f"s_cselect_b32 s24, s{PWK}, s{PWV}")
    A.e(f"s_cselect_b32 s25, s{PWK+1}, s{PWV+1}")
    A.e(f"s_mov_b32 s{SB}, s24"); A.e(f"s_mov_b32 s{SB+1}, s25"); A.e(f"s_mov_b32 s{SB+2}, 25600"); A.e(f"s_mov_b32 s{SB+3}, 0x20000")
    for i in range(7):
        if i < 6:
            A.e(f"s_add_u32 s28, s32, {4096*i}")
            A.e(f"s_add_u32 m0, s28, {L_WKV}")
            A.e("s_nop 0")
            A.e(f"buffer_load_dwordx4 v4, s[{SB}:{SB+3}], s28 offen lds")
        else:
            A.e("s_cmp_eq_u32 s20, 0")
            A.e(f"s_mov_b32 s29, {L_WKV + 24*1024}")
            A.e(f"s_cselect_b32 m0, s29, {L_DUMMY}")
            A.e(f"s_mov_b32 s30, 0x7fff0000")
            A.e(f"s_cselect_b32 s28, {24*1024}, s30")
            A.e(f"buffer_load_dwordx4 v4, s[{SB}:{SB+3}], s28 offen lds")
    for c in range(10): q.run(X_items(c))
    if PREFETCH: prefetch(A, pfx + "b")
    st(A)
    KV, KW, KX = 64, 72, [104, 108]
    A.e("v_lshrrev_b32 v12, 2, v2")
    A.e("v_lshl_add_u32 v12, v3, 3, v12")
    A.e("v_mul_u32_u24 v12, 40, v12")
    A.e("v_and_b32 v13, 3, v2")
    A.e("v_lshl_add_u32 v12, v13, 3, v12")
    A.e(f"v_add_u32 v176, {L_WKV}, v12")
    for i in range(8): A.e(f"v_mov_b32 v{KV+i}, 0")
    q.wait_v(("x0",))
    A.e("s_barrier")
    def rds(kk):
        c, ks = kk >> 1, kk & 1; b = kk & 1
        xb = L_XR + 8192*c
        a, o = ((VXF0 if ks == 0 else VXF1), xb) if xb < 65536 else ((VXF0h if ks == 0 else VXF1h), xb-65536)
        out = [It(f"ds_read_b128 {vr(KX[b],4)}, v{a} offset:{o}", lds=f"kx{kk}", needv=(f"x{c}",))]
        for m in range(2):
            for h in range(2):
                out.append(It(f"ds_read_b64_tr_b16 {vr(KW+8*b+4*m+2*h,2)}, v176 offset:{(32*kk + 4*h)*40 + 32*m}", lds=f"kw{kk}"))
        return out
    for variant in ("k", "v"):
        if variant == "k":
            A.e("s_cmp_eq_u32 s53, 0")
            A.e(f"s_cbranch_scc0 {pfx}_b_vpart")
        else:
            A.label(f"{pfx}_b_vpart")
        qq = Q(A); qq.vq = list(q.vq)
        qq.run(rds(0))
        wq_first = [x for c in range(4) for x in W_items(c)]
        for kk in range(20):
            if kk+1 < 20: qq.run(rds(kk+1))
            if kk >= 8: qq.emit(wq_first.pop(0))
            b = kk & 1
            for m in range(2):
                if variant == "k": t = f"v_mfma_f32_16x16x32_bf16 {vr(KV+4*m,4)}, {vr(KW+8*b+4*m,4)}, {vr(KX[b],4)}, {vr(KV+4*m,4)}"
                else: t = f"v_mfma_f32_16x16x32_bf16 {vr(KV+4*m,4)}, {vr(KX[b],4)}, {vr(KW+8*b+4*m,4)}, {vr(KV+4*m,4)}"
                qq.emit(It(t, needl=(f"kx{kk}", f"kw{kk}")))
        A.e("s_lshr_b32 s21, s20, 1")
        A.e("s_lshl_b32 s26, s54, 1")
        A.e("s_add_u32 s21, s21, s26          ; T")
        A.e("s_and_b32 s26, s20, 1            ; u")
        srd(A, SC, PWS, WS_VA + 64*2048)
        A.e(f"v_mov_b32 v19 , {OOB}".replace(" ,", ","))
        A.e("v_and_b32 v12, 1, v3             ; h (g&1)")
        A.e("v_cmp_gt_u32 vcc, 2, v3")
        A.e(f"v_cvt_pk_bf16_f32 v112, v{KV}, v{KV+1}")
        A.e(f"v_cvt_pk_bf16_f32 v113, v{KV+2}, v{KV+3}")
        A.e(f"v_cvt_pk_bf16_f32 v116, v{KV+4}, v{KV+5}")
        A.e(f"v_cvt_pk_bf16_f32 v117, v{KV+6}, v{KV+7}")
        if variant == "v":
            A.e("s_mov_b64 s[28:29], vcc")
            A.e("v_cmp_eq_u32 vcc, 4, v2")
            A.e("v_mov_b32 v13, 0x3f803f80")
            A.e("s_nop 0")
            A.e("v_cndmask_b32 v116, v116, v13, vcc")
            A.e("v_cndmask_b32 v117, v117, v13, vcc")
            A.e("s_mov_b64 vcc, s[28:29]")
        A.e("v_mov_b32 v120, v112"); A.e("v_mov_b32 v121, v113")
        A.e("v_mov_b32 v122, v116"); A.e("v_mov_b32 v123, v117")
        A.e("s_nop 1")
        A.e("v_permlane32_swap_b32 v120, v114")
        A.e("v_permlane32_swap_b32 v121, v115")
        A.e("v_permlane32_swap_b32 v122, v118")
        A.e("v_permlane32_swap_b32 v123, v119")
        if variant == "k":
            A.e("s_lshl_b32 s28, s26, 4")
            A.e("v_add_u32 v14, s28, v2           ; key32")
            A.e("v_lshl_add_u32 v15, v12, 5, v14")
            A.e("v_lshlrev_b32 v15, 4, v15")
            A.e("s_lshl_b32 s28, s21, 10")
            A.e(f"s_add_u32 s28, s28, {WS_KA}")
            A.e("v_add_u32 v15, s28, v15")
            A.e("v_cndmask_b32 v15, v19, v15, vcc")
            A.e(f"buffer_store_dwordx4 v[112:115], v15, s[{SC}:{SC+3}], 0 offen sc1")
            A.e("v_lshlrev_b32 v14, 3, v14")
            A.e("s_lshl_b32 s28, s21, 9")
            A.e(f"s_add_u32 s28, s28, {WS_KB}")
            A.e("v_add_u32 v14, s28, v14")
            A.e("v_cmp_eq_u32 vcc, 0, v3")
            A.e("s_nop 1")
            A.e("v_cndmask_b32 v14, v19, v14, vcc")
            A.e(f"buffer_store_dwordx2 v[116:117], v14, s[{SC}:{SC+3}], 0 offen sc1")
            A.e("s_lshl_b32 s28, s54, 7")
            A.e(f"s_add_u32 s28, s28, {WS_FLAG}")
            srd(A, SE_, PWS, 128, add="s28")
            A.e("v_lshlrev_b32 v14, 2, v0")
            A.e("v_mov_b32 v13, 0")
            A.e(f"buffer_store_dword v13, v14, s[{SE_}:{SE_+3}], 0 offen sc1")
        else:
            A.e("v_lshl_add_u32 v15, v12, 5, v2")
            A.e("v_lshlrev_b32 v15, 4, v15")
            A.e("s_lshl_b32 s28, s21, 11")
            A.e("s_lshl_b32 s29, s26, 10")
            A.e("s_add_u32 s28, s28, s29")
            A.e(f"s_add_u32 s28, s28, {WS_VA}")
            A.e("v_add_u32 v15, s28, v15")
            A.e("v_add_u32 v14, 256, v15")
            A.e("v_cndmask_b32 v15, v19, v15, vcc")
            A.e("v_cndmask_b32 v14, v19, v14, vcc")
            A.e(f"buffer_store_dwordx4 v[112:115], v15, s[{SC}:{SC+3}], 0 offen sc1")
            A.e("v_cmp_gt_u32 vcc, 5, v2")
            A.e("s_nop 1")
            A.e("v_cndmask_b32 v14, v19, v14, vcc")
            A.e(f"buffer_store_dwordx4 v[116:119], v14, s[{SC}:{SC+3}], 0 offen sc1")
        A.e("s_waitcnt vmcnt(0)")
        A.e("s_barrier")
        A.e("s_cmp_lg_u32 s20, 0")
        A.e(f"s_cbranch_scc1 {pfx}_b_nf{variant}")
        srd(A, SE_, PDBG, 256)
        A.e("s_lshl_b32 s28, s52, 2")
        A.e("v_mov_b32 v14, s28")
        A.e("v_mov_b32 v13, 1")
        A.e("s_mov_b64 exec, 1")
        A.e(f"buffer_store_dword v13, v14, s[{SE_}:{SE_+3}], 0 offen sc1")
        A.e("s_mov_b64 exec, -1")
        A.label(f"{pfx}_b_nf{variant}")
        if variant == "k": A.e(f"s_branch {pfx}_b_ownx")
    A.label(f"{pfx}_b_ownx")
    A.e("s_mul_i32 s21, s22, 81920")
    srd(A, SA, PX, 81920, add="s21")
    for c in range(4):
        for g in xdma(c, L_XR + 8192*c):
            for x in g: A.e(x)
    A.e("s_waitcnt vmcnt(0)")
    st(A)
    A.label(f"{pfx}_qgemm")
    q = qcommon
    def sync(c): return [It("s_barrier", needv=(f"x{c}", f"w{c}"))]
    def loads(c):
        L = []
        if c+4 < 10: L += X_items(c+4)
        if c >= 2 and c+2 < 10: L += W_items(c+2)
        return L
    pre, steps = gemm_items(lambda c: L_XR + 8192*c, lambda c: L_WR + WCH*(c % 4), sync, loads)
    q.run(pre)
    late = [It(x) for x in part_addr_lines() + addr_setup_items("late")]
    grp = []; cur = []
    for it in late:
        cur.append(it)
        t = it.txt[0]
        if not (t.startswith("v_cmp") or t.startswith("s_nop") or (len(cur) > 1 and cur[-2].txt[0].startswith("v_cmp"))
                or (len(cur) > 2 and cur[-3].txt[0].startswith("v_cmp")) or (len(cur) > 3 and cur[-4].txt[0].startswith("v_cmp"))):
            grp.append(It([y for c in cur for y in c.txt], w=len(cur))); cur = []
    if cur: grp.append(It([y for c in cur for y in c.txt], w=len(cur)))
    per = (len(grp) + 17)//18
    for kk in range(20):
        q.run(merge(steps[kk], grp[kk*per:(kk+1)*per]))
    q.all_l(); q.all_v()
    srd(A, SE_, PDBG, 256)
    A.e("v_lshlrev_b32 v12, 2, v1")
    A.e(f"buffer_load_dword v248, v12, s[{SE_}:{SE_+3}], 0 offen sc1")
    st(A)
    A.e("s_barrier")
    q_epilogue(A, q)
    A.e(f"s_mov_b32 s35, {SPIN_MAX}")
    A.label(f"{pfx}_kv_p")
    A.e("s_waitcnt vmcnt(0)")
    A.e("v_cmp_ne_u32 vcc, 0, v248")
    A.e("s_sub_u32 s35, s35, 1")
    A.e("s_cmp_eq_u32 s35, 0")
    A.e(f"s_cbranch_scc1 {pfx}_kv_d")
    A.e("s_cmp_eq_u64 vcc, -1")
    A.e(f"s_cbranch_scc1 {pfx}_kv_d")
    A.e("s_sleep 1")
    A.e(f"buffer_load_dword v248, v12, s[{SE_}:{SE_+3}], 0 offen sc1")
    A.e(f"s_branch {pfx}_kv_p")
    A.label(f"{pfx}_kv_d")
    A.e("s_waitcnt lgkmcnt(0)")
    A.e("s_barrier")
    st(A)

def poll(A, pfx, name, srd_, nl, cmpmask):
    A.e("s_cmp_lg_u32 s20, 0")
    A.e(f"s_cbranch_scc1 {pfx}_{name}_np")
    A.e("v_lshlrev_b32 v12, 2, v1")
    A.e(f"s_mov_b32 s35, {SPIN_MAX}")
    if nl < 64: A.e(f"s_mov_b64 exec, {hex((1 << nl)-1)}")
    A.label(f"{pfx}_{name}_p")
    A.e(f"buffer_load_dword v13, v12, s[{srd_}:{srd_+3}], 0 offen sc1")
    A.e("s_waitcnt vmcnt(0)")
    A.e("v_cmp_ne_u32 vcc, 0, v13")
    A.e("s_sub_u32 s35, s35, 1")
    A.e("s_cmp_eq_u32 s35, 0")
    A.e(f"s_cbranch_scc1 {pfx}_{name}_d")
    if nl == 64:
        A.e("s_cmp_eq_u64 vcc, -1")
    else:
        A.e(f"s_cmp_eq_u32 vcc_lo, {hex((1 << nl)-1)}")
    A.e(f"s_cbranch_scc1 {pfx}_{name}_d")
    A.e("s_sleep 1")
    A.e(f"s_branch {pfx}_{name}_p")
    A.label(f"{pfx}_{name}_d")
    if nl < 64: A.e("s_mov_b64 exec, -1")
    A.label(f"{pfx}_{name}_np")

PREF_K, PREF_V = 6, 5
def step(A, tau, t, first=False, last=False, fillers=None, pre=None):
    cur = S[t & 1]; nxt = S[(t+1) & 1]
    Pc = P[t & 1]; Pp = P[(t+1) & 1]
    par = tau & 1
    if t < NT-1: nt, ntau = t+1, tau
    else: nt, ntau = 0, tau+1
    do_next = not (last and t == NT-1)
    M1 = f"v_mfma_f32_32x32x16_bf16 {vr(nxt,16)}, {KAr(nt)}, {QAr(ntau)}, 0" if do_next else None
    M2 = f"v_mfma_f32_32x32x8_bf16 {vr(nxt,16)}, {KBr(nt)}, {QBr(ntau)}, {vr(nxt,16)}" if do_next else None
    if t == 0: pt, op, c0 = NT-1, O[par ^ 1], None
    else:
        pt, op = t-1, O[par]
        c0 = "0" if t == 1 else None
    if t == 0 and first: PV0p = PVp = None
    else:
        PV0p = f"v_mfma_f32_32x32x16_bf16 {vr(op,16)}, {VAr(pt,0)}, {vr(Pp,4)}, {c0 or vr(op,16)}"
        PVp = f"v_mfma_f32_32x32x16_bf16 {vr(op,16)}, {VAr(pt,1)}, {vr(Pp+4,4)}, {vr(op,16)}"
    E = lambda i: f"v_exp_f32 v{cur+i}, v{cur+i}"
    C = lambda i: f"v_cvt_pk_bf16_f32 v{Pc+i}, v{cur+2*i}, v{cur+2*i+1}"
    seq = [E(0), M1, E(1), E(2), C(0), E(3), E(4), PV0p, C(1), E(5), E(6), C(2), E(7), M2, E(8), C(3), E(9), E(10), C(4), E(11),
           PVp, E(12), C(5), E(13), E(14), E(15), C(6), C(7)]
    seq = [x for x in seq if x]
    groups = list(fillers or [])
    if groups:
        epos = [i for i, x in enumerate(seq) if x.startswith("v_exp")]
        flat = []
        for g in groups:
            if any(y.startswith("s_cbranch") for y in g) or any("exec" in y for y in g): flat.append(g)
            elif any("m0" in y for y in g): flat.append(g)
            else: flat += [[y] for y in g]
        n = len(flat); out = []; k = 0
        for i, x in enumerate(seq):
            out.append(x)
            if i in epos:
                want = ((epos.index(i)+1)*n + len(epos)-1)//len(epos) if True else 0
                while k < min(want, n):
                    out += flat[k]; k += 1
        for g in flat[k:]: out += g
        seq = out
    for x in (pre or []): A.e(x)
    for x in seq:
        if x.endswith(":"): A.label(x[:-1])
        else: A.e(x)

def part_addr_lines():
    L = ["s_lshl_b32 s29, s20, 1"]
    for tau in range(1, 7):
        slot_ = (-2 - ((tau-1) >> 1)) & 3
        for w in range(4):
            j = (2*w + 1 + tau) & 7
            assert slot_ == (w - (j >> 1) - 1) & 3
        L += [f"s_add_u32 s28, s29, {1+tau}", "s_and_b32 s28, s28, 7", f"s_mul_i32 s28, s28, {3*PART}",
              f"s_add_u32 s28, s28, {slot_*PART}", f"v_add_u32 v{VPA+tau-1}, s28, v4"]
    return L
def part_write(tau):
    par = (tau-1) & 1
    return [[f"ds_write_b128 v{VPA+tau-1}, {vr(O[par]+4*g,4)} offset:{1024*g}"] for g in range(3)]

def kv_load_groups():
    def ldK(t): return [[f"s_add_u32 s27, s44, {1024*t}", f"buffer_load_dwordx4 {KAr(t)}, v4, s[{SA}:{SA+3}], s27 offen"],
                        [f"s_add_u32 s28, s45, {512*t}", f"buffer_load_dwordx2 {KBr(t)}, v5, s[{SA}:{SA+3}], s28 offen"]]
    def ldV(t): return [[f"s_add_u32 s29, s46, {2048*t}", f"buffer_load_dwordx4 {VAr(t,0)}, v8, s[{SA}:{SA+3}], s29 offen"],
                        [f"buffer_load_dwordx4 {VAr(t,1)}, v8, s[{SA}:{SA+3}], s29 offen offset:1024"]]
    return ldK, ldV

def q_reads(A):
    for tau in range(8):
        A.e(f"v_mov_b32 v{132+6*tau}, 0"); A.e(f"v_mov_b32 v{133+6*tau}, 0")
    A.e("s_lshl_b32 s35, s20, 1")
    for tau in range(8):
        A.e(f"s_add_u32 s36, s35, {2+tau}")
        A.e("s_and_b32 s36, s36, 7")
        A.e("s_mul_i32 s36, s36, 1280")
        A.e(f"s_add_u32 s36, s36, {L_QL}")
        A.e(f"v_add_u32 v12, s36, v{VQR}")
        A.e(f"v_add_u32 v13, s36, v{VQRB}")
        A.e(f"ds_read_b128 {QAr(tau)}, v12")
        A.e("s_mov_b32 exec_hi, 0")
        A.e(f"ds_read_b64 {QBr(tau)}, v13")
        A.e("s_mov_b32 exec_hi, -1")

def late_setup(A):
    A.e("s_mul_i32 s21, s23, 160")
    srd(A, SD, PWO, "0", add="s21")
    A.e(f"s_sub_u32 s{SD+2}, 819200, s21")
    srd(A, SF, PU, 2048*1280)

def first_scores(A):
    A.e(f"v_mfma_f32_32x32x16_bf16 {vr(S[0],16)}, {KAr(0)}, {QAr(0)}, 0")
    A.e(f"v_mfma_f32_32x32x8_bf16 {vr(S[0],16)}, {KBr(0)}, {QBr(0)}, {vr(S[0],16)}")
    A.e("s_nop 7"); A.e("s_nop 3")

def kgen_phase(A, pfx):
    q = Q(A)
    ldK, ldV = kv_load_groups()
    kv = []
    for t in range(NT): kv += [It(g, vm="kv") for g in ldK(t) + ldV(t)]
    ksetup, rows, afr, bfr, mms = kgen_parts()
    q.vq = []
    q_reads(A)
    q.run([It(x.txt) for x in ksetup])
    due = {49: 0, 65: 1, 81: 2, 97: 3}
    arow = {}
    for nt, r0 in enumerate((36, 52, 68, 84)):
        for i, it in enumerate(afr[nt]): arow.setdefault(r0 + i, []).append(it)
    share = [26, 14, 14, 10]; k = 0
    for pos, R in enumerate(rows):
        q.run(R + arow.get(pos, []))
        if pos+1 in due:
            nt = due[pos+1]
            q.run(bfr[nt])
            L = kv[k:k+share[nt]]; k += share[nt]
            if nt == 2: A.e("s_waitcnt vmcnt(30)")
            q.run(L[:4])
            q.run(merge(mms[nt], L[4:]))
    assert k == len(kv)
    q.all_l()
    A.e("s_nop 7")
    st(A)
    for l in kgen_pack_lines(): A.e(l)
    A.e("s_barrier")
    for l in kgen_write_lines(): A.e(l)
    late_setup(A)
    A.e("v_mov_b32 v192, 0")
    A.e("s_and_b32 s21, s20, 1")
    A.e("s_mul_i32 s21, s21, 8320")
    A.e(f"s_add_u32 s21, s21, {L_U0}")
    A.e("v_and_b32 v12, 15, v1")
    A.e("v_lshlrev_b32 v12, 2, v12")
    A.e("v_lshrrev_b32 v13, 4, v1")
    A.e("v_and_b32 v13, 1, v13")
    A.e("v_mul_u32_u24 v13, 0x2040, v13        ; 8256")
    A.e("v_add3_u32 v12, v12, v13, s21")
    A.e("ds_write_b32 v12, v192")
    A.e("s_waitcnt vmcnt(0)")
    st(A)
    first_scores(A)
    for t in range(NT): step(A, 0, t, first=True)

def b_transition(A, pfx):
    ldK, ldV = kv_load_groups()
    PK, PVn = PREF_K, PREF_V
    for g in ldK(0) + ldV(0):
        for x in g: A.e(x)
    q_reads(A)
    for t in range(1, PK):
        for g in ldK(t):
            for x in g: A.e(x)
        if t < PVn:
            for g in ldV(t):
                for x in g: A.e(x)
    late_setup(A)
    A.e("s_waitcnt lgkmcnt(0)")
    A.e("s_barrier")
    order = ["K0", "V0"]
    for t in range(1, PK):
        order.append(f"K{t}")
        if t < PVn: order.append(f"V{t}")
    A.e(f"s_waitcnt vmcnt({2*(len(order)-1)})")
    st(A)
    first_scores(A)
    for t in range(NT):
        fl = []; need = []
        if t+1 < NT: need.append(f"K{t+1}")
        if t >= 1: need.append(f"V{t-1}")
        idx = max(order.index(x) for x in need)
        nout = 2*(len(order) - 1 - idx)
        if t == NT-1: nout = 0
        new = []
        if t+PK < NT: fl += ldK(t+PK); new.append(f"K{t+PK}")
        if t+PVn < NT: fl += ldV(t+PVn); new.append(f"V{t+PVn}")
        step(A, 0, t, first=True, fillers=fl, pre=[f"s_waitcnt vmcnt({nout})"])
        order += new

def attention(A, pfx):
    srd(A, SA, PWS, WS_VA + 64*2048)
    A.e("s_lshl_b32 s44, s20, 14          ; KA: T*1024")
    A.e(f"s_lshl_b32 s45, s20, 13         ; KB: T*512")
    A.e(f"s_add_u32 s45, s45, {WS_KB}")
    A.e("s_lshl_b32 s46, s20, 15          ; VA: T*2048")
    A.e(f"s_add_u32 s46, s46, {WS_VA}")
    A.e(f"s_cmp_ge_u32 s3, {NCONV}")
    A.e(f"s_cbranch_scc1 {pfx}_btr")
    kgen_phase(A, pfx)
    A.e(f"s_branch {pfx}_tau1")
    A.label(f"{pfx}_btr")
    b_transition(A, pfx)
    A.label(f"{pfx}_tau1")
    st(A)
    wl = []
    for c in range(8): wl += wdma_ring(c, BWchunk(c))
    def bg(n):
        L = []
        la, lb = f"{pfx}_bga{n}", f"{pfx}_bgb{n}"
        if n < 8:
            L += [f"s_cbranch_vccnz {la}", f"s_add_u32 s63, s61, {64*1280*n}",
                  f"buffer_load_dwordx2 {vr(176+2*n,2)}, v{VUD}, s[{SF}:{SF+3}], s63 offen", f"s_branch {lb}", la + ":"] + wl[n] + [lb + ":"]
        elif 12 <= n < 20:
            k = n - 12
            L += [f"s_cbranch_vccnz {la}"] + (["s_waitcnt vmcnt(0)"] if k == 0 else []) + \
                 [f"ds_write_b32 v{VUP}, v{176+2*k} offset:{256*k}", f"ds_write_b32 v{VUP}, v{177+2*k} offset:{8320+256*k}",
                  f"s_branch {lb}", la + ":"] + wl[n] + [lb + ":"]
        else:
            L += [f"s_cbranch_vccz {lb}"] + wl[n] + [lb + ":"]
        return L
    A.e(f"s_cmp_ge_u32 s3, {NCONV}")
    A.e("s_cselect_b64 vcc, -1, 0")
    A.e(f"s_mul_i32 s61, s20, {512*1280}")
    for tau in range(1, 8):
        for t in range(NT):
            fl = []
            if tau <= 6 and t in (3, 4, 6): fl += [part_write(tau)[(3, 4, 6).index(t)]]
            if tau <= 6 and t in (5, 8, 11, 14): fl += [bg((tau-1)*4 + (t-5)//3)]
            step(A, tau, t, last=(tau == 7), fillers=fl)
        st(A)
    A.e("s_nop 1")
    par = 1; Pp = P[(NT-1) & 1]
    A.e(f"v_mfma_f32_32x32x16_bf16 {vr(O[par],16)}, {VAr(NT-1,0)}, {vr(Pp,4)}, {vr(O[par],16)}")
    A.e(f"v_mfma_f32_32x32x16_bf16 {vr(O[par],16)}, {VAr(NT-1,1)}, {vr(Pp+4,4)}, {vr(O[par],16)}")
    A.e("s_waitcnt vmcnt(0) lgkmcnt(0)")
    A.e("s_barrier")
    st(A)

def reduce_publish(A, pfx):
    RB = 176 - 48
    RB = 128
    def rdpart(jj):
        for sl in range(3):
            for g in range(3):
                A.e(f"ds_read_b128 {vr(RB + (jj*3+sl)*12 + 4*g, 4)}, v{VRED} offset:{(jj*3+sl)*PART + 1024*g}")
    rdpart(0)
    srd(A, SC, PWS, 2048*1280, add=WS_O)
    for jj in range(2):
        Of = O[jj]
        A.e("s_waitcnt lgkmcnt(0)")
        if jj == 0: rdpart(1)
        for sl in range(3):
            for r in range(12): A.e(f"v_add_f32 v{Of+r}, v{Of+r}, v{RB+(jj*3+sl)*12+r}")
        A.e(f"v_mov_b32 v28, v{Of+8}")
        A.e(f"v_mov_b32 v29, v{Of+8}")
        A.e("s_nop 1")
        A.e("v_permlane32_swap_b32 v28, v29")
        A.e("s_nop 1")
        A.e("v_rcp_f32 v29, v29")
        A.e("s_nop 0")
        for r in range(12): A.e(f"v_mul_f32 v{16+r}, v{Of+r}, v29")
        for g in range(3):
            A.e(f"v_cvt_pk_bf16_f32 v{32+6*jj+2*g}, v{16+4*g}, v{17+4*g}")
            A.e(f"v_cvt_pk_bf16_f32 v{33+6*jj+2*g}, v{18+4*g}, v{19+4*g}")
    A.e("s_barrier")
    for jj in range(2):
        A.e(f"ds_write_b64 v{VOS}, {vr(32+6*jj,2)} offset:{5120*jj}")
        A.e(f"ds_write_b64 v{VOS}, {vr(34+6*jj,2)} offset:{5120*jj+16}")
        A.e(f"ds_write_b64 v{VOS2a if jj == 0 else VOS2b}, {vr(36+6*jj,2)}")
    for i in range(3):
        A.e("s_mul_i32 s24, s23, 10")
        A.e("s_add_u32 s24, s24, s20")
        if i: A.e(f"s_add_u32 s24, s24, {4*i}")
        A.e("s_lshr_b32 s25, s24, 2")
        A.e("s_lshl_b32 s25, s25, 10")
        A.e("s_and_b32 s24, s24, 3")
        A.e("s_lshl_b32 s24, s24, 8")
        A.e("s_add_u32 s24, s24, s25")
        A.e("s_mul_i32 s25, s22, 81920")
        A.e(f"s_add_u32 s{28+i}, s24, s25")
    A.e("s_waitcnt lgkmcnt(0)")
    A.e("s_barrier")
    for i in range(3):
        A.e(f"ds_read_b128 {vr(44+4*i,4)}, v{VTID16} offset:{64*i}")
    for i in range(2):
        A.e(f"s_waitcnt lgkmcnt({2-i})")
        A.e(f"buffer_store_dwordx4 {vr(44+4*i,4)}, v{VOG}, s[{SC}:{SC+3}], s{28+i} offen sc1")
    A.e("s_cmp_ge_u32 s20, 2")
    A.e(f"s_cbranch_scc1 {pfx}_no3rd")
    A.e("s_waitcnt lgkmcnt(0)")
    A.e(f"buffer_store_dwordx4 {vr(52,4)}, v{VOG}, s[{SC}:{SC+3}], s30 offen sc1")
    A.label(f"{pfx}_no3rd")
    A.e("s_waitcnt lgkmcnt(0)")
    A.e("s_lshl_b32 s21, s22, 7")
    A.e(f"s_add_u32 s21, s21, {WS_FLAG}")
    srd(A, SE_, PWS, 128, add="s21")
    A.e(f"s_cmp_ge_u32 s3, {NCONV}")
    A.e(f"s_cbranch_scc1 {pfx}_nouprep")
    u_prep(A)
    A.label(f"{pfx}_nouprep")
    A.e("s_waitcnt vmcnt(0)")
    A.e("s_barrier")
    A.e("s_cmp_lg_u32 s20, 0")
    A.e(f"s_cbranch_scc1 {pfx}_noflag")
    A.e("s_lshl_b32 s21, s23, 2")
    A.e("v_mov_b32 v12, s21")
    A.e("v_mov_b32 v13, 1")
    A.e("s_mov_b64 exec, 1")
    A.e(f"buffer_store_dword v13, v12, s[{SE_}:{SE_+3}], 0 offen sc1")
    A.e("s_mov_b64 exec, -1")
    A.label(f"{pfx}_noflag")
    st(A)

def u_prep(A):
    for ps in range(5):
        b = 64 + 10*ps
        A.e(f"ds_read_b128 {vr(b,4)}, v{VUR} offset:{2048*ps}")
        A.e(f"ds_read_b128 {vr(b+4,4)}, v{VUR} offset:{2048*ps+16}")
        A.e(f"ds_read_b32 v{b+8}, v{VUR} offset:{2048*ps+32}")
    A.e("s_and_b32 s21, s20, 1")
    A.e("s_cmp_eq_u32 s21, 0")
    A.e("s_mov_b32 s25, 0x07060302")
    A.e("s_cselect_b32 s26, 0x05040100, s25")
    A.e(f"v_add_u32 v12, {L_U0}, v{VUW}")
    A.e("s_waitcnt lgkmcnt(0)")
    A.e("s_barrier")
    for ps in range(5):
        b = 64 + 10*ps
        if ps == 4: A.e("s_mov_b64 exec, 15")
        o = 116 + 8*(ps & 1)
        for i in range(4): A.e(f"v_perm_b32 v{o+i}, v{b+2*i+1}, v{b+2*i}, s26")
        for i in range(4): A.e(f"v_perm_b32 v{o+4+i}, v{b+2*i+2}, v{b+2*i+1}, s26")
        A.e(f"ds_write_b128 v12, {vr(o,4)} offset:{1024*ps}")
        A.e(f"ds_write_b128 v{VUW}, {vr(o+4,4)} offset:{L_U1+1024*ps}")
        if ps == 4: A.e("s_mov_b64 exec, -1")

def conv_part(A, pfx):
    ACC = 16; AB = 64
    def Br(D, i): return ar(32*D + 4*i, 4)
    def Ar(c, i): return vr(AB + 32*(c & 1) + 4*i, 4)
    def Ahalf(c, i, h): return vr(AB + 32*(c & 1) + 4*i + 2*h, 2)
    srd(A, SH, POUT, 2048*2560)
    A.e("s_waitcnt lgkmcnt(0)")
    st(A)
    q = Q(A)
    def readsA(c):
        L = [It(f"v_add_u32 v11, {512*c}, v{VCU}")]
        for i in range(8):
            L.append(It(f"ds_read2_b32 {Ahalf(c,i,0)}, v11 offset0:{16*i} offset1:{16*i+1}", lds=f"a{c}_{i}"))
            L.append(It(f"ds_read2_b32 {Ahalf(c,i,1)}, v11 offset0:{16*i+2} offset1:{16*i+3}", lds=f"a{c}_{i}"))
        return L
    def readsB(D):
        return [It(f"ds_read_b128 {Br(D,i)}, v{VCK} offset:{512*(7-D)+64*i}", lds=f"b{D}_{i}") for i in range(8)]
    def mm(c, D, i):
        acc = ACC + 4*(c + D)
        first = (c == 0 and i == 0)
        return It(f"v_mfma_f32_16x16x32_bf16 {vr(acc,4)}, {Ar(c,i)}, {Br(D,i)}, {'0' if first else vr(acc,4)}", needl=(f"a{c}_{i}", f"b{D}_{i}"), w=2)
    def flush1(B):
        acc = ACC + 4*B; bo = (B & 1)*YSB
        return [It(f"v_cvt_pk_bf16_f32 v48, v{acc}, v{acc+1}"), It(f"v_cvt_pk_bf16_f32 v49, v{acc+2}, v{acc+3}"),
                It(f"ds_write_b64 v{VYS}, v[48:49] offset:{bo}", lds=f"yw{B}")]
    def flush2(B):
        bo = (B & 1)*YSB; r = 50 + 2*(B & 1)
        return [It("s_barrier", needl=(f"yw{B}",)),
                It(f"ds_read_b64_tr_b16 {vr(r,2)}, v{VYT} offset:{bo}", lds=f"yr{B}")]
    def flush3(B):
        r = 50 + 2*(B & 1)
        return [It([f"s_mov_b32 s28, {B*256*2560}", f"buffer_store_dwordx2 {vr(r,2)}, v{VYO}, s[{SH}:{SH+3}], s28 offen"], vm="Y", needl=(f"yr{B}",))]
    q.run(readsA(0) + readsB(0))
    for c in range(8):
        if c == 0:
            for D in range(8):
                M = [mm(0, D, i) for i in range(8)]
                R = readsB(D+1) if D < 7 else readsA(1)
                q.run(merge(M, R))
        else:
            M = [mm(c, D, i) for i in range(8) for D in range(8-c)]
            R = readsA(c+1) if c < 7 else []
            n = len(M); h1 = min(5, n); h2 = max(h1, n//2);
            q.run(M[:h1])
            if c == 7: A.e("s_nop 2")
            q.run(flush1(c-1))
            q.run(merge(M[h1:h2], R[:len(R)//2]))
            q.run(flush2(c-1))
            q.run(merge(M[h2:], R[len(R)//2:]))
            q.run(flush3(c-1))
        import os
        if Cfg.STAMP and os.environ.get("DETC") == "1": st(A); q.lq = []
    A.e("s_nop 7")
    q.run(flush1(7) + flush2(7) + flush3(7))
    st(A)
    finish(A)

BW0 = 73728
def BWchunk(c): return (BW0 + c*WCH) if c < 8 else (16704 + (c-8)*WCH)
BXBUF = [0, 8192, 37184, 37184+8192, 37184+16384, 37184+24576]

def finish(A):
    if Cfg.STAMP:
        A.e("s_waitcnt vmcnt(0)")
        st(A)
        A.e("s_mov_b32 s2, s3")
        stamp_out(A, PWS, 4, STAMP_BASE, VSTAMP, VSTMP)
    A.e("s_endpgm")

def outproj_b(A, pfx):
    A.e("s_mov_b32 s60, s22")
    A.e("s_sub_u32 s61, s22, 20")
    A.e("s_add_u32 s62, s61, 12")
    A.e("s_cmp_lt_u32 s62, 20")
    A.e("s_cselect_b32 s63, 3, 2")
    A.e("s_cselect_b32 s62, s62, s61")
    q = Q(A)
    for c in (8, 9): q.run([It(g, vm=f"W{c}") for g in wdma_ring(c, BWchunk(c))])
    srd(A, SE_, PWS, 32*128, add=WS_FLAG)
    def wait_flags(name, regs):
        nl = 8*len(regs)
        A.e("s_cmp_lg_u32 s20, 0")
        A.e(f"s_cbranch_scc1 {pfx}_{name}_np")
        A.e(f"v_mov_b32 v14, s{regs[0]}")
        if len(regs) > 1:
            A.e("v_lshrrev_b32 v13, 3, v1")
            A.e("v_cmp_eq_u32 vcc, 1, v13")
            A.e(f"v_mov_b32 v15, s{regs[1]}")
            A.e("s_nop 0")
            A.e("v_cndmask_b32 v14, v14, v15, vcc")
        A.e("v_and_b32 v12, 7, v1")
        A.e("v_lshlrev_b32 v12, 2, v12")
        A.e("v_lshl_add_u32 v12, v14, 7, v12")
        A.e(f"s_mov_b32 s35, {SPIN_MAX}")
        A.e(f"s_mov_b64 exec, {hex((1 << nl)-1)}")
        A.label(f"{pfx}_{name}_p")
        A.e(f"buffer_load_dword v13, v12, s[{SE_}:{SE_+3}], 0 offen sc1")
        A.e("s_waitcnt vmcnt(0)")
        A.e("v_cmp_ne_u32 vcc, 0, v13")
        A.e("s_sub_u32 s35, s35, 1")
        A.e("s_cmp_eq_u32 s35, 0")
        A.e(f"s_cbranch_scc1 {pfx}_{name}_d")
        A.e(f"s_cmp_eq_u32 vcc_lo, {hex((1 << nl)-1)}")
        A.e(f"s_cbranch_scc1 {pfx}_{name}_d")
        A.e("s_sleep 1")
        A.e(f"s_branch {pfx}_{name}_p")
        A.label(f"{pfx}_{name}_d")
        A.e("s_mov_b64 exec, -1")
        A.label(f"{pfx}_{name}_np")
        A.e("s_waitcnt vmcnt(0)")
        A.e("s_barrier")
    wait_flags("o", [60])
    q.vq = []
    st(A)
    srd(A, SA, PWS, 2048*1280, add=WS_O)
    srd(A, SC, POUT, 2048*2560)
    for t in range(3):
        A.e(f"s_lshl_b32 s21, s{60+t}, 2")
        A.e("s_add_u32 s21, s21, s20")
        A.e(f"s_mul_i32 s{56+t}, s21, 20480")
    ACC = [16, 36]; WF = 56
    def Xr(sl, kk): return ar(80*sl + 4*kk, 4)
    def xld(sl, t, kk):
        return It([f"s_add_u32 s36, s{56+t}, {1024*kk}", f"buffer_load_dwordx4 {Xr(sl, kk)}, v4, s[{SA}:{SA+3}], s36 offen"], vm=f"X{sl}_{kk}")
    def rdW(kk, mt):
        c, ks = kk >> 1, kk & 1; out = []
        for h in range(2):
            off = BWchunk(c) + (32*ks + 8*h)*160 + 32*mt
            a = VWT
            if off >= 131072: a, off = VWTh2, off - 131072
            elif off >= 65536: a, off = VWTh, off - 65536
            out.append(It(f"ds_read_b64_tr_b16 {vr(WF+mt*4+h*2,2)}, v{a} offset:{off}", lds=f"w{kk}_{mt}"))
        return out
    def pack(slot, base):
        for mt in range(5):
            acc = ACC[slot] + 4*mt
            r = base + 2*mt
            A.e(f"v_cvt_pk_bf16_f32 v{r}, v{acc}, v{acc+1}")
            A.e(f"v_cvt_pk_bf16_f32 v{r+1}, v{acc+2}, v{acc+3}")
    def store(base, t):
        A.e(f"s_mul_i32 s21, s{60+t}, 163840")
        A.e("s_add_u32 s21, s21, s55")
        for mt in range(5):
            q.emit(It(f"buffer_store_dwordx2 {vr(base+2*mt,2)}, v{VOUT}, s[{SC}:{SC+3}], s21 offen offset:{32*mt}", vm="S"))
    A.e("s_mul_i32 s55, s23, 160")
    A.e("s_add_u32 s55, s55, 1280")
    def run_pass(tiles):
        n = len(tiles)
        loads = [xld(sl, t, kk) for kk in range(20) for sl, t in enumerate(tiles)]
        ahead = 8*n
        q.run(loads[:ahead]); loads = loads[ahead:]
        for mt in range(5): q.run(rdW(0, mt))
        for kk in range(20):
            for mt in range(5):
                for sl in range(n):
                    nl = gemm_need(kk, mt, []) if sl == 0 else ()
                    nv = tuple(f"X{z}_{kk}" for z in range(n)) if (mt == 0 and sl == 0) else ()
                    q.emit(It(f"v_mfma_f32_16x16x32_bf16 {vr(ACC[sl]+4*mt,4)}, {vr(WF+4*mt,4)}, {Xr(sl, kk)}, {vr(ACC[sl]+4*mt,4) if kk else '0'}",
                              needl=nl, needv=nv))
                if loads and mt < n: q.emit(loads.pop(0))
                if kk+1 < 20: q.run(rdW(kk+1, mt))
        assert not loads
        q.all_l()
        A.e("s_nop 7")
    run_pass([0])
    pack(0, 92)
    store(92, 0)
    st(A)
    wait_flags("o2", [61, 62])
    q.vq = []
    st(A)
    A.e("s_cmp_eq_u32 s63, 2")
    A.e(f"s_cbranch_scc1 {pfx}_b2")
    q = Q(A)
    run_pass([1, 2])
    st(A)
    pack(0, 92); pack(1, 102)
    store(92, 1); store(102, 2)
    finish(A)
    A.label(f"{pfx}_b2")
    q = Q(A)
    run_pass([1])
    st(A)
    pack(0, 92)
    store(92, 1)
    finish(A)

def mega_role(A, pfx):
    prologue(A, pfx)
    front(A, pfx)
    attention(A, pfx)
    reduce_publish(A, pfx)
    A.e(f"s_cmp_ge_u32 s3, {NCONV}")
    A.e(f"s_cbranch_scc1 {pfx}_bback")
    conv_part(A, pfx)
    A.label(f"{pfx}_bback")
    outproj_b(A, pfx)
    A.label(f"{pfx}_end")
    A.e("s_endpgm")
```

```python
from common import *
from sched import *
import math
LOG2E = math.log2(math.e)
GBUF = 18432; GXB = 8192
L_KR = 73728
L_KG = 0; KGW = 25872
RA = 3
L_XR = 0; L_WKV = 81920; L_WR = 107520
L_QL = 104448
L_PART = 0; PART = 3072
L_U0 = 92160; CS = 4160
L_WA = 108800; WCH = 10240
L_DUMMY = 160000
L_U1 = 64; L_WB = 16704
L_YS = 16896; YSC = 576; YSB = 4*YSC
L_BAD = 161024
LDS_MEGA = 161088
def Wchunk(c): return (L_WA + c*WCH) if c < 5 else (L_WB + (c-5)*WCH)
XBUF = [L_KR, L_KR+8192, L_U0, L_U0+8192, L_U1, L_U1+8192]
WS_FLAG = 0x1100000
SPIN_MAX = 1 << 18
NCONV = 160
PU, PARE, PAIM, PBRE, PBIM, PCRE, PCIM, PLDT = 64, 66, 68, 70, 72, 74, 76, 78
PDSK, PX, PWQ, PWK, PWV, PWO, POUT, PDBG = 80, 82, 84, 86, 88, 90, 92, 94
PWS = 4
SA, SB, SC, SD, SE_, SF, SG, SH = 8, 12, 16, 40, 44, 48, 52, 56
VXD0, VXD1 = 200, 201
VWD = 202
VOUT = 205
VYO = 206
VOS, VOS2a, VOS2b = 207, 208, 209
VOG = 210
VTID16 = 213
VCU, VCK = 214, 215
VYS = 216
VYT, VUT = 217, 218
VUR = 219
VUW = 220
VRED = 221
VXF0, VXF1 = 222, 223
VWT = 224
VUD = 225
VQW = 226
VQR, VQRB = 231, 232
VXF0h, VXF1h, VWTh, VWTh2 = 233, 234, 235, 236
VUP = 237
VPA = 238
VSTAMP, VSTMP = 252, 253
S = [16, 32]; P = [48, 56]; O = [80, 96]; VW = 7; NT = 16
def QAr(tau): return vr(128+6*tau, 4)
def QBr(tau): return vr(132+6*tau, 2)
def KAr(t): return ar(4*t, 4)
def KBr(t): return ar(64+2*t, 2)
def VAr(t, u): return ar(96+8*t+4*u, 4)

def st(A): stamp(A, VSTAMP)

PREFETCH = True
CODE_BYTES = 80*1024
def prefetch(A, pfx):
    A.e("s_getpc_b64 s[24:25]")
    A.label(f"{pfx}_pc")
    A.e("s_lshr_b32 s26, s3, 3")
    A.e("s_lshl_b32 s26, s26, 2")
    A.e("s_add_u32 s26, s26, s20          ; slice 0..127")
    A.e("s_mul_i32 s26, s26, 768")
    A.e("v_min_u32 v12, 5, v1")
    A.e("v_lshlrev_b32 v12, 7, v12")
    A.e("v_add_u32 v12, s26, v12")
    A.e(f"v_min_u32 v12, mg_end-{pfx}_pc-4, v12")
    A.e("global_load_dword v249, v12, s[24:25]")
    A.e("s_lshl_b32 s26, s3, 2")
    A.e("s_add_u32 s26, s26, s20")
    A.e("s_lshl_b32 s26, s26, 6")
    A.e("v_add_u32 v12, s26, v1           ; slot")
    A.e("v_lshlrev_b32 v13, 7, v12")
    srd(A, SB, PX, 2048*1280)
    A.e(f"buffer_load_dword v250, v13, s[{SB}:{SB+3}], 0 offen")
    A.e("v_subrev_u32 v13, 0x280000, v13")
    srd(A, SB, PWQ, 819200)
    A.e(f"buffer_load_dword v251, v13, s[{SB}:{SB+3}], 0 offen")
def prologue(A, pfx):
    A.e("s_load_dwordx16 s[64:79], s[0:1], 0")
    A.e("s_load_dwordx16 s[80:95], s[0:1], 64")
    A.e(f"s_load_dwordx2 s[4:5], s[0:1], 128")
    stamp_init(A, VSTAMP); st(A)
    A.e("v_and_b32 v1, 63, v0")
    A.e("v_lshrrev_b32 v12, 6, v0")
    A.e("v_lshlrev_b32 v4, 4, v1          ; lane*16")
    A.e("v_readfirstlane_b32 s20, v12")
    A.e("v_and_b32 v2, 15, v1")
    A.e("v_lshrrev_b32 v3, 4, v1")
    A.e("s_mul_i32 s23, s3, 3277")
    A.e("s_lshr_b32 s23, s23, 16          ; w / 20")
    A.e("s_mul_i32 s22, s23, 20")
    A.e("s_sub_u32 s22, s3, s22           ; w % 20")
    A.e(f"s_sub_u32 s52, s3, {NCONV}        ; j")
    A.e("s_mul_i32 s24, s52, 5462")
    A.e("s_lshr_b32 s24, s24, 16          ; j / 12")
    A.e("s_mul_i32 s25, s24, 12")
    A.e("s_sub_u32 s25, s52, s25")
    A.e("s_add_u32 s25, s25, 20")
    A.e(f"s_cmp_ge_u32 s3, {NCONV}")
    A.e("s_cselect_b32 s22, s25, s22      ; rb")
    A.e("s_cselect_b32 s23, s24, s23      ; hg")
    A.e("s_lshr_b32 s53, s52, 5")
    A.e("s_min_u32 s53, s53, 2")
    A.e("s_cselect_b32 s53, s53, s53")
    A.e(f"s_cmp_lt_u32 s3, {NCONV}")
    A.e("s_cselect_b32 s53, 2, s53")
    A.e("s_and_b32 s54, s52, 31")
    A.e("s_cmp_lt_u32 s53, 2")
    A.e("s_cselect_b32 s54, s54, s22")
    A.e("s_lshl_b32 s32, s20, 10          ; wave*1024")
    A.e("s_lshl_b32 s31, s20, 11          ; wave*2048")
    A.e("s_and_b32 s33, s3, 7")
    A.e("s_mul_i32 s33, s33, 20")
    A.e("s_lshr_b32 s34, s3, 3")
    A.e("s_add_u32 s33, s33, s34")
    A.e("s_min_u32 s33, s33, 159")
    A.e("s_lshl_b32 s34, s33, 2")
    A.e("s_add_u32 s34, s34, s20          ; channel d")
    A.e("s_movk_i32 s27, 1280")
    A.e("v_lshrrev_b32 v12, 3, v1")
    A.e("v_and_b32 v13, 7, v1")
    A.e("v_xor_b32 v13, v13, v12")
    A.e("v_lshlrev_b32 v13, 4, v13")
    A.e("s_lshl_b32 s21, s20, 4")
    A.e("v_add_u32 v12, s21, v12")
    A.e(f"v_mad_u32_u24 v{VXD0}, v12, s27, v13")
    A.e(f"v_add_u32 v{VXD1}, 10240, v{VXD0}")
    A.e("s_mov_b32 s26, 6554")
    for n in range(3):
        A.e(f"s_add_u32 s21, s20, {4*n}")
        A.e("s_lshl_b32 s21, s21, 6")
        A.e("v_add_u32 v12, s21, v1          ; p")
        A.e("v_mul_u32_u24 v13, s26, v12")
        A.e("v_lshrrev_b32 v13, 16, v13      ; rho")
        A.e("v_mul_u32_u24 v14, 10, v13")
        A.e("v_sub_u32 v14, v12, v14         ; cc")
        A.e("v_lshlrev_b32 v14, 4, v14")
        A.e("v_and_b32 v15, 0x33, v13")
        A.e("v_bfe_u32 v5, v13, 2, 1")
        A.e("v_lshl_or_b32 v15, v5, 3, v15")
        A.e("v_bfe_u32 v5, v13, 3, 1")
        A.e("v_lshl_or_b32 v15, v5, 2, v15")
        A.e(f"v_mad_u32_u24 v{VWD+n}, v15, s27, v14")
        if n == 2:
            A.e(f"v_mov_b32 v12, {OOB}")
            A.e("v_cmp_gt_u32 vcc, 64, v13")
            A.e("s_nop 1")
            A.e(f"v_cndmask_b32 v{VWD+2}, v12, v{VWD+2}, vcc")
    for l in addr_setup_items(): A.e(l)
    A.e("s_waitcnt lgkmcnt(0)")
    A.e("s_mul_i32 s21, s54, 81920")
    srd(A, SA, PX, 81920, add="s21")
    A.e("s_mul_i32 s21, s23, 160")
    srd(A, SD, PWQ, "0", add="s21")
    A.e(f"s_sub_u32 s{SD+2}, 819200, s21")

def addr_setup_items(part="front"):
    T = Asm(); A = T
    A.e("s_lshl_b32 s21, s20, 4")
    A.e("v_add_u32 v12, s21, v2")
    A.e("v_lshlrev_b32 v12, 7, v12")
    A.e("v_and_b32 v13, 7, v2")
    A.e("v_xor_b32 v14, v13, v3")
    A.e(f"v_lshl_add_u32 v{VXF0}, v14, 4, v12")
    A.e("v_add_u32 v14, 4, v3")
    A.e("v_xor_b32 v14, v13, v14")
    A.e(f"v_lshl_add_u32 v{VXF1}, v14, 4, v12")
    A.e(f"v_add_u32 v{VXF0h}, 65536, v{VXF0}")
    A.e(f"v_add_u32 v{VXF1h}, 65536, v{VXF1}")
    A.e("v_lshrrev_b32 v12, 1, v3")
    A.e("v_lshlrev_b32 v12, 4, v12")
    A.e("v_and_b32 v13, 1, v3")
    A.e("v_lshl_add_u32 v12, v13, 2, v12")
    A.e("v_lshrrev_b32 v13, 2, v2")
    A.e("v_add_u32 v12, v12, v13")
    A.e("v_mul_u32_u24 v12, 160, v12")
    A.e("v_and_b32 v13, 3, v2")
    A.e(f"v_lshl_add_u32 v{VWT}, v13, 3, v12")
    A.e(f"v_add_u32 v{VWTh}, 65536, v{VWT}")
    A.e(f"v_add_u32 v{VWTh2}, 0x20000, v{VWT}")
    A.e("s_and_b32 s21, s20, 1")
    A.e("s_lshl_b32 s21, s21, 4")
    A.e("v_add_u32 v15, s21, v2          ; pos32")
    A.e("s_lshr_b32 s24, s20, 1")
    A.e("s_mul_i32 s24, s24, 1280")
    A.e(f"s_add_u32 s24, s24, {L_QL}")
    A.e("v_lshlrev_b32 v14, 3, v15        ; 8*pos32")
    A.e("v_add_u32 v14, s24, v14")
    A.e("v_lshlrev_b32 v13, 4, v3")
    A.e("v_and_b32 v13, 16, v13")
    A.e("v_cmp_lt_u32 vcc, 1, v3          ; g >= 2")
    for mt in range(5):
        cs = []; isb = []
        for g in range(4):
            c0 = 16*mt + 4*g; hl, d0 = divmod(c0, 20)
            if d0 < 16: cs.append(hl*2560 + ((d0 >> 2) & 1)*512 + (d0 >> 3)*8); isb.append(0)
            else: cs.append(hl*2560 + 1024); isb.append(1)
        enc = [c | (0 if b else 0x8000) for c, b in zip(cs, isb)]
        assert all(c < 0x8000 for c in cs)
        A.e(f"v_mov_b32 v12, {hex(enc[0] | (enc[1] << 16))}")
        A.e(f"v_mov_b32 v6, {hex(enc[2] | (enc[3] << 16))}")
        A.e("v_cndmask_b32 v12, v12, v6, vcc")
        A.e("v_lshrrev_b32 v12, v13, v12")
        A.e("v_bfe_u32 v6, v12, 15, 1")
        A.e("v_and_b32 v12, 0x7fff, v12")
        A.e("v_mul_u32_u24 v6, v6, v15")
        A.e("v_lshl_add_u32 v6, v6, 3, v14")
        A.e(f"v_add_u32 v{VQW+mt}, v6, v12")
    A.e(f"v_mov_b32 v{VQR}, v4")
    A.e("v_and_b32 v12, 31, v1")
    A.e("v_lshlrev_b32 v12, 3, v12")
    A.e(f"v_add_u32 v{VQRB}, 1024, v12")
    A.e(f"v_mov_b32 v12, {OOB}")
    A.e("v_lshlrev_b32 v5, 3, v1")
    A.e("v_cmp_gt_u32 vcc, 32, v1")
    A.e("v_and_b32 v13, 31, v1")
    A.e("s_nop 0")
    A.e("v_cndmask_b32 v5, v12, v5, vcc")
    A.e("v_cmp_gt_u32 vcc, 21, v13")
    A.e("s_nop 1")
    A.e("v_cndmask_b32 v8, v12, v4, vcc")
    if part == "front": return [x.strip() for x in T.lines if x.strip()]
    T.lines.clear()
    A.e(f"s_mul_i32 s21, s20, {6*PART}")
    A.e(f"v_add_u32 v{VRED}, s21, v4")
    A.e("v_and_b32 v13, 31, v1")
    A.e("v_mul_u32_u24 v13, 160, v13")
    A.e("v_lshrrev_b32 v14, 5, v1         ; h")
    A.e("v_lshl_add_u32 v13, v14, 3, v13")
    A.e("s_mul_i32 s24, s20, 40")
    A.e(f"v_add_u32 v{VOS}, s24, v13")
    A.e(f"v_mov_b32 v12, {L_DUMMY}")
    A.e(f"v_add_u32 v13, 32, v{VOS}")
    A.e("v_cmp_eq_u32 vcc, 0, v14")
    A.e(f"v_add_u32 v15, 5152, v{VOS}")
    A.e("s_nop 0")
    A.e(f"v_cndmask_b32 v{VOS2a}, v12, v13, vcc")
    A.e(f"v_cndmask_b32 v{VOS2b}, v12, v15, vcc")
    A.e("v_lshrrev_b32 v13, 4, v1")
    A.e("v_mul_u32_u24 v13, 0x5000, v13       ; (row >> 4) * 20480")
    A.e("v_and_b32 v14, 15, v1")
    A.e(f"v_lshl_add_u32 v{VOG}, v14, 4, v13")
    A.e("v_mul_u32_u24 v13, 160, v1")
    A.e("s_lshl_b32 s24, s20, 4")
    A.e(f"v_add_u32 v{VTID16}, s24, v13")
    A.e("s_lshl_b32 s21, s20, 4")
    A.e("s_movk_i32 s26, 2560")
    A.e("v_add_u32 v13, s21, v2")
    A.e("v_mul_u32_u24 v13, s26, v13")
    A.e(f"v_lshl_add_u32 v{VOUT}, v3, 3, v13")
    A.e("s_lshl_b32 s21, s20, 6")
    A.e("v_add_u32 v13, s21, v1")
    A.e("v_mul_u32_u24 v13, s26, v13")
    A.e("s_lshl_b32 s21, s33, 3")
    A.e(f"v_add_u32 v{VYO}, s21, v13")
    A.e("v_add_u32 v12, 1, v2")
    A.e("v_and_b32 v12, 1, v12            ; cp")
    A.e("v_sub_u32 v13, v2, v12")
    A.e("v_add_u32 v13, 9, v13")
    A.e("v_and_b32 v14, 1, v3")
    A.e("v_lshlrev_b32 v14, 3, v14        ; 8(g&1)")
    A.e("v_sub_u32 v13, v13, v14")
    A.e("v_lshrrev_b32 v15, 1, v3         ; g>>1")
    A.e("v_lshl_add_u32 v13, v15, 4, v13")
    A.e("v_lshlrev_b32 v13, 1, v13")
    A.e("v_xor_b32 v12, 1, v12")
    A.e(f"s_mov_b32 s24, {L_U0 - L_U1}")
    A.e("v_mul_lo_u32 v12, v12, s24")
    A.e("v_add_u32 v13, v13, v12")
    A.e(f"s_mul_i32 s21, s20, {CS}")
    A.e(f"s_add_u32 s24, s21, {L_U1}")
    A.e(f"v_add_u32 v{VCU}, s24, v13")
    A.e(f"v_add_u32 v{VUW}, s21, v4")
    A.e("v_lshlrev_b32 v13, 4, v2")
    A.e("v_sub_u32 v13, 2040, v13")
    A.e("v_lshl_add_u32 v13, v15, 4, v13")
    A.e("v_sub_u32 v13, v13, v14")
    A.e("v_lshlrev_b32 v13, 1, v13")
    A.e("s_mul_i32 s24, s20, 4608")
    A.e(f"s_add_u32 s24, s24, {L_KR-3584}")
    A.e(f"v_add_u32 v{VCK}, s24, v13")
    A.e("v_lshlrev_b32 v13, 5, v2")
    A.e("v_lshl_add_u32 v13, v3, 3, v13")
    A.e(f"s_mul_i32 s24, s20, {YSC}")
    A.e(f"s_add_u32 s24, s24, {L_YS}")
    A.e(f"v_add_u32 v{VYS}, s24, v13")
    A.e("v_and_b32 v13, 3, v2")
    A.e("v_lshlrev_b32 v13, 3, v13")
    A.e("v_lshl_add_u32 v13, v3, 5, v13")
    A.e("s_lshl_b32 s21, s20, 7")
    A.e("v_add_u32 v13, s21, v13")
    A.e("v_lshrrev_b32 v12, 2, v2")
    A.e(f"v_mul_u32_u24 v14, {YSC}, v12" if False else f"s_movk_i32 s24, {YSC}")
    A.e("v_mul_u32_u24 v14, s24, v12")
    A.e(f"v_add3_u32 v{VYT}, v14, v13, v13" if False else f"v_add_u32 v14, v14, v13")
    A.e(f"v_add_u32 v{VYT}, {L_YS}, v14")
    A.e(f"s_movk_i32 s24, {CS}")
    A.e("v_mul_u32_u24 v14, s24, v12")
    A.e("v_add_u32 v14, v14, v13")
    A.e(f"v_add_u32 v{VUT}, {L_U0+32}, v14")
    A.e("s_lshr_b32 s21, s20, 1")
    A.e("s_mul_i32 s21, s21, 8320")
    A.e(f"s_add_u32 s21, s21, {L_U0}")
    A.e("v_lshlrev_b32 v13, 5, v1")
    A.e(f"v_add_u32 v{VUR}, s21, v13")
    A.e("s_movk_i32 s26, 1280")
    A.e("v_mul_u32_u24 v13, s26, v1")
    A.e("s_lshl_b32 s21, s33, 3")
    A.e(f"v_add_u32 v{VUD}, s21, v13")
    A.e("s_lshl_b32 s21, s20, 11")
    A.e(f"s_add_u32 s21, s21, {L_U0+64}")
    A.e("v_lshlrev_b32 v13, 2, v1")
    A.e(f"v_add_u32 v{VUP}, s21, v13")
    return [x.strip() for x in T.lines if x.strip()]

def wdma_ring(c, base):
    L = []
    for n in range(3):
        g = []
        if n < 2:
            g += [f"s_add_u32 m0, s32, {base + 4096*n}", f"s_mov_b32 s38, {64*1280*c}" if n == 0 else "s_nop 0"]
        else:
            g += [f"s_add_u32 s39, s32, {base + 8192}", "s_cmp_lt_u32 s20, 2", f"s_cselect_b32 m0, s39, {L_DUMMY}", "s_nop 0"]
        g.append(f"buffer_load_dwordx4 v{VWD+n}, s[{SD}:{SD+3}], s38 offen lds")
        L.append(g)
    return L
def xdma(c, base, srd_=SA):
    return [[f"s_add_u32 m0, s31, {base}", f"s_movk_i32 s36, {128*c}",
             f"buffer_load_dwordx4 v{VXD0}, s[{srd_}:{srd_+3}], s36 offen lds"],
            [f"s_add_u32 m0, s31, {base+1024}", "s_nop 0",
             f"buffer_load_dwordx4 v{VXD1}, s[{srd_}:{srd_+3}], s36 offen lds"]]

GACC = 16; GWF = 36; GXF = [56, 60]
def gemm_rdX(kk, xb):
    ks = kk & 1
    if xb < 65536: a, o = (VXF0 if ks == 0 else VXF1), xb
    else: a, o = (VXF0h if ks == 0 else VXF1h), xb - 65536
    return It(f"ds_read_b128 {vr(GXF[kk & 1],4)}, v{a} offset:{o}", lds=f"x{kk}")
def gemm_rdW(kk, mt, wb):
    ks = kk & 1
    out = []
    for h in range(2):
        off = wb + (32*ks + 8*h)*160 + 32*mt
        a = VWT
        if off >= 131072: a, off = VWTh2, off - 131072
        elif off >= 65536: a, off = VWTh, off - 65536
        out.append(It(f"ds_read_b64_tr_b16 {vr(GWF+mt*4+h*2,2)}, v{a} offset:{off}", lds=f"w{kk}_{mt}"))
    return out
def gemm_need(kk, mt, xt):
    if mt == 0: return tuple(xt) + (f"w{kk}_0", f"w{kk}_1", f"w{kk}_2")
    if mt == 3: return (f"w{kk}_3", f"w{kk}_4")
    return ()
def gemm_mm(kk, mt):
    return It(f"v_mfma_f32_16x16x32_bf16 {vr(GACC+4*mt,4)}, {vr(GWF+mt*4,4)}, {vr(GXF[kk & 1],4)}, {vr(GACC+4*mt,4) if kk else '0'}",
              needl=gemm_need(kk, mt, (f"x{kk}",)), w=2)
def gemm_items(xbase, wbase, sync, loads=None):
    steps = []
    spread = list(loads(0)) if loads else []
    pre = list(sync(0)) + [gemm_rdX(0, xbase(0))]
    for mt in range(5): pre += gemm_rdW(0, mt, wbase(0))
    for kk in range(20):
        L = []
        c1 = (kk+1) >> 1
        boundary = (kk+1) & 1 == 0 and kk+1 < 20
        for mt in range(5):
            L.append(gemm_mm(kk, mt))
            if kk+1 < 20:
                if mt == 0:
                    if boundary:
                        L += spread; spread = []
                        L += list(sync(c1))
                        if loads: spread = list(loads(c1))
                    L.append(gemm_rdX(kk+1, xbase(c1)))
                L += gemm_rdW(kk+1, mt, wbase(c1))
            if spread and mt in (1, 2, 3): L.append(spread.pop(0))
        steps.append(L)
    assert not spread
    return pre, steps

def rho(s, b):
    if s == 0: return b
    q = b >> s; rem = b & ((1 << s)-1); half = 1 << (s-1)
    if rem > half or (rem == half and (q & 1)): q += 1
    return q << s
KACC = 64
RS = 528
def kgen_setup_lines():
    T = Asm(); A = T
    A.e("v_lshlrev_b32 v12, 2, v1          ; lane*4")
    A.e("s_lshl_b32 s24, s34, 8           ; d*256")
    A.e("v_add_u32 v13, s24, v12")
    for k, s in enumerate((PARE, PAIM, PBRE, PBIM, PCRE, PCIM)):
        A.e(f"global_load_dword v{104+k}, v13, s[{s}:{s+1}]")
    A.e("s_lshl_b32 s24, s34, 1")
    A.e("v_mov_b32 v14, s24")
    A.e(f"global_load_ushort v110, v14, s[{PLDT}:{PLDT+1}]")
    A.e(f"global_load_ushort v198, v14, s[{PDSK}:{PDSK+1}]")
    A.e(f"s_mul_i32 s21, s20, {KGW}")
    A.e(f"s_add_u32 s21, s21, {L_KG}")
    A.e("v_lshlrev_b32 v14, 3, v1            ; lane*8")
    A.e("v_add_u32 v196, s21, v14")
    A.e(f"v_add_u32 v197, {33*RS}, v196")
    for s in range(4):
        for mt in range(2):
            dst = 112 + 2*s + mt
            A.e(f"v_add_u32 v15, {16*mt}, v2          ; b")
            if s > 0:
                half = 1 << (s-1)
                A.e(f"v_bfe_u32 v12, v15, {s}, 1")
                A.e(f"v_add3_u32 v15, v15, v12, {half-1}")
                A.e(f"v_lshrrev_b32 v15, {s}, v15")
                A.e(f"v_lshlrev_b32 v15, {s}, v15")
            A.e(f"v_mul_u32_u24 v15, {RS}, v15")
            A.e(f"v_lshl_add_u32 v15, v3, 4, v15")
            A.e(f"v_add_u32 v{dst}, s21, v15")
    for s in range(1, 4):
        for b in range(32):
            half = 1 << (s-1)
            assert (((b + half - 1 + ((b >> s) & 1)) >> s) << s) == rho(s, b)
    A.e(f"v_mul_u32_u24 v15, {RS}, v2")
    A.e("v_lshl_add_u32 v15, v3, 4, v15")
    A.e(f"v_add_u32 v15, {33*RS}, v15")
    A.e("v_add_u32 v111, s21, v15")
    return [x.strip() for x in T.lines if x.strip()]

def kgen_parts():
    L = []
    a = lambda t, **k: L.append(It(t, **k))
    E1 = [120, 122]; E32 = [124, 126]
    C = [176, 178]; TM = [180, 182]
    PK = [184, 186]
    WC = [188, 190]
    a("v_lshlrev_b32 v110, 16, v110", needv=("kp",))
    a(f"v_mul_f32 v110, {hex(f2u(LOG2E))}, v110")
    a("v_exp_f32 v110, v110")
    a("s_nop 0")
    a("v_cvt_pk_bf16_f32 v110, v110, v110")
    a("v_lshlrev_b32 v110, 16, v110")
    for hf in range(2):
        for k in range(6):
            a(f"v_lshlrev_b32 v{176+k}, 16, v{104+k}" if hf == 0 else f"v_and_b32 v{176+k}, 0xffff0000, v{104+k}")
        ZR, ZI = 192, 193
        a(f"v_mul_f32 v{ZR}, v110, v176"); a(f"v_mul_f32 v{ZI}, v110, v177")
        a("v_mul_f32 v178, v110, v178"); a("v_mul_f32 v179, v110, v179")
        a(f"v_mul_f32 v{ZR}, {hex(f2u(LOG2E))}, v{ZR}"); a(f"v_mul_f32 v{ZI}, {hex(f2u(1/(2*math.pi)))}, v{ZI}")
        w = WC[hf]
        a(f"v_mul_f32 v{w}, v180, v178"); a(f"v_mul_f32 v{w+1}, v180, v179")
        a(f"v_fma_f32 v{w}, -v181, v179, v{w}"); a(f"v_fma_f32 v{w+1}, v181, v178, v{w+1}")
        for (m, dst) in ((1, E1[hf]), (32, E32[hf])):
            if m == 1:
                a(f"v_exp_f32 v182, v{ZR}"); a(f"v_fract_f32 v183, v{ZI}")
            else:
                lit = hex(f2u(float(m)))
                a(f"v_mul_f32 v182, {lit}, v{ZR}"); a(f"v_mul_f32 v183, {lit}, v{ZI}")
                a("v_exp_f32 v182, v182"); a("v_fract_f32 v183, v183")
            a("v_cos_f32 v194, v183"); a("v_sin_f32 v195, v183")
            a("s_nop 0")
            a(f"v_mul_f32 v{dst}, v182, v194"); a(f"v_mul_f32 v{dst+1}, v182, v195")
    for hf in range(2):
        a(f"v_mov_b32 v{C[hf]}, v{WC[hf]}"); a(f"v_mov_b32 v{C[hf]+1}, v{WC[hf]+1}")
    setup = L
    def cm(x, e, t):
        return (f"v_pk_mul_f32 v[{t}:{t+1}], v[{x}:{x+1}], v[{e}:{e+1}] op_sel:[0,0] op_sel_hi:[0,1]",
                f"v_pk_fma_f32 v[{x}:{x+1}], v[{x}:{x+1}], v[{e}:{e+1}], v[{t}:{t+1}] op_sel:[1,1,0] op_sel_hi:[1,0,1] neg_lo:[1,0,0]")
    rows = []
    def row(n, r, e, neg, waddr, stp, pre=()):
        pk = PK[n & 1]; sg = "-" if neg else ""
        R = [It(y) for y in pre]
        if stp: R += [It(cm(C[0], e[0], TM[0])[0]), It(cm(C[1], e[1], TM[1])[0])]
        R += [It(f"v_cvt_pk_bf16_f32 v{pk}, v{C[0]}, {sg}v{C[0]+1}"), It(f"v_cvt_pk_bf16_f32 v{pk+1}, v{C[1]}, {sg}v{C[1]+1}")]
        if stp: R += [It(cm(C[0], e[0], TM[0])[1]), It(cm(C[1], e[1], TM[1])[1])]
        R.append(It(f"ds_write_b64 v{waddr}, {vr(pk,2)} offset:{r*RS}", lds="kw"))
        rows.append(R)
    for j in range(33): row(j, j, E1, True, 196, j < 32)
    one = [f"v_mov_b32 v{C[0]}, 1.0", f"v_mov_b32 v{C[0]+1}, 0", f"v_mov_b32 v{C[1]}, 1.0", f"v_mov_b32 v{C[1]+1}, 0"]
    for nt in range(4):
        for r in range(16):
            row(33+16*nt+r, r, E32, False, 197, not (nt == 3 and r == 15), pre=(one if (nt == 0 and r == 0) else ()))
    BF = 224
    NS = 12
    def slot(n): return vr(16 + 4*(n % NS), 4)
    afr, bfr, mms = [], [], []
    for nt in range(4):
        variants = [(0,0),(0,1),(1,0),(1,1)] if nt == 0 else [((2 if nt == 1 else 3), 0), ((2 if nt == 1 else 3), 1)]
        tiles = [0,1,2,3] if nt == 0 else [2+2*nt, 3+2*nt]
        nv = len(variants); tot = 8*nv
        ra = []; mm = []
        def rd(n):
            ks, vi = divmod(n, nv); s_, mt = variants[vi]
            return It(f"ds_read_b128 {slot(n)}, v{112+2*s_+mt} offset:{64*ks}", lds=f"ka{nt}_{n}")
        for n in range(tot):
            ks, vi = divmod(n, nv)
            if n < NS: ra.append(rd(n))
            acc = KACC + 4*tiles[vi]
            mm.append(It(f"v_mfma_f32_16x16x32_bf16 {vr(acc,4)}, {slot(n)}, {ar(BF+4*ks,4)}, {vr(acc,4) if ks else '0'}",
                         needl=(f"kb{nt}_{ks}", f"ka{nt}_{n}"), w=2))
            if n + NS < tot: mm.append(rd(n + NS))
        afr.append(ra)
        bfr.append([It(f"ds_read_b128 {ar(BF+4*ks,4)}, v111 offset:{64*ks}", lds=f"kb{nt}_{ks}") for ks in range(8)])
        mms.append(mm)
    return setup, rows, afr, bfr, mms

def kgen_pack_lines():
    T = Asm(); A = T
    ACC = KACC
    A.e("v_lshlrev_b32 v198, 16, v198")
    A.e("v_cmp_eq_u32 vcc, 0, v1")
    A.e("s_nop 1")
    A.e("v_cndmask_b32 v198, 0, v198, vcc")
    A.e(f"v_add_f32 v{ACC}, v{ACC}, v198")
    A.e("v_cmp_gt_u32 vcc, 8, v2")
    A.e("s_nop 1")
    for i in range(8):
        A.e(f"v_cndmask_b32 v{ACC+i}, v{ACC+8+i}, v{ACC+i}, vcc")
    for nt in range(4):
        for mt in range(2):
            tile = mt if nt == 0 else 2+2*nt+mt
            acc = ACC + 4*tile
            b = 176 + 2*(nt*2+mt)
            A.e(f"v_cvt_pk_bf16_f32 v{b}, v{acc+3}, v{acc+2}")
            A.e(f"v_cvt_pk_bf16_f32 v{b+1}, v{acc+1}, v{acc}")
    return [x.strip() for x in T.lines if x.strip()]
def kgen_write_lines():
    T = Asm(); A = T
    A.e("s_mul_i32 s21, s20, 4608")
    A.e(f"s_add_u32 s21, s21, {L_KR}")
    A.e("v_lshlrev_b32 v15, 5, v2")
    A.e("v_lshl_add_u32 v15, v3, 2, v15    ; 32c + 4g")
    A.e("v_sub_u32 v15, 2044, v15")
    A.e("v_lshlrev_b32 v15, 1, v15")
    A.e(f"v_add_u32 v15, s21, v15")
    A.e(f"v_subrev_u32 v15, {(512*3+16)*2}, v15")
    for nt in range(4):
        for mt in range(2):
            b = 176 + 2*(nt*2+mt)
            A.e(f"ds_write_b64 v15, {vr(b,2)} offset:{(512*3+16)*2 - (512*nt+16*mt)*2}")
    A.e("v_mov_b32 v192, 0"); A.e("v_mov_b32 v193, 0")
    A.e("v_lshlrev_b32 v12, 3, v1")
    A.e(f"s_add_u32 s21, s21, 4096")
    A.e("v_add_u32 v12, s21, v12")
    A.e("ds_write_b64 v12, v[192:193]")
    return [x.strip() for x in T.lines if x.strip()]

def q_epilogue(A, q):
    A.e(f"s_mov_b32 s26, {hex(f2u(QSCALE))}")
    for mt in range(5):
        acc = GACC + 4*mt
        for i in range(4): A.e(f"v_mul_f32 v{acc+i}, s26, v{acc+i}")
        A.e(f"v_cvt_pk_bf16_f32 v{36+mt*2}, v{acc}, v{acc+1}")
        A.e(f"v_cvt_pk_bf16_f32 v{37+mt*2}, v{acc+2}, v{acc+3}")
        q.emit(It(f"ds_write_b64 v{VQW+mt}, {vr(36+mt*2,2)}", lds="qw"))

def weave_setup(A, q, setup, pro):
    safe = [i for i, l in enumerate(setup) if l.startswith("v_") and not l.startswith("v_cndmask") and i+1 < len(setup)
            and not setup[i+1].startswith("v_cndmask") and not setup[i+1].startswith("s_nop") and not l.startswith("v_cmp")
            and not setup[i+1].startswith("s_addc")]
    step = max(1, len(safe)//len(pro))
    pts = {safe[min(k*step, len(safe)-1)]: k for k in range(len(pro))}
    done = 0
    for i, l in enumerate(setup):
        A.e(l)
        if i in pts: q.emit(pro[pts[i]]); done += 1
    assert done == len(pro), (done, len(pro))

def X_items(c): return [It(g, vm=f"x{c}") for g in xdma(c, L_XR + 8192*c)]
def W_items(c): return [It(g, vm=f"w{c}") for g in wdma_ring(c, L_WR + WCH*(c % 4))]

def front(A, pfx):
    A.e("s_cmp_lt_u32 s53, 2")
    A.e(f"s_cbranch_scc1 {pfx}_kvpro")
    q = Q(A)
    q.run(X_items(0) + W_items(0))
    A.e(f"s_cmp_ge_u32 s3, {NCONV}")
    A.e(f"s_cbranch_scc1 {pfx}_nokp")
    for l in kgen_setup_lines(): A.e(l)
    A.label(f"{pfx}_nokp")
    if PREFETCH: prefetch(A, pfx + "a")
    for c in range(1, 4): q.run(X_items(c) + W_items(c))
    qcommon = q
    st(A)
    A.e(f"s_branch {pfx}_qgemm")
    A.label(f"{pfx}_kvpro")
    q = Q(A)
    A.e("s_cmp_eq_u32 s53, 0")
    A.e(f"s_cselect_b32 s24, s{PWK}, s{PWV}")
    A.e(f"s_cselect_b32 s25, s{PWK+1}, s{PWV+1}")
    A.e(f"s_mov_b32 s{SB}, s24"); A.e(f"s_mov_b32 s{SB+1}, s25"); A.e(f"s_mov_b32 s{SB+2}, 25600"); A.e(f"s_mov_b32 s{SB+3}, 0x20000")
    for i in range(7):
        if i < 6:
            A.e(f"s_add_u32 s28, s32, {4096*i}")
            A.e(f"s_add_u32 m0, s28, {L_WKV}")
            A.e("s_nop 0")
            A.e(f"buffer_load_dwordx4 v4, s[{SB}:{SB+3}], s28 offen lds")
        else:
            A.e("s_cmp_eq_u32 s20, 0")
            A.e(f"s_mov_b32 s29, {L_WKV + 24*1024}")
            A.e(f"s_cselect_b32 m0, s29, {L_DUMMY}")
            A.e(f"s_mov_b32 s30, 0x7fff0000")
            A.e(f"s_cselect_b32 s28, {24*1024}, s30")
            A.e(f"buffer_load_dwordx4 v4, s[{SB}:{SB+3}], s28 offen lds")
    for c in range(10): q.run(X_items(c))
    if PREFETCH: prefetch(A, pfx + "b")
    st(A)
    KV, KW, KX = 64, 72, [104, 108]
    A.e("v_lshrrev_b32 v12, 2, v2")
    A.e("v_lshl_add_u32 v12, v3, 3, v12")
    A.e("v_mul_u32_u24 v12, 40, v12")
    A.e("v_and_b32 v13, 3, v2")
    A.e("v_lshl_add_u32 v12, v13, 3, v12")
    A.e(f"v_add_u32 v176, {L_WKV}, v12")
    for i in range(8): A.e(f"v_mov_b32 v{KV+i}, 0")
    q.wait_v(("x0",))
    A.e("s_barrier")
    def rds(kk):
        c, ks = kk >> 1, kk & 1; b = kk & 1
        xb = L_XR + 8192*c
        a, o = ((VXF0 if ks == 0 else VXF1), xb) if xb < 65536 else ((VXF0h if ks == 0 else VXF1h), xb-65536)
        out = [It(f"ds_read_b128 {vr(KX[b],4)}, v{a} offset:{o}", lds=f"kx{kk}", needv=(f"x{c}",))]
        for m in range(2):
            for h in range(2):
                out.append(It(f"ds_read_b64_tr_b16 {vr(KW+8*b+4*m+2*h,2)}, v176 offset:{(32*kk + 4*h)*40 + 32*m}", lds=f"kw{kk}"))
        return out
    for variant in ("k", "v"):
        if variant == "k":
            A.e("s_cmp_eq_u32 s53, 0")
            A.e(f"s_cbranch_scc0 {pfx}_b_vpart")
        else:
            A.label(f"{pfx}_b_vpart")
        qq = Q(A); qq.vq = list(q.vq)
        qq.run(rds(0))
        wq_first = [x for c in range(4) for x in W_items(c)]
        for kk in range(20):
            if kk+1 < 20: qq.run(rds(kk+1))
            if kk >= 8: qq.emit(wq_first.pop(0))
            b = kk & 1
            for m in range(2):
                if variant == "k": t = f"v_mfma_f32_16x16x32_bf16 {vr(KV+4*m,4)}, {vr(KW+8*b+4*m,4)}, {vr(KX[b],4)}, {vr(KV+4*m,4)}"
                else: t = f"v_mfma_f32_16x16x32_bf16 {vr(KV+4*m,4)}, {vr(KX[b],4)}, {vr(KW+8*b+4*m,4)}, {vr(KV+4*m,4)}"
                qq.emit(It(t, needl=(f"kx{kk}", f"kw{kk}")))
        A.e("s_lshr_b32 s21, s20, 1")
        A.e("s_lshl_b32 s26, s54, 1")
        A.e("s_add_u32 s21, s21, s26          ; T")
        A.e("s_and_b32 s26, s20, 1            ; u")
        srd(A, SC, PWS, WS_VA + 64*2048)
        A.e(f"v_mov_b32 v19 , {OOB}".replace(" ,", ","))
        A.e("v_and_b32 v12, 1, v3             ; h (g&1)")
        A.e("v_cmp_gt_u32 vcc, 2, v3")
        A.e(f"v_cvt_pk_bf16_f32 v112, v{KV}, v{KV+1}")
        A.e(f"v_cvt_pk_bf16_f32 v113, v{KV+2}, v{KV+3}")
        A.e(f"v_cvt_pk_bf16_f32 v116, v{KV+4}, v{KV+5}")
        A.e(f"v_cvt_pk_bf16_f32 v117, v{KV+6}, v{KV+7}")
        if variant == "v":
            A.e("s_mov_b64 s[28:29], vcc")
            A.e("v_cmp_eq_u32 vcc, 4, v2")
            A.e("v_mov_b32 v13, 0x3f803f80")
            A.e("s_nop 0")
            A.e("v_cndmask_b32 v116, v116, v13, vcc")
            A.e("v_cndmask_b32 v117, v117, v13, vcc")
            A.e("s_mov_b64 vcc, s[28:29]")
        A.e("v_mov_b32 v120, v112"); A.e("v_mov_b32 v121, v113")
        A.e("v_mov_b32 v122, v116"); A.e("v_mov_b32 v123, v117")
        A.e("s_nop 1")
        A.e("v_permlane32_swap_b32 v120, v114")
        A.e("v_permlane32_swap_b32 v121, v115")
        A.e("v_permlane32_swap_b32 v122, v118")
        A.e("v_permlane32_swap_b32 v123, v119")
        if variant == "k":
            A.e("s_lshl_b32 s28, s26, 4")
            A.e("v_add_u32 v14, s28, v2           ; key32")
            A.e("v_lshl_add_u32 v15, v12, 5, v14")
            A.e("v_lshlrev_b32 v15, 4, v15")
            A.e("s_lshl_b32 s28, s21, 10")
            A.e(f"s_add_u32 s28, s28, {WS_KA}")
            A.e("v_add_u32 v15, s28, v15")
            A.e("v_cndmask_b32 v15, v19, v15, vcc")
            A.e(f"buffer_store_dwordx4 v[112:115], v15, s[{SC}:{SC+3}], 0 offen sc1")
            A.e("v_lshlrev_b32 v14, 3, v14")
            A.e("s_lshl_b32 s28, s21, 9")
            A.e(f"s_add_u32 s28, s28, {WS_KB}")
            A.e("v_add_u32 v14, s28, v14")
            A.e("v_cmp_eq_u32 vcc, 0, v3")
            A.e("s_nop 1")
            A.e("v_cndmask_b32 v14, v19, v14, vcc")
            A.e(f"buffer_store_dwordx2 v[116:117], v14, s[{SC}:{SC+3}], 0 offen sc1")
            A.e("s_lshl_b32 s28, s54, 7")
            A.e(f"s_add_u32 s28, s28, {WS_FLAG}")
            srd(A, SE_, PWS, 128, add="s28")
            A.e("v_lshlrev_b32 v14, 2, v0")
            A.e("v_mov_b32 v13, 0")
            A.e(f"buffer_store_dword v13, v14, s[{SE_}:{SE_+3}], 0 offen sc1")
        else:
            A.e("v_lshl_add_u32 v15, v12, 5, v2")
            A.e("v_lshlrev_b32 v15, 4, v15")
            A.e("s_lshl_b32 s28, s21, 11")
            A.e("s_lshl_b32 s29, s26, 10")
            A.e("s_add_u32 s28, s28, s29")
            A.e(f"s_add_u32 s28, s28, {WS_VA}")
            A.e("v_add_u32 v15, s28, v15")
            A.e("v_add_u32 v14, 256, v15")
            A.e("v_cndmask_b32 v15, v19, v15, vcc")
            A.e("v_cndmask_b32 v14, v19, v14, vcc")
            A.e(f"buffer_store_dwordx4 v[112:115], v15, s[{SC}:{SC+3}], 0 offen sc1")
            A.e("v_cmp_gt_u32 vcc, 5, v2")
            A.e("s_nop 1")
            A.e("v_cndmask_b32 v14, v19, v14, vcc")
            A.e(f"buffer_store_dwordx4 v[116:119], v14, s[{SC}:{SC+3}], 0 offen sc1")
        A.e("s_waitcnt vmcnt(0)")
        A.e("s_barrier")
        A.e("s_cmp_lg_u32 s20, 0")
        A.e(f"s_cbranch_scc1 {pfx}_b_nf{variant}")
        srd(A, SE_, PDBG, 256)
        A.e("s_lshl_b32 s28, s52, 2")
        A.e("v_mov_b32 v14, s28")
        A.e("v_mov_b32 v13, 1")
        A.e("s_mov_b64 exec, 1")
        A.e(f"buffer_store_dword v13, v14, s[{SE_}:{SE_+3}], 0 offen sc1")
        A.e("s_mov_b64 exec, -1")
        A.label(f"{pfx}_b_nf{variant}")
        if variant == "k": A.e(f"s_branch {pfx}_b_ownx")
    A.label(f"{pfx}_b_ownx")
    A.e("s_mul_i32 s21, s22, 81920")
    srd(A, SA, PX, 81920, add="s21")
    for c in range(4):
        for g in xdma(c, L_XR + 8192*c):
            for x in g: A.e(x)
    A.e("s_waitcnt vmcnt(0)")
    st(A)
    A.label(f"{pfx}_qgemm")
    q = qcommon
    def sync(c): return [It("s_barrier", needv=(f"x{c}", f"w{c}"))]
    def loads(c):
        L = []
        if c+4 < 10: L += X_items(c+4)
        if c >= 2 and c+2 < 10: L += W_items(c+2)
        return L
    pre, steps = gemm_items(lambda c: L_XR + 8192*c, lambda c: L_WR + WCH*(c % 4), sync, loads)
    q.run(pre)
    late = [It(x) for x in part_addr_lines() + addr_setup_items("late")]
    grp = []; cur = []
    for it in late:
        cur.append(it)
        t = it.txt[0]
        if not (t.startswith("v_cmp") or t.startswith("s_nop") or (len(cur) > 1 and cur[-2].txt[0].startswith("v_cmp"))
                or (len(cur) > 2 and cur[-3].txt[0].startswith("v_cmp")) or (len(cur) > 3 and cur[-4].txt[0].startswith("v_cmp"))):
            grp.append(It([y for c in cur for y in c.txt], w=len(cur))); cur = []
    if cur: grp.append(It([y for c in cur for y in c.txt], w=len(cur)))
    per = (len(grp) + 17)//18
    for kk in range(20):
        q.run(merge(steps[kk], grp[kk*per:(kk+1)*per]))
    q.all_l(); q.all_v()
    srd(A, SE_, PDBG, 256)
    A.e("v_lshlrev_b32 v12, 2, v1")
    A.e(f"buffer_load_dword v248, v12, s[{SE_}:{SE_+3}], 0 offen sc1")
    st(A)
    A.e("s_barrier")
    q_epilogue(A, q)
    A.e(f"s_mov_b32 s35, {SPIN_MAX}")
    A.label(f"{pfx}_kv_p")
    A.e("s_waitcnt vmcnt(0)")
    A.e("v_cmp_ne_u32 vcc, 0, v248")
    A.e("s_sub_u32 s35, s35, 1")
    A.e("s_cmp_eq_u32 s35, 0")
    A.e(f"s_cbranch_scc1 {pfx}_kv_d")
    A.e("s_cmp_eq_u64 vcc, -1")
    A.e(f"s_cbranch_scc1 {pfx}_kv_d")
    A.e("s_sleep 1")
    A.e(f"buffer_load_dword v248, v12, s[{SE_}:{SE_+3}], 0 offen sc1")
    A.e(f"s_branch {pfx}_kv_p")
    A.label(f"{pfx}_kv_d")
    A.e("s_waitcnt lgkmcnt(0)")
    A.e("s_barrier")
    st(A)

def poll(A, pfx, name, srd_, nl, cmpmask):
    A.e("s_cmp_lg_u32 s20, 0")
    A.e(f"s_cbranch_scc1 {pfx}_{name}_np")
    A.e("v_lshlrev_b32 v12, 2, v1")
    A.e(f"s_mov_b32 s35, {SPIN_MAX}")
    if nl < 64: A.e(f"s_mov_b64 exec, {hex((1 << nl)-1)}")
    A.label(f"{pfx}_{name}_p")
    A.e(f"buffer_load_dword v13, v12, s[{srd_}:{srd_+3}], 0 offen sc1")
    A.e("s_waitcnt vmcnt(0)")
    A.e("v_cmp_ne_u32 vcc, 0, v13")
    A.e("s_sub_u32 s35, s35, 1")
    A.e("s_cmp_eq_u32 s35, 0")
    A.e(f"s_cbranch_scc1 {pfx}_{name}_d")
    if nl == 64:
        A.e("s_cmp_eq_u64 vcc, -1")
    else:
        A.e(f"s_cmp_eq_u32 vcc_lo, {hex((1 << nl)-1)}")
    A.e(f"s_cbranch_scc1 {pfx}_{name}_d")
    A.e("s_sleep 1")
    A.e(f"s_branch {pfx}_{name}_p")
    A.label(f"{pfx}_{name}_d")
    if nl < 64: A.e("s_mov_b64 exec, -1")
    A.label(f"{pfx}_{name}_np")

PREF_K, PREF_V = 6, 5
def step(A, tau, t, first=False, last=False, fillers=None, pre=None):
    cur = S[t & 1]; nxt = S[(t+1) & 1]
    Pc = P[t & 1]; Pp = P[(t+1) & 1]
    par = tau & 1
    if t < NT-1: nt, ntau = t+1, tau
    else: nt, ntau = 0, tau+1
    do_next = not (last and t == NT-1)
    M1 = f"v_mfma_f32_32x32x16_bf16 {vr(nxt,16)}, {KAr(nt)}, {QAr(ntau)}, 0" if do_next else None
    M2 = f"v_mfma_f32_32x32x8_bf16 {vr(nxt,16)}, {KBr(nt)}, {QBr(ntau)}, {vr(nxt,16)}" if do_next else None
    if t == 0: pt, op, c0 = NT-1, O[par ^ 1], None
    else:
        pt, op = t-1, O[par]
        c0 = "0" if t == 1 else None
    if t == 0 and first: PV0p = PVp = None
    else:
        PV0p = f"v_mfma_f32_32x32x16_bf16 {vr(op,16)}, {VAr(pt,0)}, {vr(Pp,4)}, {c0 or vr(op,16)}"
        PVp = f"v_mfma_f32_32x32x16_bf16 {vr(op,16)}, {VAr(pt,1)}, {vr(Pp+4,4)}, {vr(op,16)}"
    E = lambda i: f"v_exp_f32 v{cur+i}, v{cur+i}"
    C = lambda i: f"v_cvt_pk_bf16_f32 v{Pc+i}, v{cur+2*i}, v{cur+2*i+1}"
    seq = [E(0), M1, E(1), E(2), C(0), E(3), E(4), PV0p, C(1), E(5), E(6), C(2), E(7), M2, E(8), C(3), E(9), E(10), C(4), E(11),
           PVp, E(12), C(5), E(13), E(14), E(15), C(6), C(7)]
    seq = [x for x in seq if x]
    groups = list(fillers or [])
    if groups:
        epos = [i for i, x in enumerate(seq) if x.startswith("v_exp")]
        flat = []
        for g in groups:
            if any(y.startswith("s_cbranch") for y in g) or any("exec" in y for y in g): flat.append(g)
            elif any("m0" in y for y in g): flat.append(g)
            else: flat += [[y] for y in g]
        n = len(flat); out = []; k = 0
        for i, x in enumerate(seq):
            out.append(x)
            if i in epos:
                want = ((epos.index(i)+1)*n + len(epos)-1)//len(epos) if True else 0
                while k < min(want, n):
                    out += flat[k]; k += 1
        for g in flat[k:]: out += g
        seq = out
    for x in (pre or []): A.e(x)
    for x in seq:
        if x.endswith(":"): A.label(x[:-1])
        else: A.e(x)

def part_addr_lines():
    L = ["s_lshl_b32 s29, s20, 1"]
    for tau in range(1, 7):
        slot_ = (-2 - ((tau-1) >> 1)) & 3
        for w in range(4):
            j = (2*w + 1 + tau) & 7
            assert slot_ == (w - (j >> 1) - 1) & 3
        L += [f"s_add_u32 s28, s29, {1+tau}", "s_and_b32 s28, s28, 7", f"s_mul_i32 s28, s28, {3*PART}",
              f"s_add_u32 s28, s28, {slot_*PART}", f"v_add_u32 v{VPA+tau-1}, s28, v4"]
    return L
def part_write(tau):
    par = (tau-1) & 1
    return [[f"ds_write_b128 v{VPA+tau-1}, {vr(O[par]+4*g,4)} offset:{1024*g}"] for g in range(3)]

def kv_load_groups():
    def ldK(t): return [[f"s_add_u32 s27, s44, {1024*t}", f"buffer_load_dwordx4 {KAr(t)}, v4, s[{SA}:{SA+3}], s27 offen"],
                        [f"s_add_u32 s28, s45, {512*t}", f"buffer_load_dwordx2 {KBr(t)}, v5, s[{SA}:{SA+3}], s28 offen"]]
    def ldV(t): return [[f"s_add_u32 s29, s46, {2048*t}", f"buffer_load_dwordx4 {VAr(t,0)}, v8, s[{SA}:{SA+3}], s29 offen"],
                        [f"buffer_load_dwordx4 {VAr(t,1)}, v8, s[{SA}:{SA+3}], s29 offen offset:1024"]]
    return ldK, ldV

def q_reads(A):
    A.e(f"v_mov_b32 v12, {L_BAD}")
    A.e("v_mov_b32 v13, 0")
    A.e("ds_write_b32 v12, v13")
    for tau in range(8):
        A.e(f"v_mov_b32 v{132+6*tau}, 0"); A.e(f"v_mov_b32 v{133+6*tau}, 0")
    A.e("s_lshl_b32 s35, s20, 1")
    for tau in range(8):
        A.e(f"s_add_u32 s36, s35, {2+tau}")
        A.e("s_and_b32 s36, s36, 7")
        A.e("s_mul_i32 s36, s36, 1280")
        A.e(f"s_add_u32 s36, s36, {L_QL}")
        A.e(f"v_add_u32 v12, s36, v{VQR}")
        A.e(f"v_add_u32 v13, s36, v{VQRB}")
        A.e(f"ds_read_b128 {QAr(tau)}, v12")
        A.e("s_mov_b32 exec_hi, 0")
        A.e(f"ds_read_b64 {QBr(tau)}, v13")
        A.e("s_mov_b32 exec_hi, -1")

def late_setup(A):
    A.e("s_mul_i32 s21, s23, 160")
    srd(A, SD, PWO, "0", add="s21")
    A.e(f"s_sub_u32 s{SD+2}, 819200, s21")
    srd(A, SF, PU, 2048*1280)

def first_scores(A):
    A.e(f"v_mfma_f32_32x32x16_bf16 {vr(S[0],16)}, {KAr(0)}, {QAr(0)}, 0")
    A.e(f"v_mfma_f32_32x32x8_bf16 {vr(S[0],16)}, {KBr(0)}, {QBr(0)}, {vr(S[0],16)}")
    A.e("s_nop 7"); A.e("s_nop 3")

def kgen_phase(A, pfx):
    q = Q(A)
    ldK, ldV = kv_load_groups()
    kv = []
    for t in range(NT): kv += [It(g, vm="kv") for g in ldK(t) + ldV(t)]
    ksetup, rows, afr, bfr, mms = kgen_parts()
    q.vq = []
    q_reads(A)
    q.run([It(x.txt) for x in ksetup])
    due = {49: 0, 65: 1, 81: 2, 97: 3}
    arow = {}
    for nt, r0 in enumerate((36, 52, 68, 84)):
        for i, it in enumerate(afr[nt]): arow.setdefault(r0 + i, []).append(it)
    share = [26, 14, 14, 10]; k = 0
    for pos, R in enumerate(rows):
        q.run(R + arow.get(pos, []))
        if pos+1 in due:
            nt = due[pos+1]
            q.run(bfr[nt])
            L = kv[k:k+share[nt]]; k += share[nt]
            if nt == 2: A.e("s_waitcnt vmcnt(30)")
            q.run(L[:4])
            q.run(merge(mms[nt], L[4:]))
    assert k == len(kv)
    q.all_l()
    A.e("s_nop 7")
    st(A)
    for l in kgen_pack_lines(): A.e(l)
    A.e("s_barrier")
    for l in kgen_write_lines(): A.e(l)
    late_setup(A)
    A.e("v_mov_b32 v192, 0")
    A.e("s_and_b32 s21, s20, 1")
    A.e("s_mul_i32 s21, s21, 8320")
    A.e(f"s_add_u32 s21, s21, {L_U0}")
    A.e("v_and_b32 v12, 15, v1")
    A.e("v_lshlrev_b32 v12, 2, v12")
    A.e("v_lshrrev_b32 v13, 4, v1")
    A.e("v_and_b32 v13, 1, v13")
    A.e("v_mul_u32_u24 v13, 0x2040, v13        ; 8256")
    A.e("v_add3_u32 v12, v12, v13, s21")
    A.e("ds_write_b32 v12, v192")
    A.e("s_waitcnt vmcnt(0)")
    st(A)
    first_scores(A)
    for t in range(NT): step(A, 0, t, first=True)

def b_transition(A, pfx):
    ldK, ldV = kv_load_groups()
    PK, PVn = PREF_K, PREF_V
    for g in ldK(0) + ldV(0):
        for x in g: A.e(x)
    q_reads(A)
    for t in range(1, PK):
        for g in ldK(t):
            for x in g: A.e(x)
        if t < PVn:
            for g in ldV(t):
                for x in g: A.e(x)
    late_setup(A)
    A.e("s_waitcnt lgkmcnt(0)")
    A.e("s_barrier")
    order = ["K0", "V0"]
    for t in range(1, PK):
        order.append(f"K{t}")
        if t < PVn: order.append(f"V{t}")
    A.e(f"s_waitcnt vmcnt({2*(len(order)-1)})")
    st(A)
    first_scores(A)
    for t in range(NT):
        fl = []; need = []
        if t+1 < NT: need.append(f"K{t+1}")
        if t >= 1: need.append(f"V{t-1}")
        idx = max(order.index(x) for x in need)
        nout = 2*(len(order) - 1 - idx)
        if t == NT-1: nout = 0
        new = []
        if t+PK < NT: fl += ldK(t+PK); new.append(f"K{t+PK}")
        if t+PVn < NT: fl += ldV(t+PVn); new.append(f"V{t+PVn}")
        step(A, 0, t, first=True, fillers=fl, pre=[f"s_waitcnt vmcnt({nout})"])
        order += new

def attention(A, pfx):
    srd(A, SA, PWS, WS_VA + 64*2048)
    A.e("s_lshl_b32 s44, s20, 14          ; KA: T*1024")
    A.e(f"s_lshl_b32 s45, s20, 13         ; KB: T*512")
    A.e(f"s_add_u32 s45, s45, {WS_KB}")
    A.e("s_lshl_b32 s46, s20, 15          ; VA: T*2048")
    A.e(f"s_add_u32 s46, s46, {WS_VA}")
    A.e(f"s_cmp_ge_u32 s3, {NCONV}")
    A.e(f"s_cbranch_scc1 {pfx}_btr")
    kgen_phase(A, pfx)
    A.e(f"s_branch {pfx}_tau1")
    A.label(f"{pfx}_btr")
    b_transition(A, pfx)
    A.label(f"{pfx}_tau1")
    st(A)
    wl = []
    for c in range(8): wl += wdma_ring(c, BWchunk(c))
    def bg(n):
        L = []
        la, lb = f"{pfx}_bga{n}", f"{pfx}_bgb{n}"
        if n < 8:
            L += [f"s_cbranch_vccnz {la}", f"s_add_u32 s63, s61, {64*1280*n}",
                  f"buffer_load_dwordx2 {vr(176+2*n,2)}, v{VUD}, s[{SF}:{SF+3}], s63 offen", f"s_branch {lb}", la + ":"] + wl[n] + [lb + ":"]
        elif 12 <= n < 20:
            k = n - 12
            L += [f"s_cbranch_vccnz {la}"] + (["s_waitcnt vmcnt(0)"] if k == 0 else []) + \
                 [f"ds_write_b32 v{VUP}, v{176+2*k} offset:{256*k}", f"ds_write_b32 v{VUP}, v{177+2*k} offset:{8320+256*k}",
                  f"s_branch {lb}", la + ":"] + wl[n] + [lb + ":"]
        else:
            L += [f"s_cbranch_vccz {lb}"] + wl[n] + [lb + ":"]
        return L
    A.e(f"s_cmp_ge_u32 s3, {NCONV}")
    A.e("s_cselect_b64 vcc, -1, 0")
    A.e(f"s_mul_i32 s61, s20, {512*1280}")
    for tau in range(1, 8):
        for t in range(NT):
            fl = []
            if tau <= 6 and t in (3, 4, 6): fl += [part_write(tau)[(3, 4, 6).index(t)]]
            if tau <= 6 and t in (5, 8, 11, 14): fl += [bg((tau-1)*4 + (t-5)//3)]
            step(A, tau, t, last=(tau == 7), fillers=fl)
        st(A)
    A.e("s_nop 1")
    par = 1; Pp = P[(NT-1) & 1]
    A.e(f"v_mfma_f32_32x32x16_bf16 {vr(O[par],16)}, {VAr(NT-1,0)}, {vr(Pp,4)}, {vr(O[par],16)}")
    A.e(f"v_mfma_f32_32x32x16_bf16 {vr(O[par],16)}, {VAr(NT-1,1)}, {vr(Pp+4,4)}, {vr(O[par],16)}")
    A.e("s_waitcnt vmcnt(0) lgkmcnt(0)")
    A.e("s_barrier")
    st(A)

def reduce_publish(A, pfx):
    quads = [[64, 68, 72, 76, 112, 116, 120, 124, 176], [180, 184, 188, 192, 196, 44, 48, 52, 56]]
    def rdpart(jj):
        for sl in range(3):
            for g in range(3):
                A.e(f"ds_read_b128 {vr(quads[jj][3*sl+g], 4)}, v{VRED} offset:{(jj*3+sl)*PART + 1024*g}")
    rdpart(0)
    srd(A, SC, PWS, 2048*1280, add=WS_O)
    A.e("s_mov_b64 s[56:57], 0")
    for jj in range(2):
        Of = O[jj]
        A.e("s_waitcnt lgkmcnt(0)")
        if jj == 0: rdpart(1)
        for sl in range(3):
            for r in range(12): A.e(f"v_add_f32 v{Of+r}, v{Of+r}, v{quads[jj][3*sl + (r >> 2)] + (r & 3)}")
        A.e(f"v_mov_b32 v28, v{Of+8}")
        A.e(f"v_mov_b32 v29, v{Of+8}")
        A.e(f"v_max3_f32 v30, |v{Of}|, |v{Of+1}|, |v{Of+2}|")
        A.e(f"v_max3_f32 v30, v30, |v{Of+3}|, |v{Of+4}|")
        A.e("v_permlane32_swap_b32 v28, v29")
        for r in range(5, 11, 2): A.e(f"v_max3_f32 v30, v30, |v{Of+r}|, |v{Of+r+1}|")
        A.e(f"v_max_f32 v30, v30, |v{Of+11}|")
        A.e("v_cmp_nle_f32 vcc, 0x2b800000, v29      ; !(2^-40 <= l)")
        A.e("s_or_b64 s[56:57], s[56:57], vcc")
        A.e("v_cmp_nge_f32 vcc, 0x53800000, v29      ; !(2^40 >= l)")
        A.e("s_or_b64 s[56:57], s[56:57], vcc")
        A.e("v_cmp_ngt_f32 vcc, 0x7f800000, v30")
        A.e("s_or_b64 s[56:57], s[56:57], vcc")
        A.e("v_rcp_f32 v29, v29")
        A.e("s_nop 0")
        for r in range(12): A.e(f"v_mul_f32 v{16+r}, v{Of+r}, v29")
        for g in range(3):
            A.e(f"v_cvt_pk_bf16_f32 v{32+6*jj+2*g}, v{16+4*g}, v{17+4*g}")
            A.e(f"v_cvt_pk_bf16_f32 v{33+6*jj+2*g}, v{18+4*g}, v{19+4*g}")
    A.e(f"v_mov_b32 v14, {L_BAD}")
    A.e("s_cmp_eq_u64 s[56:57], 0")
    A.e(f"s_cbranch_scc1 {pfx}_safe")
    A.e("v_mov_b32 v15, 1")
    A.e("ds_write_b32 v14, v15")
    A.e("s_waitcnt lgkmcnt(0)")
    A.label(f"{pfx}_safe")
    A.e("s_barrier")
    A.e("ds_read_b32 v15, v14")
    for jj in range(2):
        A.e(f"ds_write_b64 v{VOS}, {vr(32+6*jj,2)} offset:{5120*jj}")
        A.e(f"ds_write_b64 v{VOS}, {vr(34+6*jj,2)} offset:{5120*jj+16}")
        A.e(f"ds_write_b64 v{VOS2a if jj == 0 else VOS2b}, {vr(36+6*jj,2)}")
    for i in range(3):
        A.e("s_mul_i32 s24, s23, 10")
        A.e("s_add_u32 s24, s24, s20")
        if i: A.e(f"s_add_u32 s24, s24, {4*i}")
        A.e("s_lshr_b32 s25, s24, 2")
        A.e("s_lshl_b32 s25, s25, 10")
        A.e("s_and_b32 s24, s24, 3")
        A.e("s_lshl_b32 s24, s24, 8")
        A.e("s_add_u32 s24, s24, s25")
        A.e("s_mul_i32 s25, s22, 81920")
        A.e(f"s_add_u32 s{28+i}, s24, s25")
    A.e("s_waitcnt lgkmcnt(0)")
    A.e("v_readfirstlane_b32 s56, v15")
    A.e("s_nop 0")
    A.e("s_cmp_lg_u32 s56, 0")
    A.e(f"s_cbranch_scc1 {pfx}_slow")
    A.label(f"{pfx}_staged")
    A.e("s_barrier")
    for i in range(3):
        A.e(f"ds_read_b128 {vr(44+4*i,4)}, v{VTID16} offset:{64*i}")
    for i in range(2):
        A.e(f"s_waitcnt lgkmcnt({2-i})")
        A.e(f"buffer_store_dwordx4 {vr(44+4*i,4)}, v{VOG}, s[{SC}:{SC+3}], s{28+i} offen sc1")
    A.e("s_cmp_ge_u32 s20, 2")
    A.e(f"s_cbranch_scc1 {pfx}_no3rd")
    A.e("s_waitcnt lgkmcnt(0)")
    A.e(f"buffer_store_dwordx4 {vr(52,4)}, v{VOG}, s[{SC}:{SC+3}], s30 offen sc1")
    A.label(f"{pfx}_no3rd")
    A.e("s_waitcnt lgkmcnt(0)")
    A.e("s_lshl_b32 s21, s22, 7")
    A.e(f"s_add_u32 s21, s21, {WS_FLAG}")
    srd(A, SE_, PWS, 128, add="s21")
    A.e(f"s_cmp_ge_u32 s3, {NCONV}")
    A.e(f"s_cbranch_scc1 {pfx}_nouprep")
    u_prep(A)
    A.label(f"{pfx}_nouprep")
    A.e("s_waitcnt vmcnt(0)")
    A.e("s_barrier")
    A.e("s_cmp_lg_u32 s20, 0")
    A.e(f"s_cbranch_scc1 {pfx}_noflag")
    A.e("s_lshl_b32 s21, s23, 2")
    A.e("v_mov_b32 v12, s21")
    A.e("v_mov_b32 v13, 1")
    A.e("s_mov_b64 exec, 1")
    A.e(f"buffer_store_dword v13, v12, s[{SE_}:{SE_+3}], 0 offen sc1")
    A.e("s_mov_b64 exec, -1")
    A.label(f"{pfx}_noflag")
    st(A)

def u_prep(A):
    for ps in range(5):
        b = 64 + 10*ps
        A.e(f"ds_read_b128 {vr(b,4)}, v{VUR} offset:{2048*ps}")
        A.e(f"ds_read_b128 {vr(b+4,4)}, v{VUR} offset:{2048*ps+16}")
        A.e(f"ds_read_b32 v{b+8}, v{VUR} offset:{2048*ps+32}")
    A.e("s_and_b32 s21, s20, 1")
    A.e("s_cmp_eq_u32 s21, 0")
    A.e("s_mov_b32 s25, 0x07060302")
    A.e("s_cselect_b32 s26, 0x05040100, s25")
    A.e(f"v_add_u32 v12, {L_U0}, v{VUW}")
    A.e("s_waitcnt lgkmcnt(0)")
    A.e("s_barrier")
    for ps in range(5):
        b = 64 + 10*ps
        if ps == 4: A.e("s_mov_b64 exec, 15")
        o = 116 + 8*(ps & 1)
        for i in range(4): A.e(f"v_perm_b32 v{o+i}, v{b+2*i+1}, v{b+2*i}, s26")
        for i in range(4): A.e(f"v_perm_b32 v{o+4+i}, v{b+2*i+2}, v{b+2*i+1}, s26")
        A.e(f"ds_write_b128 v12, {vr(o,4)} offset:{1024*ps}")
        A.e(f"ds_write_b128 v{VUW}, {vr(o+4,4)} offset:{L_U1+1024*ps}")
        if ps == 4: A.e("s_mov_b64 exec, -1")

def conv_part(A, pfx):
    ACC = 16; AB = 64
    def Br(D, i): return ar(32*D + 4*i, 4)
    def Ar(c, i): return vr(AB + 32*(c & 1) + 4*i, 4)
    def Ahalf(c, i, h): return vr(AB + 32*(c & 1) + 4*i + 2*h, 2)
    srd(A, SH, POUT, 2048*2560)
    A.e("s_waitcnt lgkmcnt(0)")
    st(A)
    q = Q(A)
    def readsA(c):
        L = [It(f"v_add_u32 v11, {512*c}, v{VCU}")]
        for i in range(8):
            L.append(It(f"ds_read2_b32 {Ahalf(c,i,0)}, v11 offset0:{16*i} offset1:{16*i+1}", lds=f"a{c}_{i}"))
            L.append(It(f"ds_read2_b32 {Ahalf(c,i,1)}, v11 offset0:{16*i+2} offset1:{16*i+3}", lds=f"a{c}_{i}"))
        return L
    def readsB(D):
        return [It(f"ds_read_b128 {Br(D,i)}, v{VCK} offset:{512*(7-D)+64*i}", lds=f"b{D}_{i}") for i in range(8)]
    def mm(c, D, i):
        acc = ACC + 4*(c + D)
        first = (c == 0 and i == 0)
        return It(f"v_mfma_f32_16x16x32_bf16 {vr(acc,4)}, {Ar(c,i)}, {Br(D,i)}, {'0' if first else vr(acc,4)}", needl=(f"a{c}_{i}", f"b{D}_{i}"), w=2)
    def flush1(B):
        acc = ACC + 4*B; bo = (B & 1)*YSB
        return [It(f"v_cvt_pk_bf16_f32 v48, v{acc}, v{acc+1}"), It(f"v_cvt_pk_bf16_f32 v49, v{acc+2}, v{acc+3}"),
                It(f"ds_write_b64 v{VYS}, v[48:49] offset:{bo}", lds=f"yw{B}")]
    def flush2(B):
        bo = (B & 1)*YSB; r = 50 + 2*(B & 1)
        return [It("s_barrier", needl=(f"yw{B}",)),
                It(f"ds_read_b64_tr_b16 {vr(r,2)}, v{VYT} offset:{bo}", lds=f"yr{B}")]
    def flush3(B):
        r = 50 + 2*(B & 1)
        return [It([f"s_mov_b32 s28, {B*256*2560}", f"buffer_store_dwordx2 {vr(r,2)}, v{VYO}, s[{SH}:{SH+3}], s28 offen"], vm="Y", needl=(f"yr{B}",))]
    q.run(readsA(0) + readsB(0))
    for c in range(8):
        if c == 0:
            for D in range(8):
                M = [mm(0, D, i) for i in range(8)]
                R = readsB(D+1) if D < 7 else readsA(1)
                q.run(merge(M, R))
        else:
            M = [mm(c, D, i) for i in range(8) for D in range(8-c)]
            R = readsA(c+1) if c < 7 else []
            n = len(M); h1 = min(5, n); h2 = max(h1, n//2);
            q.run(M[:h1])
            if c == 7: A.e("s_nop 2")
            q.run(flush1(c-1))
            q.run(merge(M[h1:h2], R[:len(R)//2]))
            q.run(flush2(c-1))
            q.run(merge(M[h2:], R[len(R)//2:]))
            q.run(flush3(c-1))
        import os
        if Cfg.STAMP and os.environ.get("DETC") == "1": st(A); q.lq = []
    A.e("s_nop 7")
    q.run(flush1(7) + flush2(7) + flush3(7))
    st(A)
    finish(A)

BW0 = 73728
def BWchunk(c): return (BW0 + c*WCH) if c < 8 else (16704 + (c-8)*WCH)
BXBUF = [0, 8192, 37184, 37184+8192, 37184+16384, 37184+24576]

def finish(A):
    if Cfg.STAMP:
        A.e("s_waitcnt vmcnt(0)")
        st(A)
        A.e("s_mov_b32 s2, s3")
        stamp_out(A, PWS, 4, STAMP_BASE, VSTAMP, VSTMP)
    A.e("s_endpgm")

def outproj_b(A, pfx):
    A.e("s_mov_b32 s60, s22")
    A.e("s_sub_u32 s61, s22, 20")
    A.e("s_add_u32 s62, s61, 12")
    A.e("s_cmp_lt_u32 s62, 20")
    A.e("s_cselect_b32 s63, 3, 2")
    A.e("s_cselect_b32 s62, s62, s61")
    q = Q(A)
    for c in (8, 9): q.run([It(g, vm=f"W{c}") for g in wdma_ring(c, BWchunk(c))])
    srd(A, SE_, PWS, 32*128, add=WS_FLAG)
    def wait_flags(name, regs):
        nl = 8*len(regs)
        A.e("s_cmp_lg_u32 s20, 0")
        A.e(f"s_cbranch_scc1 {pfx}_{name}_np")
        A.e(f"v_mov_b32 v14, s{regs[0]}")
        if len(regs) > 1:
            A.e("v_lshrrev_b32 v13, 3, v1")
            A.e("v_cmp_eq_u32 vcc, 1, v13")
            A.e(f"v_mov_b32 v15, s{regs[1]}")
            A.e("s_nop 0")
            A.e("v_cndmask_b32 v14, v14, v15, vcc")
        A.e("v_and_b32 v12, 7, v1")
        A.e("v_lshlrev_b32 v12, 2, v12")
        A.e("v_lshl_add_u32 v12, v14, 7, v12")
        A.e(f"s_mov_b32 s35, {SPIN_MAX}")
        A.e(f"s_mov_b64 exec, {hex((1 << nl)-1)}")
        A.label(f"{pfx}_{name}_p")
        A.e(f"buffer_load_dword v13, v12, s[{SE_}:{SE_+3}], 0 offen sc1")
        A.e("s_waitcnt vmcnt(0)")
        A.e("v_cmp_ne_u32 vcc, 0, v13")
        A.e("s_sub_u32 s35, s35, 1")
        A.e("s_cmp_eq_u32 s35, 0")
        A.e(f"s_cbranch_scc1 {pfx}_{name}_d")
        A.e(f"s_cmp_eq_u32 vcc_lo, {hex((1 << nl)-1)}")
        A.e(f"s_cbranch_scc1 {pfx}_{name}_d")
        A.e("s_sleep 1")
        A.e(f"s_branch {pfx}_{name}_p")
        A.label(f"{pfx}_{name}_d")
        A.e("s_mov_b64 exec, -1")
        A.label(f"{pfx}_{name}_np")
        A.e("s_waitcnt vmcnt(0)")
        A.e("s_barrier")
    wait_flags("o", [60])
    q.vq = []
    st(A)
    srd(A, SA, PWS, 2048*1280, add=WS_O)
    srd(A, SC, POUT, 2048*2560)
    for t in range(3):
        A.e(f"s_lshl_b32 s21, s{60+t}, 2")
        A.e("s_add_u32 s21, s21, s20")
        A.e(f"s_mul_i32 s{56+t}, s21, 20480")
    ACC = [16, 36]; WF = 56
    def Xr(sl, kk): return ar(80*sl + 4*kk, 4)
    def xld(sl, t, kk):
        return It([f"s_add_u32 s36, s{56+t}, {1024*kk}", f"buffer_load_dwordx4 {Xr(sl, kk)}, v4, s[{SA}:{SA+3}], s36 offen"], vm=f"X{sl}_{kk}")
    def rdW(kk, mt):
        c, ks = kk >> 1, kk & 1; out = []
        for h in range(2):
            off = BWchunk(c) + (32*ks + 8*h)*160 + 32*mt
            a = VWT
            if off >= 131072: a, off = VWTh2, off - 131072
            elif off >= 65536: a, off = VWTh, off - 65536
            out.append(It(f"ds_read_b64_tr_b16 {vr(WF+mt*4+h*2,2)}, v{a} offset:{off}", lds=f"w{kk}_{mt}"))
        return out
    def pack(slot, base):
        for mt in range(5):
            acc = ACC[slot] + 4*mt
            r = base + 2*mt
            A.e(f"v_cvt_pk_bf16_f32 v{r}, v{acc}, v{acc+1}")
            A.e(f"v_cvt_pk_bf16_f32 v{r+1}, v{acc+2}, v{acc+3}")
    def store(base, t):
        A.e(f"s_mul_i32 s21, s{60+t}, 163840")
        A.e("s_add_u32 s21, s21, s55")
        for mt in range(5):
            q.emit(It(f"buffer_store_dwordx2 {vr(base+2*mt,2)}, v{VOUT}, s[{SC}:{SC+3}], s21 offen offset:{32*mt}", vm="S"))
    A.e("s_mul_i32 s55, s23, 160")
    A.e("s_add_u32 s55, s55, 1280")
    def run_pass(tiles):
        n = len(tiles)
        loads = [xld(sl, t, kk) for kk in range(20) for sl, t in enumerate(tiles)]
        ahead = 8*n
        q.run(loads[:ahead]); loads = loads[ahead:]
        for mt in range(5): q.run(rdW(0, mt))
        for kk in range(20):
            for mt in range(5):
                for sl in range(n):
                    nl = gemm_need(kk, mt, []) if sl == 0 else ()
                    nv = tuple(f"X{z}_{kk}" for z in range(n)) if (mt == 0 and sl == 0) else ()
                    q.emit(It(f"v_mfma_f32_16x16x32_bf16 {vr(ACC[sl]+4*mt,4)}, {vr(WF+4*mt,4)}, {Xr(sl, kk)}, {vr(ACC[sl]+4*mt,4) if kk else '0'}",
                              needl=nl, needv=nv))
                if loads and mt < n: q.emit(loads.pop(0))
                if kk+1 < 20: q.run(rdW(kk+1, mt))
        assert not loads
        q.all_l()
        A.e("s_nop 7")
    run_pass([0])
    pack(0, 92)
    store(92, 0)
    st(A)
    wait_flags("o2", [61, 62])
    q.vq = []
    st(A)
    A.e("s_cmp_eq_u32 s63, 2")
    A.e(f"s_cbranch_scc1 {pfx}_b2")
    q = Q(A)
    run_pass([1, 2])
    st(A)
    pack(0, 92); pack(1, 102)
    store(92, 1); store(102, 2)
    finish(A)
    A.label(f"{pfx}_b2")
    q = Q(A)
    run_pass([1])
    st(A)
    pack(0, 92)
    store(92, 1)
    finish(A)

def slow_softmax(A, pfx):
    QD, MX, PS = 10240, 22528, 24576
    Sx, Px, Ox, QFA, QFB = 16, 48, 80, 64, 68
    A.label(f"{pfx}_slow")
    A.e("s_barrier")
    A.e("s_cmp_lg_u32 s20, 0")
    A.e(f"s_cbranch_scc1 {pfx}_sl_nodump")
    A.e("v_lshlrev_b32 v13, 3, v1")
    for tau in range(8):
        j = (2 + tau) & 7
        A.e(f"ds_write_b128 v4, {QAr(tau)} offset:{QD + 1536*j}")
        A.e(f"ds_write_b64 v13, {QBr(tau)} offset:{QD + 1536*j + 1024}")
    A.e("s_waitcnt lgkmcnt(0)")
    A.label(f"{pfx}_sl_nodump")
    A.e("s_barrier")
    A.e("s_mov_b32 s56, 0                 ; tile j")
    A.e("v_and_b32 v12, 31, v1")
    A.e("v_lshlrev_b32 v12, 2, v12        ; query*4")
    A.e("s_lshl_b32 s21, s20, 7")
    A.e(f"s_add_u32 s21, s21, {MX}")
    A.e("v_add_u32 v72, s21, v12")
    A.e(f"v_add_u32 v73, {MX}, v12")
    A.e(f"s_mul_i32 s21, s20, {PART}")
    A.e(f"s_add_u32 s21, s21, {PS}")
    A.e("v_add_u32 v74, s21, v4")
    A.e(f"v_add_u32 v75, {PS}, v4")
    A.label(f"{pfx}_sl_loop")
    A.e("s_mul_i32 s21, s56, 1536")
    A.e(f"s_add_u32 s21, s21, {QD}")
    A.e("v_add_u32 v14, s21, v4")
    A.e("v_lshlrev_b32 v15, 3, v1")
    A.e("v_add_u32 v15, s21, v15")
    A.e(f"ds_read_b128 {vr(QFA,4)}, v14")
    A.e(f"ds_read_b64 {vr(QFB,2)}, v15 offset:1024")
    A.e("v_mov_b32 v70, 0xff800000")
    A.e("s_waitcnt lgkmcnt(0)")
    def scores(t):
        A.e(f"v_mfma_f32_32x32x16_bf16 {vr(Sx,16)}, {KAr(t)}, {vr(QFA,4)}, 0")
        A.e(f"v_mfma_f32_32x32x8_bf16 {vr(Sx,16)}, {KBr(t)}, {vr(QFB,2)}, {vr(Sx,16)}")
        A.e("s_nop 11")
    for t in range(NT):
        scores(t)
        for i in range(8): A.e(f"v_max3_f32 v70, v70, v{Sx+2*i}, v{Sx+2*i+1}")
        A.e("s_nop 6")
    A.e("v_mov_b32 v71, v70")
    A.e("v_mov_b32 v76, v70")
    A.e("s_nop 1")
    A.e("v_permlane32_swap_b32 v71, v76")
    A.e("s_nop 1")
    A.e("v_max3_f32 v70, v70, v71, v76")
    A.e("ds_write_b32 v72, v70")
    A.e("s_waitcnt lgkmcnt(0)")
    A.e("s_barrier")
    for w in range(4): A.e(f"ds_read_b32 v{76+w}, v73 offset:{128*w}")
    A.e("s_waitcnt lgkmcnt(0)")
    A.e("v_max3_f32 v71, v76, v77, v78")
    A.e("v_max_f32 v71, v71, v79")
    for t in range(NT):
        scores(t)
        for i in range(16): A.e(f"v_sub_f32 v{Sx+i}, v{Sx+i}, v71")
        for i in range(16): A.e(f"v_exp_f32 v{Sx+i}, v{Sx+i}")
        A.e("s_nop 0")
        for i in range(8): A.e(f"v_cvt_pk_bf16_f32 v{Px+i}, v{Sx+2*i}, v{Sx+2*i+1}")
        A.e("s_nop 1")
        A.e(f"v_mfma_f32_32x32x16_bf16 {vr(Ox,16)}, {VAr(t,0)}, {vr(Px,4)}, {'0' if t == 0 else vr(Ox,16)}")
        A.e(f"v_mfma_f32_32x32x16_bf16 {vr(Ox,16)}, {VAr(t,1)}, {vr(Px+4,4)}, {vr(Ox,16)}")
        A.e("s_nop 6")
    A.e("s_nop 11")
    for g in range(3): A.e(f"ds_write_b128 v74, {vr(Ox+4*g,4)} offset:{1024*g}")
    A.e("s_waitcnt lgkmcnt(0)")
    A.e("s_barrier")
    A.e("s_lshr_b32 s21, s56, 1")
    A.e("s_cmp_lg_u32 s21, s20")
    A.e(f"s_cbranch_scc1 {pfx}_sl_next")
    for w in range(4):
        for g in range(3): A.e(f"ds_read_b128 {vr(16+12*w+4*g,4)}, v75 offset:{PART*w + 1024*g}")
    A.e("s_waitcnt lgkmcnt(0)")
    for w in range(1, 4):
        for r in range(12): A.e(f"v_add_f32 v{16+r}, v{16+r}, v{16+12*w+r}")
    A.e("v_mov_b32 v76, v24")
    A.e("v_mov_b32 v77, v24")
    A.e("s_nop 1")
    A.e("v_permlane32_swap_b32 v76, v77")
    A.e("s_nop 1")
    A.e("v_rcp_f32 v77, v77")
    A.e("s_nop 0")
    for r in range(12): A.e(f"v_mul_f32 v{16+r}, v{16+r}, v77")
    for g in range(3):
        A.e(f"v_cvt_pk_bf16_f32 v{32+2*g}, v{16+4*g}, v{17+4*g}")
        A.e(f"v_cvt_pk_bf16_f32 v{33+2*g}, v{18+4*g}, v{19+4*g}")
    A.e("s_and_b32 s21, s56, 1")
    A.e("s_mul_i32 s21, s21, 5120")
    A.e(f"v_add_u32 v14, s21, v{VOS}")
    A.e("ds_write_b64 v14, v[32:33]")
    A.e("ds_write_b64 v14, v[34:35] offset:16")
    A.e("s_mov_b32 exec_hi, 0")
    A.e("ds_write_b64 v14, v[36:37] offset:32")
    A.e("s_mov_b32 exec_hi, -1")
    A.e("s_waitcnt lgkmcnt(0)")
    A.label(f"{pfx}_sl_next")
    A.e("s_barrier")
    A.e("s_add_u32 s56, s56, 1")
    A.e("s_cmp_lt_u32 s56, 8")
    A.e(f"s_cbranch_scc1 {pfx}_sl_loop")
    A.e(f"s_branch {pfx}_staged")

def mega_role(A, pfx):
    prologue(A, pfx)
    front(A, pfx)
    attention(A, pfx)
    reduce_publish(A, pfx)
    A.e(f"s_cmp_ge_u32 s3, {NCONV}")
    A.e(f"s_cbranch_scc1 {pfx}_bback")
    conv_part(A, pfx)
    A.label(f"{pfx}_bback")
    outproj_b(A, pfx)
    slow_softmax(A, pfx)
    A.label(f"{pfx}_end")
    A.e("s_endpgm")
```

```python
from common import *
from sched import *
import math
LOG2E = math.log2(math.e)
GBUF = 18432; GXB = 8192
L_KR = 73728
L_KG = 0; KGW = 25872
RA = 3
L_XR = 0; L_WKV = 81920; L_WR = 107520
L_QL = 104448
L_PART = 0; PART = 3072
L_U0 = 92160; CS = 4160
L_WA = 108800; WCH = 10240
L_DUMMY = 160000
L_U1 = 64; L_WB = 16704
L_YS = 16896; YSC = 576; YSB = 4*YSC
L_BAD = 161024
LDS_MEGA = 161088
def Wchunk(c): return (L_WA + c*WCH) if c < 5 else (L_WB + (c-5)*WCH)
XBUF = [L_KR, L_KR+8192, L_U0, L_U0+8192, L_U1, L_U1+8192]
WS_FLAG = 0x1100000
SPIN_MAX = 1 << 18
NCONV = 160
PU, PARE, PAIM, PBRE, PBIM, PCRE, PCIM, PLDT = 64, 66, 68, 70, 72, 74, 76, 78
PDSK, PX, PWQ, PWK, PWV, PWO, POUT, PDBG = 80, 82, 84, 86, 88, 90, 92, 94
PWS = 4
SA, SB, SC, SD, SE_, SF, SG, SH = 8, 12, 16, 40, 44, 48, 52, 56
VXD0, VXD1 = 200, 201
VWD = 202
VOUT = 205
VYO = 206
VOS, VOS2a, VOS2b = 207, 208, 209
VOG = 210
VTID16 = 213
VCU, VCK = 214, 215
VYS = 216
VYT, VUT = 217, 218
VUR = 219
VUW = 220
VRED = 221
VXF0, VXF1 = 222, 223
VWT = 224
VUD = 225
VQW = 226
VQR, VQRB = 231, 232
VXF0h, VXF1h, VWTh, VWTh2 = 233, 234, 235, 236
VUP = 237
VPA = 238
VSTAMP, VSTMP = 252, 253
S = [16, 32]; P = [48, 56]; O = [80, 96]; VW = 7; NT = 16
def QAr(tau): return vr(128+6*tau, 4)
def QBr(tau): return vr(132+6*tau, 2)
def KAr(t): return ar(4*t, 4)
def KBr(t): return ar(64+2*t, 2)
def VAr(t, u): return ar(96+8*t+4*u, 4)

def st(A): stamp(A, VSTAMP)

PREFETCH = True
CODE_BYTES = 80*1024
def prefetch(A, pfx):
    A.e("s_getpc_b64 s[24:25]")
    A.label(f"{pfx}_pc")
    A.e("s_lshr_b32 s26, s3, 3")
    A.e("s_lshl_b32 s26, s26, 2")
    A.e("s_add_u32 s26, s26, s20          ; slice 0..127")
    A.e("s_mul_i32 s26, s26, 768")
    A.e("v_min_u32 v12, 5, v1")
    A.e("v_lshlrev_b32 v12, 7, v12")
    A.e("v_add_u32 v12, s26, v12")
    A.e(f"v_min_u32 v12, mg_end-{pfx}_pc-4, v12")
    A.e("global_load_dword v249, v12, s[24:25]")
    A.e("s_lshl_b32 s26, s3, 2")
    A.e("s_add_u32 s26, s26, s20")
    A.e("s_lshl_b32 s26, s26, 6")
    A.e("v_add_u32 v12, s26, v1           ; slot")
    A.e("v_lshlrev_b32 v13, 7, v12")
    srd(A, SB, PX, 2048*1280)
    A.e(f"buffer_load_dword v250, v13, s[{SB}:{SB+3}], 0 offen")
    A.e("v_subrev_u32 v13, 0x280000, v13")
    srd(A, SB, PWQ, 819200)
    A.e(f"buffer_load_dword v251, v13, s[{SB}:{SB+3}], 0 offen")
def prologue(A, pfx):
    A.e("s_load_dwordx16 s[64:79], s[0:1], 0")
    A.e("s_load_dwordx16 s[80:95], s[0:1], 64")
    A.e(f"s_load_dwordx2 s[4:5], s[0:1], 128")
    stamp_init(A, VSTAMP); st(A)
    A.e("v_and_b32 v1, 63, v0")
    A.e("v_lshrrev_b32 v12, 6, v0")
    A.e("v_lshlrev_b32 v4, 4, v1          ; lane*16")
    A.e("v_readfirstlane_b32 s20, v12")
    A.e("v_and_b32 v2, 15, v1")
    A.e("v_lshrrev_b32 v3, 4, v1")
    A.e(f"s_sub_u32 s52, s3, {NCONV}        ; j")
    A.e("s_and_b32 s24, s3, 7             ; r")
    A.e("s_lshr_b32 s25, s3, 3            ; q (conv)")
    A.e("s_lshr_b32 s26, s52, 3           ; q (others)")
    A.e(f"s_cmp_ge_u32 s3, {NCONV}")
    A.e("s_cselect_b32 s25, s26, s25      ; q")
    A.e("s_cselect_b32 s26, 8, 16")
    A.e("s_cselect_b32 s27, 20, 0")
    A.e("s_cselect_b32 s28, 28, 16")
    A.e("s_lshr_b32 s22, s25, 3")
    A.e("s_lshl_b32 s22, s22, 3")
    A.e("s_add_u32 s22, s22, s24")
    A.e("s_add_u32 s22, s22, s27")
    A.e("s_and_b32 s23, s25, 7")
    A.e("s_lshr_b32 s29, s24, 1")
    A.e("s_add_u32 s29, s29, s28")
    A.e("s_and_b32 s30, s24, 1")
    A.e("s_lshl_b32 s30, s30, 2")
    A.e("s_add_u32 s30, s30, s25")
    A.e("s_sub_u32 s30, s30, s26")
    A.e("s_cmp_ge_u32 s25, s26")
    A.e("s_cselect_b32 s22, s29, s22")
    A.e("s_cselect_b32 s23, s30, s23")
    A.e("s_lshr_b32 s53, s52, 5")
    A.e("s_min_u32 s53, s53, 2")
    A.e("s_cselect_b32 s53, s53, s53")
    A.e(f"s_cmp_lt_u32 s3, {NCONV}")
    A.e("s_cselect_b32 s53, 2, s53")
    A.e("s_and_b32 s54, s52, 31")
    A.e("s_cmp_lt_u32 s53, 2")
    A.e("s_cselect_b32 s54, s54, s22")
    A.e("s_lshl_b32 s32, s20, 10          ; wave*1024")
    A.e("s_lshl_b32 s31, s20, 11          ; wave*2048")
    A.e("s_and_b32 s33, s3, 7")
    A.e("s_mul_i32 s33, s33, 20")
    A.e("s_lshr_b32 s34, s3, 3")
    A.e("s_add_u32 s33, s33, s34")
    A.e("s_min_u32 s33, s33, 159")
    A.e("s_lshl_b32 s34, s33, 2")
    A.e("s_add_u32 s34, s34, s20          ; channel d")
    A.e("s_movk_i32 s27, 1280")
    A.e("v_lshrrev_b32 v12, 3, v1")
    A.e("v_and_b32 v13, 7, v1")
    A.e("v_xor_b32 v13, v13, v12")
    A.e("v_lshlrev_b32 v13, 4, v13")
    A.e("s_lshl_b32 s21, s20, 4")
    A.e("v_add_u32 v12, s21, v12")
    A.e(f"v_mad_u32_u24 v{VXD0}, v12, s27, v13")
    A.e(f"v_add_u32 v{VXD1}, 10240, v{VXD0}")
    A.e("s_mov_b32 s26, 6554")
    for n in range(3):
        A.e(f"s_add_u32 s21, s20, {4*n}")
        A.e("s_lshl_b32 s21, s21, 6")
        A.e("v_add_u32 v12, s21, v1          ; p")
        A.e("v_mul_u32_u24 v13, s26, v12")
        A.e("v_lshrrev_b32 v13, 16, v13      ; rho")
        A.e("v_mul_u32_u24 v14, 10, v13")
        A.e("v_sub_u32 v14, v12, v14         ; cc")
        A.e("v_lshlrev_b32 v14, 4, v14")
        A.e("v_and_b32 v15, 0x33, v13")
        A.e("v_bfe_u32 v5, v13, 2, 1")
        A.e("v_lshl_or_b32 v15, v5, 3, v15")
        A.e("v_bfe_u32 v5, v13, 3, 1")
        A.e("v_lshl_or_b32 v15, v5, 2, v15")
        A.e(f"v_mad_u32_u24 v{VWD+n}, v15, s27, v14")
        if n == 2:
            A.e(f"v_mov_b32 v12, {OOB}")
            A.e("v_cmp_gt_u32 vcc, 64, v13")
            A.e("s_nop 1")
            A.e(f"v_cndmask_b32 v{VWD+2}, v12, v{VWD+2}, vcc")
    for l in addr_setup_items(): A.e(l)
    A.e("s_waitcnt lgkmcnt(0)")
    A.e("s_mul_i32 s21, s54, 81920")
    srd(A, SA, PX, 81920, add="s21")
    A.e("s_mul_i32 s21, s23, 160")
    srd(A, SD, PWQ, "0", add="s21")
    A.e(f"s_sub_u32 s{SD+2}, 819200, s21")

def addr_setup_items(part="front"):
    T = Asm(); A = T
    A.e("s_lshl_b32 s21, s20, 4")
    A.e("v_add_u32 v12, s21, v2")
    A.e("v_lshlrev_b32 v12, 7, v12")
    A.e("v_and_b32 v13, 7, v2")
    A.e("v_xor_b32 v14, v13, v3")
    A.e(f"v_lshl_add_u32 v{VXF0}, v14, 4, v12")
    A.e("v_add_u32 v14, 4, v3")
    A.e("v_xor_b32 v14, v13, v14")
    A.e(f"v_lshl_add_u32 v{VXF1}, v14, 4, v12")
    A.e(f"v_add_u32 v{VXF0h}, 65536, v{VXF0}")
    A.e(f"v_add_u32 v{VXF1h}, 65536, v{VXF1}")
    A.e("v_lshrrev_b32 v12, 1, v3")
    A.e("v_lshlrev_b32 v12, 4, v12")
    A.e("v_and_b32 v13, 1, v3")
    A.e("v_lshl_add_u32 v12, v13, 2, v12")
    A.e("v_lshrrev_b32 v13, 2, v2")
    A.e("v_add_u32 v12, v12, v13")
    A.e("v_mul_u32_u24 v12, 160, v12")
    A.e("v_and_b32 v13, 3, v2")
    A.e(f"v_lshl_add_u32 v{VWT}, v13, 3, v12")
    A.e(f"v_add_u32 v{VWTh}, 65536, v{VWT}")
    A.e(f"v_add_u32 v{VWTh2}, 0x20000, v{VWT}")
    A.e("s_and_b32 s21, s20, 1")
    A.e("s_lshl_b32 s21, s21, 4")
    A.e("v_add_u32 v15, s21, v2          ; pos32")
    A.e("s_lshr_b32 s24, s20, 1")
    A.e("s_mul_i32 s24, s24, 1280")
    A.e(f"s_add_u32 s24, s24, {L_QL}")
    A.e("v_lshlrev_b32 v14, 3, v15        ; 8*pos32")
    A.e("v_add_u32 v14, s24, v14")
    A.e("v_lshlrev_b32 v13, 4, v3")
    A.e("v_and_b32 v13, 16, v13")
    A.e("v_cmp_lt_u32 vcc, 1, v3          ; g >= 2")
    for mt in range(5):
        cs = []; isb = []
        for g in range(4):
            c0 = 16*mt + 4*g; hl, d0 = divmod(c0, 20)
            if d0 < 16: cs.append(hl*2560 + ((d0 >> 2) & 1)*512 + (d0 >> 3)*8); isb.append(0)
            else: cs.append(hl*2560 + 1024); isb.append(1)
        enc = [c | (0 if b else 0x8000) for c, b in zip(cs, isb)]
        assert all(c < 0x8000 for c in cs)
        A.e(f"v_mov_b32 v12, {hex(enc[0] | (enc[1] << 16))}")
        A.e(f"v_mov_b32 v6, {hex(enc[2] | (enc[3] << 16))}")
        A.e("v_cndmask_b32 v12, v12, v6, vcc")
        A.e("v_lshrrev_b32 v12, v13, v12")
        A.e("v_bfe_u32 v6, v12, 15, 1")
        A.e("v_and_b32 v12, 0x7fff, v12")
        A.e("v_mul_u32_u24 v6, v6, v15")
        A.e("v_lshl_add_u32 v6, v6, 3, v14")
        A.e(f"v_add_u32 v{VQW+mt}, v6, v12")
    A.e(f"v_mov_b32 v{VQR}, v4")
    A.e("v_and_b32 v12, 31, v1")
    A.e("v_lshlrev_b32 v12, 3, v12")
    A.e(f"v_add_u32 v{VQRB}, 1024, v12")
    A.e(f"v_mov_b32 v12, {OOB}")
    A.e("v_lshlrev_b32 v5, 3, v1")
    A.e("v_cmp_gt_u32 vcc, 32, v1")
    A.e("v_and_b32 v13, 31, v1")
    A.e("s_nop 0")
    A.e("v_cndmask_b32 v5, v12, v5, vcc")
    A.e("v_cmp_gt_u32 vcc, 21, v13")
    A.e("s_nop 1")
    A.e("v_cndmask_b32 v8, v12, v4, vcc")
    if part == "front": return [x.strip() for x in T.lines if x.strip()]
    T.lines.clear()
    A.e(f"s_mul_i32 s21, s20, {6*PART}")
    A.e(f"v_add_u32 v{VRED}, s21, v4")
    A.e("v_and_b32 v13, 31, v1")
    A.e("v_mul_u32_u24 v13, 160, v13")
    A.e("v_lshrrev_b32 v14, 5, v1         ; h")
    A.e("v_lshl_add_u32 v13, v14, 3, v13")
    A.e("s_mul_i32 s24, s20, 40")
    A.e(f"v_add_u32 v{VOS}, s24, v13")
    A.e(f"v_mov_b32 v12, {L_DUMMY}")
    A.e(f"v_add_u32 v13, 32, v{VOS}")
    A.e("v_cmp_eq_u32 vcc, 0, v14")
    A.e(f"v_add_u32 v15, 5152, v{VOS}")
    A.e("s_nop 0")
    A.e(f"v_cndmask_b32 v{VOS2a}, v12, v13, vcc")
    A.e(f"v_cndmask_b32 v{VOS2b}, v12, v15, vcc")
    A.e("v_lshrrev_b32 v13, 4, v1")
    A.e("v_mul_u32_u24 v13, 0x5000, v13       ; (row >> 4) * 20480")
    A.e("v_and_b32 v14, 15, v1")
    A.e(f"v_lshl_add_u32 v{VOG}, v14, 4, v13")
    A.e("v_mul_u32_u24 v13, 160, v1")
    A.e("s_lshl_b32 s24, s20, 4")
    A.e(f"v_add_u32 v{VTID16}, s24, v13")
    A.e("s_lshl_b32 s21, s20, 4")
    A.e("s_movk_i32 s26, 2560")
    A.e("v_add_u32 v13, s21, v2")
    A.e("v_mul_u32_u24 v13, s26, v13")
    A.e(f"v_lshl_add_u32 v{VOUT}, v3, 3, v13")
    A.e("s_lshl_b32 s21, s20, 6")
    A.e("v_add_u32 v13, s21, v1")
    A.e("v_mul_u32_u24 v13, s26, v13")
    A.e("s_lshl_b32 s21, s33, 3")
    A.e(f"v_add_u32 v{VYO}, s21, v13")
    A.e("v_add_u32 v12, 1, v2")
    A.e("v_and_b32 v12, 1, v12            ; cp")
    A.e("v_sub_u32 v13, v2, v12")
    A.e("v_add_u32 v13, 9, v13")
    A.e("v_and_b32 v14, 1, v3")
    A.e("v_lshlrev_b32 v14, 3, v14        ; 8(g&1)")
    A.e("v_sub_u32 v13, v13, v14")
    A.e("v_lshrrev_b32 v15, 1, v3         ; g>>1")
    A.e("v_lshl_add_u32 v13, v15, 4, v13")
    A.e("v_lshlrev_b32 v13, 1, v13")
    A.e("v_xor_b32 v12, 1, v12")
    A.e(f"s_mov_b32 s24, {L_U0 - L_U1}")
    A.e("v_mul_lo_u32 v12, v12, s24")
    A.e("v_add_u32 v13, v13, v12")
    A.e(f"s_mul_i32 s21, s20, {CS}")
    A.e(f"s_add_u32 s24, s21, {L_U1}")
    A.e(f"v_add_u32 v{VCU}, s24, v13")
    A.e(f"v_add_u32 v{VUW}, s21, v4")
    A.e("v_lshlrev_b32 v13, 4, v2")
    A.e("v_sub_u32 v13, 2040, v13")
    A.e("v_lshl_add_u32 v13, v15, 4, v13")
    A.e("v_sub_u32 v13, v13, v14")
    A.e("v_lshlrev_b32 v13, 1, v13")
    A.e("s_mul_i32 s24, s20, 4608")
    A.e(f"s_add_u32 s24, s24, {L_KR-3584}")
    A.e(f"v_add_u32 v{VCK}, s24, v13")
    A.e("v_lshlrev_b32 v13, 5, v2")
    A.e("v_lshl_add_u32 v13, v3, 3, v13")
    A.e(f"s_mul_i32 s24, s20, {YSC}")
    A.e(f"s_add_u32 s24, s24, {L_YS}")
    A.e(f"v_add_u32 v{VYS}, s24, v13")
    A.e("v_and_b32 v13, 3, v2")
    A.e("v_lshlrev_b32 v13, 3, v13")
    A.e("v_lshl_add_u32 v13, v3, 5, v13")
    A.e("s_lshl_b32 s21, s20, 7")
    A.e("v_add_u32 v13, s21, v13")
    A.e("v_lshrrev_b32 v12, 2, v2")
    A.e(f"v_mul_u32_u24 v14, {YSC}, v12" if False else f"s_movk_i32 s24, {YSC}")
    A.e("v_mul_u32_u24 v14, s24, v12")
    A.e(f"v_add3_u32 v{VYT}, v14, v13, v13" if False else f"v_add_u32 v14, v14, v13")
    A.e(f"v_add_u32 v{VYT}, {L_YS}, v14")
    A.e(f"s_movk_i32 s24, {CS}")
    A.e("v_mul_u32_u24 v14, s24, v12")
    A.e("v_add_u32 v14, v14, v13")
    A.e(f"v_add_u32 v{VUT}, {L_U0+32}, v14")
    A.e("s_lshr_b32 s21, s20, 1")
    A.e("s_mul_i32 s21, s21, 8320")
    A.e(f"s_add_u32 s21, s21, {L_U0}")
    A.e("v_lshlrev_b32 v13, 5, v1")
    A.e(f"v_add_u32 v{VUR}, s21, v13")
    A.e("s_movk_i32 s26, 1280")
    A.e("v_mul_u32_u24 v13, s26, v1")
    A.e("s_lshl_b32 s21, s33, 3")
    A.e(f"v_add_u32 v{VUD}, s21, v13")
    A.e("s_lshl_b32 s21, s20, 11")
    A.e(f"s_add_u32 s21, s21, {L_U0+64}")
    A.e("v_lshlrev_b32 v13, 2, v1")
    A.e(f"v_add_u32 v{VUP}, s21, v13")
    return [x.strip() for x in T.lines if x.strip()]

def wdma_ring(c, base):
    L = []
    for n in range(3):
        g = []
        if n < 2:
            g += [f"s_add_u32 m0, s32, {base + 4096*n}", f"s_mov_b32 s38, {64*1280*c}" if n == 0 else "s_nop 0"]
        else:
            g += [f"s_add_u32 s39, s32, {base + 8192}", "s_cmp_lt_u32 s20, 2", f"s_cselect_b32 m0, s39, {L_DUMMY}", "s_nop 0"]
        g.append(f"buffer_load_dwordx4 v{VWD+n}, s[{SD}:{SD+3}], s38 offen lds")
        L.append(g)
    return L
def xdma(c, base, srd_=SA):
    return [[f"s_add_u32 m0, s31, {base}", f"s_movk_i32 s36, {128*c}",
             f"buffer_load_dwordx4 v{VXD0}, s[{srd_}:{srd_+3}], s36 offen lds"],
            [f"s_add_u32 m0, s31, {base+1024}", "s_nop 0",
             f"buffer_load_dwordx4 v{VXD1}, s[{srd_}:{srd_+3}], s36 offen lds"]]

GACC = 16; GWF = 36; GXF = [56, 60]
def gemm_rdX(kk, xb):
    ks = kk & 1
    if xb < 65536: a, o = (VXF0 if ks == 0 else VXF1), xb
    else: a, o = (VXF0h if ks == 0 else VXF1h), xb - 65536
    return It(f"ds_read_b128 {vr(GXF[kk & 1],4)}, v{a} offset:{o}", lds=f"x{kk}")
def gemm_rdW(kk, mt, wb):
    ks = kk & 1
    out = []
    for h in range(2):
        off = wb + (32*ks + 8*h)*160 + 32*mt
        a = VWT
        if off >= 131072: a, off = VWTh2, off - 131072
        elif off >= 65536: a, off = VWTh, off - 65536
        out.append(It(f"ds_read_b64_tr_b16 {vr(GWF+mt*4+h*2,2)}, v{a} offset:{off}", lds=f"w{kk}_{mt}"))
    return out
def gemm_need(kk, mt, xt):
    if mt == 0: return tuple(xt) + (f"w{kk}_0", f"w{kk}_1", f"w{kk}_2")
    if mt == 3: return (f"w{kk}_3", f"w{kk}_4")
    return ()
def gemm_mm(kk, mt):
    return It(f"v_mfma_f32_16x16x32_bf16 {vr(GACC+4*mt,4)}, {vr(GWF+mt*4,4)}, {vr(GXF[kk & 1],4)}, {vr(GACC+4*mt,4) if kk else '0'}",
              needl=gemm_need(kk, mt, (f"x{kk}",)), w=2)
def gemm_items(xbase, wbase, sync, loads=None):
    steps = []
    spread = list(loads(0)) if loads else []
    pre = list(sync(0)) + [gemm_rdX(0, xbase(0))]
    for mt in range(5): pre += gemm_rdW(0, mt, wbase(0))
    for kk in range(20):
        L = []
        c1 = (kk+1) >> 1
        boundary = (kk+1) & 1 == 0 and kk+1 < 20
        for mt in range(5):
            L.append(gemm_mm(kk, mt))
            if kk+1 < 20:
                if mt == 0:
                    if boundary:
                        L += spread; spread = []
                        L += list(sync(c1))
                        if loads: spread = list(loads(c1))
                    L.append(gemm_rdX(kk+1, xbase(c1)))
                L += gemm_rdW(kk+1, mt, wbase(c1))
            if spread and mt in (1, 2, 3): L.append(spread.pop(0))
        steps.append(L)
    assert not spread
    return pre, steps

def rho(s, b):
    if s == 0: return b
    q = b >> s; rem = b & ((1 << s)-1); half = 1 << (s-1)
    if rem > half or (rem == half and (q & 1)): q += 1
    return q << s
KACC = 64
RS = 528
def kgen_setup_lines():
    T = Asm(); A = T
    A.e("v_lshlrev_b32 v12, 2, v1          ; lane*4")
    A.e("s_lshl_b32 s24, s34, 8           ; d*256")
    A.e("v_add_u32 v13, s24, v12")
    for k, s in enumerate((PARE, PAIM, PBRE, PBIM, PCRE, PCIM)):
        A.e(f"global_load_dword v{104+k}, v13, s[{s}:{s+1}]")
    A.e("s_lshl_b32 s24, s34, 1")
    A.e("v_mov_b32 v14, s24")
    A.e(f"global_load_ushort v110, v14, s[{PLDT}:{PLDT+1}]")
    A.e(f"global_load_ushort v198, v14, s[{PDSK}:{PDSK+1}]")
    A.e(f"s_mul_i32 s21, s20, {KGW}")
    A.e(f"s_add_u32 s21, s21, {L_KG}")
    A.e("v_lshlrev_b32 v14, 3, v1            ; lane*8")
    A.e("v_add_u32 v196, s21, v14")
    A.e(f"v_add_u32 v197, {33*RS}, v196")
    for s in range(4):
        for mt in range(2):
            dst = 112 + 2*s + mt
            A.e(f"v_add_u32 v15, {16*mt}, v2          ; b")
            if s > 0:
                half = 1 << (s-1)
                A.e(f"v_bfe_u32 v12, v15, {s}, 1")
                A.e(f"v_add3_u32 v15, v15, v12, {half-1}")
                A.e(f"v_lshrrev_b32 v15, {s}, v15")
                A.e(f"v_lshlrev_b32 v15, {s}, v15")
            A.e(f"v_mul_u32_u24 v15, {RS}, v15")
            A.e(f"v_lshl_add_u32 v15, v3, 4, v15")
            A.e(f"v_add_u32 v{dst}, s21, v15")
    for s in range(1, 4):
        for b in range(32):
            half = 1 << (s-1)
            assert (((b + half - 1 + ((b >> s) & 1)) >> s) << s) == rho(s, b)
    A.e(f"v_mul_u32_u24 v15, {RS}, v2")
    A.e("v_lshl_add_u32 v15, v3, 4, v15")
    A.e(f"v_add_u32 v15, {33*RS}, v15")
    A.e("v_add_u32 v111, s21, v15")
    return [x.strip() for x in T.lines if x.strip()]

def kgen_parts():
    L = []
    a = lambda t, **k: L.append(It(t, **k))
    E1 = [120, 122]; E32 = [124, 126]
    C = [176, 178]; TM = [180, 182]
    PK = [184, 186]
    WC = [188, 190]
    a("v_lshlrev_b32 v110, 16, v110", needv=("kp",))
    a(f"v_mul_f32 v110, {hex(f2u(LOG2E))}, v110")
    a("v_exp_f32 v110, v110")
    a("s_nop 0")
    a("v_cvt_pk_bf16_f32 v110, v110, v110")
    a("v_lshlrev_b32 v110, 16, v110")
    for hf in range(2):
        for k in range(6):
            a(f"v_lshlrev_b32 v{176+k}, 16, v{104+k}" if hf == 0 else f"v_and_b32 v{176+k}, 0xffff0000, v{104+k}")
        ZR, ZI = 192, 193
        a(f"v_mul_f32 v{ZR}, v110, v176"); a(f"v_mul_f32 v{ZI}, v110, v177")
        a("v_mul_f32 v178, v110, v178"); a("v_mul_f32 v179, v110, v179")
        a(f"v_mul_f32 v{ZR}, {hex(f2u(LOG2E))}, v{ZR}"); a(f"v_mul_f32 v{ZI}, {hex(f2u(1/(2*math.pi)))}, v{ZI}")
        w = WC[hf]
        a(f"v_mul_f32 v{w}, v180, v178"); a(f"v_mul_f32 v{w+1}, v180, v179")
        a(f"v_fma_f32 v{w}, -v181, v179, v{w}"); a(f"v_fma_f32 v{w+1}, v181, v178, v{w+1}")
        for (m, dst) in ((1, E1[hf]), (32, E32[hf])):
            if m == 1:
                a(f"v_exp_f32 v182, v{ZR}"); a(f"v_fract_f32 v183, v{ZI}")
            else:
                lit = hex(f2u(float(m)))
                a(f"v_mul_f32 v182, {lit}, v{ZR}"); a(f"v_mul_f32 v183, {lit}, v{ZI}")
                a("v_exp_f32 v182, v182"); a("v_fract_f32 v183, v183")
            a("v_cos_f32 v194, v183"); a("v_sin_f32 v195, v183")
            a("s_nop 0")
            a(f"v_mul_f32 v{dst}, v182, v194"); a(f"v_mul_f32 v{dst+1}, v182, v195")
    for hf in range(2):
        a(f"v_mov_b32 v{C[hf]}, v{WC[hf]}"); a(f"v_mov_b32 v{C[hf]+1}, v{WC[hf]+1}")
    setup = L
    def cm(x, e, t):
        return (f"v_pk_mul_f32 v[{t}:{t+1}], v[{x}:{x+1}], v[{e}:{e+1}] op_sel:[0,0] op_sel_hi:[0,1]",
                f"v_pk_fma_f32 v[{x}:{x+1}], v[{x}:{x+1}], v[{e}:{e+1}], v[{t}:{t+1}] op_sel:[1,1,0] op_sel_hi:[1,0,1] neg_lo:[1,0,0]")
    rows = []
    def row(n, r, e, neg, waddr, stp, pre=()):
        pk = PK[n & 1]; sg = "-" if neg else ""
        R = [It(y) for y in pre]
        if stp: R += [It(cm(C[0], e[0], TM[0])[0]), It(cm(C[1], e[1], TM[1])[0])]
        R += [It(f"v_cvt_pk_bf16_f32 v{pk}, v{C[0]}, {sg}v{C[0]+1}"), It(f"v_cvt_pk_bf16_f32 v{pk+1}, v{C[1]}, {sg}v{C[1]+1}")]
        if stp: R += [It(cm(C[0], e[0], TM[0])[1]), It(cm(C[1], e[1], TM[1])[1])]
        R.append(It(f"ds_write_b64 v{waddr}, {vr(pk,2)} offset:{r*RS}", lds="kw"))
        rows.append(R)
    for j in range(33): row(j, j, E1, True, 196, j < 32)
    one = [f"v_mov_b32 v{C[0]}, 1.0", f"v_mov_b32 v{C[0]+1}, 0", f"v_mov_b32 v{C[1]}, 1.0", f"v_mov_b32 v{C[1]+1}, 0"]
    for nt in range(4):
        for r in range(16):
            row(33+16*nt+r, r, E32, False, 197, not (nt == 3 and r == 15), pre=(one if (nt == 0 and r == 0) else ()))
    BF = 224
    NS = 12
    def slot(n): return vr(16 + 4*(n % NS), 4)
    afr, bfr, mms = [], [], []
    for nt in range(4):
        variants = [(0,0),(0,1),(1,0),(1,1)] if nt == 0 else [((2 if nt == 1 else 3), 0), ((2 if nt == 1 else 3), 1)]
        tiles = [0,1,2,3] if nt == 0 else [2+2*nt, 3+2*nt]
        nv = len(variants); tot = 8*nv
        ra = []; mm = []
        def rd(n):
            ks, vi = divmod(n, nv); s_, mt = variants[vi]
            return It(f"ds_read_b128 {slot(n)}, v{112+2*s_+mt} offset:{64*ks}", lds=f"ka{nt}_{n}")
        for n in range(tot):
            ks, vi = divmod(n, nv)
            if n < NS: ra.append(rd(n))
            acc = KACC + 4*tiles[vi]
            mm.append(It(f"v_mfma_f32_16x16x32_bf16 {vr(acc,4)}, {slot(n)}, {ar(BF+4*ks,4)}, {vr(acc,4) if ks else '0'}",
                         needl=(f"kb{nt}_{ks}", f"ka{nt}_{n}"), w=2))
            if n + NS < tot: mm.append(rd(n + NS))
        afr.append(ra)
        bfr.append([It(f"ds_read_b128 {ar(BF+4*ks,4)}, v111 offset:{64*ks}", lds=f"kb{nt}_{ks}") for ks in range(8)])
        mms.append(mm)
    return setup, rows, afr, bfr, mms

def kgen_pack_lines():
    T = Asm(); A = T
    ACC = KACC
    A.e("v_lshlrev_b32 v198, 16, v198")
    A.e("v_cmp_eq_u32 vcc, 0, v1")
    A.e("s_nop 1")
    A.e("v_cndmask_b32 v198, 0, v198, vcc")
    A.e(f"v_add_f32 v{ACC}, v{ACC}, v198")
    A.e("v_cmp_gt_u32 vcc, 8, v2")
    A.e("s_nop 1")
    for i in range(8):
        A.e(f"v_cndmask_b32 v{ACC+i}, v{ACC+8+i}, v{ACC+i}, vcc")
    for nt in range(4):
        for mt in range(2):
            tile = mt if nt == 0 else 2+2*nt+mt
            acc = ACC + 4*tile
            b = 176 + 2*(nt*2+mt)
            A.e(f"v_cvt_pk_bf16_f32 v{b}, v{acc+3}, v{acc+2}")
            A.e(f"v_cvt_pk_bf16_f32 v{b+1}, v{acc+1}, v{acc}")
    return [x.strip() for x in T.lines if x.strip()]
def kgen_write_lines():
    T = Asm(); A = T
    A.e("s_mul_i32 s21, s20, 4608")
    A.e(f"s_add_u32 s21, s21, {L_KR}")
    A.e("v_lshlrev_b32 v15, 5, v2")
    A.e("v_lshl_add_u32 v15, v3, 2, v15    ; 32c + 4g")
    A.e("v_sub_u32 v15, 2044, v15")
    A.e("v_lshlrev_b32 v15, 1, v15")
    A.e(f"v_add_u32 v15, s21, v15")
    A.e(f"v_subrev_u32 v15, {(512*3+16)*2}, v15")
    for nt in range(4):
        for mt in range(2):
            b = 176 + 2*(nt*2+mt)
            A.e(f"ds_write_b64 v15, {vr(b,2)} offset:{(512*3+16)*2 - (512*nt+16*mt)*2}")
    A.e("v_mov_b32 v192, 0"); A.e("v_mov_b32 v193, 0")
    A.e("v_lshlrev_b32 v12, 3, v1")
    A.e(f"s_add_u32 s21, s21, 4096")
    A.e("v_add_u32 v12, s21, v12")
    A.e("ds_write_b64 v12, v[192:193]")
    return [x.strip() for x in T.lines if x.strip()]

def q_epilogue(A, q):
    A.e(f"s_mov_b32 s26, {hex(f2u(QSCALE))}")
    for mt in range(5):
        acc = GACC + 4*mt
        for i in range(4): A.e(f"v_mul_f32 v{acc+i}, s26, v{acc+i}")
        A.e(f"v_cvt_pk_bf16_f32 v{36+mt*2}, v{acc}, v{acc+1}")
        A.e(f"v_cvt_pk_bf16_f32 v{37+mt*2}, v{acc+2}, v{acc+3}")
        q.emit(It(f"ds_write_b64 v{VQW+mt}, {vr(36+mt*2,2)}", lds="qw"))

def weave_setup(A, q, setup, pro):
    safe = [i for i, l in enumerate(setup) if l.startswith("v_") and not l.startswith("v_cndmask") and i+1 < len(setup)
            and not setup[i+1].startswith("v_cndmask") and not setup[i+1].startswith("s_nop") and not l.startswith("v_cmp")
            and not setup[i+1].startswith("s_addc")]
    step = max(1, len(safe)//len(pro))
    pts = {safe[min(k*step, len(safe)-1)]: k for k in range(len(pro))}
    done = 0
    for i, l in enumerate(setup):
        A.e(l)
        if i in pts: q.emit(pro[pts[i]]); done += 1
    assert done == len(pro), (done, len(pro))

def X_items(c): return [It(g, vm=f"x{c}") for g in xdma(c, L_XR + 8192*c)]
def W_items(c): return [It(g, vm=f"w{c}") for g in wdma_ring(c, L_WR + WCH*(c % 4))]

def front(A, pfx):
    A.e("s_cmp_lt_u32 s53, 2")
    A.e(f"s_cbranch_scc1 {pfx}_kvpro")
    q = Q(A)
    q.run(X_items(0) + W_items(0))
    A.e(f"s_cmp_ge_u32 s3, {NCONV}")
    A.e(f"s_cbranch_scc1 {pfx}_nokp")
    for l in kgen_setup_lines(): A.e(l)
    A.label(f"{pfx}_nokp")
    for c in range(1, 4): q.run(X_items(c) + W_items(c))
    if PREFETCH: prefetch(A, pfx + "a")
    qcommon = q
    st(A)
    A.e(f"s_branch {pfx}_qgemm")
    A.label(f"{pfx}_kvpro")
    q = Q(A)
    A.e("s_cmp_eq_u32 s53, 0")
    A.e(f"s_cselect_b32 s24, s{PWK}, s{PWV}")
    A.e(f"s_cselect_b32 s25, s{PWK+1}, s{PWV+1}")
    A.e(f"s_mov_b32 s{SB}, s24"); A.e(f"s_mov_b32 s{SB+1}, s25"); A.e(f"s_mov_b32 s{SB+2}, 25600"); A.e(f"s_mov_b32 s{SB+3}, 0x20000")
    for i in range(7):
        if i < 6:
            A.e(f"s_add_u32 s28, s32, {4096*i}")
            A.e(f"s_add_u32 m0, s28, {L_WKV}")
            A.e("s_nop 0")
            A.e(f"buffer_load_dwordx4 v4, s[{SB}:{SB+3}], s28 offen lds")
        else:
            A.e("s_cmp_eq_u32 s20, 0")
            A.e(f"s_mov_b32 s29, {L_WKV + 24*1024}")
            A.e(f"s_cselect_b32 m0, s29, {L_DUMMY}")
            A.e(f"s_mov_b32 s30, 0x7fff0000")
            A.e(f"s_cselect_b32 s28, {24*1024}, s30")
            A.e(f"buffer_load_dwordx4 v4, s[{SB}:{SB+3}], s28 offen lds")
    for c in range(10): q.run(X_items(c))
    if PREFETCH: prefetch(A, pfx + "b")
    st(A)
    KV, KW, KX = 64, 72, [104, 108]
    A.e("v_lshrrev_b32 v12, 2, v2")
    A.e("v_lshl_add_u32 v12, v3, 3, v12")
    A.e("v_mul_u32_u24 v12, 40, v12")
    A.e("v_and_b32 v13, 3, v2")
    A.e("v_lshl_add_u32 v12, v13, 3, v12")
    A.e(f"v_add_u32 v176, {L_WKV}, v12")
    for i in range(8): A.e(f"v_mov_b32 v{KV+i}, 0")
    A.e("s_mul_i32 s21, s22, 81920")
    srd(A, SH, PX, 81920, add="s21")
    q.wait_v(("x0",))
    A.e("s_barrier")
    def rds(kk):
        c, ks = kk >> 1, kk & 1; b = kk & 1
        xb = L_XR + 8192*c
        a, o = ((VXF0 if ks == 0 else VXF1), xb) if xb < 65536 else ((VXF0h if ks == 0 else VXF1h), xb-65536)
        out = [It(f"ds_read_b128 {vr(KX[b],4)}, v{a} offset:{o}", lds=f"kx{kk}", needv=(f"x{c}",))]
        for m in range(2):
            for h in range(2):
                out.append(It(f"ds_read_b64_tr_b16 {vr(KW+8*b+4*m+2*h,2)}, v176 offset:{(32*kk + 4*h)*40 + 32*m}", lds=f"kw{kk}"))
        return out
    for variant in ("k", "v"):
        if variant == "k":
            A.e("s_cmp_eq_u32 s53, 0")
            A.e(f"s_cbranch_scc0 {pfx}_b_vpart")
        else:
            A.label(f"{pfx}_b_vpart")
        qq = Q(A); qq.vq = list(q.vq)
        qq.run(rds(0))
        wq_first = [x for c in range(4) for x in W_items(c)]
        for kk in range(20):
            if kk+1 < 20: qq.run(rds(kk+1))
            if kk >= 8: qq.emit(wq_first.pop(0))
            if kk in (2, 4, 6, 8):
                c_ = kk//2 - 1
                qq.run([It(g, vm=f"ox{c_}") for g in xdma(c_, L_XR + 8192*c_, SH)])
            b = kk & 1
            for m in range(2):
                if variant == "k": t = f"v_mfma_f32_16x16x32_bf16 {vr(KV+4*m,4)}, {vr(KW+8*b+4*m,4)}, {vr(KX[b],4)}, {vr(KV+4*m,4)}"
                else: t = f"v_mfma_f32_16x16x32_bf16 {vr(KV+4*m,4)}, {vr(KX[b],4)}, {vr(KW+8*b+4*m,4)}, {vr(KV+4*m,4)}"
                qq.emit(It(t, needl=(f"kx{kk}", f"kw{kk}")))
        A.e("s_lshr_b32 s21, s20, 1")
        A.e("s_lshl_b32 s26, s54, 1")
        A.e("s_add_u32 s21, s21, s26          ; T")
        A.e("s_and_b32 s26, s20, 1            ; u")
        srd(A, SC, PWS, WS_VA + 64*2048)
        A.e(f"v_mov_b32 v19 , {OOB}".replace(" ,", ","))
        A.e("v_and_b32 v12, 1, v3             ; h (g&1)")
        A.e("v_cmp_gt_u32 vcc, 2, v3")
        A.e(f"v_cvt_pk_bf16_f32 v112, v{KV}, v{KV+1}")
        A.e(f"v_cvt_pk_bf16_f32 v113, v{KV+2}, v{KV+3}")
        A.e(f"v_cvt_pk_bf16_f32 v116, v{KV+4}, v{KV+5}")
        A.e(f"v_cvt_pk_bf16_f32 v117, v{KV+6}, v{KV+7}")
        if variant == "v":
            A.e("s_mov_b64 s[28:29], vcc")
            A.e("v_cmp_eq_u32 vcc, 4, v2")
            A.e("v_mov_b32 v13, 0x3f803f80")
            A.e("s_nop 0")
            A.e("v_cndmask_b32 v116, v116, v13, vcc")
            A.e("v_cndmask_b32 v117, v117, v13, vcc")
            A.e("s_mov_b64 vcc, s[28:29]")
        A.e("v_mov_b32 v120, v112"); A.e("v_mov_b32 v121, v113")
        A.e("v_mov_b32 v122, v116"); A.e("v_mov_b32 v123, v117")
        A.e("s_nop 1")
        A.e("v_permlane32_swap_b32 v120, v114")
        A.e("v_permlane32_swap_b32 v121, v115")
        A.e("v_permlane32_swap_b32 v122, v118")
        A.e("v_permlane32_swap_b32 v123, v119")
        if variant == "k":
            A.e("s_lshl_b32 s28, s26, 4")
            A.e("v_add_u32 v14, s28, v2           ; key32")
            A.e("v_lshl_add_u32 v15, v12, 5, v14")
            A.e("v_lshlrev_b32 v15, 4, v15")
            A.e("s_lshl_b32 s28, s21, 10")
            A.e(f"s_add_u32 s28, s28, {WS_KA}")
            A.e("v_add_u32 v15, s28, v15")
            A.e("v_cndmask_b32 v15, v19, v15, vcc")
            A.e(f"buffer_store_dwordx4 v[112:115], v15, s[{SC}:{SC+3}], 0 offen sc1")
            A.e("v_lshlrev_b32 v14, 3, v14")
            A.e("s_lshl_b32 s28, s21, 9")
            A.e(f"s_add_u32 s28, s28, {WS_KB}")
            A.e("v_add_u32 v14, s28, v14")
            A.e("v_cmp_eq_u32 vcc, 0, v3")
            A.e("s_nop 1")
            A.e("v_cndmask_b32 v14, v19, v14, vcc")
            A.e(f"buffer_store_dwordx2 v[116:117], v14, s[{SC}:{SC+3}], 0 offen sc1")
            A.e("s_lshl_b32 s28, s54, 7")
            A.e(f"s_add_u32 s28, s28, {WS_FLAG}")
            srd(A, SE_, PWS, 128, add="s28")
            A.e("v_lshlrev_b32 v14, 2, v0")
            A.e("v_mov_b32 v13, 0")
            A.e(f"buffer_store_dword v13, v14, s[{SE_}:{SE_+3}], 0 offen sc1")
        else:
            A.e("v_lshl_add_u32 v15, v12, 5, v2")
            A.e("v_lshlrev_b32 v15, 4, v15")
            A.e("s_lshl_b32 s28, s21, 11")
            A.e("s_lshl_b32 s29, s26, 10")
            A.e("s_add_u32 s28, s28, s29")
            A.e(f"s_add_u32 s28, s28, {WS_VA}")
            A.e("v_add_u32 v15, s28, v15")
            A.e("v_add_u32 v14, 256, v15")
            A.e("v_cndmask_b32 v15, v19, v15, vcc")
            A.e("v_cndmask_b32 v14, v19, v14, vcc")
            A.e(f"buffer_store_dwordx4 v[112:115], v15, s[{SC}:{SC+3}], 0 offen sc1")
            A.e("v_cmp_gt_u32 vcc, 5, v2")
            A.e("s_nop 1")
            A.e("v_cndmask_b32 v14, v19, v14, vcc")
            A.e(f"buffer_store_dwordx4 v[116:119], v14, s[{SC}:{SC+3}], 0 offen sc1")
        A.e("s_waitcnt vmcnt(0)")
        A.e("s_barrier")
        A.e("s_cmp_lg_u32 s20, 0")
        A.e(f"s_cbranch_scc1 {pfx}_b_nf{variant}")
        srd(A, SE_, PDBG, 256)
        A.e("s_lshl_b32 s28, s52, 2")
        A.e("v_mov_b32 v14, s28")
        A.e("v_mov_b32 v13, 1")
        A.e("s_mov_b64 exec, 1")
        A.e(f"buffer_store_dword v13, v14, s[{SE_}:{SE_+3}], 0 offen sc1")
        A.e("s_mov_b64 exec, -1")
        A.label(f"{pfx}_b_nf{variant}")
        if variant == "k": A.e(f"s_branch {pfx}_b_ownx")
    A.label(f"{pfx}_b_ownx")
    A.e("s_mul_i32 s21, s22, 81920")
    srd(A, SA, PX, 81920, add="s21")
    st(A)
    A.label(f"{pfx}_qgemm")
    q = qcommon
    def sync(c): return [It("s_barrier", needv=(f"x{c}", f"w{c}"))]
    def loads(c):
        L = []
        if c+4 < 10: L += X_items(c+4)
        if c >= 2 and c+2 < 10: L += W_items(c+2)
        return L
    pre, steps = gemm_items(lambda c: L_XR + 8192*c, lambda c: L_WR + WCH*(c % 4), sync, loads)
    q.run(pre)
    late = [It(x) for x in part_addr_lines() + addr_setup_items("late")]
    grp = []; cur = []
    for it in late:
        cur.append(it)
        t = it.txt[0]
        if not (t.startswith("v_cmp") or t.startswith("s_nop") or (len(cur) > 1 and cur[-2].txt[0].startswith("v_cmp"))
                or (len(cur) > 2 and cur[-3].txt[0].startswith("v_cmp")) or (len(cur) > 3 and cur[-4].txt[0].startswith("v_cmp"))):
            grp.append(It([y for c in cur for y in c.txt], w=len(cur))); cur = []
    if cur: grp.append(It([y for c in cur for y in c.txt], w=len(cur)))
    per = (len(grp) + 17)//18
    for kk in range(20):
        q.run(merge(steps[kk], grp[kk*per:(kk+1)*per]))
    q.all_l(); q.all_v()
    srd(A, SE_, PDBG, 256)
    A.e("v_lshlrev_b32 v12, 2, v1")
    A.e(f"buffer_load_dword v248, v12, s[{SE_}:{SE_+3}], 0 offen sc1")
    st(A)
    A.e("s_barrier")
    q_epilogue(A, q)
    A.e(f"s_mov_b32 s35, {SPIN_MAX}")
    A.label(f"{pfx}_kv_p")
    A.e("s_waitcnt vmcnt(0)")
    A.e("v_cmp_ne_u32 vcc, 0, v248")
    A.e("s_sub_u32 s35, s35, 1")
    A.e("s_cmp_eq_u32 s35, 0")
    A.e(f"s_cbranch_scc1 {pfx}_kv_d")
    A.e("s_cmp_eq_u64 vcc, -1")
    A.e(f"s_cbranch_scc1 {pfx}_kv_d")
    A.e("s_sleep 1")
    A.e(f"buffer_load_dword v248, v12, s[{SE_}:{SE_+3}], 0 offen sc1")
    A.e(f"s_branch {pfx}_kv_p")
    A.label(f"{pfx}_kv_d")
    A.e("s_waitcnt lgkmcnt(0)")
    A.e("s_barrier")
    st(A)

def poll(A, pfx, name, srd_, nl, cmpmask):
    A.e("s_cmp_lg_u32 s20, 0")
    A.e(f"s_cbranch_scc1 {pfx}_{name}_np")
    A.e("v_lshlrev_b32 v12, 2, v1")
    A.e(f"s_mov_b32 s35, {SPIN_MAX}")
    if nl < 64: A.e(f"s_mov_b64 exec, {hex((1 << nl)-1)}")
    A.label(f"{pfx}_{name}_p")
    A.e(f"buffer_load_dword v13, v12, s[{srd_}:{srd_+3}], 0 offen sc1")
    A.e("s_waitcnt vmcnt(0)")
    A.e("v_cmp_ne_u32 vcc, 0, v13")
    A.e("s_sub_u32 s35, s35, 1")
    A.e("s_cmp_eq_u32 s35, 0")
    A.e(f"s_cbranch_scc1 {pfx}_{name}_d")
    if nl == 64:
        A.e("s_cmp_eq_u64 vcc, -1")
    else:
        A.e(f"s_cmp_eq_u32 vcc_lo, {hex((1 << nl)-1)}")
    A.e(f"s_cbranch_scc1 {pfx}_{name}_d")
    A.e("s_sleep 1")
    A.e(f"s_branch {pfx}_{name}_p")
    A.label(f"{pfx}_{name}_d")
    if nl < 64: A.e("s_mov_b64 exec, -1")
    A.label(f"{pfx}_{name}_np")

PREF_K, PREF_V = 6, 5
def step(A, tau, t, first=False, last=False, fillers=None, pre=None):
    cur = S[t & 1]; nxt = S[(t+1) & 1]
    Pc = P[t & 1]; Pp = P[(t+1) & 1]
    par = tau & 1
    if t < NT-1: nt, ntau = t+1, tau
    else: nt, ntau = 0, tau+1
    do_next = not (last and t == NT-1)
    M1 = f"v_mfma_f32_32x32x16_bf16 {vr(nxt,16)}, {KAr(nt)}, {QAr(ntau)}, 0" if do_next else None
    M2 = f"v_mfma_f32_32x32x8_bf16 {vr(nxt,16)}, {KBr(nt)}, {QBr(ntau)}, {vr(nxt,16)}" if do_next else None
    if t == 0: pt, op, c0 = NT-1, O[par ^ 1], None
    else:
        pt, op = t-1, O[par]
        c0 = "0" if t == 1 else None
    if t == 0 and first: PV0p = PVp = None
    else:
        PV0p = f"v_mfma_f32_32x32x16_bf16 {vr(op,16)}, {VAr(pt,0)}, {vr(Pp,4)}, {c0 or vr(op,16)}"
        PVp = f"v_mfma_f32_32x32x16_bf16 {vr(op,16)}, {VAr(pt,1)}, {vr(Pp+4,4)}, {vr(op,16)}"
    E = lambda i: f"v_exp_f32 v{cur+i}, v{cur+i}"
    C = lambda i: f"v_cvt_pk_bf16_f32 v{Pc+i}, v{cur+2*i}, v{cur+2*i+1}"
    seq = [E(0), M1, E(1), E(2), C(0), E(3), E(4), PV0p, C(1), E(5), E(6), C(2), E(7), M2, E(8), C(3), E(9), E(10), C(4), E(11),
           PVp, E(12), C(5), E(13), E(14), E(15), C(6), C(7)]
    seq = [x for x in seq if x]
    groups = list(fillers or [])
    if groups:
        epos = [i for i, x in enumerate(seq) if x.startswith("v_exp")]
        flat = []
        for g in groups:
            if any(y.startswith("s_cbranch") for y in g) or any("exec" in y for y in g): flat.append(g)
            elif any("m0" in y for y in g): flat.append(g)
            else: flat += [[y] for y in g]
        n = len(flat); out = []; k = 0
        for i, x in enumerate(seq):
            out.append(x)
            if i in epos:
                want = ((epos.index(i)+1)*n + len(epos)-1)//len(epos) if True else 0
                while k < min(want, n):
                    out += flat[k]; k += 1
        for g in flat[k:]: out += g
        seq = out
    for x in (pre or []): A.e(x)
    for x in seq:
        if x.endswith(":"): A.label(x[:-1])
        else: A.e(x)

def part_addr_lines():
    L = ["s_lshl_b32 s29, s20, 1"]
    for tau in range(1, 7):
        slot_ = (-2 - ((tau-1) >> 1)) & 3
        for w in range(4):
            j = (2*w + 1 + tau) & 7
            assert slot_ == (w - (j >> 1) - 1) & 3
        L += [f"s_add_u32 s28, s29, {1+tau}", "s_and_b32 s28, s28, 7", f"s_mul_i32 s28, s28, {3*PART}",
              f"s_add_u32 s28, s28, {slot_*PART}", f"v_add_u32 v{VPA+tau-1}, s28, v4"]
    return L
def part_write(tau):
    par = (tau-1) & 1
    return [[f"ds_write_b128 v{VPA+tau-1}, {vr(O[par]+4*g,4)} offset:{1024*g}"] for g in range(3)]

def kv_load_groups():
    def ldK(t): return [[f"s_add_u32 s27, s44, {1024*t}", f"buffer_load_dwordx4 {KAr(t)}, v4, s[{SA}:{SA+3}], s27 offen"],
                        [f"s_add_u32 s28, s45, {512*t}", f"buffer_load_dwordx2 {KBr(t)}, v5, s[{SA}:{SA+3}], s28 offen"]]
    def ldV(t): return [[f"s_add_u32 s29, s46, {2048*t}", f"buffer_load_dwordx4 {VAr(t,0)}, v8, s[{SA}:{SA+3}], s29 offen"],
                        [f"buffer_load_dwordx4 {VAr(t,1)}, v8, s[{SA}:{SA+3}], s29 offen offset:1024"]]
    return ldK, ldV

def q_reads(A):
    A.e(f"v_mov_b32 v12, {L_BAD}")
    A.e("v_mov_b32 v13, 0")
    A.e("ds_write_b32 v12, v13")
    for tau in range(8):
        A.e(f"v_mov_b32 v{132+6*tau}, 0"); A.e(f"v_mov_b32 v{133+6*tau}, 0")
    A.e("s_lshl_b32 s35, s20, 1")
    for tau in range(8):
        A.e(f"s_add_u32 s36, s35, {2+tau}")
        A.e("s_and_b32 s36, s36, 7")
        A.e("s_mul_i32 s36, s36, 1280")
        A.e(f"s_add_u32 s36, s36, {L_QL}")
        A.e(f"v_add_u32 v12, s36, v{VQR}")
        A.e(f"v_add_u32 v13, s36, v{VQRB}")
        A.e(f"ds_read_b128 {QAr(tau)}, v12")
        A.e("s_mov_b32 exec_hi, 0")
        A.e(f"ds_read_b64 {QBr(tau)}, v13")
        A.e("s_mov_b32 exec_hi, -1")

def late_setup(A):
    A.e("s_mul_i32 s21, s23, 160")
    srd(A, SD, PWO, "0", add="s21")
    A.e(f"s_sub_u32 s{SD+2}, 819200, s21")
    srd(A, SF, PU, 2048*1280)

def first_scores(A):
    A.e(f"v_mfma_f32_32x32x16_bf16 {vr(S[0],16)}, {KAr(0)}, {QAr(0)}, 0")
    A.e(f"v_mfma_f32_32x32x8_bf16 {vr(S[0],16)}, {KBr(0)}, {QBr(0)}, {vr(S[0],16)}")
    A.e("s_nop 7"); A.e("s_nop 3")

def kgen_phase(A, pfx):
    q = Q(A)
    ldK, ldV = kv_load_groups()
    kv = []
    for t in range(NT): kv += [It(g, vm="kv") for g in ldK(t) + ldV(t)]
    ksetup, rows, afr, bfr, mms = kgen_parts()
    q.vq = []
    q_reads(A)
    q.run([It(x.txt) for x in ksetup])
    due = {49: 0, 65: 1, 81: 2, 97: 3}
    arow = {}
    for nt, r0 in enumerate((36, 52, 68, 84)):
        for i, it in enumerate(afr[nt]): arow.setdefault(r0 + i, []).append(it)
    share = [26, 14, 14, 10]; k = 0
    for pos, R in enumerate(rows):
        q.run(R + arow.get(pos, []))
        if pos+1 in due:
            nt = due[pos+1]
            q.run(bfr[nt])
            L = kv[k:k+share[nt]]; k += share[nt]
            if nt == 2: A.e("s_waitcnt vmcnt(30)")
            q.run(L[:4])
            q.run(merge(mms[nt], L[4:]))
    assert k == len(kv)
    q.all_l()
    A.e("s_nop 7")
    st(A)
    for l in kgen_pack_lines(): A.e(l)
    A.e("s_barrier")
    for l in kgen_write_lines(): A.e(l)
    late_setup(A)
    A.e("v_mov_b32 v192, 0")
    A.e("s_and_b32 s21, s20, 1")
    A.e("s_mul_i32 s21, s21, 8320")
    A.e(f"s_add_u32 s21, s21, {L_U0}")
    A.e("v_and_b32 v12, 15, v1")
    A.e("v_lshlrev_b32 v12, 2, v12")
    A.e("v_lshrrev_b32 v13, 4, v1")
    A.e("v_and_b32 v13, 1, v13")
    A.e("v_mul_u32_u24 v13, 0x2040, v13        ; 8256")
    A.e("v_add3_u32 v12, v12, v13, s21")
    A.e("ds_write_b32 v12, v192")
    A.e("s_waitcnt vmcnt(0)")
    st(A)
    first_scores(A)
    for t in range(NT): step(A, 0, t, first=True)

def b_transition(A, pfx):
    ldK, ldV = kv_load_groups()
    PK, PVn = PREF_K, PREF_V
    for g in ldK(0) + ldV(0):
        for x in g: A.e(x)
    q_reads(A)
    for t in range(1, PK):
        for g in ldK(t):
            for x in g: A.e(x)
        if t < PVn:
            for g in ldV(t):
                for x in g: A.e(x)
    late_setup(A)
    A.e("s_waitcnt lgkmcnt(0)")
    A.e("s_barrier")
    order = ["K0", "V0"]
    for t in range(1, PK):
        order.append(f"K{t}")
        if t < PVn: order.append(f"V{t}")
    A.e(f"s_waitcnt vmcnt({2*(len(order)-1)})")
    st(A)
    first_scores(A)
    for t in range(NT):
        fl = []; need = []
        if t+1 < NT: need.append(f"K{t+1}")
        if t >= 1: need.append(f"V{t-1}")
        idx = max(order.index(x) for x in need)
        nout = 2*(len(order) - 1 - idx)
        if t == NT-1: nout = 0
        new = []
        if t+PK < NT: fl += ldK(t+PK); new.append(f"K{t+PK}")
        if t+PVn < NT: fl += ldV(t+PVn); new.append(f"V{t+PVn}")
        step(A, 0, t, first=True, fillers=fl, pre=[f"s_waitcnt vmcnt({nout})"])
        order += new

def attention(A, pfx):
    srd(A, SA, PWS, WS_VA + 64*2048)
    A.e("s_lshl_b32 s44, s20, 14          ; KA: T*1024")
    A.e(f"s_lshl_b32 s45, s20, 13         ; KB: T*512")
    A.e(f"s_add_u32 s45, s45, {WS_KB}")
    A.e("s_lshl_b32 s46, s20, 15          ; VA: T*2048")
    A.e(f"s_add_u32 s46, s46, {WS_VA}")
    A.e(f"s_cmp_ge_u32 s3, {NCONV}")
    A.e(f"s_cbranch_scc1 {pfx}_btr")
    kgen_phase(A, pfx)
    A.e(f"s_branch {pfx}_tau1")
    A.label(f"{pfx}_btr")
    b_transition(A, pfx)
    A.label(f"{pfx}_tau1")
    st(A)
    wl = []
    for c in range(8): wl += wdma_ring(c, BWchunk(c))
    def bg(n):
        L = []
        la, lb = f"{pfx}_bga{n}", f"{pfx}_bgb{n}"
        if n < 8:
            L += [f"s_cbranch_vccnz {la}", f"s_add_u32 s63, s61, {64*1280*n}",
                  f"buffer_load_dwordx2 {vr(176+2*n,2)}, v{VUD}, s[{SF}:{SF+3}], s63 offen", f"s_branch {lb}", la + ":"] + wl[n] + [lb + ":"]
        elif 12 <= n < 20:
            k = n - 12
            L += [f"s_cbranch_vccnz {la}"] + (["s_waitcnt vmcnt(0)"] if k == 0 else []) + \
                 [f"ds_write_b32 v{VUP}, v{176+2*k} offset:{256*k}", f"ds_write_b32 v{VUP}, v{177+2*k} offset:{8320+256*k}",
                  f"s_branch {lb}", la + ":"] + wl[n] + [lb + ":"]
        else:
            L += [f"s_cbranch_vccz {lb}"] + wl[n] + [lb + ":"]
        return L
    A.e(f"s_cmp_ge_u32 s3, {NCONV}")
    A.e("s_cselect_b64 vcc, -1, 0")
    A.e(f"s_mul_i32 s61, s20, {512*1280}")
    for tau in range(1, 8):
        for t in range(NT):
            fl = []
            if tau <= 6 and t in (3, 4, 6): fl += [part_write(tau)[(3, 4, 6).index(t)]]
            if tau <= 6 and t in (5, 8, 11, 14): fl += [bg((tau-1)*4 + (t-5)//3)]
            step(A, tau, t, last=(tau == 7), fillers=fl)
        st(A)
    A.e("s_nop 1")
    par = 1; Pp = P[(NT-1) & 1]
    A.e(f"v_mfma_f32_32x32x16_bf16 {vr(O[par],16)}, {VAr(NT-1,0)}, {vr(Pp,4)}, {vr(O[par],16)}")
    A.e(f"v_mfma_f32_32x32x16_bf16 {vr(O[par],16)}, {VAr(NT-1,1)}, {vr(Pp+4,4)}, {vr(O[par],16)}")
    A.e("s_waitcnt vmcnt(0) lgkmcnt(0)")
    A.e("s_barrier")
    st(A)

def reduce_publish(A, pfx):
    quads = [[64, 68, 72, 76, 112, 116, 120, 124, 176], [180, 184, 188, 192, 196, 44, 48, 52, 56]]
    def rdpart(jj):
        for sl in range(3):
            for g in range(3):
                A.e(f"ds_read_b128 {vr(quads[jj][3*sl+g], 4)}, v{VRED} offset:{(jj*3+sl)*PART + 1024*g}")
    rdpart(0)
    srd(A, SC, PWS, 2048*1280, add=WS_O)
    A.e("s_mov_b64 s[56:57], 0")
    for jj in range(2):
        Of = O[jj]
        A.e("s_waitcnt lgkmcnt(0)")
        if jj == 0: rdpart(1)
        for sl in range(3):
            for r in range(12): A.e(f"v_add_f32 v{Of+r}, v{Of+r}, v{quads[jj][3*sl + (r >> 2)] + (r & 3)}")
        A.e(f"v_mov_b32 v28, v{Of+8}")
        A.e(f"v_mov_b32 v29, v{Of+8}")
        A.e(f"v_max3_f32 v30, |v{Of}|, |v{Of+1}|, |v{Of+2}|")
        A.e(f"v_max3_f32 v30, v30, |v{Of+3}|, |v{Of+4}|")
        A.e("v_permlane32_swap_b32 v28, v29")
        for r in range(5, 11, 2): A.e(f"v_max3_f32 v30, v30, |v{Of+r}|, |v{Of+r+1}|")
        A.e(f"v_max_f32 v30, v30, |v{Of+11}|")
        A.e("v_cmp_nle_f32 vcc, 0x2b800000, v29      ; !(2^-40 <= l)")
        A.e("s_or_b64 s[56:57], s[56:57], vcc")
        A.e("v_cmp_nge_f32 vcc, 0x53800000, v29      ; !(2^40 >= l)")
        A.e("s_or_b64 s[56:57], s[56:57], vcc")
        A.e("v_cmp_ngt_f32 vcc, 0x7f800000, v30")
        A.e("s_or_b64 s[56:57], s[56:57], vcc")
        A.e("v_rcp_f32 v29, v29")
        A.e("s_nop 0")
        for r in range(12): A.e(f"v_mul_f32 v{16+r}, v{Of+r}, v29")
        for g in range(3):
            A.e(f"v_cvt_pk_bf16_f32 v{32+6*jj+2*g}, v{16+4*g}, v{17+4*g}")
            A.e(f"v_cvt_pk_bf16_f32 v{33+6*jj+2*g}, v{18+4*g}, v{19+4*g}")
    A.e(f"v_mov_b32 v14, {L_BAD}")
    A.e("s_cmp_eq_u64 s[56:57], 0")
    A.e(f"s_cbranch_scc1 {pfx}_safe")
    A.e("v_mov_b32 v15, 1")
    A.e("ds_write_b32 v14, v15")
    A.e("s_waitcnt lgkmcnt(0)")
    A.label(f"{pfx}_safe")
    A.e("s_barrier")
    A.e("ds_read_b32 v15, v14")
    for jj in range(2):
        A.e(f"ds_write_b64 v{VOS}, {vr(32+6*jj,2)} offset:{5120*jj}")
        A.e(f"ds_write_b64 v{VOS}, {vr(34+6*jj,2)} offset:{5120*jj+16}")
        A.e(f"ds_write_b64 v{VOS2a if jj == 0 else VOS2b}, {vr(36+6*jj,2)}")
    for i in range(3):
        A.e("s_mul_i32 s24, s23, 10")
        A.e("s_add_u32 s24, s24, s20")
        if i: A.e(f"s_add_u32 s24, s24, {4*i}")
        A.e("s_lshr_b32 s25, s24, 2")
        A.e("s_lshl_b32 s25, s25, 10")
        A.e("s_and_b32 s24, s24, 3")
        A.e("s_lshl_b32 s24, s24, 8")
        A.e("s_add_u32 s24, s24, s25")
        A.e("s_mul_i32 s25, s22, 81920")
        A.e(f"s_add_u32 s{28+i}, s24, s25")
    A.e("s_waitcnt lgkmcnt(0)")
    A.e("v_readfirstlane_b32 s56, v15")
    A.e("s_nop 0")
    A.e("s_cmp_lg_u32 s56, 0")
    A.e(f"s_cbranch_scc1 {pfx}_slow")
    A.label(f"{pfx}_staged")
    A.e("s_barrier")
    for i in range(3):
        A.e(f"ds_read_b128 {vr(44+4*i,4)}, v{VTID16} offset:{64*i}")
    for i in range(2):
        A.e(f"s_waitcnt lgkmcnt({2-i})")
        A.e(f"buffer_store_dwordx4 {vr(44+4*i,4)}, v{VOG}, s[{SC}:{SC+3}], s{28+i} offen sc1")
    A.e("s_cmp_ge_u32 s20, 2")
    A.e(f"s_cbranch_scc1 {pfx}_no3rd")
    A.e("s_waitcnt lgkmcnt(0)")
    A.e(f"buffer_store_dwordx4 {vr(52,4)}, v{VOG}, s[{SC}:{SC+3}], s30 offen sc1")
    A.label(f"{pfx}_no3rd")
    A.e("s_waitcnt lgkmcnt(0)")
    A.e("s_lshl_b32 s21, s22, 7")
    A.e(f"s_add_u32 s21, s21, {WS_FLAG}")
    srd(A, SE_, PWS, 128, add="s21")
    A.e(f"s_cmp_ge_u32 s3, {NCONV}")
    A.e(f"s_cbranch_scc1 {pfx}_nouprep")
    u_prep(A)
    A.label(f"{pfx}_nouprep")
    A.e("s_waitcnt vmcnt(0)")
    A.e("s_barrier")
    A.e("s_cmp_lg_u32 s20, 0")
    A.e(f"s_cbranch_scc1 {pfx}_noflag")
    A.e("s_lshl_b32 s21, s23, 2")
    A.e("v_mov_b32 v12, s21")
    A.e("v_mov_b32 v13, 1")
    A.e("s_mov_b64 exec, 1")
    A.e(f"buffer_store_dword v13, v12, s[{SE_}:{SE_+3}], 0 offen sc1")
    A.e("s_mov_b64 exec, -1")
    A.label(f"{pfx}_noflag")
    st(A)

def u_prep(A):
    for ps in range(5):
        b = 64 + 10*ps
        A.e(f"ds_read_b128 {vr(b,4)}, v{VUR} offset:{2048*ps}")
        A.e(f"ds_read_b128 {vr(b+4,4)}, v{VUR} offset:{2048*ps+16}")
        A.e(f"ds_read_b32 v{b+8}, v{VUR} offset:{2048*ps+32}")
    A.e("s_and_b32 s21, s20, 1")
    A.e("s_cmp_eq_u32 s21, 0")
    A.e("s_mov_b32 s25, 0x07060302")
    A.e("s_cselect_b32 s26, 0x05040100, s25")
    A.e(f"v_add_u32 v12, {L_U0}, v{VUW}")
    A.e("s_waitcnt lgkmcnt(0)")
    A.e("s_barrier")
    for ps in range(5):
        b = 64 + 10*ps
        if ps == 4: A.e("s_mov_b64 exec, 15")
        o = 116 + 8*(ps & 1)
        for i in range(4): A.e(f"v_perm_b32 v{o+i}, v{b+2*i+1}, v{b+2*i}, s26")
        for i in range(4): A.e(f"v_perm_b32 v{o+4+i}, v{b+2*i+2}, v{b+2*i+1}, s26")
        A.e(f"ds_write_b128 v12, {vr(o,4)} offset:{1024*ps}")
        A.e(f"ds_write_b128 v{VUW}, {vr(o+4,4)} offset:{L_U1+1024*ps}")
        if ps == 4: A.e("s_mov_b64 exec, -1")

def conv_part(A, pfx):
    ACC = 16; AB = 64
    def Br(D, i): return ar(32*D + 4*i, 4)
    def Ar(c, i): return vr(AB + 32*(c & 1) + 4*i, 4)
    def Ahalf(c, i, h): return vr(AB + 32*(c & 1) + 4*i + 2*h, 2)
    srd(A, SH, POUT, 2048*2560)
    A.e("s_waitcnt lgkmcnt(0)")
    st(A)
    q = Q(A)
    def readsA(c):
        L = [It(f"v_add_u32 v11, {512*c}, v{VCU}")]
        for i in range(8):
            L.append(It(f"ds_read2_b32 {Ahalf(c,i,0)}, v11 offset0:{16*i} offset1:{16*i+1}", lds=f"a{c}_{i}"))
            L.append(It(f"ds_read2_b32 {Ahalf(c,i,1)}, v11 offset0:{16*i+2} offset1:{16*i+3}", lds=f"a{c}_{i}"))
        return L
    def readsB(D):
        return [It(f"ds_read_b128 {Br(D,i)}, v{VCK} offset:{512*(7-D)+64*i}", lds=f"b{D}_{i}") for i in range(8)]
    def mm(c, D, i):
        acc = ACC + 4*(c + D)
        first = (c == 0 and i == 0)
        return It(f"v_mfma_f32_16x16x32_bf16 {vr(acc,4)}, {Ar(c,i)}, {Br(D,i)}, {'0' if first else vr(acc,4)}", needl=(f"a{c}_{i}", f"b{D}_{i}"), w=2)
    def flush1(B):
        acc = ACC + 4*B; bo = (B & 1)*YSB
        return [It(f"v_cvt_pk_bf16_f32 v48, v{acc}, v{acc+1}"), It(f"v_cvt_pk_bf16_f32 v49, v{acc+2}, v{acc+3}"),
                It(f"ds_write_b64 v{VYS}, v[48:49] offset:{bo}", lds=f"yw{B}")]
    def flush2(B):
        bo = (B & 1)*YSB; r = 50 + 2*(B & 1)
        return [It("s_barrier", needl=(f"yw{B}",)),
                It(f"ds_read_b64_tr_b16 {vr(r,2)}, v{VYT} offset:{bo}", lds=f"yr{B}")]
    def flush3(B):
        r = 50 + 2*(B & 1)
        return [It([f"s_mov_b32 s28, {B*256*2560}", f"buffer_store_dwordx2 {vr(r,2)}, v{VYO}, s[{SH}:{SH+3}], s28 offen"], vm="Y", needl=(f"yr{B}",))]
    q.run(readsA(0) + readsB(0))
    for c in range(8):
        if c == 0:
            for D in range(8):
                M = [mm(0, D, i) for i in range(8)]
                R = readsB(D+1) if D < 7 else readsA(1)
                q.run(merge(M, R))
        else:
            M = [mm(c, D, i) for i in range(8) for D in range(8-c)]
            R = readsA(c+1) if c < 7 else []
            n = len(M); h1 = min(5, n); h2 = max(h1, n//2);
            q.run(M[:h1])
            if c == 7: A.e("s_nop 2")
            q.run(flush1(c-1))
            q.run(merge(M[h1:h2], R[:len(R)//2]))
            q.run(flush2(c-1))
            q.run(merge(M[h2:], R[len(R)//2:]))
            q.run(flush3(c-1))
        import os
        if Cfg.STAMP and os.environ.get("DETC") == "1": st(A); q.lq = []
    A.e("s_nop 7")
    q.run(flush1(7) + flush2(7) + flush3(7))
    st(A)
    finish(A)

BW0 = 73728
def BWchunk(c): return (BW0 + c*WCH) if c < 8 else (16704 + (c-8)*WCH)
BXBUF = [0, 8192, 37184, 37184+8192, 37184+16384, 37184+24576]

def finish(A):
    if Cfg.STAMP:
        A.e("s_waitcnt vmcnt(0)")
        st(A)
        A.e("s_mov_b32 s2, s3")
        stamp_out(A, PWS, 4, STAMP_BASE, VSTAMP, VSTMP)
    A.e("s_endpgm")

def outproj_b(A, pfx):
    A.e("s_mov_b32 s60, s22")
    A.e("s_sub_u32 s61, s22, 20")
    A.e("s_add_u32 s62, s61, 12")
    A.e("s_cmp_lt_u32 s62, 20")
    A.e("s_cselect_b32 s63, 3, 2")
    A.e("s_cselect_b32 s62, s62, s61")
    q = Q(A)
    for c in (8, 9): q.run([It(g, vm=f"W{c}") for g in wdma_ring(c, BWchunk(c))])
    srd(A, SE_, PWS, 32*128, add=WS_FLAG)
    def wait_flags(name, regs):
        nl = 8*len(regs)
        A.e("s_cmp_lg_u32 s20, 0")
        A.e(f"s_cbranch_scc1 {pfx}_{name}_np")
        A.e(f"v_mov_b32 v14, s{regs[0]}")
        if len(regs) > 1:
            A.e("v_lshrrev_b32 v13, 3, v1")
            A.e("v_cmp_eq_u32 vcc, 1, v13")
            A.e(f"v_mov_b32 v15, s{regs[1]}")
            A.e("s_nop 0")
            A.e("v_cndmask_b32 v14, v14, v15, vcc")
        A.e("v_and_b32 v12, 7, v1")
        A.e("v_lshlrev_b32 v12, 2, v12")
        A.e("v_lshl_add_u32 v12, v14, 7, v12")
        A.e(f"s_mov_b32 s35, {SPIN_MAX}")
        A.e(f"s_mov_b64 exec, {hex((1 << nl)-1)}")
        A.label(f"{pfx}_{name}_p")
        A.e(f"buffer_load_dword v13, v12, s[{SE_}:{SE_+3}], 0 offen sc1")
        A.e("s_waitcnt vmcnt(0)")
        A.e("v_cmp_ne_u32 vcc, 0, v13")
        A.e("s_sub_u32 s35, s35, 1")
        A.e("s_cmp_eq_u32 s35, 0")
        A.e(f"s_cbranch_scc1 {pfx}_{name}_d")
        A.e(f"s_cmp_eq_u32 vcc_lo, {hex((1 << nl)-1)}")
        A.e(f"s_cbranch_scc1 {pfx}_{name}_d")
        A.e("s_sleep 1")
        A.e(f"s_branch {pfx}_{name}_p")
        A.label(f"{pfx}_{name}_d")
        A.e("s_mov_b64 exec, -1")
        A.label(f"{pfx}_{name}_np")
        A.e("s_waitcnt vmcnt(0)")
        A.e("s_barrier")
    wait_flags("o", [60])
    q.vq = []
    st(A)
    srd(A, SA, PWS, 2048*1280, add=WS_O)
    srd(A, SC, POUT, 2048*2560)
    for t in range(3):
        A.e(f"s_lshl_b32 s21, s{60+t}, 2")
        A.e("s_add_u32 s21, s21, s20")
        A.e(f"s_mul_i32 s{56+t}, s21, 20480")
    ACC = [16, 36]; WF = 56
    def Xr(sl, kk): return ar(80*sl + 4*kk, 4)
    def xld(sl, t, kk):
        return It([f"s_add_u32 s36, s{56+t}, {1024*kk}", f"buffer_load_dwordx4 {Xr(sl, kk)}, v4, s[{SA}:{SA+3}], s36 offen"], vm=f"X{sl}_{kk}")
    def rdW(kk, mt):
        c, ks = kk >> 1, kk & 1; out = []
        for h in range(2):
            off = BWchunk(c) + (32*ks + 8*h)*160 + 32*mt
            a = VWT
            if off >= 131072: a, off = VWTh2, off - 131072
            elif off >= 65536: a, off = VWTh, off - 65536
            out.append(It(f"ds_read_b64_tr_b16 {vr(WF+mt*4+h*2,2)}, v{a} offset:{off}", lds=f"w{kk}_{mt}"))
        return out
    def pack(slot, base):
        for mt in range(5):
            acc = ACC[slot] + 4*mt
            r = base + 2*mt
            A.e(f"v_cvt_pk_bf16_f32 v{r}, v{acc}, v{acc+1}")
            A.e(f"v_cvt_pk_bf16_f32 v{r+1}, v{acc+2}, v{acc+3}")
    def store(base, t):
        A.e(f"s_mul_i32 s21, s{60+t}, 163840")
        A.e("s_add_u32 s21, s21, s55")
        for mt in range(5):
            q.emit(It(f"buffer_store_dwordx2 {vr(base+2*mt,2)}, v{VOUT}, s[{SC}:{SC+3}], s21 offen offset:{32*mt}", vm="S"))
    A.e("s_mul_i32 s55, s23, 160")
    A.e("s_add_u32 s55, s55, 1280")
    def run_pass(tiles):
        n = len(tiles)
        loads = [xld(sl, t, kk) for kk in range(20) for sl, t in enumerate(tiles)]
        ahead = 8*n
        q.run(loads[:ahead]); loads = loads[ahead:]
        for mt in range(5): q.run(rdW(0, mt))
        for kk in range(20):
            for mt in range(5):
                for sl in range(n):
                    nl = gemm_need(kk, mt, []) if sl == 0 else ()
                    nv = tuple(f"X{z}_{kk}" for z in range(n)) if (mt == 0 and sl == 0) else ()
                    q.emit(It(f"v_mfma_f32_16x16x32_bf16 {vr(ACC[sl]+4*mt,4)}, {vr(WF+4*mt,4)}, {Xr(sl, kk)}, {vr(ACC[sl]+4*mt,4) if kk else '0'}",
                              needl=nl, needv=nv))
                if loads and mt < n: q.emit(loads.pop(0))
                if kk+1 < 20: q.run(rdW(kk+1, mt))
        assert not loads
        q.all_l()
        A.e("s_nop 7")
    run_pass([0])
    pack(0, 92)
    store(92, 0)
    st(A)
    wait_flags("o2", [61, 62])
    q.vq = []
    st(A)
    A.e("s_cmp_eq_u32 s63, 2")
    A.e(f"s_cbranch_scc1 {pfx}_b2")
    q = Q(A)
    run_pass([1, 2])
    st(A)
    pack(0, 92); pack(1, 102)
    store(92, 1); store(102, 2)
    finish(A)
    A.label(f"{pfx}_b2")
    q = Q(A)
    run_pass([1])
    st(A)
    pack(0, 92)
    store(92, 1)
    finish(A)

def slow_softmax(A, pfx):
    QD, MX, PS = 10240, 22528, 24576
    Sx, Px, Ox, QFA, QFB = 16, 48, 80, 64, 68
    A.label(f"{pfx}_slow")
    A.e("s_barrier")
    A.e("s_cmp_lg_u32 s20, 0")
    A.e(f"s_cbranch_scc1 {pfx}_sl_nodump")
    A.e("v_lshlrev_b32 v13, 3, v1")
    for tau in range(8):
        j = (2 + tau) & 7
        A.e(f"ds_write_b128 v4, {QAr(tau)} offset:{QD + 1536*j}")
        A.e(f"ds_write_b64 v13, {QBr(tau)} offset:{QD + 1536*j + 1024}")
    A.e("s_waitcnt lgkmcnt(0)")
    A.label(f"{pfx}_sl_nodump")
    A.e("s_barrier")
    A.e("s_mov_b32 s56, 0                 ; tile j")
    A.e("v_and_b32 v12, 31, v1")
    A.e("v_lshlrev_b32 v12, 2, v12        ; query*4")
    A.e("s_lshl_b32 s21, s20, 7")
    A.e(f"s_add_u32 s21, s21, {MX}")
    A.e("v_add_u32 v72, s21, v12")
    A.e(f"v_add_u32 v73, {MX}, v12")
    A.e(f"s_mul_i32 s21, s20, {PART}")
    A.e(f"s_add_u32 s21, s21, {PS}")
    A.e("v_add_u32 v74, s21, v4")
    A.e(f"v_add_u32 v75, {PS}, v4")
    A.label(f"{pfx}_sl_loop")
    A.e("s_mul_i32 s21, s56, 1536")
    A.e(f"s_add_u32 s21, s21, {QD}")
    A.e("v_add_u32 v14, s21, v4")
    A.e("v_lshlrev_b32 v15, 3, v1")
    A.e("v_add_u32 v15, s21, v15")
    A.e(f"ds_read_b128 {vr(QFA,4)}, v14")
    A.e(f"ds_read_b64 {vr(QFB,2)}, v15 offset:1024")
    A.e("v_mov_b32 v70, 0xff800000")
    A.e("s_waitcnt lgkmcnt(0)")
    def scores(t):
        A.e(f"v_mfma_f32_32x32x16_bf16 {vr(Sx,16)}, {KAr(t)}, {vr(QFA,4)}, 0")
        A.e(f"v_mfma_f32_32x32x8_bf16 {vr(Sx,16)}, {KBr(t)}, {vr(QFB,2)}, {vr(Sx,16)}")
        A.e("s_nop 11")
    for t in range(NT):
        scores(t)
        for i in range(8): A.e(f"v_max3_f32 v70, v70, v{Sx+2*i}, v{Sx+2*i+1}")
        A.e("s_nop 6")
    A.e("v_mov_b32 v71, v70")
    A.e("v_mov_b32 v76, v70")
    A.e("s_nop 1")
    A.e("v_permlane32_swap_b32 v71, v76")
    A.e("s_nop 1")
    A.e("v_max3_f32 v70, v70, v71, v76")
    A.e("ds_write_b32 v72, v70")
    A.e("s_waitcnt lgkmcnt(0)")
    A.e("s_barrier")
    for w in range(4): A.e(f"ds_read_b32 v{76+w}, v73 offset:{128*w}")
    A.e("s_waitcnt lgkmcnt(0)")
    A.e("v_max3_f32 v71, v76, v77, v78")
    A.e("v_max_f32 v71, v71, v79")
    for t in range(NT):
        scores(t)
        for i in range(16): A.e(f"v_sub_f32 v{Sx+i}, v{Sx+i}, v71")
        for i in range(16): A.e(f"v_exp_f32 v{Sx+i}, v{Sx+i}")
        A.e("s_nop 0")
        for i in range(8): A.e(f"v_cvt_pk_bf16_f32 v{Px+i}, v{Sx+2*i}, v{Sx+2*i+1}")
        A.e("s_nop 1")
        A.e(f"v_mfma_f32_32x32x16_bf16 {vr(Ox,16)}, {VAr(t,0)}, {vr(Px,4)}, {'0' if t == 0 else vr(Ox,16)}")
        A.e(f"v_mfma_f32_32x32x16_bf16 {vr(Ox,16)}, {VAr(t,1)}, {vr(Px+4,4)}, {vr(Ox,16)}")
        A.e("s_nop 6")
    A.e("s_nop 11")
    for g in range(3): A.e(f"ds_write_b128 v74, {vr(Ox+4*g,4)} offset:{1024*g}")
    A.e("s_waitcnt lgkmcnt(0)")
    A.e("s_barrier")
    A.e("s_lshr_b32 s21, s56, 1")
    A.e("s_cmp_lg_u32 s21, s20")
    A.e(f"s_cbranch_scc1 {pfx}_sl_next")
    for w in range(4):
        for g in range(3): A.e(f"ds_read_b128 {vr(16+12*w+4*g,4)}, v75 offset:{PART*w + 1024*g}")
    A.e("s_waitcnt lgkmcnt(0)")
    for w in range(1, 4):
        for r in range(12): A.e(f"v_add_f32 v{16+r}, v{16+r}, v{16+12*w+r}")
    A.e("v_mov_b32 v76, v24")
    A.e("v_mov_b32 v77, v24")
    A.e("s_nop 1")
    A.e("v_permlane32_swap_b32 v76, v77")
    A.e("s_nop 1")
    A.e("v_rcp_f32 v77, v77")
    A.e("s_nop 0")
    for r in range(12): A.e(f"v_mul_f32 v{16+r}, v{16+r}, v77")
    for g in range(3):
        A.e(f"v_cvt_pk_bf16_f32 v{32+2*g}, v{16+4*g}, v{17+4*g}")
        A.e(f"v_cvt_pk_bf16_f32 v{33+2*g}, v{18+4*g}, v{19+4*g}")
    A.e("s_and_b32 s21, s56, 1")
    A.e("s_mul_i32 s21, s21, 5120")
    A.e(f"v_add_u32 v14, s21, v{VOS}")
    A.e("ds_write_b64 v14, v[32:33]")
    A.e("ds_write_b64 v14, v[34:35] offset:16")
    A.e("s_mov_b32 exec_hi, 0")
    A.e("ds_write_b64 v14, v[36:37] offset:32")
    A.e("s_mov_b32 exec_hi, -1")
    A.e("s_waitcnt lgkmcnt(0)")
    A.label(f"{pfx}_sl_next")
    A.e("s_barrier")
    A.e("s_add_u32 s56, s56, 1")
    A.e("s_cmp_lt_u32 s56, 8")
    A.e(f"s_cbranch_scc1 {pfx}_sl_loop")
    A.e(f"s_branch {pfx}_staged")

def mega_role(A, pfx):
    prologue(A, pfx)
    front(A, pfx)
    attention(A, pfx)
    reduce_publish(A, pfx)
    A.e(f"s_cmp_ge_u32 s3, {NCONV}")
    A.e(f"s_cbranch_scc1 {pfx}_bback")
    conv_part(A, pfx)
    A.label(f"{pfx}_bback")
    outproj_b(A, pfx)
    slow_softmax(A, pfx)
    A.label(f"{pfx}_end")
    A.e("s_endpgm")
```

```python
from common import *
from sched import *
import math
LOG2E = math.log2(math.e)
GBUF = 18432; GXB = 8192
L_KR = 73728
L_KG = 0; KGW = 25872
RA = 3
L_XR = 0; L_WKV = 81920; L_WR = 107520
L_QL = 104448
L_PART = 0; PART = 3072
L_U0 = 92160; CS = 4160
L_WA = 108800; WCH = 10240
L_DUMMY = 160000
L_U1 = 64; L_WB = 16704
L_YS = 16896; YSC = 576; YSB = 4*YSC
L_BAD = 161024
LDS_MEGA = 161088
def Wchunk(c): return (L_WA + c*WCH) if c < 5 else (L_WB + (c-5)*WCH)
XBUF = [L_KR, L_KR+8192, L_U0, L_U0+8192, L_U1, L_U1+8192]
WS_FLAG = 0x1100000
SPIN_MAX = 1 << 18
NCONV = 160
PU, PARE, PAIM, PBRE, PBIM, PCRE, PCIM, PLDT = 64, 66, 68, 70, 72, 74, 76, 78
PDSK, PX, PWQ, PWK, PWV, PWO, POUT, PDBG = 80, 82, 84, 86, 88, 90, 92, 94
PWS = 4
SA, SB, SC, SD, SE_, SF, SG, SH = 8, 12, 16, 40, 44, 48, 52, 56
VXD0, VXD1 = 200, 201
VWD = 202
VOUT = 205
VYO = 206
VOS, VOS2a, VOS2b = 207, 208, 209
VOG = 210
VTID16 = 213
VCU, VCK = 214, 215
VYS = 216
VYT, VUT = 217, 218
VUR = 219
VUW = 220
VRED = 221
VXF0, VXF1 = 222, 223
VWT = 224
VUD = 225
VQW = 226
VQR, VQRB = 231, 232
VXF0h, VXF1h, VWTh, VWTh2 = 233, 234, 235, 236
VOUT2 = 245
VUP = 237
VPA = 238
VSTAMP, VSTMP = 252, 253
S = [16, 32]; P = [48, 56]; O = [80, 96]; VW = 7; NT = 16
def QAr(tau): return vr(128+6*tau, 4)
def QBr(tau): return vr(132+6*tau, 2)
def KAr(t): return ar(4*t, 4)
def KBr(t): return ar(64+2*t, 2)
def VAr(t, u): return ar(96+8*t+4*u, 4)

def st(A): stamp(A, VSTAMP)

PREFETCH = True
CODE_BYTES = 80*1024
def prefetch(A, pfx):
    A.e("s_getpc_b64 s[24:25]")
    A.label(f"{pfx}_pc")
    A.e("s_lshr_b32 s26, s3, 3")
    A.e("s_lshl_b32 s26, s26, 2")
    A.e("s_add_u32 s26, s26, s20          ; slice 0..127")
    A.e("s_mul_i32 s26, s26, 768")
    A.e("v_min_u32 v12, 5, v1")
    A.e("v_lshlrev_b32 v12, 7, v12")
    A.e("v_add_u32 v12, s26, v12")
    A.e(f"v_min_u32 v12, mg_end-{pfx}_pc-4, v12")
    A.e("global_load_dword v249, v12, s[24:25]")
    A.e("s_lshl_b32 s26, s3, 2")
    A.e("s_add_u32 s26, s26, s20")
    A.e("s_lshl_b32 s26, s26, 6")
    A.e("v_add_u32 v12, s26, v1           ; slot")
    A.e("v_lshlrev_b32 v13, 7, v12")
    srd(A, SB, PX, 2048*1280)
    A.e(f"buffer_load_dword v250, v13, s[{SB}:{SB+3}], 0 offen")
    A.e("v_subrev_u32 v13, 0x280000, v13")
    srd(A, SB, PWQ, 819200)
    A.e(f"buffer_load_dword v251, v13, s[{SB}:{SB+3}], 0 offen")
def prologue(A, pfx):
    A.e("s_load_dwordx16 s[64:79], s[0:1], 0")
    A.e("s_load_dwordx16 s[80:95], s[0:1], 64")
    A.e(f"s_load_dwordx2 s[4:5], s[0:1], 128")
    stamp_init(A, VSTAMP); st(A)
    A.e("v_and_b32 v1, 63, v0")
    A.e("v_lshrrev_b32 v12, 6, v0")
    A.e("v_lshlrev_b32 v4, 4, v1          ; lane*16")
    A.e("v_readfirstlane_b32 s20, v12")
    A.e("v_and_b32 v2, 15, v1")
    A.e("v_lshrrev_b32 v3, 4, v1")
    A.e(f"s_sub_u32 s52, s3, {NCONV}        ; j")
    A.e("s_and_b32 s24, s3, 7             ; r")
    A.e("s_lshr_b32 s25, s3, 3            ; q (conv)")
    A.e("s_lshr_b32 s26, s52, 3           ; q (others)")
    A.e(f"s_cmp_ge_u32 s3, {NCONV}")
    A.e("s_cselect_b32 s25, s26, s25      ; q")
    A.e("s_cselect_b32 s26, 8, 16")
    A.e("s_cselect_b32 s27, 20, 0")
    A.e("s_cselect_b32 s28, 28, 16")
    A.e("s_lshr_b32 s22, s25, 3")
    A.e("s_lshl_b32 s22, s22, 3")
    A.e("s_add_u32 s22, s22, s24")
    A.e("s_add_u32 s22, s22, s27")
    A.e("s_and_b32 s23, s25, 7")
    A.e("s_lshr_b32 s29, s24, 1")
    A.e("s_add_u32 s29, s29, s28")
    A.e("s_and_b32 s30, s24, 1")
    A.e("s_lshl_b32 s30, s30, 2")
    A.e("s_add_u32 s30, s30, s25")
    A.e("s_sub_u32 s30, s30, s26")
    A.e("s_cmp_ge_u32 s25, s26")
    A.e("s_cselect_b32 s22, s29, s22")
    A.e("s_cselect_b32 s23, s30, s23")
    A.e("s_lshr_b32 s53, s52, 5")
    A.e("s_min_u32 s53, s53, 2")
    A.e("s_cselect_b32 s53, s53, s53")
    A.e(f"s_cmp_lt_u32 s3, {NCONV}")
    A.e("s_cselect_b32 s53, 2, s53")
    A.e("s_and_b32 s54, s52, 31")
    A.e("s_cmp_lt_u32 s53, 2")
    A.e("s_cselect_b32 s54, s54, s22")
    A.e("s_lshl_b32 s32, s20, 10          ; wave*1024")
    A.e("s_lshl_b32 s31, s20, 11          ; wave*2048")
    A.e("s_and_b32 s33, s3, 7")
    A.e("s_mul_i32 s33, s33, 20")
    A.e("s_lshr_b32 s34, s3, 3")
    A.e("s_add_u32 s33, s33, s34")
    A.e("s_min_u32 s33, s33, 159")
    A.e("s_lshl_b32 s34, s33, 2")
    A.e("s_add_u32 s34, s34, s20          ; channel d")
    A.e("s_movk_i32 s27, 1280")
    A.e("v_lshrrev_b32 v12, 3, v1")
    A.e("v_and_b32 v13, 7, v1")
    A.e("v_xor_b32 v13, v13, v12")
    A.e("v_lshlrev_b32 v13, 4, v13")
    A.e("s_lshl_b32 s21, s20, 4")
    A.e("v_add_u32 v12, s21, v12")
    A.e(f"v_mad_u32_u24 v{VXD0}, v12, s27, v13")
    A.e(f"v_add_u32 v{VXD1}, 10240, v{VXD0}")
    A.e("s_mov_b32 s26, 6554")
    for n in range(3):
        A.e(f"s_add_u32 s21, s20, {4*n}")
        A.e("s_lshl_b32 s21, s21, 6")
        A.e("v_add_u32 v12, s21, v1          ; p")
        A.e("v_mul_u32_u24 v13, s26, v12")
        A.e("v_lshrrev_b32 v13, 16, v13      ; rho")
        A.e("v_mul_u32_u24 v14, 10, v13")
        A.e("v_sub_u32 v14, v12, v14         ; cc")
        A.e("v_lshlrev_b32 v14, 4, v14")
        A.e("v_and_b32 v15, 0x33, v13")
        A.e("v_bfe_u32 v5, v13, 2, 1")
        A.e("v_lshl_or_b32 v15, v5, 3, v15")
        A.e("v_bfe_u32 v5, v13, 3, 1")
        A.e("v_lshl_or_b32 v15, v5, 2, v15")
        A.e(f"v_mad_u32_u24 v{VWD+n}, v15, s27, v14")
        if n == 2:
            A.e(f"v_mov_b32 v12, {OOB}")
            A.e("v_cmp_gt_u32 vcc, 64, v13")
            A.e("s_nop 1")
            A.e(f"v_cndmask_b32 v{VWD+2}, v12, v{VWD+2}, vcc")
    for l in addr_setup_items(): A.e(l)
    A.e("s_waitcnt lgkmcnt(0)")
    A.e("s_mul_i32 s21, s54, 81920")
    srd(A, SA, PX, 81920, add="s21")
    A.e("s_mul_i32 s21, s23, 160")
    srd(A, SD, PWQ, "0", add="s21")
    A.e(f"s_sub_u32 s{SD+2}, 819200, s21")

def addr_setup_items(part="front"):
    T = Asm(); A = T
    A.e("s_lshl_b32 s21, s20, 4")
    A.e("v_add_u32 v12, s21, v2")
    A.e("v_lshlrev_b32 v12, 7, v12")
    A.e("v_and_b32 v13, 7, v2")
    A.e("v_xor_b32 v14, v13, v3")
    A.e(f"v_lshl_add_u32 v{VXF0}, v14, 4, v12")
    A.e("v_add_u32 v14, 4, v3")
    A.e("v_xor_b32 v14, v13, v14")
    A.e(f"v_lshl_add_u32 v{VXF1}, v14, 4, v12")
    A.e(f"v_add_u32 v{VXF0h}, 65536, v{VXF0}")
    A.e(f"v_add_u32 v{VXF1h}, 65536, v{VXF1}")
    A.e("v_lshrrev_b32 v12, 1, v3")
    A.e("v_lshlrev_b32 v12, 4, v12")
    A.e("v_and_b32 v13, 1, v3")
    A.e("v_lshl_add_u32 v12, v13, 2, v12")
    A.e("v_lshrrev_b32 v13, 2, v2")
    A.e("v_add_u32 v12, v12, v13")
    A.e("v_mul_u32_u24 v12, 160, v12")
    A.e("v_and_b32 v13, 3, v2")
    A.e(f"v_lshl_add_u32 v{VWT}, v13, 3, v12")
    A.e(f"v_add_u32 v{VWTh}, 65536, v{VWT}")
    A.e(f"v_add_u32 v{VWTh2}, 0x20000, v{VWT}")
    A.e("s_and_b32 s21, s20, 1")
    A.e("s_lshl_b32 s21, s21, 4")
    A.e("v_add_u32 v15, s21, v2          ; pos32")
    A.e("s_lshr_b32 s24, s20, 1")
    A.e("s_mul_i32 s24, s24, 1280")
    A.e(f"s_add_u32 s24, s24, {L_QL}")
    A.e("v_lshlrev_b32 v14, 3, v15        ; 8*pos32")
    A.e("v_add_u32 v14, s24, v14")
    A.e("v_lshlrev_b32 v13, 4, v3")
    A.e("v_and_b32 v13, 16, v13")
    A.e("v_cmp_lt_u32 vcc, 1, v3          ; g >= 2")
    for mt in range(5):
        cs = []; isb = []
        for g in range(4):
            c0 = 16*mt + 4*g; hl, d0 = divmod(c0, 20)
            if d0 < 16: cs.append(hl*2560 + ((d0 >> 2) & 1)*512 + (d0 >> 3)*8); isb.append(0)
            else: cs.append(hl*2560 + 1024); isb.append(1)
        enc = [c | (0 if b else 0x8000) for c, b in zip(cs, isb)]
        assert all(c < 0x8000 for c in cs)
        A.e(f"v_mov_b32 v12, {hex(enc[0] | (enc[1] << 16))}")
        A.e(f"v_mov_b32 v6, {hex(enc[2] | (enc[3] << 16))}")
        A.e("v_cndmask_b32 v12, v12, v6, vcc")
        A.e("v_lshrrev_b32 v12, v13, v12")
        A.e("v_bfe_u32 v6, v12, 15, 1")
        A.e("v_and_b32 v12, 0x7fff, v12")
        A.e("v_mul_u32_u24 v6, v6, v15")
        A.e("v_lshl_add_u32 v6, v6, 3, v14")
        A.e(f"v_add_u32 v{VQW+mt}, v6, v12")
    A.e(f"v_mov_b32 v{VQR}, v4")
    A.e("v_and_b32 v12, 31, v1")
    A.e("v_lshlrev_b32 v12, 3, v12")
    A.e(f"v_add_u32 v{VQRB}, 1024, v12")
    A.e(f"v_mov_b32 v12, {OOB}")
    A.e("v_lshlrev_b32 v5, 3, v1")
    A.e("v_cmp_gt_u32 vcc, 32, v1")
    A.e("v_and_b32 v13, 31, v1")
    A.e("s_nop 0")
    A.e("v_cndmask_b32 v5, v12, v5, vcc")
    A.e("v_cmp_gt_u32 vcc, 21, v13")
    A.e("s_nop 1")
    A.e("v_cndmask_b32 v8, v12, v4, vcc")
    if part == "front": return [x.strip() for x in T.lines if x.strip()]
    T.lines.clear()
    A.e(f"s_mul_i32 s21, s20, {6*PART}")
    A.e(f"v_add_u32 v{VRED}, s21, v4")
    A.e("v_and_b32 v13, 31, v1")
    A.e("v_mul_u32_u24 v13, 160, v13")
    A.e("v_lshrrev_b32 v14, 5, v1         ; h")
    A.e("v_lshl_add_u32 v13, v14, 3, v13")
    A.e("s_mul_i32 s24, s20, 40")
    A.e(f"v_add_u32 v{VOS}, s24, v13")
    A.e(f"v_mov_b32 v12, {L_DUMMY}")
    A.e(f"v_add_u32 v13, 32, v{VOS}")
    A.e("v_cmp_eq_u32 vcc, 0, v14")
    A.e(f"v_add_u32 v15, 5152, v{VOS}")
    A.e("s_nop 0")
    A.e(f"v_cndmask_b32 v{VOS2a}, v12, v13, vcc")
    A.e(f"v_cndmask_b32 v{VOS2b}, v12, v15, vcc")
    A.e("v_lshrrev_b32 v13, 4, v1")
    A.e("v_mul_u32_u24 v13, 0x5000, v13       ; (row >> 4) * 20480")
    A.e("v_and_b32 v14, 15, v1")
    A.e(f"v_lshl_add_u32 v{VOG}, v14, 4, v13")
    A.e("v_mul_u32_u24 v13, 160, v1")
    A.e("s_lshl_b32 s24, s20, 4")
    A.e(f"v_add_u32 v{VTID16}, s24, v13")
    A.e("s_lshl_b32 s21, s20, 4")
    A.e("s_movk_i32 s26, 2560")
    A.e("v_add_u32 v13, s21, v2")
    A.e("v_mul_u32_u24 v13, s26, v13")
    A.e(f"v_lshl_add_u32 v{VOUT}, v3, 3, v13")
    A.e("v_and_b32 v14, 1, v3")
    A.e("v_lshl_add_u32 v13, v14, 5, v13")
    A.e("v_lshrrev_b32 v14, 1, v3")
    A.e(f"v_lshl_add_u32 v{VOUT2}, v14, 4, v13     ; + 32 (g & 1) + 16 (g >> 1)")
    A.e("s_lshl_b32 s21, s20, 6")
    A.e("v_add_u32 v13, s21, v1")
    A.e("v_mul_u32_u24 v13, s26, v13")
    A.e("s_lshl_b32 s21, s33, 3")
    A.e(f"v_add_u32 v{VYO}, s21, v13")
    A.e("v_add_u32 v12, 1, v2")
    A.e("v_and_b32 v12, 1, v12            ; cp")
    A.e("v_sub_u32 v13, v2, v12")
    A.e("v_add_u32 v13, 9, v13")
    A.e("v_and_b32 v14, 1, v3")
    A.e("v_lshlrev_b32 v14, 3, v14        ; 8(g&1)")
    A.e("v_sub_u32 v13, v13, v14")
    A.e("v_lshrrev_b32 v15, 1, v3         ; g>>1")
    A.e("v_lshl_add_u32 v13, v15, 4, v13")
    A.e("v_lshlrev_b32 v13, 1, v13")
    A.e("v_xor_b32 v12, 1, v12")
    A.e(f"s_mov_b32 s24, {L_U0 - L_U1}")
    A.e("v_mul_lo_u32 v12, v12, s24")
    A.e("v_add_u32 v13, v13, v12")
    A.e(f"s_mul_i32 s21, s20, {CS}")
    A.e(f"s_add_u32 s24, s21, {L_U1}")
    A.e(f"v_add_u32 v{VCU}, s24, v13")
    A.e(f"v_add_u32 v{VUW}, s21, v4")
    A.e("v_lshlrev_b32 v13, 4, v2")
    A.e("v_sub_u32 v13, 2040, v13")
    A.e("v_lshl_add_u32 v13, v15, 4, v13")
    A.e("v_sub_u32 v13, v13, v14")
    A.e("v_lshlrev_b32 v13, 1, v13")
    A.e("s_mul_i32 s24, s20, 4608")
    A.e(f"s_add_u32 s24, s24, {L_KR-3584}")
    A.e(f"v_add_u32 v{VCK}, s24, v13")
    A.e("v_lshlrev_b32 v13, 5, v2")
    A.e("v_lshl_add_u32 v13, v3, 3, v13")
    A.e(f"s_mul_i32 s24, s20, {YSC}")
    A.e(f"s_add_u32 s24, s24, {L_YS}")
    A.e(f"v_add_u32 v{VYS}, s24, v13")
    A.e("v_and_b32 v13, 3, v2")
    A.e("v_lshlrev_b32 v13, 3, v13")
    A.e("v_lshl_add_u32 v13, v3, 5, v13")
    A.e("s_lshl_b32 s21, s20, 7")
    A.e("v_add_u32 v13, s21, v13")
    A.e("v_lshrrev_b32 v12, 2, v2")
    A.e(f"v_mul_u32_u24 v14, {YSC}, v12" if False else f"s_movk_i32 s24, {YSC}")
    A.e("v_mul_u32_u24 v14, s24, v12")
    A.e(f"v_add3_u32 v{VYT}, v14, v13, v13" if False else f"v_add_u32 v14, v14, v13")
    A.e(f"v_add_u32 v{VYT}, {L_YS}, v14")
    A.e(f"s_movk_i32 s24, {CS}")
    A.e("v_mul_u32_u24 v14, s24, v12")
    A.e("v_add_u32 v14, v14, v13")
    A.e(f"v_add_u32 v{VUT}, {L_U0+32}, v14")
    A.e("s_lshr_b32 s21, s20, 1")
    A.e("s_mul_i32 s21, s21, 8320")
    A.e(f"s_add_u32 s21, s21, {L_U0}")
    A.e("v_lshlrev_b32 v13, 5, v1")
    A.e(f"v_add_u32 v{VUR}, s21, v13")
    A.e("s_movk_i32 s26, 1280")
    A.e("v_mul_u32_u24 v13, s26, v1")
    A.e("s_lshl_b32 s21, s33, 3")
    A.e(f"v_add_u32 v{VUD}, s21, v13")
    A.e("s_lshl_b32 s21, s20, 11")
    A.e(f"s_add_u32 s21, s21, {L_U0+64}")
    A.e("v_lshlrev_b32 v13, 2, v1")
    A.e(f"v_add_u32 v{VUP}, s21, v13")
    return [x.strip() for x in T.lines if x.strip()]

def wdma_ring(c, base):
    L = []
    for n in range(3):
        g = []
        if n < 2:
            g += [f"s_add_u32 m0, s32, {base + 4096*n}", f"s_mov_b32 s38, {64*1280*c}" if n == 0 else "s_nop 0"]
        else:
            g += [f"s_add_u32 s39, s32, {base + 8192}", "s_cmp_lt_u32 s20, 2", f"s_cselect_b32 m0, s39, {L_DUMMY}", "s_nop 0"]
        g.append(f"buffer_load_dwordx4 v{VWD+n}, s[{SD}:{SD+3}], s38 offen lds")
        L.append(g)
    return L
def xdma(c, base, srd_=SA):
    return [[f"s_add_u32 m0, s31, {base}", f"s_movk_i32 s36, {128*c}",
             f"buffer_load_dwordx4 v{VXD0}, s[{srd_}:{srd_+3}], s36 offen lds"],
            [f"s_add_u32 m0, s31, {base+1024}", "s_nop 0",
             f"buffer_load_dwordx4 v{VXD1}, s[{srd_}:{srd_+3}], s36 offen lds"]]

GACC = 16; GWF = 36; GXF = [56, 60]
def gemm_rdX(kk, xb):
    ks = kk & 1
    if xb < 65536: a, o = (VXF0 if ks == 0 else VXF1), xb
    else: a, o = (VXF0h if ks == 0 else VXF1h), xb - 65536
    return It(f"ds_read_b128 {vr(GXF[kk & 1],4)}, v{a} offset:{o}", lds=f"x{kk}")
def gemm_rdW(kk, mt, wb):
    ks = kk & 1
    out = []
    for h in range(2):
        off = wb + (32*ks + 8*h)*160 + 32*mt
        a = VWT
        if off >= 131072: a, off = VWTh2, off - 131072
        elif off >= 65536: a, off = VWTh, off - 65536
        out.append(It(f"ds_read_b64_tr_b16 {vr(GWF+mt*4+h*2,2)}, v{a} offset:{off}", lds=f"w{kk}_{mt}"))
    return out
def gemm_need(kk, mt, xt):
    if mt == 0: return tuple(xt) + (f"w{kk}_0", f"w{kk}_1", f"w{kk}_2")
    if mt == 3: return (f"w{kk}_3", f"w{kk}_4")
    return ()
def gemm_mm(kk, mt):
    return It(f"v_mfma_f32_16x16x32_bf16 {vr(GACC+4*mt,4)}, {vr(GWF+mt*4,4)}, {vr(GXF[kk & 1],4)}, {vr(GACC+4*mt,4) if kk else '0'}",
              needl=gemm_need(kk, mt, (f"x{kk}",)), w=2)
def gemm_items(xbase, wbase, sync, loads=None):
    steps = []
    spread = list(loads(0)) if loads else []
    pre = list(sync(0)) + [gemm_rdX(0, xbase(0))]
    for mt in range(5): pre += gemm_rdW(0, mt, wbase(0))
    for kk in range(20):
        L = []
        c1 = (kk+1) >> 1
        boundary = (kk+1) & 1 == 0 and kk+1 < 20
        for mt in range(5):
            L.append(gemm_mm(kk, mt))
            if kk+1 < 20:
                if mt == 0:
                    if boundary:
                        L += spread; spread = []
                        L += list(sync(c1))
                        if loads: spread = list(loads(c1))
                    L.append(gemm_rdX(kk+1, xbase(c1)))
                L += gemm_rdW(kk+1, mt, wbase(c1))
            if spread and mt in (1, 2, 3): L.append(spread.pop(0))
        steps.append(L)
    assert not spread
    return pre, steps

def rho(s, b):
    if s == 0: return b
    q = b >> s; rem = b & ((1 << s)-1); half = 1 << (s-1)
    if rem > half or (rem == half and (q & 1)): q += 1
    return q << s
KACC = 64
RS = 528
def kgen_setup_lines():
    T = Asm(); A = T
    A.e("v_lshlrev_b32 v12, 2, v1          ; lane*4")
    A.e("s_lshl_b32 s24, s34, 8           ; d*256")
    A.e("v_add_u32 v13, s24, v12")
    for k, s in enumerate((PARE, PAIM, PBRE, PBIM, PCRE, PCIM)):
        A.e(f"global_load_dword v{104+k}, v13, s[{s}:{s+1}]")
    A.e("s_lshl_b32 s24, s34, 1")
    A.e("v_mov_b32 v14, s24")
    A.e(f"global_load_ushort v110, v14, s[{PLDT}:{PLDT+1}]")
    A.e(f"global_load_ushort v198, v14, s[{PDSK}:{PDSK+1}]")
    A.e(f"s_mul_i32 s21, s20, {KGW}")
    A.e(f"s_add_u32 s21, s21, {L_KG}")
    A.e("v_lshlrev_b32 v14, 3, v1            ; lane*8")
    A.e("v_add_u32 v196, s21, v14")
    A.e(f"v_add_u32 v197, {33*RS}, v196")
    for s in range(4):
        for mt in range(2):
            dst = 112 + 2*s + mt
            A.e(f"v_add_u32 v15, {16*mt}, v2          ; b")
            if s > 0:
                half = 1 << (s-1)
                A.e(f"v_bfe_u32 v12, v15, {s}, 1")
                A.e(f"v_add3_u32 v15, v15, v12, {half-1}")
                A.e(f"v_lshrrev_b32 v15, {s}, v15")
                A.e(f"v_lshlrev_b32 v15, {s}, v15")
            A.e(f"v_mul_u32_u24 v15, {RS}, v15")
            A.e(f"v_lshl_add_u32 v15, v3, 4, v15")
            A.e(f"v_add_u32 v{dst}, s21, v15")
    for s in range(1, 4):
        for b in range(32):
            half = 1 << (s-1)
            assert (((b + half - 1 + ((b >> s) & 1)) >> s) << s) == rho(s, b)
    A.e(f"v_mul_u32_u24 v15, {RS}, v2")
    A.e("v_lshl_add_u32 v15, v3, 4, v15")
    A.e(f"v_add_u32 v15, {33*RS}, v15")
    A.e("v_add_u32 v111, s21, v15")
    return [x.strip() for x in T.lines if x.strip()]

def kgen_parts():
    L = []
    a = lambda t, **k: L.append(It(t, **k))
    E1 = [120, 122]; E32 = [124, 126]
    C = [176, 178]; TM = [180, 182]
    PK = [184, 186]
    WC = [188, 190]
    a("v_lshlrev_b32 v110, 16, v110", needv=("kp",))
    a(f"v_mul_f32 v110, {hex(f2u(LOG2E))}, v110")
    a("v_exp_f32 v110, v110")
    a("s_nop 0")
    a("v_cvt_pk_bf16_f32 v110, v110, v110")
    a("v_lshlrev_b32 v110, 16, v110")
    for hf in range(2):
        for k in range(6):
            a(f"v_lshlrev_b32 v{176+k}, 16, v{104+k}" if hf == 0 else f"v_and_b32 v{176+k}, 0xffff0000, v{104+k}")
        ZR, ZI = 192, 193
        a(f"v_mul_f32 v{ZR}, v110, v176"); a(f"v_mul_f32 v{ZI}, v110, v177")
        a("v_mul_f32 v178, v110, v178"); a("v_mul_f32 v179, v110, v179")
        a(f"v_mul_f32 v{ZR}, {hex(f2u(LOG2E))}, v{ZR}"); a(f"v_mul_f32 v{ZI}, {hex(f2u(1/(2*math.pi)))}, v{ZI}")
        w = WC[hf]
        a(f"v_mul_f32 v{w}, v180, v178"); a(f"v_mul_f32 v{w+1}, v180, v179")
        a(f"v_fma_f32 v{w}, -v181, v179, v{w}"); a(f"v_fma_f32 v{w+1}, v181, v178, v{w+1}")
        for (m, dst) in ((1, E1[hf]), (32, E32[hf])):
            if m == 1:
                a(f"v_exp_f32 v182, v{ZR}"); a(f"v_fract_f32 v183, v{ZI}")
            else:
                lit = hex(f2u(float(m)))
                a(f"v_mul_f32 v182, {lit}, v{ZR}"); a(f"v_mul_f32 v183, {lit}, v{ZI}")
                a("v_exp_f32 v182, v182"); a("v_fract_f32 v183, v183")
            a("v_cos_f32 v194, v183"); a("v_sin_f32 v195, v183")
            a("s_nop 0")
            a(f"v_mul_f32 v{dst}, v182, v194"); a(f"v_mul_f32 v{dst+1}, v182, v195")
    for hf in range(2):
        a(f"v_mov_b32 v{C[hf]}, v{WC[hf]}"); a(f"v_mov_b32 v{C[hf]+1}, v{WC[hf]+1}")
    setup = L
    def cm(x, e, t):
        return (f"v_pk_mul_f32 v[{t}:{t+1}], v[{x}:{x+1}], v[{e}:{e+1}] op_sel:[0,0] op_sel_hi:[0,1]",
                f"v_pk_fma_f32 v[{x}:{x+1}], v[{x}:{x+1}], v[{e}:{e+1}], v[{t}:{t+1}] op_sel:[1,1,0] op_sel_hi:[1,0,1] neg_lo:[1,0,0]")
    rows = []
    def row(n, r, e, neg, waddr, stp, pre=()):
        pk = PK[n & 1]; sg = "-" if neg else ""
        R = [It(y) for y in pre]
        if stp: R += [It(cm(C[0], e[0], TM[0])[0]), It(cm(C[1], e[1], TM[1])[0])]
        R += [It(f"v_cvt_pk_bf16_f32 v{pk}, v{C[0]}, {sg}v{C[0]+1}"), It(f"v_cvt_pk_bf16_f32 v{pk+1}, v{C[1]}, {sg}v{C[1]+1}")]
        if stp: R += [It(cm(C[0], e[0], TM[0])[1]), It(cm(C[1], e[1], TM[1])[1])]
        R.append(It(f"ds_write_b64 v{waddr}, {vr(pk,2)} offset:{r*RS}", lds="kw"))
        rows.append(R)
    for j in range(33): row(j, j, E1, True, 196, j < 32)
    one = [f"v_mov_b32 v{C[0]}, 1.0", f"v_mov_b32 v{C[0]+1}, 0", f"v_mov_b32 v{C[1]}, 1.0", f"v_mov_b32 v{C[1]+1}, 0"]
    for nt in range(4):
        for r in range(16):
            row(33+16*nt+r, r, E32, False, 197, not (nt == 3 and r == 15), pre=(one if (nt == 0 and r == 0) else ()))
    BF = 224
    NS = 12
    def slot(n): return vr(16 + 4*(n % NS), 4)
    afr, bfr, mms = [], [], []
    for nt in range(4):
        variants = [(0,0),(0,1),(1,0),(1,1)] if nt == 0 else [((2 if nt == 1 else 3), 0), ((2 if nt == 1 else 3), 1)]
        tiles = [0,1,2,3] if nt == 0 else [2+2*nt, 3+2*nt]
        nv = len(variants); tot = 8*nv
        ra = []; mm = []
        def rd(n):
            ks, vi = divmod(n, nv); s_, mt = variants[vi]
            return It(f"ds_read_b128 {slot(n)}, v{112+2*s_+mt} offset:{64*ks}", lds=f"ka{nt}_{n}")
        for n in range(tot):
            ks, vi = divmod(n, nv)
            if n < NS: ra.append(rd(n))
            acc = KACC + 4*tiles[vi]
            mm.append(It(f"v_mfma_f32_16x16x32_bf16 {vr(acc,4)}, {slot(n)}, {ar(BF+4*ks,4)}, {vr(acc,4) if ks else '0'}",
                         needl=(f"kb{nt}_{ks}", f"ka{nt}_{n}"), w=2))
            if n + NS < tot: mm.append(rd(n + NS))
        afr.append(ra)
        bfr.append([It(f"ds_read_b128 {ar(BF+4*ks,4)}, v111 offset:{64*ks}", lds=f"kb{nt}_{ks}") for ks in range(8)])
        mms.append(mm)
    return setup, rows, afr, bfr, mms

def kgen_pack_lines():
    T = Asm(); A = T
    ACC = KACC
    A.e("v_lshlrev_b32 v198, 16, v198")
    A.e("v_cmp_eq_u32 vcc, 0, v1")
    A.e("s_nop 1")
    A.e("v_cndmask_b32 v198, 0, v198, vcc")
    A.e(f"v_add_f32 v{ACC}, v{ACC}, v198")
    A.e("v_cmp_gt_u32 vcc, 8, v2")
    A.e("s_nop 1")
    for i in range(8):
        A.e(f"v_cndmask_b32 v{ACC+i}, v{ACC+8+i}, v{ACC+i}, vcc")
    for nt in range(4):
        for mt in range(2):
            tile = mt if nt == 0 else 2+2*nt+mt
            acc = ACC + 4*tile
            b = 176 + 2*(nt*2+mt)
            A.e(f"v_cvt_pk_bf16_f32 v{b}, v{acc+3}, v{acc+2}")
            A.e(f"v_cvt_pk_bf16_f32 v{b+1}, v{acc+1}, v{acc}")
    return [x.strip() for x in T.lines if x.strip()]
def kgen_write_lines():
    T = Asm(); A = T
    A.e("s_mul_i32 s21, s20, 4608")
    A.e(f"s_add_u32 s21, s21, {L_KR}")
    A.e("v_lshlrev_b32 v15, 5, v2")
    A.e("v_lshl_add_u32 v15, v3, 2, v15    ; 32c + 4g")
    A.e("v_sub_u32 v15, 2044, v15")
    A.e("v_lshlrev_b32 v15, 1, v15")
    A.e(f"v_add_u32 v15, s21, v15")
    A.e(f"v_subrev_u32 v15, {(512*3+16)*2}, v15")
    for nt in range(4):
        for mt in range(2):
            b = 176 + 2*(nt*2+mt)
            A.e(f"ds_write_b64 v15, {vr(b,2)} offset:{(512*3+16)*2 - (512*nt+16*mt)*2}")
    A.e("v_mov_b32 v192, 0"); A.e("v_mov_b32 v193, 0")
    A.e("v_lshlrev_b32 v12, 3, v1")
    A.e(f"s_add_u32 s21, s21, 4096")
    A.e("v_add_u32 v12, s21, v12")
    A.e("ds_write_b64 v12, v[192:193]")
    return [x.strip() for x in T.lines if x.strip()]

def q_epilogue(A, q):
    A.e(f"s_mov_b32 s26, {hex(f2u(QSCALE))}")
    for mt in range(5):
        acc = GACC + 4*mt
        for i in range(4): A.e(f"v_mul_f32 v{acc+i}, s26, v{acc+i}")
        A.e(f"v_cvt_pk_bf16_f32 v{36+mt*2}, v{acc}, v{acc+1}")
        A.e(f"v_cvt_pk_bf16_f32 v{37+mt*2}, v{acc+2}, v{acc+3}")
        q.emit(It(f"ds_write_b64 v{VQW+mt}, {vr(36+mt*2,2)}", lds="qw"))

def weave_setup(A, q, setup, pro):
    safe = [i for i, l in enumerate(setup) if l.startswith("v_") and not l.startswith("v_cndmask") and i+1 < len(setup)
            and not setup[i+1].startswith("v_cndmask") and not setup[i+1].startswith("s_nop") and not l.startswith("v_cmp")
            and not setup[i+1].startswith("s_addc")]
    step = max(1, len(safe)//len(pro))
    pts = {safe[min(k*step, len(safe)-1)]: k for k in range(len(pro))}
    done = 0
    for i, l in enumerate(setup):
        A.e(l)
        if i in pts: q.emit(pro[pts[i]]); done += 1
    assert done == len(pro), (done, len(pro))

def X_items(c): return [It(g, vm=f"x{c}") for g in xdma(c, L_XR + 8192*c)]
def W_items(c): return [It(g, vm=f"w{c}") for g in wdma_ring(c, L_WR + WCH*(c % 4))]

def front(A, pfx):
    A.e("s_cmp_lt_u32 s53, 2")
    A.e(f"s_cbranch_scc1 {pfx}_kvpro")
    q = Q(A)
    q.run(X_items(0) + W_items(0))
    A.e(f"s_cmp_ge_u32 s3, {NCONV}")
    A.e(f"s_cbranch_scc1 {pfx}_nokp")
    for l in kgen_setup_lines(): A.e(l)
    A.label(f"{pfx}_nokp")
    for c in range(1, 4): q.run(X_items(c) + W_items(c))
    if PREFETCH: prefetch(A, pfx + "a")
    A.e(f"s_cmp_ge_u32 s3, {NCONV}")
    A.e(f"s_cbranch_scc1 {pfx}_noks")
    A.e(f"s_waitcnt vmcnt({15 + (3 if PREFETCH else 0)})")
    for it in kgen_parts()[0]:
        for l in it.txt: A.e(l)
    A.label(f"{pfx}_noks")
    qcommon = q
    st(A)
    A.e(f"s_branch {pfx}_qgemm")
    A.label(f"{pfx}_kvpro")
    q = Q(A)
    A.e("s_cmp_eq_u32 s53, 0")
    A.e(f"s_cselect_b32 s24, s{PWK}, s{PWV}")
    A.e(f"s_cselect_b32 s25, s{PWK+1}, s{PWV+1}")
    A.e(f"s_mov_b32 s{SB}, s24"); A.e(f"s_mov_b32 s{SB+1}, s25"); A.e(f"s_mov_b32 s{SB+2}, 25600"); A.e(f"s_mov_b32 s{SB+3}, 0x20000")
    for i in range(7):
        if i < 6:
            A.e(f"s_add_u32 s28, s32, {4096*i}")
            A.e(f"s_add_u32 m0, s28, {L_WKV}")
            A.e("s_nop 0")
            A.e(f"buffer_load_dwordx4 v4, s[{SB}:{SB+3}], s28 offen lds")
        else:
            A.e("s_cmp_eq_u32 s20, 0")
            A.e(f"s_mov_b32 s29, {L_WKV + 24*1024}")
            A.e(f"s_cselect_b32 m0, s29, {L_DUMMY}")
            A.e(f"s_mov_b32 s30, 0x7fff0000")
            A.e(f"s_cselect_b32 s28, {24*1024}, s30")
            A.e(f"buffer_load_dwordx4 v4, s[{SB}:{SB+3}], s28 offen lds")
    for c in range(10): q.run(X_items(c))
    if PREFETCH: prefetch(A, pfx + "b")
    st(A)
    KV, KW, KX = 64, 72, [104, 108]
    A.e("v_lshrrev_b32 v12, 2, v2")
    A.e("v_lshl_add_u32 v12, v3, 3, v12")
    A.e("v_mul_u32_u24 v12, 40, v12")
    A.e("v_and_b32 v13, 3, v2")
    A.e("v_lshl_add_u32 v12, v13, 3, v12")
    A.e(f"v_add_u32 v176, {L_WKV}, v12")
    for i in range(8): A.e(f"v_mov_b32 v{KV+i}, 0")
    A.e("s_mul_i32 s21, s22, 81920")
    srd(A, SH, PX, 81920, add="s21")
    q.wait_v(("x0",))
    A.e("s_barrier")
    def rds(kk):
        c, ks = kk >> 1, kk & 1; b = kk & 1
        xb = L_XR + 8192*c
        a, o = ((VXF0 if ks == 0 else VXF1), xb) if xb < 65536 else ((VXF0h if ks == 0 else VXF1h), xb-65536)
        out = [It(f"ds_read_b128 {vr(KX[b],4)}, v{a} offset:{o}", lds=f"kx{kk}", needv=(f"x{c}",))]
        for m in range(2):
            for h in range(2):
                out.append(It(f"ds_read_b64_tr_b16 {vr(KW+8*b+4*m+2*h,2)}, v176 offset:{(32*kk + 4*h)*40 + 32*m}", lds=f"kw{kk}"))
        return out
    for variant in ("k", "v"):
        if variant == "k":
            A.e("s_cmp_eq_u32 s53, 0")
            A.e(f"s_cbranch_scc0 {pfx}_b_vpart")
        else:
            A.label(f"{pfx}_b_vpart")
        qq = Q(A); qq.vq = list(q.vq)
        qq.run(rds(0))
        wq_first = [x for c in range(4) for x in W_items(c)]
        for kk in range(20):
            if kk+1 < 20: qq.run(rds(kk+1))
            if kk >= 8: qq.emit(wq_first.pop(0))
            if kk in (2, 4, 6, 8):
                c_ = kk//2 - 1
                qq.run([It(g, vm=f"ox{c_}") for g in xdma(c_, L_XR + 8192*c_, SH)])
            b = kk & 1
            for m in range(2):
                if variant == "k": t = f"v_mfma_f32_16x16x32_bf16 {vr(KV+4*m,4)}, {vr(KW+8*b+4*m,4)}, {vr(KX[b],4)}, {vr(KV+4*m,4)}"
                else: t = f"v_mfma_f32_16x16x32_bf16 {vr(KV+4*m,4)}, {vr(KX[b],4)}, {vr(KW+8*b+4*m,4)}, {vr(KV+4*m,4)}"
                qq.emit(It(t, needl=(f"kx{kk}", f"kw{kk}")))
        A.e("s_lshr_b32 s21, s20, 1")
        A.e("s_lshl_b32 s26, s54, 1")
        A.e("s_add_u32 s21, s21, s26          ; T")
        A.e("s_and_b32 s26, s20, 1            ; u")
        srd(A, SC, PWS, WS_VA + 64*2048)
        A.e(f"v_mov_b32 v19 , {OOB}".replace(" ,", ","))
        A.e("v_and_b32 v12, 1, v3             ; h (g&1)")
        A.e("v_cmp_gt_u32 vcc, 2, v3")
        A.e(f"v_cvt_pk_bf16_f32 v112, v{KV}, v{KV+1}")
        A.e(f"v_cvt_pk_bf16_f32 v113, v{KV+2}, v{KV+3}")
        A.e(f"v_cvt_pk_bf16_f32 v116, v{KV+4}, v{KV+5}")
        A.e(f"v_cvt_pk_bf16_f32 v117, v{KV+6}, v{KV+7}")
        if variant == "v":
            A.e("s_mov_b64 s[28:29], vcc")
            A.e("v_cmp_eq_u32 vcc, 4, v2")
            A.e("v_mov_b32 v13, 0x3f803f80")
            A.e("s_nop 0")
            A.e("v_cndmask_b32 v116, v116, v13, vcc")
            A.e("v_cndmask_b32 v117, v117, v13, vcc")
            A.e("s_mov_b64 vcc, s[28:29]")
        A.e("v_mov_b32 v120, v112"); A.e("v_mov_b32 v121, v113")
        A.e("v_mov_b32 v122, v116"); A.e("v_mov_b32 v123, v117")
        A.e("s_nop 1")
        A.e("v_permlane32_swap_b32 v120, v114")
        A.e("v_permlane32_swap_b32 v121, v115")
        A.e("v_permlane32_swap_b32 v122, v118")
        A.e("v_permlane32_swap_b32 v123, v119")
        if variant == "k":
            A.e("s_lshl_b32 s28, s26, 4")
            A.e("v_add_u32 v14, s28, v2           ; key32")
            A.e("v_lshl_add_u32 v15, v12, 5, v14")
            A.e("v_lshlrev_b32 v15, 4, v15")
            A.e("s_lshl_b32 s28, s21, 10")
            A.e(f"s_add_u32 s28, s28, {WS_KA}")
            A.e("v_add_u32 v15, s28, v15")
            A.e("v_cndmask_b32 v15, v19, v15, vcc")
            A.e(f"buffer_store_dwordx4 v[112:115], v15, s[{SC}:{SC+3}], 0 offen sc1")
            A.e("v_lshlrev_b32 v14, 3, v14")
            A.e("s_lshl_b32 s28, s21, 9")
            A.e(f"s_add_u32 s28, s28, {WS_KB}")
            A.e("v_add_u32 v14, s28, v14")
            A.e("v_cmp_eq_u32 vcc, 0, v3")
            A.e("s_nop 1")
            A.e("v_cndmask_b32 v14, v19, v14, vcc")
            A.e(f"buffer_store_dwordx2 v[116:117], v14, s[{SC}:{SC+3}], 0 offen sc1")
            A.e("s_lshl_b32 s28, s54, 7")
            A.e(f"s_add_u32 s28, s28, {WS_FLAG}")
            srd(A, SE_, PWS, 128, add="s28")
            A.e("v_lshlrev_b32 v14, 2, v0")
            A.e("v_mov_b32 v13, 0")
            A.e(f"buffer_store_dword v13, v14, s[{SE_}:{SE_+3}], 0 offen sc1")
        else:
            A.e("v_lshl_add_u32 v15, v12, 5, v2")
            A.e("v_lshlrev_b32 v15, 4, v15")
            A.e("s_lshl_b32 s28, s21, 11")
            A.e("s_lshl_b32 s29, s26, 10")
            A.e("s_add_u32 s28, s28, s29")
            A.e(f"s_add_u32 s28, s28, {WS_VA}")
            A.e("v_add_u32 v15, s28, v15")
            A.e("v_add_u32 v14, 256, v15")
            A.e("v_cndmask_b32 v15, v19, v15, vcc")
            A.e("v_cndmask_b32 v14, v19, v14, vcc")
            A.e(f"buffer_store_dwordx4 v[112:115], v15, s[{SC}:{SC+3}], 0 offen sc1")
            A.e("v_cmp_gt_u32 vcc, 5, v2")
            A.e("s_nop 1")
            A.e("v_cndmask_b32 v14, v19, v14, vcc")
            A.e(f"buffer_store_dwordx4 v[116:119], v14, s[{SC}:{SC+3}], 0 offen sc1")
        A.e("s_waitcnt vmcnt(0)")
        A.e("s_barrier")
        A.e("s_cmp_lg_u32 s20, 0")
        A.e(f"s_cbranch_scc1 {pfx}_b_nf{variant}")
        srd(A, SE_, PDBG, 256)
        A.e("s_lshl_b32 s28, s52, 2")
        A.e("v_mov_b32 v14, s28")
        A.e("v_mov_b32 v13, 1")
        A.e("s_mov_b64 exec, 1")
        A.e(f"buffer_store_dword v13, v14, s[{SE_}:{SE_+3}], 0 offen sc1")
        A.e("s_mov_b64 exec, -1")
        A.label(f"{pfx}_b_nf{variant}")
        if variant == "k": A.e(f"s_branch {pfx}_b_ownx")
    A.label(f"{pfx}_b_ownx")
    A.e("s_mul_i32 s21, s22, 81920")
    srd(A, SA, PX, 81920, add="s21")
    st(A)
    A.label(f"{pfx}_qgemm")
    q = qcommon
    def sync(c): return [It("s_barrier", needv=(f"x{c}", f"w{c}"))]
    def loads(c):
        L = []
        if c+4 < 10: L += X_items(c+4)
        if c >= 2 and c+2 < 10: L += W_items(c+2)
        return L
    pre, steps = gemm_items(lambda c: L_XR + 8192*c, lambda c: L_WR + WCH*(c % 4), sync, loads)
    q.run(pre)
    late = [It(x) for x in part_addr_lines() + addr_setup_items("late")]
    grp = []; cur = []
    for it in late:
        cur.append(it)
        t = it.txt[0]
        if not (t.startswith("v_cmp") or t.startswith("s_nop") or (len(cur) > 1 and cur[-2].txt[0].startswith("v_cmp"))
                or (len(cur) > 2 and cur[-3].txt[0].startswith("v_cmp")) or (len(cur) > 3 and cur[-4].txt[0].startswith("v_cmp"))):
            grp.append(It([y for c in cur for y in c.txt], w=len(cur))); cur = []
    if cur: grp.append(It([y for c in cur for y in c.txt], w=len(cur)))
    per = (len(grp) + 17)//18
    for kk in range(20):
        q.run(merge(steps[kk], grp[kk*per:(kk+1)*per]))
    q.all_l(); q.all_v()
    srd(A, SE_, PDBG, 256)
    A.e("v_lshlrev_b32 v12, 2, v1")
    A.e(f"buffer_load_dword v248, v12, s[{SE_}:{SE_+3}], 0 offen sc1")
    st(A)
    A.e("s_barrier")
    q_epilogue(A, q)
    A.e(f"s_mov_b32 s35, {SPIN_MAX}")
    A.label(f"{pfx}_kv_p")
    A.e("s_waitcnt vmcnt(0)")
    A.e("v_cmp_ne_u32 vcc, 0, v248")
    A.e("s_sub_u32 s35, s35, 1")
    A.e("s_cmp_eq_u32 s35, 0")
    A.e(f"s_cbranch_scc1 {pfx}_kv_d")
    A.e("s_cmp_eq_u64 vcc, -1")
    A.e(f"s_cbranch_scc1 {pfx}_kv_d")
    A.e("s_sleep 1")
    A.e(f"buffer_load_dword v248, v12, s[{SE_}:{SE_+3}], 0 offen sc1")
    A.e(f"s_branch {pfx}_kv_p")
    A.label(f"{pfx}_kv_d")
    A.e("s_waitcnt lgkmcnt(0)")
    A.e("s_barrier")
    st(A)

def poll(A, pfx, name, srd_, nl, cmpmask):
    A.e("s_cmp_lg_u32 s20, 0")
    A.e(f"s_cbranch_scc1 {pfx}_{name}_np")
    A.e("v_lshlrev_b32 v12, 2, v1")
    A.e(f"s_mov_b32 s35, {SPIN_MAX}")
    if nl < 64: A.e(f"s_mov_b64 exec, {hex((1 << nl)-1)}")
    A.label(f"{pfx}_{name}_p")
    A.e(f"buffer_load_dword v13, v12, s[{srd_}:{srd_+3}], 0 offen sc1")
    A.e("s_waitcnt vmcnt(0)")
    A.e("v_cmp_ne_u32 vcc, 0, v13")
    A.e("s_sub_u32 s35, s35, 1")
    A.e("s_cmp_eq_u32 s35, 0")
    A.e(f"s_cbranch_scc1 {pfx}_{name}_d")
    if nl == 64:
        A.e("s_cmp_eq_u64 vcc, -1")
    else:
        A.e(f"s_cmp_eq_u32 vcc_lo, {hex((1 << nl)-1)}")
    A.e(f"s_cbranch_scc1 {pfx}_{name}_d")
    A.e("s_sleep 1")
    A.e(f"s_branch {pfx}_{name}_p")
    A.label(f"{pfx}_{name}_d")
    if nl < 64: A.e("s_mov_b64 exec, -1")
    A.label(f"{pfx}_{name}_np")

PREF_K, PREF_V = 6, 5
def step(A, tau, t, first=False, last=False, fillers=None, pre=None):
    cur = S[t & 1]; nxt = S[(t+1) & 1]
    Pc = P[t & 1]; Pp = P[(t+1) & 1]
    par = tau & 1
    if t < NT-1: nt, ntau = t+1, tau
    else: nt, ntau = 0, tau+1
    do_next = not (last and t == NT-1)
    M1 = f"v_mfma_f32_32x32x16_bf16 {vr(nxt,16)}, {KAr(nt)}, {QAr(ntau)}, 0" if do_next else None
    M2 = f"v_mfma_f32_32x32x8_bf16 {vr(nxt,16)}, {KBr(nt)}, {QBr(ntau)}, {vr(nxt,16)}" if do_next else None
    if t == 0: pt, op, c0 = NT-1, O[par ^ 1], None
    else:
        pt, op = t-1, O[par]
        c0 = "0" if t == 1 else None
    if t == 0 and first: PV0p = PVp = None
    else:
        PV0p = f"v_mfma_f32_32x32x16_bf16 {vr(op,16)}, {VAr(pt,0)}, {vr(Pp,4)}, {c0 or vr(op,16)}"
        PVp = f"v_mfma_f32_32x32x16_bf16 {vr(op,16)}, {VAr(pt,1)}, {vr(Pp+4,4)}, {vr(op,16)}"
    E = lambda i: f"v_exp_f32 v{cur+i}, v{cur+i}"
    C = lambda i: f"v_cvt_pk_bf16_f32 v{Pc+i}, v{cur+2*i}, v{cur+2*i+1}"
    seq = [E(0), M1, E(1), E(2), C(0), E(3), E(4), PV0p, C(1), E(5), E(6), C(2), E(7), M2, E(8), C(3), E(9), E(10), C(4), E(11),
           PVp, E(12), C(5), E(13), E(14), E(15), C(6), C(7)]
    seq = [x for x in seq if x]
    groups = list(fillers or [])
    if groups:
        epos = [i for i, x in enumerate(seq) if x.startswith("v_exp")]
        flat = []
        for g in groups:
            if any(y.startswith("s_cbranch") for y in g) or any("exec" in y for y in g): flat.append(g)
            elif any("m0" in y for y in g): flat.append(g)
            else: flat += [[y] for y in g]
        n = len(flat); out = []; k = 0
        for i, x in enumerate(seq):
            out.append(x)
            if i in epos:
                want = ((epos.index(i)+1)*n + len(epos)-1)//len(epos) if True else 0
                while k < min(want, n):
                    out += flat[k]; k += 1
        for g in flat[k:]: out += g
        seq = out
    for x in (pre or []): A.e(x)
    for x in seq:
        if x.endswith(":"): A.label(x[:-1])
        else: A.e(x)

def part_addr_lines():
    L = ["s_lshl_b32 s29, s20, 1"]
    for tau in range(1, 7):
        slot_ = (-2 - ((tau-1) >> 1)) & 3
        for w in range(4):
            j = (2*w + 1 + tau) & 7
            assert slot_ == (w - (j >> 1) - 1) & 3
        L += [f"s_add_u32 s28, s29, {1+tau}", "s_and_b32 s28, s28, 7", f"s_mul_i32 s28, s28, {3*PART}",
              f"s_add_u32 s28, s28, {slot_*PART}", f"v_add_u32 v{VPA+tau-1}, s28, v4"]
    return L
def part_write(tau):
    par = (tau-1) & 1
    return [[f"ds_write_b128 v{VPA+tau-1}, {vr(O[par]+4*g,4)} offset:{1024*g}"] for g in range(3)]

def kv_load_groups():
    def ldK(t): return [[f"s_add_u32 s27, s44, {1024*t}", f"buffer_load_dwordx4 {KAr(t)}, v4, s[{SA}:{SA+3}], s27 offen"],
                        [f"s_add_u32 s28, s45, {512*t}", f"buffer_load_dwordx2 {KBr(t)}, v5, s[{SA}:{SA+3}], s28 offen"]]
    def ldV(t): return [[f"s_add_u32 s29, s46, {2048*t}", f"buffer_load_dwordx4 {VAr(t,0)}, v8, s[{SA}:{SA+3}], s29 offen"],
                        [f"buffer_load_dwordx4 {VAr(t,1)}, v8, s[{SA}:{SA+3}], s29 offen offset:1024"]]
    return ldK, ldV

def q_reads(A):
    A.e(f"v_mov_b32 v12, {L_BAD}")
    A.e("v_mov_b32 v13, 0")
    A.e("ds_write_b32 v12, v13")
    for tau in range(8):
        A.e(f"v_mov_b32 v{132+6*tau}, 0"); A.e(f"v_mov_b32 v{133+6*tau}, 0")
    A.e("s_lshl_b32 s35, s20, 1")
    for tau in range(8):
        A.e(f"s_add_u32 s36, s35, {2+tau}")
        A.e("s_and_b32 s36, s36, 7")
        A.e("s_mul_i32 s36, s36, 1280")
        A.e(f"s_add_u32 s36, s36, {L_QL}")
        A.e(f"v_add_u32 v12, s36, v{VQR}")
        A.e(f"v_add_u32 v13, s36, v{VQRB}")
        A.e(f"ds_read_b128 {QAr(tau)}, v12")
        A.e("s_mov_b32 exec_hi, 0")
        A.e(f"ds_read_b64 {QBr(tau)}, v13")
        A.e("s_mov_b32 exec_hi, -1")

def late_setup(A):
    A.e("s_mul_i32 s21, s23, 160")
    srd(A, SD, PWO, "0", add="s21")
    A.e(f"s_sub_u32 s{SD+2}, 819200, s21")
    srd(A, SF, PU, 2048*1280)

def first_scores(A):
    A.e(f"v_mfma_f32_32x32x16_bf16 {vr(S[0],16)}, {KAr(0)}, {QAr(0)}, 0")
    A.e(f"v_mfma_f32_32x32x8_bf16 {vr(S[0],16)}, {KBr(0)}, {QBr(0)}, {vr(S[0],16)}")
    A.e("s_nop 7"); A.e("s_nop 3")

def kgen_phase(A, pfx):
    q = Q(A)
    ldK, ldV = kv_load_groups()
    kv = []
    for t in range(NT): kv += [It(g, vm="kv") for g in ldK(t) + ldV(t)]
    ksetup, rows, afr, bfr, mms = kgen_parts()
    q.vq = []
    q_reads(A)
    due = {49: 0, 65: 1, 81: 2, 97: 3}
    arow = {}
    for nt, r0 in enumerate((36, 52, 68, 84)):
        for i, it in enumerate(afr[nt]): arow.setdefault(r0 + i, []).append(it)
    share = [26, 14, 14, 10]; k = 0
    for pos, R in enumerate(rows):
        q.run(R + arow.get(pos, []))
        if pos+1 in due:
            nt = due[pos+1]
            q.run(bfr[nt])
            L = kv[k:k+share[nt]]; k += share[nt]
            if nt == 2: A.e("s_waitcnt vmcnt(30)")
            q.run(L[:4])
            q.run(merge(mms[nt], L[4:]))
    assert k == len(kv)
    q.all_l()
    A.e("s_nop 7")
    st(A)
    for l in kgen_pack_lines(): A.e(l)
    A.e("s_barrier")
    for l in kgen_write_lines(): A.e(l)
    late_setup(A)
    A.e("v_mov_b32 v192, 0")
    A.e("s_and_b32 s21, s20, 1")
    A.e("s_mul_i32 s21, s21, 8320")
    A.e(f"s_add_u32 s21, s21, {L_U0}")
    A.e("v_and_b32 v12, 15, v1")
    A.e("v_lshlrev_b32 v12, 2, v12")
    A.e("v_lshrrev_b32 v13, 4, v1")
    A.e("v_and_b32 v13, 1, v13")
    A.e("v_mul_u32_u24 v13, 0x2040, v13        ; 8256")
    A.e("v_add3_u32 v12, v12, v13, s21")
    A.e("ds_write_b32 v12, v192")
    A.e("s_waitcnt vmcnt(0)")
    st(A)
    first_scores(A)
    for t in range(NT): step(A, 0, t, first=True)

def b_transition(A, pfx):
    ldK, ldV = kv_load_groups()
    PK, PVn = PREF_K, PREF_V
    for g in ldK(0) + ldV(0):
        for x in g: A.e(x)
    q_reads(A)
    for t in range(1, PK):
        for g in ldK(t):
            for x in g: A.e(x)
        if t < PVn:
            for g in ldV(t):
                for x in g: A.e(x)
    late_setup(A)
    A.e("s_waitcnt lgkmcnt(0)")
    A.e("s_barrier")
    order = ["K0", "V0"]
    for t in range(1, PK):
        order.append(f"K{t}")
        if t < PVn: order.append(f"V{t}")
    A.e(f"s_waitcnt vmcnt({2*(len(order)-1)})")
    st(A)
    first_scores(A)
    for t in range(NT):
        fl = []; need = []
        if t+1 < NT: need.append(f"K{t+1}")
        if t >= 1: need.append(f"V{t-1}")
        idx = max(order.index(x) for x in need)
        nout = 2*(len(order) - 1 - idx)
        if t == NT-1: nout = 0
        new = []
        if t+PK < NT: fl += ldK(t+PK); new.append(f"K{t+PK}")
        if t+PVn < NT: fl += ldV(t+PVn); new.append(f"V{t+PVn}")
        step(A, 0, t, first=True, fillers=fl, pre=[f"s_waitcnt vmcnt({nout})"])
        order += new

def attention(A, pfx):
    srd(A, SA, PWS, WS_VA + 64*2048)
    A.e("s_lshl_b32 s44, s20, 14          ; KA: T*1024")
    A.e(f"s_lshl_b32 s45, s20, 13         ; KB: T*512")
    A.e(f"s_add_u32 s45, s45, {WS_KB}")
    A.e("s_lshl_b32 s46, s20, 15          ; VA: T*2048")
    A.e(f"s_add_u32 s46, s46, {WS_VA}")
    A.e(f"s_cmp_ge_u32 s3, {NCONV}")
    A.e(f"s_cbranch_scc1 {pfx}_btr")
    kgen_phase(A, pfx)
    A.e(f"s_branch {pfx}_tau1")
    A.label(f"{pfx}_btr")
    b_transition(A, pfx)
    A.label(f"{pfx}_tau1")
    st(A)
    wl = []
    for c in range(8): wl += wdma_ring(c, BWchunk(c))
    def bg(n):
        L = []
        la, lb = f"{pfx}_bga{n}", f"{pfx}_bgb{n}"
        if n < 8:
            L += [f"s_cbranch_vccnz {la}", f"s_add_u32 s63, s61, {64*1280*n}",
                  f"buffer_load_dwordx2 {vr(176+2*n,2)}, v{VUD}, s[{SF}:{SF+3}], s63 offen", f"s_branch {lb}", la + ":"] + wl[n] + [lb + ":"]
        elif 12 <= n < 20:
            k = n - 12
            L += [f"s_cbranch_vccnz {la}"] + (["s_waitcnt vmcnt(0)"] if k == 0 else []) + \
                 [f"ds_write_b32 v{VUP}, v{176+2*k} offset:{256*k}", f"ds_write_b32 v{VUP}, v{177+2*k} offset:{8320+256*k}",
                  f"s_branch {lb}", la + ":"] + wl[n] + [lb + ":"]
        else:
            L += [f"s_cbranch_vccz {lb}"] + wl[n] + [lb + ":"]
        return L
    A.e(f"s_cmp_ge_u32 s3, {NCONV}")
    A.e("s_cselect_b64 vcc, -1, 0")
    A.e(f"s_mul_i32 s61, s20, {512*1280}")
    for tau in range(1, 8):
        for t in range(NT):
            fl = []
            if tau <= 6 and t in (3, 4, 6): fl += [part_write(tau)[(3, 4, 6).index(t)]]
            if tau <= 6 and t in (5, 8, 11, 14): fl += [bg((tau-1)*4 + (t-5)//3)]
            step(A, tau, t, last=(tau == 7), fillers=fl)
        st(A)
    A.e("s_nop 1")
    par = 1; Pp = P[(NT-1) & 1]
    A.e(f"v_mfma_f32_32x32x16_bf16 {vr(O[par],16)}, {VAr(NT-1,0)}, {vr(Pp,4)}, {vr(O[par],16)}")
    A.e(f"v_mfma_f32_32x32x16_bf16 {vr(O[par],16)}, {VAr(NT-1,1)}, {vr(Pp+4,4)}, {vr(O[par],16)}")
    A.e("s_waitcnt vmcnt(0) lgkmcnt(0)")
    A.e("s_barrier")
    st(A)

def reduce_publish(A, pfx):
    quads = [[64, 68, 72, 76, 112, 116, 120, 124, 176], [180, 184, 188, 192, 196, 44, 48, 52, 56]]
    def rdpart(jj):
        for sl in range(3):
            for g in range(3):
                A.e(f"ds_read_b128 {vr(quads[jj][3*sl+g], 4)}, v{VRED} offset:{(jj*3+sl)*PART + 1024*g}")
    rdpart(0)
    srd(A, SC, PWS, 2048*1280, add=WS_O)
    A.e("s_mov_b64 s[56:57], 0")
    for jj in range(2):
        Of = O[jj]
        A.e("s_waitcnt lgkmcnt(0)")
        if jj == 0: rdpart(1)
        for sl in range(3):
            for r in range(12): A.e(f"v_add_f32 v{Of+r}, v{Of+r}, v{quads[jj][3*sl + (r >> 2)] + (r & 3)}")
        A.e(f"v_mov_b32 v28, v{Of+8}")
        A.e(f"v_mov_b32 v29, v{Of+8}")
        A.e(f"v_max3_f32 v30, |v{Of}|, |v{Of+1}|, |v{Of+2}|")
        A.e(f"v_max3_f32 v30, v30, |v{Of+3}|, |v{Of+4}|")
        A.e("v_permlane32_swap_b32 v28, v29")
        for r in range(5, 11, 2): A.e(f"v_max3_f32 v30, v30, |v{Of+r}|, |v{Of+r+1}|")
        A.e(f"v_max_f32 v30, v30, |v{Of+11}|")
        A.e("v_cmp_nle_f32 vcc, 0x2b800000, v29      ; !(2^-40 <= l)")
        A.e("s_or_b64 s[56:57], s[56:57], vcc")
        A.e("v_cmp_nge_f32 vcc, 0x53800000, v29      ; !(2^40 >= l)")
        A.e("s_or_b64 s[56:57], s[56:57], vcc")
        A.e("v_cmp_ngt_f32 vcc, 0x7f800000, v30")
        A.e("s_or_b64 s[56:57], s[56:57], vcc")
        A.e("v_rcp_f32 v29, v29")
        A.e("s_nop 0")
        for r in range(12): A.e(f"v_mul_f32 v{16+r}, v{Of+r}, v29")
        for g in range(3):
            A.e(f"v_cvt_pk_bf16_f32 v{32+6*jj+2*g}, v{16+4*g}, v{17+4*g}")
            A.e(f"v_cvt_pk_bf16_f32 v{33+6*jj+2*g}, v{18+4*g}, v{19+4*g}")
    A.e(f"v_mov_b32 v14, {L_BAD}")
    A.e("s_cmp_eq_u64 s[56:57], 0")
    A.e(f"s_cbranch_scc1 {pfx}_safe")
    A.e("v_mov_b32 v15, 1")
    A.e("ds_write_b32 v14, v15")
    A.e("s_waitcnt lgkmcnt(0)")
    A.label(f"{pfx}_safe")
    A.e("s_barrier")
    A.e("ds_read_b32 v15, v14")
    for jj in range(2):
        A.e(f"ds_write_b64 v{VOS}, {vr(32+6*jj,2)} offset:{5120*jj}")
        A.e(f"ds_write_b64 v{VOS}, {vr(34+6*jj,2)} offset:{5120*jj+16}")
        A.e(f"ds_write_b64 v{VOS2a if jj == 0 else VOS2b}, {vr(36+6*jj,2)}")
    for i in range(3):
        A.e("s_mul_i32 s24, s23, 10")
        A.e("s_add_u32 s24, s24, s20")
        if i: A.e(f"s_add_u32 s24, s24, {4*i}")
        A.e("s_lshr_b32 s25, s24, 2")
        A.e("s_lshl_b32 s25, s25, 10")
        A.e("s_and_b32 s24, s24, 3")
        A.e("s_lshl_b32 s24, s24, 8")
        A.e("s_add_u32 s24, s24, s25")
        A.e("s_mul_i32 s25, s22, 81920")
        A.e(f"s_add_u32 s{28+i}, s24, s25")
    A.e("s_waitcnt lgkmcnt(0)")
    A.e("v_readfirstlane_b32 s56, v15")
    A.e("s_nop 0")
    A.e("s_cmp_lg_u32 s56, 0")
    A.e(f"s_cbranch_scc1 {pfx}_slow")
    A.label(f"{pfx}_staged")
    A.e("s_barrier")
    for i in range(3):
        A.e(f"ds_read_b128 {vr(44+4*i,4)}, v{VTID16} offset:{64*i}")
    for i in range(2):
        A.e(f"s_waitcnt lgkmcnt({2-i})")
        A.e(f"buffer_store_dwordx4 {vr(44+4*i,4)}, v{VOG}, s[{SC}:{SC+3}], s{28+i} offen sc1")
    A.e("s_cmp_ge_u32 s20, 2")
    A.e(f"s_cbranch_scc1 {pfx}_no3rd")
    A.e("s_waitcnt lgkmcnt(0)")
    A.e(f"buffer_store_dwordx4 {vr(52,4)}, v{VOG}, s[{SC}:{SC+3}], s30 offen sc1")
    A.label(f"{pfx}_no3rd")
    A.e("s_waitcnt lgkmcnt(0)")
    A.e("s_lshl_b32 s21, s22, 7")
    A.e(f"s_add_u32 s21, s21, {WS_FLAG}")
    srd(A, SE_, PWS, 128, add="s21")
    A.e(f"s_cmp_ge_u32 s3, {NCONV}")
    A.e(f"s_cbranch_scc1 {pfx}_nouprep")
    u_prep(A)
    A.label(f"{pfx}_nouprep")
    A.e("s_waitcnt vmcnt(0)")
    A.e("s_barrier")
    A.e("s_cmp_lg_u32 s20, 0")
    A.e(f"s_cbranch_scc1 {pfx}_noflag")
    A.e("s_lshl_b32 s21, s23, 2")
    A.e("v_mov_b32 v12, s21")
    A.e("v_mov_b32 v13, 1")
    A.e("s_mov_b64 exec, 1")
    A.e(f"buffer_store_dword v13, v12, s[{SE_}:{SE_+3}], 0 offen sc1")
    A.e("s_mov_b64 exec, -1")
    A.label(f"{pfx}_noflag")
    st(A)

def u_prep(A):
    for ps in range(5):
        b = 64 + 10*ps
        A.e(f"ds_read_b128 {vr(b,4)}, v{VUR} offset:{2048*ps}")
        A.e(f"ds_read_b128 {vr(b+4,4)}, v{VUR} offset:{2048*ps+16}")
        A.e(f"ds_read_b32 v{b+8}, v{VUR} offset:{2048*ps+32}")
    A.e("s_and_b32 s21, s20, 1")
    A.e("s_cmp_eq_u32 s21, 0")
    A.e("s_mov_b32 s25, 0x07060302")
    A.e("s_cselect_b32 s26, 0x05040100, s25")
    A.e(f"v_add_u32 v12, {L_U0}, v{VUW}")
    A.e("s_waitcnt lgkmcnt(0)")
    A.e("s_barrier")
    for ps in range(5):
        b = 64 + 10*ps
        if ps == 4: A.e("s_mov_b64 exec, 15")
        o = 116 + 8*(ps & 1)
        for i in range(4): A.e(f"v_perm_b32 v{o+i}, v{b+2*i+1}, v{b+2*i}, s26")
        for i in range(4): A.e(f"v_perm_b32 v{o+4+i}, v{b+2*i+2}, v{b+2*i+1}, s26")
        A.e(f"ds_write_b128 v12, {vr(o,4)} offset:{1024*ps}")
        A.e(f"ds_write_b128 v{VUW}, {vr(o+4,4)} offset:{L_U1+1024*ps}")
        if ps == 4: A.e("s_mov_b64 exec, -1")

def conv_part(A, pfx):
    ACC = 16; AB = 64
    def Br(D, i): return ar(32*D + 4*i, 4)
    def Ar(c, i): return vr(AB + 32*(c & 1) + 4*i, 4)
    def Ahalf(c, i, h): return vr(AB + 32*(c & 1) + 4*i + 2*h, 2)
    srd(A, SH, POUT, 2048*2560)
    A.e("s_waitcnt lgkmcnt(0)")
    st(A)
    q = Q(A)
    def readsA(c):
        L = [It(f"v_add_u32 v11, {512*c}, v{VCU}")]
        for i in range(8):
            L.append(It(f"ds_read2_b32 {Ahalf(c,i,0)}, v11 offset0:{16*i} offset1:{16*i+1}", lds=f"a{c}_{i}"))
            L.append(It(f"ds_read2_b32 {Ahalf(c,i,1)}, v11 offset0:{16*i+2} offset1:{16*i+3}", lds=f"a{c}_{i}"))
        return L
    def readsB(D):
        return [It(f"ds_read_b128 {Br(D,i)}, v{VCK} offset:{512*(7-D)+64*i}", lds=f"b{D}_{i}") for i in range(8)]
    def mm(c, D, i):
        acc = ACC + 4*(c + D)
        first = (c == 0 and i == 0)
        return It(f"v_mfma_f32_16x16x32_bf16 {vr(acc,4)}, {Ar(c,i)}, {Br(D,i)}, {'0' if first else vr(acc,4)}", needl=(f"a{c}_{i}", f"b{D}_{i}"), w=2)
    def flush1(B):
        acc = ACC + 4*B; bo = (B & 1)*YSB
        return [It(f"v_cvt_pk_bf16_f32 v48, v{acc}, v{acc+1}"), It(f"v_cvt_pk_bf16_f32 v49, v{acc+2}, v{acc+3}"),
                It(f"ds_write_b64 v{VYS}, v[48:49] offset:{bo}", lds=f"yw{B}")]
    def flush2(B):
        bo = (B & 1)*YSB; r = 50 + 2*(B & 1)
        return [It("s_barrier", needl=(f"yw{B}",)),
                It(f"ds_read_b64_tr_b16 {vr(r,2)}, v{VYT} offset:{bo}", lds=f"yr{B}")]
    def flush3(B):
        r = 50 + 2*(B & 1)
        return [It([f"s_mov_b32 s28, {B*256*2560}", f"buffer_store_dwordx2 {vr(r,2)}, v{VYO}, s[{SH}:{SH+3}], s28 offen"], vm="Y", needl=(f"yr{B}",))]
    q.run(readsA(0) + readsB(0))
    for c in range(8):
        if c == 0:
            for D in range(8):
                M = [mm(0, D, i) for i in range(8)]
                R = readsB(D+1) if D < 7 else readsA(1)
                q.run(merge(M, R))
        else:
            M = [mm(c, D, i) for i in range(8) for D in range(8-c)]
            R = readsA(c+1) if c < 7 else []
            n = len(M); h1 = min(5, n); h2 = max(h1, n//2);
            q.run(M[:h1])
            if c == 7: A.e("s_nop 2")
            q.run(flush1(c-1))
            q.run(merge(M[h1:h2], R[:len(R)//2]))
            q.run(flush2(c-1))
            q.run(merge(M[h2:], R[len(R)//2:]))
            q.run(flush3(c-1))
        import os
        if Cfg.STAMP and os.environ.get("DETC") == "1": st(A); q.lq = []
    A.e("s_nop 7")
    q.run(flush1(7) + flush2(7) + flush3(7))
    st(A)
    finish(A)

BW0 = 73728
def BWchunk(c): return (BW0 + c*WCH) if c < 8 else (16704 + (c-8)*WCH)
BXBUF = [0, 8192, 37184, 37184+8192, 37184+16384, 37184+24576]

def finish(A):
    if Cfg.STAMP:
        A.e("s_waitcnt vmcnt(0)")
        st(A)
        A.e("s_mov_b32 s2, s3")
        stamp_out(A, PWS, 4, STAMP_BASE, VSTAMP, VSTMP)
    A.e("s_endpgm")

def outproj_b(A, pfx):
    A.e("s_mov_b32 s60, s22")
    A.e("s_sub_u32 s61, s22, 20")
    A.e("s_add_u32 s62, s61, 12")
    A.e("s_cmp_lt_u32 s62, 20")
    A.e("s_cselect_b32 s63, 3, 2")
    A.e("s_cselect_b32 s62, s62, s61")
    q = Q(A)
    for c in (8, 9): q.run([It(g, vm=f"W{c}") for g in wdma_ring(c, BWchunk(c))])
    srd(A, SE_, PWS, 32*128, add=WS_FLAG)
    def wait_flags(name, regs):
        nl = 8*len(regs)
        A.e("s_cmp_lg_u32 s20, 0")
        A.e(f"s_cbranch_scc1 {pfx}_{name}_np")
        A.e(f"v_mov_b32 v14, s{regs[0]}")
        if len(regs) > 1:
            A.e("v_lshrrev_b32 v13, 3, v1")
            A.e("v_cmp_eq_u32 vcc, 1, v13")
            A.e(f"v_mov_b32 v15, s{regs[1]}")
            A.e("s_nop 0")
            A.e("v_cndmask_b32 v14, v14, v15, vcc")
        A.e("v_and_b32 v12, 7, v1")
        A.e("v_lshlrev_b32 v12, 2, v12")
        A.e("v_lshl_add_u32 v12, v14, 7, v12")
        A.e(f"s_mov_b32 s35, {SPIN_MAX}")
        A.e(f"s_mov_b64 exec, {hex((1 << nl)-1)}")
        A.label(f"{pfx}_{name}_p")
        A.e(f"buffer_load_dword v13, v12, s[{SE_}:{SE_+3}], 0 offen sc1")
        A.e("s_waitcnt vmcnt(0)")
        A.e("v_cmp_ne_u32 vcc, 0, v13")
        A.e("s_sub_u32 s35, s35, 1")
        A.e("s_cmp_eq_u32 s35, 0")
        A.e(f"s_cbranch_scc1 {pfx}_{name}_d")
        A.e(f"s_cmp_eq_u32 vcc_lo, {hex((1 << nl)-1)}")
        A.e(f"s_cbranch_scc1 {pfx}_{name}_d")
        A.e(f"s_branch {pfx}_{name}_p")
        A.label(f"{pfx}_{name}_d")
        A.e("s_mov_b64 exec, -1")
        A.label(f"{pfx}_{name}_np")
        A.e("s_waitcnt vmcnt(0)")
        A.e("s_barrier")
    wait_flags("o", [60])
    q.vq = []
    st(A)
    srd(A, SA, PWS, 2048*1280, add=WS_O)
    srd(A, SC, POUT, 2048*2560)
    for t in range(3):
        A.e(f"s_lshl_b32 s21, s{60+t}, 2")
        A.e("s_add_u32 s21, s21, s20")
        A.e(f"s_mul_i32 s{56+t}, s21, 20480")
    ACC = [16, 36]; WF = 56
    def Xr(sl, kk): return ar(80*sl + 4*kk, 4)
    def xld(sl, t, kk):
        return It([f"s_add_u32 s36, s{56+t}, {1024*kk}", f"buffer_load_dwordx4 {Xr(sl, kk)}, v4, s[{SA}:{SA+3}], s36 offen"], vm=f"X{sl}_{kk}")
    def rdW(kk, mt):
        c, ks = kk >> 1, kk & 1; out = []
        for h in range(2):
            off = BWchunk(c) + (32*ks + 8*h)*160 + 32*mt
            a = VWT
            if off >= 131072: a, off = VWTh2, off - 131072
            elif off >= 65536: a, off = VWTh, off - 65536
            out.append(It(f"ds_read_b64_tr_b16 {vr(WF+mt*4+h*2,2)}, v{a} offset:{off}", lds=f"w{kk}_{mt}"))
        return out
    def pack(slot, base):
        for mt in range(5):
            acc = ACC[slot] + 4*mt
            r = base + 2*mt
            A.e(f"v_cvt_pk_bf16_f32 v{r}, v{acc}, v{acc+1}")
            A.e(f"v_cvt_pk_bf16_f32 v{r+1}, v{acc+2}, v{acc+3}")
    def store(base, t):
        A.e(f"s_mul_i32 s21, s{60+t}, 163840")
        A.e("s_add_u32 s21, s21, s55")
        for pr in range(2):
            r = base + 4*pr
            A.e(f"v_permlane16_swap_b32 v{r}, v{r+2}")
            A.e(f"v_permlane16_swap_b32 v{r+1}, v{r+3}")
        q.emit(It(f"buffer_store_dwordx4 {vr(base,4)}, v{VOUT2}, s[{SC}:{SC+3}], s21 offen", vm="S"))
        q.emit(It(f"buffer_store_dwordx4 {vr(base+4,4)}, v{VOUT2}, s[{SC}:{SC+3}], s21 offen offset:64", vm="S"))
        q.emit(It(f"buffer_store_dwordx2 {vr(base+8,2)}, v{VOUT}, s[{SC}:{SC+3}], s21 offen offset:128", vm="S"))
    A.e("s_mul_i32 s55, s23, 160")
    A.e("s_add_u32 s55, s55, 1280")
    def run_pass(tiles):
        n = len(tiles)
        loads = [xld(sl, t, kk) for kk in range(20) for sl, t in enumerate(tiles)]
        ahead = 8*n
        q.run(loads[:ahead]); loads = loads[ahead:]
        for mt in range(5): q.run(rdW(0, mt))
        for kk in range(20):
            for mt in range(5):
                for sl in range(n):
                    nl = gemm_need(kk, mt, []) if sl == 0 else ()
                    nv = tuple(f"X{z}_{kk}" for z in range(n)) if (mt == 0 and sl == 0) else ()
                    q.emit(It(f"v_mfma_f32_16x16x32_bf16 {vr(ACC[sl]+4*mt,4)}, {vr(WF+4*mt,4)}, {Xr(sl, kk)}, {vr(ACC[sl]+4*mt,4) if kk else '0'}",
                              needl=nl, needv=nv))
                if loads and mt < n: q.emit(loads.pop(0))
                if kk+1 < 20: q.run(rdW(kk+1, mt))
        assert not loads
        q.all_l()
        A.e("s_nop 7")
    run_pass([0])
    pack(0, 92)
    store(92, 0)
    st(A)
    wait_flags("o2", [61, 62])
    q.vq = []
    st(A)
    A.e("s_cmp_eq_u32 s63, 2")
    A.e(f"s_cbranch_scc1 {pfx}_b2")
    q = Q(A)
    run_pass([1, 2])
    st(A)
    pack(0, 92); pack(1, 104)
    store(92, 1); store(104, 2)
    finish(A)
    A.label(f"{pfx}_b2")
    q = Q(A)
    run_pass([1])
    st(A)
    pack(0, 92)
    store(92, 1)
    finish(A)

def slow_softmax(A, pfx):
    QD, MX, PS = 10240, 22528, 24576
    Sx, Px, Ox, QFA, QFB = 16, 48, 80, 64, 68
    A.label(f"{pfx}_slow")
    A.e("s_barrier")
    A.e("s_cmp_lg_u32 s20, 0")
    A.e(f"s_cbranch_scc1 {pfx}_sl_nodump")
    A.e("v_lshlrev_b32 v13, 3, v1")
    for tau in range(8):
        j = (2 + tau) & 7
        A.e(f"ds_write_b128 v4, {QAr(tau)} offset:{QD + 1536*j}")
        A.e(f"ds_write_b64 v13, {QBr(tau)} offset:{QD + 1536*j + 1024}")
    A.e("s_waitcnt lgkmcnt(0)")
    A.label(f"{pfx}_sl_nodump")
    A.e("s_barrier")
    A.e("s_mov_b32 s56, 0                 ; tile j")
    A.e("v_and_b32 v12, 31, v1")
    A.e("v_lshlrev_b32 v12, 2, v12        ; query*4")
    A.e("s_lshl_b32 s21, s20, 7")
    A.e(f"s_add_u32 s21, s21, {MX}")
    A.e("v_add_u32 v72, s21, v12")
    A.e(f"v_add_u32 v73, {MX}, v12")
    A.e(f"s_mul_i32 s21, s20, {PART}")
    A.e(f"s_add_u32 s21, s21, {PS}")
    A.e("v_add_u32 v74, s21, v4")
    A.e(f"v_add_u32 v75, {PS}, v4")
    A.label(f"{pfx}_sl_loop")
    A.e("s_mul_i32 s21, s56, 1536")
    A.e(f"s_add_u32 s21, s21, {QD}")
    A.e("v_add_u32 v14, s21, v4")
    A.e("v_lshlrev_b32 v15, 3, v1")
    A.e("v_add_u32 v15, s21, v15")
    A.e(f"ds_read_b128 {vr(QFA,4)}, v14")
    A.e(f"ds_read_b64 {vr(QFB,2)}, v15 offset:1024")
    A.e("v_mov_b32 v70, 0xff800000")
    A.e("s_waitcnt lgkmcnt(0)")
    def scores(t):
        A.e(f"v_mfma_f32_32x32x16_bf16 {vr(Sx,16)}, {KAr(t)}, {vr(QFA,4)}, 0")
        A.e(f"v_mfma_f32_32x32x8_bf16 {vr(Sx,16)}, {KBr(t)}, {vr(QFB,2)}, {vr(Sx,16)}")
        A.e("s_nop 11")
    for t in range(NT):
        scores(t)
        for i in range(8): A.e(f"v_max3_f32 v70, v70, v{Sx+2*i}, v{Sx+2*i+1}")
        A.e("s_nop 6")
    A.e("v_mov_b32 v71, v70")
    A.e("v_mov_b32 v76, v70")
    A.e("s_nop 1")
    A.e("v_permlane32_swap_b32 v71, v76")
    A.e("s_nop 1")
    A.e("v_max3_f32 v70, v70, v71, v76")
    A.e("ds_write_b32 v72, v70")
    A.e("s_waitcnt lgkmcnt(0)")
    A.e("s_barrier")
    for w in range(4): A.e(f"ds_read_b32 v{76+w}, v73 offset:{128*w}")
    A.e("s_waitcnt lgkmcnt(0)")
    A.e("v_max3_f32 v71, v76, v77, v78")
    A.e("v_max_f32 v71, v71, v79")
    for t in range(NT):
        scores(t)
        for i in range(16): A.e(f"v_sub_f32 v{Sx+i}, v{Sx+i}, v71")
        for i in range(16): A.e(f"v_exp_f32 v{Sx+i}, v{Sx+i}")
        A.e("s_nop 0")
        for i in range(8): A.e(f"v_cvt_pk_bf16_f32 v{Px+i}, v{Sx+2*i}, v{Sx+2*i+1}")
        A.e("s_nop 1")
        A.e(f"v_mfma_f32_32x32x16_bf16 {vr(Ox,16)}, {VAr(t,0)}, {vr(Px,4)}, {'0' if t == 0 else vr(Ox,16)}")
        A.e(f"v_mfma_f32_32x32x16_bf16 {vr(Ox,16)}, {VAr(t,1)}, {vr(Px+4,4)}, {vr(Ox,16)}")
        A.e("s_nop 6")
    A.e("s_nop 11")
    for g in range(3): A.e(f"ds_write_b128 v74, {vr(Ox+4*g,4)} offset:{1024*g}")
    A.e("s_waitcnt lgkmcnt(0)")
    A.e("s_barrier")
    A.e("s_lshr_b32 s21, s56, 1")
    A.e("s_cmp_lg_u32 s21, s20")
    A.e(f"s_cbranch_scc1 {pfx}_sl_next")
    for w in range(4):
        for g in range(3): A.e(f"ds_read_b128 {vr(16+12*w+4*g,4)}, v75 offset:{PART*w + 1024*g}")
    A.e("s_waitcnt lgkmcnt(0)")
    for w in range(1, 4):
        for r in range(12): A.e(f"v_add_f32 v{16+r}, v{16+r}, v{16+12*w+r}")
    A.e("v_mov_b32 v76, v24")
    A.e("v_mov_b32 v77, v24")
    A.e("s_nop 1")
    A.e("v_permlane32_swap_b32 v76, v77")
    A.e("s_nop 1")
    A.e("v_rcp_f32 v77, v77")
    A.e("s_nop 0")
    for r in range(12): A.e(f"v_mul_f32 v{16+r}, v{16+r}, v77")
    for g in range(3):
        A.e(f"v_cvt_pk_bf16_f32 v{32+2*g}, v{16+4*g}, v{17+4*g}")
        A.e(f"v_cvt_pk_bf16_f32 v{33+2*g}, v{18+4*g}, v{19+4*g}")
    A.e("s_and_b32 s21, s56, 1")
    A.e("s_mul_i32 s21, s21, 5120")
    A.e(f"v_add_u32 v14, s21, v{VOS}")
    A.e("ds_write_b64 v14, v[32:33]")
    A.e("ds_write_b64 v14, v[34:35] offset:16")
    A.e("s_mov_b32 exec_hi, 0")
    A.e("ds_write_b64 v14, v[36:37] offset:32")
    A.e("s_mov_b32 exec_hi, -1")
    A.e("s_waitcnt lgkmcnt(0)")
    A.label(f"{pfx}_sl_next")
    A.e("s_barrier")
    A.e("s_add_u32 s56, s56, 1")
    A.e("s_cmp_lt_u32 s56, 8")
    A.e(f"s_cbranch_scc1 {pfx}_sl_loop")
    A.e(f"s_branch {pfx}_staged")

def mega_role(A, pfx):
    prologue(A, pfx)
    front(A, pfx)
    attention(A, pfx)
    reduce_publish(A, pfx)
    A.e(f"s_cmp_ge_u32 s3, {NCONV}")
    A.e(f"s_cbranch_scc1 {pfx}_bback")
    conv_part(A, pfx)
    A.label(f"{pfx}_bback")
    outproj_b(A, pfx)
    slow_softmax(A, pfx)
    A.label(f"{pfx}_end")
    A.e("s_endpgm")
```

```python
from common import *
from sched import *
import math
LOG2E = math.log2(math.e)
GBUF = 18432; GXB = 8192
L_KR = 73728
L_KG = 0; KGW = 25872
RA = 3
L_XR = 0; L_WKV = 81920; L_WR = 107520
L_QL = 104448
L_PART = 0; PART = 3072
L_U0 = 92160; CS = 4160
L_WA = 108800; WCH = 10240
L_DUMMY = 160000
L_U1 = 64; L_WB = 16704
L_YS = 16896; YSC = 576; YSB = 4*YSC
L_BAD = 161024
LDS_MEGA = 161088
def Wchunk(c): return (L_WA + c*WCH) if c < 5 else (L_WB + (c-5)*WCH)
XBUF = [L_KR, L_KR+8192, L_U0, L_U0+8192, L_U1, L_U1+8192]
WS_FLAG = 0x1100000
SPIN_MAX = 1 << 18
NCONV = 160
PU, PARE, PAIM, PBRE, PBIM, PCRE, PCIM, PLDT = 64, 66, 68, 70, 72, 74, 76, 78
PDSK, PX, PWQ, PWK, PWV, PWO, POUT, PDBG = 80, 82, 84, 86, 88, 90, 92, 94
PWS = 4
SA, SB, SC, SD, SE_, SF, SG, SH = 8, 12, 16, 40, 44, 48, 52, 56
VXD0, VXD1 = 200, 201
VWD = 202
VOUT = 205
VYO = 206
VOS, VOS2a, VOS2b = 207, 208, 209
VOG = 210
VTID16 = 213
VCU, VCK = 214, 215
VYS = 216
VYT, VUT = 217, 218
VUR = 219
VUW = 220
VRED = 221
VXF0, VXF1 = 222, 223
VWT = 224
VUD = 225
VQW = 226
VQR, VQRB = 231, 232
VXF0h, VXF1h, VWTh, VWTh2 = 233, 234, 235, 236
VOUT2 = 245
VUP = 237
VPA = 238
VSTAMP, VSTMP = 252, 253
S = [16, 32]; P = [48, 56]; O = [80, 96]; VW = 7; NT = 16
def QAr(tau): return vr(128+6*tau, 4)
def QBr(tau): return vr(132+6*tau, 2)
def KAr(t): return ar(4*t, 4)
def KBr(t): return ar(64+2*t, 2)
def VAr(t, u): return ar(96+8*t+4*u, 4)

def st(A): stamp(A, VSTAMP)

PREFETCH = True
CODE_BYTES = 80*1024
def prefetch(A, pfx):
    A.e("s_getpc_b64 s[24:25]")
    A.label(f"{pfx}_pc")
    A.e("s_lshr_b32 s26, s3, 3")
    A.e("s_lshl_b32 s26, s26, 2")
    A.e("s_add_u32 s26, s26, s20          ; slice 0..127")
    A.e("s_mul_i32 s26, s26, 768")
    A.e("v_min_u32 v12, 5, v1")
    A.e("v_lshlrev_b32 v12, 7, v12")
    A.e("v_add_u32 v12, s26, v12")
    A.e(f"v_min_u32 v12, mg_end-{pfx}_pc-4, v12")
    A.e("global_load_dword v249, v12, s[24:25]")
    A.e("s_lshl_b32 s26, s3, 2")
    A.e("s_add_u32 s26, s26, s20")
    A.e("s_lshl_b32 s26, s26, 6")
    A.e("v_add_u32 v12, s26, v1           ; slot")
    A.e("v_lshlrev_b32 v13, 7, v12")
    srd(A, SB, PX, 2048*1280)
    A.e(f"buffer_load_dword v250, v13, s[{SB}:{SB+3}], 0 offen")
    A.e("v_subrev_u32 v13, 0x280000, v13")
    srd(A, SB, PWQ, 819200)
    A.e(f"buffer_load_dword v251, v13, s[{SB}:{SB+3}], 0 offen")
def prologue(A, pfx):
    A.e("s_load_dwordx16 s[64:79], s[0:1], 0")
    A.e("s_load_dwordx16 s[80:95], s[0:1], 64")
    A.e(f"s_load_dwordx2 s[4:5], s[0:1], 128")
    stamp_init(A, VSTAMP); st(A)
    A.e("v_and_b32 v1, 63, v0")
    A.e("v_lshrrev_b32 v12, 6, v0")
    A.e("v_lshlrev_b32 v4, 4, v1          ; lane*16")
    A.e("v_readfirstlane_b32 s20, v12")
    A.e("v_and_b32 v2, 15, v1")
    A.e("v_lshrrev_b32 v3, 4, v1")
    A.e(f"s_sub_u32 s52, s3, {NCONV}        ; j")
    A.e("s_and_b32 s24, s3, 7             ; r")
    A.e("s_lshr_b32 s25, s3, 3            ; q (conv)")
    A.e("s_lshr_b32 s26, s52, 3           ; q (others)")
    A.e(f"s_cmp_ge_u32 s3, {NCONV}")
    A.e("s_cselect_b32 s25, s26, s25      ; q")
    A.e("s_cselect_b32 s26, 8, 16")
    A.e("s_cselect_b32 s27, 20, 0")
    A.e("s_cselect_b32 s28, 28, 16")
    A.e("s_lshr_b32 s22, s25, 3")
    A.e("s_lshl_b32 s22, s22, 3")
    A.e("s_add_u32 s22, s22, s24")
    A.e("s_add_u32 s22, s22, s27")
    A.e("s_and_b32 s23, s25, 7")
    A.e("s_lshr_b32 s29, s24, 1")
    A.e("s_add_u32 s29, s29, s28")
    A.e("s_and_b32 s30, s24, 1")
    A.e("s_lshl_b32 s30, s30, 2")
    A.e("s_add_u32 s30, s30, s25")
    A.e("s_sub_u32 s30, s30, s26")
    A.e("s_cmp_ge_u32 s25, s26")
    A.e("s_cselect_b32 s22, s29, s22")
    A.e("s_cselect_b32 s23, s30, s23")
    A.e("s_lshr_b32 s53, s52, 5")
    A.e("s_min_u32 s53, s53, 2")
    A.e("s_cselect_b32 s53, s53, s53")
    A.e(f"s_cmp_lt_u32 s3, {NCONV}")
    A.e("s_cselect_b32 s53, 2, s53")
    A.e("s_and_b32 s54, s52, 31")
    A.e("s_cmp_lt_u32 s53, 2")
    A.e("s_cselect_b32 s54, s54, s22")
    A.e("s_lshl_b32 s32, s20, 10          ; wave*1024")
    A.e("s_lshl_b32 s31, s20, 11          ; wave*2048")
    A.e("s_and_b32 s33, s3, 7")
    A.e("s_mul_i32 s33, s33, 20")
    A.e("s_lshr_b32 s34, s3, 3")
    A.e("s_add_u32 s33, s33, s34")
    A.e("s_min_u32 s33, s33, 159")
    A.e("s_lshl_b32 s34, s33, 2")
    A.e("s_add_u32 s34, s34, s20          ; channel d")
    A.e("s_movk_i32 s27, 1280")
    A.e("v_lshrrev_b32 v12, 3, v1")
    A.e("v_and_b32 v13, 7, v1")
    A.e("v_xor_b32 v13, v13, v12")
    A.e("v_lshlrev_b32 v13, 4, v13")
    A.e("s_lshl_b32 s21, s20, 4")
    A.e("v_add_u32 v12, s21, v12")
    A.e(f"v_mad_u32_u24 v{VXD0}, v12, s27, v13")
    A.e(f"v_add_u32 v{VXD1}, 10240, v{VXD0}")
    A.e("s_mov_b32 s26, 6554")
    for n in range(3):
        A.e(f"s_add_u32 s21, s20, {4*n}")
        A.e("s_lshl_b32 s21, s21, 6")
        A.e("v_add_u32 v12, s21, v1          ; p")
        A.e("v_mul_u32_u24 v13, s26, v12")
        A.e("v_lshrrev_b32 v13, 16, v13      ; rho")
        A.e("v_mul_u32_u24 v14, 10, v13")
        A.e("v_sub_u32 v14, v12, v14         ; cc")
        A.e("v_lshlrev_b32 v14, 4, v14")
        A.e("v_and_b32 v15, 0x33, v13")
        A.e("v_bfe_u32 v5, v13, 2, 1")
        A.e("v_lshl_or_b32 v15, v5, 3, v15")
        A.e("v_bfe_u32 v5, v13, 3, 1")
        A.e("v_lshl_or_b32 v15, v5, 2, v15")
        A.e(f"v_mad_u32_u24 v{VWD+n}, v15, s27, v14")
        if n == 2:
            A.e(f"v_mov_b32 v12, {OOB}")
            A.e("v_cmp_gt_u32 vcc, 64, v13")
            A.e("s_nop 1")
            A.e(f"v_cndmask_b32 v{VWD+2}, v12, v{VWD+2}, vcc")
    for l in addr_setup_items(): A.e(l)
    A.e("s_waitcnt lgkmcnt(0)")
    A.e("s_mul_i32 s21, s54, 81920")
    srd(A, SA, PX, 81920, add="s21")
    A.e("s_mul_i32 s21, s23, 160")
    srd(A, SD, PWQ, "0", add="s21")
    A.e(f"s_sub_u32 s{SD+2}, 819200, s21")

def addr_setup_items(part="front"):
    T = Asm(); A = T
    A.e("s_lshl_b32 s21, s20, 4")
    A.e("v_add_u32 v12, s21, v2")
    A.e("v_lshlrev_b32 v12, 7, v12")
    A.e("v_and_b32 v13, 7, v2")
    A.e("v_xor_b32 v14, v13, v3")
    A.e(f"v_lshl_add_u32 v{VXF0}, v14, 4, v12")
    A.e("v_add_u32 v14, 4, v3")
    A.e("v_xor_b32 v14, v13, v14")
    A.e(f"v_lshl_add_u32 v{VXF1}, v14, 4, v12")
    A.e(f"v_add_u32 v{VXF0h}, 65536, v{VXF0}")
    A.e(f"v_add_u32 v{VXF1h}, 65536, v{VXF1}")
    A.e("v_lshrrev_b32 v12, 1, v3")
    A.e("v_lshlrev_b32 v12, 4, v12")
    A.e("v_and_b32 v13, 1, v3")
    A.e("v_lshl_add_u32 v12, v13, 2, v12")
    A.e("v_lshrrev_b32 v13, 2, v2")
    A.e("v_add_u32 v12, v12, v13")
    A.e("v_mul_u32_u24 v12, 160, v12")
    A.e("v_and_b32 v13, 3, v2")
    A.e(f"v_lshl_add_u32 v{VWT}, v13, 3, v12")
    A.e(f"v_add_u32 v{VWTh}, 65536, v{VWT}")
    A.e(f"v_add_u32 v{VWTh2}, 0x20000, v{VWT}")
    A.e("s_and_b32 s21, s20, 1")
    A.e("s_lshl_b32 s21, s21, 4")
    A.e("v_add_u32 v15, s21, v2          ; pos32")
    A.e("s_lshr_b32 s24, s20, 1")
    A.e("s_mul_i32 s24, s24, 1280")
    A.e(f"s_add_u32 s24, s24, {L_QL}")
    A.e("v_lshlrev_b32 v14, 3, v15        ; 8*pos32")
    A.e("v_add_u32 v14, s24, v14")
    A.e("v_lshlrev_b32 v13, 4, v3")
    A.e("v_and_b32 v13, 16, v13")
    A.e("v_cmp_lt_u32 vcc, 1, v3          ; g >= 2")
    for mt in range(5):
        cs = []; isb = []
        for g in range(4):
            c0 = 16*mt + 4*g; hl, d0 = divmod(c0, 20)
            if d0 < 16: cs.append(hl*2560 + ((d0 >> 2) & 1)*512 + (d0 >> 3)*8); isb.append(0)
            else: cs.append(hl*2560 + 1024); isb.append(1)
        enc = [c | (0 if b else 0x8000) for c, b in zip(cs, isb)]
        assert all(c < 0x8000 for c in cs)
        A.e(f"v_mov_b32 v12, {hex(enc[0] | (enc[1] << 16))}")
        A.e(f"v_mov_b32 v6, {hex(enc[2] | (enc[3] << 16))}")
        A.e("v_cndmask_b32 v12, v12, v6, vcc")
        A.e("v_lshrrev_b32 v12, v13, v12")
        A.e("v_bfe_u32 v6, v12, 15, 1")
        A.e("v_and_b32 v12, 0x7fff, v12")
        A.e("v_mul_u32_u24 v6, v6, v15")
        A.e("v_lshl_add_u32 v6, v6, 3, v14")
        A.e(f"v_add_u32 v{VQW+mt}, v6, v12")
    A.e(f"v_mov_b32 v{VQR}, v4")
    A.e("v_and_b32 v12, 31, v1")
    A.e("v_lshlrev_b32 v12, 3, v12")
    A.e(f"v_add_u32 v{VQRB}, 1024, v12")
    A.e(f"v_mov_b32 v12, {OOB}")
    A.e("v_lshlrev_b32 v5, 3, v1")
    A.e("v_cmp_gt_u32 vcc, 32, v1")
    A.e("v_and_b32 v13, 31, v1")
    A.e("s_nop 0")
    A.e("v_cndmask_b32 v5, v12, v5, vcc")
    A.e("v_cmp_gt_u32 vcc, 21, v13")
    A.e("s_nop 1")
    A.e("v_cndmask_b32 v8, v12, v4, vcc")
    if part == "front": return [x.strip() for x in T.lines if x.strip()]
    T.lines.clear()
    A.e(f"s_mul_i32 s21, s20, {6*PART}")
    A.e(f"v_add_u32 v{VRED}, s21, v4")
    A.e("v_and_b32 v13, 31, v1")
    A.e("v_mul_u32_u24 v13, 160, v13")
    A.e("v_lshrrev_b32 v14, 5, v1         ; h")
    A.e("v_lshl_add_u32 v13, v14, 3, v13")
    A.e("s_mul_i32 s24, s20, 40")
    A.e(f"v_add_u32 v{VOS}, s24, v13")
    A.e(f"v_mov_b32 v12, {L_DUMMY}")
    A.e(f"v_add_u32 v13, 32, v{VOS}")
    A.e("v_cmp_eq_u32 vcc, 0, v14")
    A.e(f"v_add_u32 v15, 5152, v{VOS}")
    A.e("s_nop 0")
    A.e(f"v_cndmask_b32 v{VOS2a}, v12, v13, vcc")
    A.e(f"v_cndmask_b32 v{VOS2b}, v12, v15, vcc")
    A.e("v_lshrrev_b32 v13, 4, v1")
    A.e("v_mul_u32_u24 v13, 0x5000, v13       ; (row >> 4) * 20480")
    A.e("v_and_b32 v14, 15, v1")
    A.e(f"v_lshl_add_u32 v{VOG}, v14, 4, v13")
    A.e("v_mul_u32_u24 v13, 160, v1")
    A.e("s_lshl_b32 s24, s20, 4")
    A.e(f"v_add_u32 v{VTID16}, s24, v13")
    A.e("s_lshl_b32 s21, s20, 4")
    A.e("s_movk_i32 s26, 2560")
    A.e("v_add_u32 v13, s21, v2")
    A.e("v_mul_u32_u24 v13, s26, v13")
    A.e(f"v_lshl_add_u32 v{VOUT}, v3, 3, v13")
    A.e("v_and_b32 v14, 1, v3")
    A.e("v_lshl_add_u32 v13, v14, 5, v13")
    A.e("v_lshrrev_b32 v14, 1, v3")
    A.e(f"v_lshl_add_u32 v{VOUT2}, v14, 4, v13     ; + 32 (g & 1) + 16 (g >> 1)")
    A.e("s_lshl_b32 s21, s20, 6")
    A.e("v_add_u32 v13, s21, v1")
    A.e("v_mul_u32_u24 v13, s26, v13")
    A.e("s_lshl_b32 s21, s33, 3")
    A.e(f"v_add_u32 v{VYO}, s21, v13")
    A.e("v_add_u32 v12, 1, v2")
    A.e("v_and_b32 v12, 1, v12            ; cp")
    A.e("v_sub_u32 v13, v2, v12")
    A.e("v_add_u32 v13, 9, v13")
    A.e("v_and_b32 v14, 1, v3")
    A.e("v_lshlrev_b32 v14, 3, v14        ; 8(g&1)")
    A.e("v_sub_u32 v13, v13, v14")
    A.e("v_lshrrev_b32 v15, 1, v3         ; g>>1")
    A.e("v_lshl_add_u32 v13, v15, 4, v13")
    A.e("v_lshlrev_b32 v13, 1, v13")
    A.e("v_xor_b32 v12, 1, v12")
    A.e(f"s_mov_b32 s24, {L_U0 - L_U1}")
    A.e("v_mul_lo_u32 v12, v12, s24")
    A.e("v_add_u32 v13, v13, v12")
    A.e(f"s_mul_i32 s21, s20, {CS}")
    A.e(f"s_add_u32 s24, s21, {L_U1}")
    A.e(f"v_add_u32 v{VCU}, s24, v13")
    A.e(f"v_add_u32 v{VUW}, s21, v4")
    A.e("v_lshlrev_b32 v13, 4, v2")
    A.e("v_sub_u32 v13, 2040, v13")
    A.e("v_lshl_add_u32 v13, v15, 4, v13")
    A.e("v_sub_u32 v13, v13, v14")
    A.e("v_lshlrev_b32 v13, 1, v13")
    A.e("s_mul_i32 s24, s20, 4608")
    A.e(f"s_add_u32 s24, s24, {L_KR-3584}")
    A.e(f"v_add_u32 v{VCK}, s24, v13")
    A.e("v_lshlrev_b32 v13, 5, v2")
    A.e("v_lshl_add_u32 v13, v3, 3, v13")
    A.e(f"s_mul_i32 s24, s20, {YSC}")
    A.e(f"s_add_u32 s24, s24, {L_YS}")
    A.e(f"v_add_u32 v{VYS}, s24, v13")
    A.e("v_and_b32 v13, 3, v2")
    A.e("v_lshlrev_b32 v13, 3, v13")
    A.e("v_lshl_add_u32 v13, v3, 5, v13")
    A.e("s_lshl_b32 s21, s20, 7")
    A.e("v_add_u32 v13, s21, v13")
    A.e("v_lshrrev_b32 v12, 2, v2")
    A.e(f"v_mul_u32_u24 v14, {YSC}, v12" if False else f"s_movk_i32 s24, {YSC}")
    A.e("v_mul_u32_u24 v14, s24, v12")
    A.e(f"v_add3_u32 v{VYT}, v14, v13, v13" if False else f"v_add_u32 v14, v14, v13")
    A.e(f"v_add_u32 v{VYT}, {L_YS}, v14")
    A.e(f"s_movk_i32 s24, {CS}")
    A.e("v_mul_u32_u24 v14, s24, v12")
    A.e("v_add_u32 v14, v14, v13")
    A.e(f"v_add_u32 v{VUT}, {L_U0+32}, v14")
    A.e("s_lshr_b32 s21, s20, 1")
    A.e("s_mul_i32 s21, s21, 8320")
    A.e(f"s_add_u32 s21, s21, {L_U0}")
    A.e("v_lshlrev_b32 v13, 5, v1")
    A.e(f"v_add_u32 v{VUR}, s21, v13")
    A.e("s_movk_i32 s26, 1280")
    A.e("v_mul_u32_u24 v13, s26, v1")
    A.e("s_lshl_b32 s21, s33, 3")
    A.e(f"v_add_u32 v{VUD}, s21, v13")
    A.e("s_lshl_b32 s21, s20, 11")
    A.e(f"s_add_u32 s21, s21, {L_U0+64}")
    A.e("v_lshlrev_b32 v13, 2, v1")
    A.e(f"v_add_u32 v{VUP}, s21, v13")
    return [x.strip() for x in T.lines if x.strip()]

def wdma_ring(c, base):
    L = []
    for n in range(3):
        g = []
        if n < 2:
            g += [f"s_add_u32 m0, s32, {base + 4096*n}", f"s_mov_b32 s38, {64*1280*c}" if n == 0 else "s_nop 0"]
        else:
            g += [f"s_add_u32 s39, s32, {base + 8192}", "s_cmp_lt_u32 s20, 2", f"s_cselect_b32 m0, s39, {L_DUMMY}", "s_nop 0"]
        g.append(f"buffer_load_dwordx4 v{VWD+n}, s[{SD}:{SD+3}], s38 offen lds")
        L.append(g)
    return L
def xdma(c, base, srd_=SA):
    return [[f"s_add_u32 m0, s31, {base}", f"s_movk_i32 s36, {128*c}",
             f"buffer_load_dwordx4 v{VXD0}, s[{srd_}:{srd_+3}], s36 offen lds"],
            [f"s_add_u32 m0, s31, {base+1024}", "s_nop 0",
             f"buffer_load_dwordx4 v{VXD1}, s[{srd_}:{srd_+3}], s36 offen lds"]]

GACC = 16; GWF = 36; GXF = [56, 60]
def gemm_rdX(kk, xb):
    ks = kk & 1
    if xb < 65536: a, o = (VXF0 if ks == 0 else VXF1), xb
    else: a, o = (VXF0h if ks == 0 else VXF1h), xb - 65536
    return It(f"ds_read_b128 {vr(GXF[kk & 1],4)}, v{a} offset:{o}", lds=f"x{kk}")
def gemm_rdW(kk, mt, wb):
    ks = kk & 1
    out = []
    for h in range(2):
        off = wb + (32*ks + 8*h)*160 + 32*mt
        a = VWT
        if off >= 131072: a, off = VWTh2, off - 131072
        elif off >= 65536: a, off = VWTh, off - 65536
        out.append(It(f"ds_read_b64_tr_b16 {vr(GWF+mt*4+h*2,2)}, v{a} offset:{off}", lds=f"w{kk}_{mt}"))
    return out
def gemm_need(kk, mt, xt):
    if mt == 0: return tuple(xt) + (f"w{kk}_0", f"w{kk}_1", f"w{kk}_2")
    if mt == 3: return (f"w{kk}_3", f"w{kk}_4")
    return ()
def gemm_mm(kk, mt):
    return It(f"v_mfma_f32_16x16x32_bf16 {vr(GACC+4*mt,4)}, {vr(GWF+mt*4,4)}, {vr(GXF[kk & 1],4)}, {vr(GACC+4*mt,4) if kk else '0'}",
              needl=gemm_need(kk, mt, (f"x{kk}",)), w=2)
def gemm_items(xbase, wbase, sync, loads=None):
    steps = []
    spread = list(loads(0)) if loads else []
    pre = list(sync(0)) + [gemm_rdX(0, xbase(0))]
    for mt in range(5): pre += gemm_rdW(0, mt, wbase(0))
    for kk in range(20):
        L = []
        c1 = (kk+1) >> 1
        boundary = (kk+1) & 1 == 0 and kk+1 < 20
        for mt in range(5):
            L.append(gemm_mm(kk, mt))
            if kk+1 < 20:
                if mt == 0:
                    if boundary:
                        L += spread; spread = []
                        L += list(sync(c1))
                        if loads: spread = list(loads(c1))
                    L.append(gemm_rdX(kk+1, xbase(c1)))
                L += gemm_rdW(kk+1, mt, wbase(c1))
            if spread and mt in (1, 2, 3): L.append(spread.pop(0))
        steps.append(L)
    assert not spread
    return pre, steps

def rho(s, b):
    if s == 0: return b
    q = b >> s; rem = b & ((1 << s)-1); half = 1 << (s-1)
    if rem > half or (rem == half and (q & 1)): q += 1
    return q << s
KACC = 64
RS = 528
def kgen_setup_lines():
    T = Asm(); A = T
    A.e("v_lshlrev_b32 v12, 2, v1          ; lane*4")
    A.e("s_lshl_b32 s24, s34, 8           ; d*256")
    A.e("v_add_u32 v13, s24, v12")
    for k, s in enumerate((PARE, PAIM, PBRE, PBIM, PCRE, PCIM)):
        A.e(f"global_load_dword v{104+k}, v13, s[{s}:{s+1}]")
    A.e("s_lshl_b32 s24, s34, 1")
    A.e("v_mov_b32 v14, s24")
    A.e(f"global_load_ushort v110, v14, s[{PLDT}:{PLDT+1}]")
    A.e(f"global_load_ushort v198, v14, s[{PDSK}:{PDSK+1}]")
    A.e(f"s_mul_i32 s21, s20, {KGW}")
    A.e(f"s_add_u32 s21, s21, {L_KG}")
    A.e("v_lshlrev_b32 v14, 3, v1            ; lane*8")
    A.e("v_add_u32 v196, s21, v14")
    A.e(f"v_add_u32 v197, {33*RS}, v196")
    for s in range(4):
        for mt in range(2):
            dst = 112 + 2*s + mt
            A.e(f"v_add_u32 v15, {16*mt}, v2          ; b")
            if s > 0:
                half = 1 << (s-1)
                A.e(f"v_bfe_u32 v12, v15, {s}, 1")
                A.e(f"v_add3_u32 v15, v15, v12, {half-1}")
                A.e(f"v_lshrrev_b32 v15, {s}, v15")
                A.e(f"v_lshlrev_b32 v15, {s}, v15")
            A.e(f"v_mul_u32_u24 v15, {RS}, v15")
            A.e(f"v_lshl_add_u32 v15, v3, 4, v15")
            A.e(f"v_add_u32 v{dst}, s21, v15")
    for s in range(1, 4):
        for b in range(32):
            half = 1 << (s-1)
            assert (((b + half - 1 + ((b >> s) & 1)) >> s) << s) == rho(s, b)
    A.e(f"v_mul_u32_u24 v15, {RS}, v2")
    A.e("v_lshl_add_u32 v15, v3, 4, v15")
    A.e(f"v_add_u32 v15, {33*RS}, v15")
    A.e("v_add_u32 v111, s21, v15")
    return [x.strip() for x in T.lines if x.strip()]

def kgen_parts():
    L = []
    a = lambda t, **k: L.append(It(t, **k))
    E1 = [120, 122]; E32 = [124, 126]
    C = [176, 178]; TM = [180, 182]
    PK = [184, 186]
    WC = [188, 190]
    a("v_lshlrev_b32 v110, 16, v110", needv=("kp",))
    a(f"v_mul_f32 v110, {hex(f2u(LOG2E))}, v110")
    a("v_exp_f32 v110, v110")
    a("s_nop 0")
    a("v_cvt_pk_bf16_f32 v110, v110, v110")
    a("v_lshlrev_b32 v110, 16, v110")
    for hf in range(2):
        for k in range(6):
            a(f"v_lshlrev_b32 v{176+k}, 16, v{104+k}" if hf == 0 else f"v_and_b32 v{176+k}, 0xffff0000, v{104+k}")
        ZR, ZI = 192, 193
        a(f"v_mul_f32 v{ZR}, v110, v176"); a(f"v_mul_f32 v{ZI}, v110, v177")
        a("v_mul_f32 v178, v110, v178"); a("v_mul_f32 v179, v110, v179")
        a(f"v_mul_f32 v{ZR}, {hex(f2u(LOG2E))}, v{ZR}"); a(f"v_mul_f32 v{ZI}, {hex(f2u(1/(2*math.pi)))}, v{ZI}")
        w = WC[hf]
        a(f"v_mul_f32 v{w}, v180, v178"); a(f"v_mul_f32 v{w+1}, v180, v179")
        a(f"v_fma_f32 v{w}, -v181, v179, v{w}"); a(f"v_fma_f32 v{w+1}, v181, v178, v{w+1}")
        for (m, dst) in ((1, E1[hf]), (32, E32[hf])):
            if m == 1:
                a(f"v_exp_f32 v182, v{ZR}"); a(f"v_fract_f32 v183, v{ZI}")
            else:
                lit = hex(f2u(float(m)))
                a(f"v_mul_f32 v182, {lit}, v{ZR}"); a(f"v_mul_f32 v183, {lit}, v{ZI}")
                a("v_exp_f32 v182, v182"); a("v_fract_f32 v183, v183")
            a("v_cos_f32 v194, v183"); a("v_sin_f32 v195, v183")
            a("s_nop 0")
            a(f"v_mul_f32 v{dst}, v182, v194"); a(f"v_mul_f32 v{dst+1}, v182, v195")
    for hf in range(2):
        a(f"v_mov_b32 v{C[hf]}, v{WC[hf]}"); a(f"v_mov_b32 v{C[hf]+1}, v{WC[hf]+1}")
    setup = L
    def cm(x, e, t):
        return (f"v_pk_mul_f32 v[{t}:{t+1}], v[{x}:{x+1}], v[{e}:{e+1}] op_sel:[0,0] op_sel_hi:[0,1]",
                f"v_pk_fma_f32 v[{x}:{x+1}], v[{x}:{x+1}], v[{e}:{e+1}], v[{t}:{t+1}] op_sel:[1,1,0] op_sel_hi:[1,0,1] neg_lo:[1,0,0]")
    rows = []
    def row(n, r, e, neg, waddr, stp, pre=()):
        pk = PK[n & 1]; sg = "-" if neg else ""
        R = [It(y) for y in pre]
        if stp: R += [It(cm(C[0], e[0], TM[0])[0]), It(cm(C[1], e[1], TM[1])[0])]
        R += [It(f"v_cvt_pk_bf16_f32 v{pk}, v{C[0]}, {sg}v{C[0]+1}"), It(f"v_cvt_pk_bf16_f32 v{pk+1}, v{C[1]}, {sg}v{C[1]+1}")]
        if stp: R += [It(cm(C[0], e[0], TM[0])[1]), It(cm(C[1], e[1], TM[1])[1])]
        R.append(It(f"ds_write_b64 v{waddr}, {vr(pk,2)} offset:{r*RS}", lds="kw"))
        rows.append(R)
    for j in range(33): row(j, j, E1, True, 196, j < 32)
    one = [f"v_mov_b32 v{C[0]}, 1.0", f"v_mov_b32 v{C[0]+1}, 0", f"v_mov_b32 v{C[1]}, 1.0", f"v_mov_b32 v{C[1]+1}, 0"]
    for nt in range(4):
        for r in range(16):
            row(33+16*nt+r, r, E32, False, 197, not (nt == 3 and r == 15), pre=(one if (nt == 0 and r == 0) else ()))
    BF = 224
    NS = 12
    def slot(n): return vr(16 + 4*(n % NS), 4)
    afr, bfr, mms = [], [], []
    for nt in range(4):
        variants = [(0,0),(0,1),(1,0),(1,1)] if nt == 0 else [((2 if nt == 1 else 3), 0), ((2 if nt == 1 else 3), 1)]
        tiles = [0,1,2,3] if nt == 0 else [2+2*nt, 3+2*nt]
        nv = len(variants); tot = 8*nv
        ra = []; mm = []
        def rd(n):
            ks, vi = divmod(n, nv); s_, mt = variants[vi]
            return It(f"ds_read_b128 {slot(n)}, v{112+2*s_+mt} offset:{64*ks}", lds=f"ka{nt}_{n}")
        for n in range(tot):
            ks, vi = divmod(n, nv)
            if n < NS: ra.append(rd(n))
            acc = KACC + 4*tiles[vi]
            mm.append(It(f"v_mfma_f32_16x16x32_bf16 {vr(acc,4)}, {slot(n)}, {ar(BF+4*ks,4)}, {vr(acc,4) if ks else '0'}",
                         needl=(f"kb{nt}_{ks}", f"ka{nt}_{n}"), w=2))
            if n + NS < tot: mm.append(rd(n + NS))
        afr.append(ra)
        bfr.append([It(f"ds_read_b128 {ar(BF+4*ks,4)}, v111 offset:{64*ks}", lds=f"kb{nt}_{ks}") for ks in range(8)])
        mms.append(mm)
    return setup, rows, afr, bfr, mms

def kgen_pack_lines():
    T = Asm(); A = T
    ACC = KACC
    A.e("v_lshlrev_b32 v198, 16, v198")
    A.e("v_cmp_eq_u32 vcc, 0, v1")
    A.e("s_nop 1")
    A.e("v_cndmask_b32 v198, 0, v198, vcc")
    A.e(f"v_add_f32 v{ACC}, v{ACC}, v198")
    A.e("v_cmp_gt_u32 vcc, 8, v2")
    A.e("s_nop 1")
    for i in range(8):
        A.e(f"v_cndmask_b32 v{ACC+i}, v{ACC+8+i}, v{ACC+i}, vcc")
    for nt in range(4):
        for mt in range(2):
            tile = mt if nt == 0 else 2+2*nt+mt
            acc = ACC + 4*tile
            b = 176 + 2*(nt*2+mt)
            A.e(f"v_cvt_pk_bf16_f32 v{b}, v{acc+3}, v{acc+2}")
            A.e(f"v_cvt_pk_bf16_f32 v{b+1}, v{acc+1}, v{acc}")
    return [x.strip() for x in T.lines if x.strip()]
def kgen_write_lines():
    T = Asm(); A = T
    A.e("s_mul_i32 s21, s20, 4608")
    A.e(f"s_add_u32 s21, s21, {L_KR}")
    A.e("v_lshlrev_b32 v15, 5, v2")
    A.e("v_lshl_add_u32 v15, v3, 2, v15    ; 32c + 4g")
    A.e("v_sub_u32 v15, 2044, v15")
    A.e("v_lshlrev_b32 v15, 1, v15")
    A.e(f"v_add_u32 v15, s21, v15")
    A.e(f"v_subrev_u32 v15, {(512*3+16)*2}, v15")
    for nt in range(4):
        for mt in range(2):
            b = 176 + 2*(nt*2+mt)
            A.e(f"ds_write_b64 v15, {vr(b,2)} offset:{(512*3+16)*2 - (512*nt+16*mt)*2}")
    A.e("v_mov_b32 v192, 0"); A.e("v_mov_b32 v193, 0")
    A.e("v_lshlrev_b32 v12, 3, v1")
    A.e(f"s_add_u32 s21, s21, 4096")
    A.e("v_add_u32 v12, s21, v12")
    A.e("ds_write_b64 v12, v[192:193]")
    return [x.strip() for x in T.lines if x.strip()]

def q_epilogue(A, q):
    A.e(f"s_mov_b32 s26, {hex(f2u(QSCALE))}")
    for mt in range(5):
        acc = GACC + 4*mt
        for i in range(4): A.e(f"v_mul_f32 v{acc+i}, s26, v{acc+i}")
        A.e(f"v_cvt_pk_bf16_f32 v{36+mt*2}, v{acc}, v{acc+1}")
        A.e(f"v_cvt_pk_bf16_f32 v{37+mt*2}, v{acc+2}, v{acc+3}")
        q.emit(It(f"ds_write_b64 v{VQW+mt}, {vr(36+mt*2,2)}", lds="qw"))

def weave_setup(A, q, setup, pro):
    safe = [i for i, l in enumerate(setup) if l.startswith("v_") and not l.startswith("v_cndmask") and i+1 < len(setup)
            and not setup[i+1].startswith("v_cndmask") and not setup[i+1].startswith("s_nop") and not l.startswith("v_cmp")
            and not setup[i+1].startswith("s_addc")]
    step = max(1, len(safe)//len(pro))
    pts = {safe[min(k*step, len(safe)-1)]: k for k in range(len(pro))}
    done = 0
    for i, l in enumerate(setup):
        A.e(l)
        if i in pts: q.emit(pro[pts[i]]); done += 1
    assert done == len(pro), (done, len(pro))

def X_items(c): return [It(g, vm=f"x{c}") for g in xdma(c, L_XR + 8192*c)]
def W_items(c): return [It(g, vm=f"w{c}") for g in wdma_ring(c, L_WR + WCH*(c % 4))]

def front(A, pfx):
    A.e("s_cmp_lt_u32 s53, 2")
    A.e(f"s_cbranch_scc1 {pfx}_kvpro")
    q = Q(A)
    q.run(X_items(0) + W_items(0))
    A.e(f"s_cmp_ge_u32 s3, {NCONV}")
    A.e(f"s_cbranch_scc1 {pfx}_nokp")
    for l in kgen_setup_lines(): A.e(l)
    A.label(f"{pfx}_nokp")
    for c in range(1, 4): q.run(X_items(c) + W_items(c))
    if PREFETCH: prefetch(A, pfx + "a")
    A.e(f"s_cmp_ge_u32 s3, {NCONV}")
    A.e(f"s_cbranch_scc1 {pfx}_noks")
    A.e(f"s_waitcnt vmcnt({15 + (3 if PREFETCH else 0)})")
    for it in kgen_parts()[0]:
        for l in it.txt: A.e(l)
    A.label(f"{pfx}_noks")
    qcommon = q
    st(A)
    A.e(f"s_branch {pfx}_qgemm")
    A.label(f"{pfx}_kvpro")
    q = Q(A)
    A.e("s_cmp_eq_u32 s53, 0")
    A.e(f"s_cselect_b32 s24, s{PWK}, s{PWV}")
    A.e(f"s_cselect_b32 s25, s{PWK+1}, s{PWV+1}")
    A.e(f"s_mov_b32 s{SB}, s24"); A.e(f"s_mov_b32 s{SB+1}, s25"); A.e(f"s_mov_b32 s{SB+2}, 25600"); A.e(f"s_mov_b32 s{SB+3}, 0x20000")
    for i in range(7):
        if i < 6:
            A.e(f"s_add_u32 s28, s32, {4096*i}")
            A.e(f"s_add_u32 m0, s28, {L_WKV}")
            A.e("s_nop 0")
            A.e(f"buffer_load_dwordx4 v4, s[{SB}:{SB+3}], s28 offen lds")
        else:
            A.e("s_cmp_eq_u32 s20, 0")
            A.e(f"s_mov_b32 s29, {L_WKV + 24*1024}")
            A.e(f"s_cselect_b32 m0, s29, {L_DUMMY}")
            A.e(f"s_mov_b32 s30, 0x7fff0000")
            A.e(f"s_cselect_b32 s28, {24*1024}, s30")
            A.e(f"buffer_load_dwordx4 v4, s[{SB}:{SB+3}], s28 offen lds")
    for c in range(10): q.run(X_items(c))
    if PREFETCH: prefetch(A, pfx + "b")
    st(A)
    KV, KW, KX = 64, 72, [104, 108]
    A.e("v_lshrrev_b32 v12, 2, v2")
    A.e("v_lshl_add_u32 v12, v3, 3, v12")
    A.e("v_mul_u32_u24 v12, 40, v12")
    A.e("v_and_b32 v13, 3, v2")
    A.e("v_lshl_add_u32 v12, v13, 3, v12")
    A.e(f"v_add_u32 v176, {L_WKV}, v12")
    for i in range(8): A.e(f"v_mov_b32 v{KV+i}, 0")
    A.e("s_mul_i32 s21, s22, 81920")
    srd(A, SH, PX, 81920, add="s21")
    q.wait_v(("x0",))
    A.e("s_barrier")
    def rds(kk):
        c, ks = kk >> 1, kk & 1; b = kk & 1
        xb = L_XR + 8192*c
        a, o = ((VXF0 if ks == 0 else VXF1), xb) if xb < 65536 else ((VXF0h if ks == 0 else VXF1h), xb-65536)
        out = [It(f"ds_read_b128 {vr(KX[b],4)}, v{a} offset:{o}", lds=f"kx{kk}", needv=(f"x{c}",))]
        for m in range(2):
            for h in range(2):
                out.append(It(f"ds_read_b64_tr_b16 {vr(KW+8*b+4*m+2*h,2)}, v176 offset:{(32*kk + 4*h)*40 + 32*m}", lds=f"kw{kk}"))
        return out
    for variant in ("k", "v"):
        if variant == "k":
            A.e("s_cmp_eq_u32 s53, 0")
            A.e(f"s_cbranch_scc0 {pfx}_b_vpart")
        else:
            A.label(f"{pfx}_b_vpart")
        qq = Q(A); qq.vq = list(q.vq)
        qq.run(rds(0))
        wq_first = [x for c in range(4) for x in W_items(c)]
        for kk in range(20):
            if kk+1 < 20: qq.run(rds(kk+1))
            if kk >= 8: qq.emit(wq_first.pop(0))
            if kk in (2, 4, 6, 8):
                c_ = kk//2 - 1
                qq.run([It(g, vm=f"ox{c_}") for g in xdma(c_, L_XR + 8192*c_, SH)])
            b = kk & 1
            for m in range(2):
                if variant == "k": t = f"v_mfma_f32_16x16x32_bf16 {vr(KV+4*m,4)}, {vr(KW+8*b+4*m,4)}, {vr(KX[b],4)}, {vr(KV+4*m,4)}"
                else: t = f"v_mfma_f32_16x16x32_bf16 {vr(KV+4*m,4)}, {vr(KX[b],4)}, {vr(KW+8*b+4*m,4)}, {vr(KV+4*m,4)}"
                qq.emit(It(t, needl=(f"kx{kk}", f"kw{kk}")))
        A.e("s_lshr_b32 s21, s20, 1")
        A.e("s_lshl_b32 s26, s54, 1")
        A.e("s_add_u32 s21, s21, s26          ; T")
        A.e("s_and_b32 s26, s20, 1            ; u")
        srd(A, SC, PWS, WS_VA + 64*2048)
        A.e(f"v_mov_b32 v19 , {OOB}".replace(" ,", ","))
        A.e("v_and_b32 v12, 1, v3             ; h (g&1)")
        A.e("v_cmp_gt_u32 vcc, 2, v3")
        A.e(f"v_cvt_pk_bf16_f32 v112, v{KV}, v{KV+1}")
        A.e(f"v_cvt_pk_bf16_f32 v113, v{KV+2}, v{KV+3}")
        A.e(f"v_cvt_pk_bf16_f32 v116, v{KV+4}, v{KV+5}")
        A.e(f"v_cvt_pk_bf16_f32 v117, v{KV+6}, v{KV+7}")
        if variant == "v":
            A.e("s_mov_b64 s[28:29], vcc")
            A.e("v_cmp_eq_u32 vcc, 4, v2")
            A.e("v_mov_b32 v13, 0x3f803f80")
            A.e("s_nop 0")
            A.e("v_cndmask_b32 v116, v116, v13, vcc")
            A.e("v_cndmask_b32 v117, v117, v13, vcc")
            A.e("s_mov_b64 vcc, s[28:29]")
        A.e("v_mov_b32 v120, v112"); A.e("v_mov_b32 v121, v113")
        A.e("v_mov_b32 v122, v116"); A.e("v_mov_b32 v123, v117")
        A.e("s_nop 1")
        A.e("v_permlane32_swap_b32 v120, v114")
        A.e("v_permlane32_swap_b32 v121, v115")
        A.e("v_permlane32_swap_b32 v122, v118")
        A.e("v_permlane32_swap_b32 v123, v119")
        if variant == "k":
            A.e("s_lshl_b32 s28, s26, 4")
            A.e("v_add_u32 v14, s28, v2           ; key32")
            A.e("v_lshl_add_u32 v15, v12, 5, v14")
            A.e("v_lshlrev_b32 v15, 4, v15")
            A.e("s_lshl_b32 s28, s21, 10")
            A.e(f"s_add_u32 s28, s28, {WS_KA}")
            A.e("v_add_u32 v15, s28, v15")
            A.e("v_cndmask_b32 v15, v19, v15, vcc")
            A.e(f"buffer_store_dwordx4 v[112:115], v15, s[{SC}:{SC+3}], 0 offen sc1")
            A.e("v_lshlrev_b32 v14, 3, v14")
            A.e("s_lshl_b32 s28, s21, 9")
            A.e(f"s_add_u32 s28, s28, {WS_KB}")
            A.e("v_add_u32 v14, s28, v14")
            A.e("v_cmp_eq_u32 vcc, 0, v3")
            A.e("s_nop 1")
            A.e("v_cndmask_b32 v14, v19, v14, vcc")
            A.e(f"buffer_store_dwordx2 v[116:117], v14, s[{SC}:{SC+3}], 0 offen sc1")
            A.e("s_lshl_b32 s28, s54, 7")
            A.e(f"s_add_u32 s28, s28, {WS_FLAG}")
            srd(A, SE_, PWS, 128, add="s28")
            A.e("v_lshlrev_b32 v14, 2, v0")
            A.e("v_mov_b32 v13, 0")
            A.e(f"buffer_store_dword v13, v14, s[{SE_}:{SE_+3}], 0 offen sc1")
        else:
            A.e("v_lshl_add_u32 v15, v12, 5, v2")
            A.e("v_lshlrev_b32 v15, 4, v15")
            A.e("s_lshl_b32 s28, s21, 11")
            A.e("s_lshl_b32 s29, s26, 10")
            A.e("s_add_u32 s28, s28, s29")
            A.e(f"s_add_u32 s28, s28, {WS_VA}")
            A.e("v_add_u32 v15, s28, v15")
            A.e("v_add_u32 v14, 256, v15")
            A.e("v_cndmask_b32 v15, v19, v15, vcc")
            A.e("v_cndmask_b32 v14, v19, v14, vcc")
            A.e(f"buffer_store_dwordx4 v[112:115], v15, s[{SC}:{SC+3}], 0 offen sc1")
            A.e("v_cmp_gt_u32 vcc, 5, v2")
            A.e("s_nop 1")
            A.e("v_cndmask_b32 v14, v19, v14, vcc")
            A.e(f"buffer_store_dwordx4 v[116:119], v14, s[{SC}:{SC+3}], 0 offen sc1")
        A.e("s_waitcnt vmcnt(0)")
        A.e("s_barrier")
        A.e("s_cmp_lg_u32 s20, 0")
        A.e(f"s_cbranch_scc1 {pfx}_b_nf{variant}")
        srd(A, SE_, PDBG, 256)
        A.e("s_lshl_b32 s28, s52, 2")
        A.e("v_mov_b32 v14, s28")
        A.e("v_mov_b32 v13, 1")
        A.e("s_mov_b64 exec, 1")
        A.e(f"buffer_store_dword v13, v14, s[{SE_}:{SE_+3}], 0 offen sc1")
        A.e("s_mov_b64 exec, -1")
        A.label(f"{pfx}_b_nf{variant}")
        if variant == "k": A.e(f"s_branch {pfx}_b_ownx")
    A.label(f"{pfx}_b_ownx")
    A.e("s_mul_i32 s21, s22, 81920")
    srd(A, SA, PX, 81920, add="s21")
    st(A)
    A.label(f"{pfx}_qgemm")
    q = qcommon
    def sync(c): return [It("s_barrier", needv=(f"x{c}", f"w{c}"))]
    def loads(c):
        L = []
        if c+4 < 10: L += X_items(c+4)
        if c >= 2 and c+2 < 10: L += W_items(c+2)
        return L
    pre, steps = gemm_items(lambda c: L_XR + 8192*c, lambda c: L_WR + WCH*(c % 4), sync, loads)
    q.run(pre)
    late = [It(x) for x in part_addr_lines() + addr_setup_items("late")]
    grp = []; cur = []
    for it in late:
        cur.append(it)
        t = it.txt[0]
        if not (t.startswith("v_cmp") or t.startswith("s_nop") or (len(cur) > 1 and cur[-2].txt[0].startswith("v_cmp"))
                or (len(cur) > 2 and cur[-3].txt[0].startswith("v_cmp")) or (len(cur) > 3 and cur[-4].txt[0].startswith("v_cmp"))):
            grp.append(It([y for c in cur for y in c.txt], w=len(cur))); cur = []
    if cur: grp.append(It([y for c in cur for y in c.txt], w=len(cur)))
    per = (len(grp) + 17)//18
    for kk in range(20):
        q.run(merge(steps[kk], grp[kk*per:(kk+1)*per]))
    q.all_l(); q.all_v()
    srd(A, SE_, PDBG, 256)
    A.e("v_lshlrev_b32 v12, 2, v1")
    A.e(f"buffer_load_dword v248, v12, s[{SE_}:{SE_+3}], 0 offen sc1")
    st(A)
    A.e("s_barrier")
    q_epilogue(A, q)
    A.e(f"s_mov_b32 s35, {SPIN_MAX}")
    A.label(f"{pfx}_kv_p")
    A.e("s_waitcnt vmcnt(0)")
    A.e("v_cmp_ne_u32 vcc, 0, v248")
    A.e("s_sub_u32 s35, s35, 1")
    A.e("s_cmp_eq_u32 s35, 0")
    A.e(f"s_cbranch_scc1 {pfx}_kv_d")
    A.e("s_cmp_eq_u64 vcc, -1")
    A.e(f"s_cbranch_scc1 {pfx}_kv_d")
    A.e("s_sleep 1")
    A.e(f"buffer_load_dword v248, v12, s[{SE_}:{SE_+3}], 0 offen sc1")
    A.e(f"s_branch {pfx}_kv_p")
    A.label(f"{pfx}_kv_d")
    A.e("s_waitcnt lgkmcnt(0)")
    A.e("s_barrier")
    st(A)

def poll(A, pfx, name, srd_, nl, cmpmask):
    A.e("s_cmp_lg_u32 s20, 0")
    A.e(f"s_cbranch_scc1 {pfx}_{name}_np")
    A.e("v_lshlrev_b32 v12, 2, v1")
    A.e(f"s_mov_b32 s35, {SPIN_MAX}")
    if nl < 64: A.e(f"s_mov_b64 exec, {hex((1 << nl)-1)}")
    A.label(f"{pfx}_{name}_p")
    A.e(f"buffer_load_dword v13, v12, s[{srd_}:{srd_+3}], 0 offen sc1")
    A.e("s_waitcnt vmcnt(0)")
    A.e("v_cmp_ne_u32 vcc, 0, v13")
    A.e("s_sub_u32 s35, s35, 1")
    A.e("s_cmp_eq_u32 s35, 0")
    A.e(f"s_cbranch_scc1 {pfx}_{name}_d")
    if nl == 64:
        A.e("s_cmp_eq_u64 vcc, -1")
    else:
        A.e(f"s_cmp_eq_u32 vcc_lo, {hex((1 << nl)-1)}")
    A.e(f"s_cbranch_scc1 {pfx}_{name}_d")
    A.e("s_sleep 1")
    A.e(f"s_branch {pfx}_{name}_p")
    A.label(f"{pfx}_{name}_d")
    if nl < 64: A.e("s_mov_b64 exec, -1")
    A.label(f"{pfx}_{name}_np")

PREF_K, PREF_V = 6, 5
def step(A, tau, t, first=False, last=False, fillers=None, pre=None):
    cur = S[t & 1]; nxt = S[(t+1) & 1]
    Pc = P[t & 1]; Pp = P[(t+1) & 1]
    par = tau & 1
    if t < NT-1: nt, ntau = t+1, tau
    else: nt, ntau = 0, tau+1
    do_next = not (last and t == NT-1)
    M1 = f"v_mfma_f32_32x32x16_bf16 {vr(nxt,16)}, {KAr(nt)}, {QAr(ntau)}, 0" if do_next else None
    M2 = f"v_mfma_f32_32x32x8_bf16 {vr(nxt,16)}, {KBr(nt)}, {QBr(ntau)}, {vr(nxt,16)}" if do_next else None
    if t == 0: pt, op, c0 = NT-1, O[par ^ 1], None
    else:
        pt, op = t-1, O[par]
        c0 = "0" if t == 1 else None
    if t == 0 and first: PV0p = PVp = None
    else:
        PV0p = f"v_mfma_f32_32x32x16_bf16 {vr(op,16)}, {VAr(pt,0)}, {vr(Pp,4)}, {c0 or vr(op,16)}"
        PVp = f"v_mfma_f32_32x32x16_bf16 {vr(op,16)}, {VAr(pt,1)}, {vr(Pp+4,4)}, {vr(op,16)}"
    E = lambda i: f"v_exp_f32 v{cur+i}, v{cur+i}"
    C = lambda i: f"v_cvt_pk_bf16_f32 v{Pc+i}, v{cur+2*i}, v{cur+2*i+1}"
    seq = [E(0), M1, E(1), E(2), C(0), E(3), E(4), PV0p, C(1), E(5), E(6), C(2), E(7), M2, E(8), C(3), E(9), E(10), C(4), E(11),
           PVp, E(12), C(5), E(13), E(14), E(15), C(6), C(7)]
    seq = [x for x in seq if x]
    groups = list(fillers or [])
    if groups:
        epos = [i for i, x in enumerate(seq) if x.startswith("v_exp")]
        flat = []
        for g in groups:
            if any(y.startswith("s_cbranch") for y in g) or any("exec" in y for y in g): flat.append(g)
            elif any("m0" in y for y in g): flat.append(g)
            else: flat += [[y] for y in g]
        n = len(flat); out = []; k = 0
        for i, x in enumerate(seq):
            out.append(x)
            if i in epos:
                want = ((epos.index(i)+1)*n + len(epos)-1)//len(epos) if True else 0
                while k < min(want, n):
                    out += flat[k]; k += 1
        for g in flat[k:]: out += g
        seq = out
    for x in (pre or []): A.e(x)
    for x in seq:
        if x.endswith(":"): A.label(x[:-1])
        else: A.e(x)

def part_addr_lines():
    L = ["s_lshl_b32 s29, s20, 1"]
    for tau in range(1, 7):
        slot_ = (-2 - ((tau-1) >> 1)) & 3
        for w in range(4):
            j = (2*w + 1 + tau) & 7
            assert slot_ == (w - (j >> 1) - 1) & 3
        L += [f"s_add_u32 s28, s29, {1+tau}", "s_and_b32 s28, s28, 7", f"s_mul_i32 s28, s28, {3*PART}",
              f"s_add_u32 s28, s28, {slot_*PART}", f"v_add_u32 v{VPA+tau-1}, s28, v4"]
    return L
def part_write(tau):
    par = (tau-1) & 1
    return [[f"ds_write_b128 v{VPA+tau-1}, {vr(O[par]+4*g,4)} offset:{1024*g}"] for g in range(3)]

def kv_load_groups():
    def ldK(t): return [[f"s_add_u32 s27, s44, {1024*t}", f"buffer_load_dwordx4 {KAr(t)}, v4, s[{SA}:{SA+3}], s27 offen"],
                        [f"s_add_u32 s28, s45, {512*t}", f"buffer_load_dwordx2 {KBr(t)}, v5, s[{SA}:{SA+3}], s28 offen"]]
    def ldV(t): return [[f"s_add_u32 s29, s46, {2048*t}", f"buffer_load_dwordx4 {VAr(t,0)}, v8, s[{SA}:{SA+3}], s29 offen"],
                        [f"buffer_load_dwordx4 {VAr(t,1)}, v8, s[{SA}:{SA+3}], s29 offen offset:1024"]]
    return ldK, ldV

def q_reads(A):
    A.e(f"v_mov_b32 v12, {L_BAD}")
    A.e("v_mov_b32 v13, 0")
    A.e("ds_write_b32 v12, v13")
    for tau in range(8):
        A.e(f"v_mov_b32 v{132+6*tau}, 0"); A.e(f"v_mov_b32 v{133+6*tau}, 0")
    A.e("s_lshl_b32 s35, s20, 1")
    for tau in range(8):
        A.e(f"s_add_u32 s36, s35, {2+tau}")
        A.e("s_and_b32 s36, s36, 7")
        A.e("s_mul_i32 s36, s36, 1280")
        A.e(f"s_add_u32 s36, s36, {L_QL}")
        A.e(f"v_add_u32 v12, s36, v{VQR}")
        A.e(f"v_add_u32 v13, s36, v{VQRB}")
        A.e(f"ds_read_b128 {QAr(tau)}, v12")
        A.e("s_mov_b32 exec_hi, 0")
        A.e(f"ds_read_b64 {QBr(tau)}, v13")
        A.e("s_mov_b32 exec_hi, -1")

def late_setup(A):
    A.e("s_mul_i32 s21, s23, 160")
    srd(A, SD, PWO, "0", add="s21")
    A.e(f"s_sub_u32 s{SD+2}, 819200, s21")
    srd(A, SF, PU, 2048*1280)

def first_scores(A):
    A.e(f"v_mfma_f32_32x32x16_bf16 {vr(S[0],16)}, {KAr(0)}, {QAr(0)}, 0")
    A.e(f"v_mfma_f32_32x32x8_bf16 {vr(S[0],16)}, {KBr(0)}, {QBr(0)}, {vr(S[0],16)}")
    A.e("s_nop 7"); A.e("s_nop 3")

def kgen_phase(A, pfx):
    q = Q(A)
    ldK, ldV = kv_load_groups()
    kv = []
    for t in range(NT): kv += [It(g, vm="kv") for g in ldK(t) + ldV(t)]
    ksetup, rows, afr, bfr, mms = kgen_parts()
    q.vq = []
    q_reads(A)
    due = {49: 0, 65: 1, 81: 2, 97: 3}
    arow = {}
    for nt, r0 in enumerate((36, 52, 68, 84)):
        for i, it in enumerate(afr[nt]): arow.setdefault(r0 + i, []).append(it)
    share = [26, 14, 14, 10]; k = 0
    for pos, R in enumerate(rows):
        q.run(R + arow.get(pos, []))
        if pos+1 in due:
            nt = due[pos+1]
            q.run(bfr[nt])
            L = kv[k:k+share[nt]]; k += share[nt]
            if nt == 2: A.e("s_waitcnt vmcnt(30)")
            q.run(L[:4])
            q.run(merge(mms[nt], L[4:]))
    assert k == len(kv)
    q.all_l()
    A.e("s_nop 7")
    st(A)
    for l in kgen_pack_lines(): A.e(l)
    A.e("s_barrier")
    for l in kgen_write_lines(): A.e(l)
    late_setup(A)
    A.e("v_mov_b32 v192, 0")
    A.e("s_and_b32 s21, s20, 1")
    A.e("s_mul_i32 s21, s21, 8320")
    A.e(f"s_add_u32 s21, s21, {L_U0}")
    A.e("v_and_b32 v12, 15, v1")
    A.e("v_lshlrev_b32 v12, 2, v12")
    A.e("v_lshrrev_b32 v13, 4, v1")
    A.e("v_and_b32 v13, 1, v13")
    A.e("v_mul_u32_u24 v13, 0x2040, v13        ; 8256")
    A.e("v_add3_u32 v12, v12, v13, s21")
    A.e("ds_write_b32 v12, v192")
    A.e("s_waitcnt vmcnt(0)")
    st(A)
    first_scores(A)
    for t in range(NT): step(A, 0, t, first=True)

def b_transition(A, pfx):
    ldK, ldV = kv_load_groups()
    PK, PVn = PREF_K, PREF_V
    for g in ldK(0) + ldV(0):
        for x in g: A.e(x)
    q_reads(A)
    for t in range(1, PK):
        for g in ldK(t):
            for x in g: A.e(x)
        if t < PVn:
            for g in ldV(t):
                for x in g: A.e(x)
    late_setup(A)
    A.e("s_waitcnt lgkmcnt(0)")
    A.e("s_barrier")
    order = ["K0", "V0"]
    for t in range(1, PK):
        order.append(f"K{t}")
        if t < PVn: order.append(f"V{t}")
    A.e(f"s_waitcnt vmcnt({2*(len(order)-1)})")
    st(A)
    first_scores(A)
    for t in range(NT):
        fl = []; need = []
        if t+1 < NT: need.append(f"K{t+1}")
        if t >= 1: need.append(f"V{t-1}")
        idx = max(order.index(x) for x in need)
        nout = 2*(len(order) - 1 - idx)
        if t == NT-1: nout = 0
        new = []
        if t+PK < NT: fl += ldK(t+PK); new.append(f"K{t+PK}")
        if t+PVn < NT: fl += ldV(t+PVn); new.append(f"V{t+PVn}")
        step(A, 0, t, first=True, fillers=fl, pre=[f"s_waitcnt vmcnt({nout})"])
        order += new

def attention(A, pfx):
    srd(A, SA, PWS, WS_VA + 64*2048)
    A.e("s_lshl_b32 s44, s20, 14          ; KA: T*1024")
    A.e(f"s_lshl_b32 s45, s20, 13         ; KB: T*512")
    A.e(f"s_add_u32 s45, s45, {WS_KB}")
    A.e("s_lshl_b32 s46, s20, 15          ; VA: T*2048")
    A.e(f"s_add_u32 s46, s46, {WS_VA}")
    A.e(f"s_cmp_ge_u32 s3, {NCONV}")
    A.e(f"s_cbranch_scc1 {pfx}_btr")
    wl = []
    for c in range(8): wl += wdma_ring(c, BWchunk(c))
    def bg(kind, n):
        if kind == "b": return wl[n]
        if n < 8: return [f"s_add_u32 s63, s61, {64*1280*n}", f"buffer_load_dwordx2 {vr(176+2*n,2)}, v{VUD}, s[{SF}:{SF+3}], s63 offen"]
        if 12 <= n < 20:
            k = n - 12
            return (["s_waitcnt vmcnt(0)"] if k == 0 else []) + \
                   [f"ds_write_b32 v{VUP}, v{176+2*k} offset:{256*k}", f"ds_write_b32 v{VUP}, v{177+2*k} offset:{8320+256*k}"]
        return None
    def taus(kind):
        st(A)
        for tau in range(1, 7):
            for t in range(NT):
                fl = []
                if t in (3, 4, 6): fl += [part_write(tau)[(3, 4, 6).index(t)]]
                if t in (5, 8, 11, 14):
                    g = bg(kind, (tau-1)*4 + (t-5)//3)
                    if g: fl += [g]
                step(A, tau, t, fillers=fl)
            st(A)
    kgen_phase(A, pfx)
    A.e(f"s_mul_i32 s61, s20, {512*1280}")
    taus("a")
    A.e(f"s_branch {pfx}_tau7")
    A.label(f"{pfx}_btr")
    b_transition(A, pfx)
    taus("b")
    A.label(f"{pfx}_tau7")
    for t in range(NT): step(A, 7, t, last=True)
    st(A)
    A.e("s_nop 1")
    par = 1; Pp = P[(NT-1) & 1]
    A.e(f"v_mfma_f32_32x32x16_bf16 {vr(O[par],16)}, {VAr(NT-1,0)}, {vr(Pp,4)}, {vr(O[par],16)}")
    A.e(f"v_mfma_f32_32x32x16_bf16 {vr(O[par],16)}, {VAr(NT-1,1)}, {vr(Pp+4,4)}, {vr(O[par],16)}")
    A.e("s_waitcnt vmcnt(0) lgkmcnt(0)")
    A.e("s_barrier")
    st(A)

def reduce_publish(A, pfx):
    quads = [[64, 68, 72, 76, 112, 116, 120, 124, 176], [180, 184, 188, 192, 196, 44, 48, 52, 56]]
    def rdpart(jj):
        for sl in range(3):
            for g in range(3):
                A.e(f"ds_read_b128 {vr(quads[jj][3*sl+g], 4)}, v{VRED} offset:{(jj*3+sl)*PART + 1024*g}")
    rdpart(0)
    srd(A, SC, PWS, 2048*1280, add=WS_O)
    A.e("s_mov_b64 s[56:57], 0")
    for jj in range(2):
        Of = O[jj]
        A.e("s_waitcnt lgkmcnt(0)")
        if jj == 0: rdpart(1)
        for sl in range(3):
            for r in range(12): A.e(f"v_add_f32 v{Of+r}, v{Of+r}, v{quads[jj][3*sl + (r >> 2)] + (r & 3)}")
        A.e(f"v_mov_b32 v28, v{Of+8}")
        A.e(f"v_mov_b32 v29, v{Of+8}")
        A.e(f"v_max3_f32 v30, |v{Of}|, |v{Of+1}|, |v{Of+2}|")
        A.e(f"v_max3_f32 v30, v30, |v{Of+3}|, |v{Of+4}|")
        A.e("v_permlane32_swap_b32 v28, v29")
        for r in range(5, 11, 2): A.e(f"v_max3_f32 v30, v30, |v{Of+r}|, |v{Of+r+1}|")
        A.e(f"v_max_f32 v30, v30, |v{Of+11}|")
        A.e("v_cmp_nle_f32 vcc, 0x2b800000, v29      ; !(2^-40 <= l)")
        A.e("v_mov_b32 v31, 0x7f800000")
        A.e("v_rcp_f32 v28, v29")
        A.e("s_or_b64 s[56:57], s[56:57], vcc")
        A.e("v_cmp_nge_f32 vcc, 0x53800000, v29      ; !(2^40 >= l)")
        A.e("v_cmp_ngt_f32 s[58:59], v31, v30")
        A.e("v_mov_b32 v29, v28")
        A.e("s_or_b64 s[56:57], s[56:57], vcc")
        A.e("s_or_b64 s[56:57], s[56:57], s[58:59]")
        for r in range(12): A.e(f"v_mul_f32 v{16+r}, v{Of+r}, v29")
        for g in range(3):
            A.e(f"v_cvt_pk_bf16_f32 v{32+6*jj+2*g}, v{16+4*g}, v{17+4*g}")
            A.e(f"v_cvt_pk_bf16_f32 v{33+6*jj+2*g}, v{18+4*g}, v{19+4*g}")
    A.e(f"v_mov_b32 v14, {L_BAD}")
    A.e("s_cmp_eq_u64 s[56:57], 0")
    A.e(f"s_cbranch_scc1 {pfx}_safe")
    A.e("v_mov_b32 v15, 1")
    A.e("ds_write_b32 v14, v15")
    A.e("s_waitcnt lgkmcnt(0)")
    A.label(f"{pfx}_safe")
    A.e("s_barrier")
    A.e("ds_read_b32 v15, v14")
    for jj in range(2):
        A.e(f"ds_write_b64 v{VOS}, {vr(32+6*jj,2)} offset:{5120*jj}")
        A.e(f"ds_write_b64 v{VOS}, {vr(34+6*jj,2)} offset:{5120*jj+16}")
        A.e(f"ds_write_b64 v{VOS2a if jj == 0 else VOS2b}, {vr(36+6*jj,2)}")
    for i in range(3):
        A.e("s_mul_i32 s24, s23, 10")
        A.e("s_add_u32 s24, s24, s20")
        if i: A.e(f"s_add_u32 s24, s24, {4*i}")
        A.e("s_lshr_b32 s25, s24, 2")
        A.e("s_lshl_b32 s25, s25, 10")
        A.e("s_and_b32 s24, s24, 3")
        A.e("s_lshl_b32 s24, s24, 8")
        A.e("s_add_u32 s24, s24, s25")
        A.e("s_mul_i32 s25, s22, 81920")
        A.e(f"s_add_u32 s{28+i}, s24, s25")
    A.e("s_waitcnt lgkmcnt(0)")
    A.e("v_readfirstlane_b32 s56, v15")
    A.e("s_nop 0")
    A.e("s_cmp_lg_u32 s56, 0")
    A.e(f"s_cbranch_scc1 {pfx}_slow")
    A.label(f"{pfx}_staged")
    A.e("s_barrier")
    for i in range(3):
        A.e(f"ds_read_b128 {vr(44+4*i,4)}, v{VTID16} offset:{64*i}")
    for i in range(2):
        A.e(f"s_waitcnt lgkmcnt({2-i})")
        A.e(f"buffer_store_dwordx4 {vr(44+4*i,4)}, v{VOG}, s[{SC}:{SC+3}], s{28+i} offen sc1")
    A.e("s_cmp_ge_u32 s20, 2")
    A.e(f"s_cbranch_scc1 {pfx}_no3rd")
    A.e("s_waitcnt lgkmcnt(0)")
    A.e(f"buffer_store_dwordx4 {vr(52,4)}, v{VOG}, s[{SC}:{SC+3}], s30 offen sc1")
    A.label(f"{pfx}_no3rd")
    A.e("s_waitcnt lgkmcnt(0)")
    A.e("s_lshl_b32 s21, s22, 7")
    A.e(f"s_add_u32 s21, s21, {WS_FLAG}")
    srd(A, SE_, PWS, 128, add="s21")
    A.e(f"s_cmp_ge_u32 s3, {NCONV}")
    A.e(f"s_cbranch_scc1 {pfx}_nouprep")
    u_prep(A)
    A.label(f"{pfx}_nouprep")
    A.e("s_waitcnt vmcnt(0)")
    A.e("s_barrier")
    A.e("s_cmp_lg_u32 s20, 0")
    A.e(f"s_cbranch_scc1 {pfx}_noflag")
    A.e("s_lshl_b32 s21, s23, 2")
    A.e("v_mov_b32 v12, s21")
    A.e("v_mov_b32 v13, 1")
    A.e("s_mov_b64 exec, 1")
    A.e(f"buffer_store_dword v13, v12, s[{SE_}:{SE_+3}], 0 offen sc1")
    A.e("s_mov_b64 exec, -1")
    A.label(f"{pfx}_noflag")
    st(A)

def u_prep(A):
    for ps in range(5):
        b = 64 + 10*ps
        A.e(f"ds_read_b128 {vr(b,4)}, v{VUR} offset:{2048*ps}")
        A.e(f"ds_read_b128 {vr(b+4,4)}, v{VUR} offset:{2048*ps+16}")
        A.e(f"ds_read_b32 v{b+8}, v{VUR} offset:{2048*ps+32}")
    A.e("s_and_b32 s21, s20, 1")
    A.e("s_cmp_eq_u32 s21, 0")
    A.e("s_mov_b32 s25, 0x07060302")
    A.e("s_cselect_b32 s26, 0x05040100, s25")
    A.e(f"v_add_u32 v12, {L_U0}, v{VUW}")
    A.e("s_waitcnt lgkmcnt(0)")
    A.e("s_barrier")
    for ps in range(5):
        b = 64 + 10*ps
        if ps == 4: A.e("s_mov_b64 exec, 15")
        o = 116 + 8*(ps & 1)
        for i in range(4): A.e(f"v_perm_b32 v{o+i}, v{b+2*i+1}, v{b+2*i}, s26")
        for i in range(4): A.e(f"v_perm_b32 v{o+4+i}, v{b+2*i+2}, v{b+2*i+1}, s26")
        A.e(f"ds_write_b128 v12, {vr(o,4)} offset:{1024*ps}")
        A.e(f"ds_write_b128 v{VUW}, {vr(o+4,4)} offset:{L_U1+1024*ps}")
        if ps == 4: A.e("s_mov_b64 exec, -1")

def conv_part(A, pfx):
    ACC = 16; AB = 64
    def Br(D, i): return ar(32*D + 4*i, 4)
    def Ar(c, i): return vr(AB + 32*(c & 1) + 4*i, 4)
    def Ahalf(c, i, h): return vr(AB + 32*(c & 1) + 4*i + 2*h, 2)
    srd(A, SH, POUT, 2048*2560)
    A.e("s_waitcnt lgkmcnt(0)")
    st(A)
    q = Q(A)
    def readsA(c):
        L = [It(f"v_add_u32 v11, {512*c}, v{VCU}")]
        for i in range(8):
            L.append(It(f"ds_read2_b32 {Ahalf(c,i,0)}, v11 offset0:{16*i} offset1:{16*i+1}", lds=f"a{c}_{i}"))
            L.append(It(f"ds_read2_b32 {Ahalf(c,i,1)}, v11 offset0:{16*i+2} offset1:{16*i+3}", lds=f"a{c}_{i}"))
        return L
    def readsB(D):
        return [It(f"ds_read_b128 {Br(D,i)}, v{VCK} offset:{512*(7-D)+64*i}", lds=f"b{D}_{i}") for i in range(8)]
    def mm(c, D, i):
        acc = ACC + 4*(c + D)
        first = (c == 0 and i == 0)
        return It(f"v_mfma_f32_16x16x32_bf16 {vr(acc,4)}, {Ar(c,i)}, {Br(D,i)}, {'0' if first else vr(acc,4)}", needl=(f"a{c}_{i}", f"b{D}_{i}"), w=2)
    def flush1(B):
        acc = ACC + 4*B; bo = (B & 1)*YSB
        return [It(f"v_cvt_pk_bf16_f32 v48, v{acc}, v{acc+1}"), It(f"v_cvt_pk_bf16_f32 v49, v{acc+2}, v{acc+3}"),
                It(f"ds_write_b64 v{VYS}, v[48:49] offset:{bo}", lds=f"yw{B}")]
    def flush2(B):
        bo = (B & 1)*YSB; r = 50 + 2*(B & 1)
        return [It("s_barrier", needl=(f"yw{B}",)),
                It(f"ds_read_b64_tr_b16 {vr(r,2)}, v{VYT} offset:{bo}", lds=f"yr{B}")]
    def flush3(B):
        r = 50 + 2*(B & 1)
        return [It([f"s_mov_b32 s28, {B*256*2560}", f"buffer_store_dwordx2 {vr(r,2)}, v{VYO}, s[{SH}:{SH+3}], s28 offen"], vm="Y", needl=(f"yr{B}",))]
    q.run(readsA(0) + readsB(0))
    for c in range(8):
        if c == 0:
            for D in range(8):
                M = [mm(0, D, i) for i in range(8)]
                R = readsB(D+1) if D < 7 else readsA(1)
                q.run(merge(M, R))
        else:
            M = [mm(c, D, i) for i in range(8) for D in range(8-c)]
            R = readsA(c+1) if c < 7 else []
            n = len(M); h1 = min(5, n); h2 = max(h1, n//2);
            q.run(M[:h1])
            if c == 7: A.e("s_nop 2")
            q.run(flush1(c-1))
            q.run(merge(M[h1:h2], R[:len(R)//2]))
            q.run(flush2(c-1))
            q.run(merge(M[h2:], R[len(R)//2:]))
            q.run(flush3(c-1))
        import os
        if Cfg.STAMP and os.environ.get("DETC") == "1": st(A); q.lq = []
    A.e("s_nop 7")
    q.run(flush1(7) + flush2(7) + flush3(7))
    st(A)
    finish(A)

BW0 = 73728
def BWchunk(c): return (BW0 + c*WCH) if c < 8 else (16704 + (c-8)*WCH)
BXBUF = [0, 8192, 37184, 37184+8192, 37184+16384, 37184+24576]

def finish(A):
    if Cfg.STAMP:
        A.e("s_waitcnt vmcnt(0)")
        st(A)
        A.e("s_mov_b32 s2, s3")
        stamp_out(A, PWS, 4, STAMP_BASE, VSTAMP, VSTMP)
    A.e("s_endpgm")

def outproj_b(A, pfx):
    A.e("s_mov_b32 s60, s22")
    A.e("s_sub_u32 s61, s22, 20")
    A.e("s_add_u32 s62, s61, 12")
    A.e("s_cmp_lt_u32 s62, 20")
    A.e("s_cselect_b32 s63, 3, 2")
    A.e("s_cselect_b32 s62, s62, s61")
    q = Q(A)
    for c in (8, 9): q.run([It(g, vm=f"W{c}") for g in wdma_ring(c, BWchunk(c))])
    srd(A, SE_, PWS, 32*128, add=WS_FLAG)
    def wait_flags(name, regs):
        nl = 8*len(regs)
        A.e("s_cmp_lg_u32 s20, 0")
        A.e(f"s_cbranch_scc1 {pfx}_{name}_np")
        A.e(f"v_mov_b32 v14, s{regs[0]}")
        if len(regs) > 1:
            A.e("v_lshrrev_b32 v13, 3, v1")
            A.e("v_cmp_eq_u32 vcc, 1, v13")
            A.e(f"v_mov_b32 v15, s{regs[1]}")
            A.e("s_nop 0")
            A.e("v_cndmask_b32 v14, v14, v15, vcc")
        A.e("v_and_b32 v12, 7, v1")
        A.e("v_lshlrev_b32 v12, 2, v12")
        A.e("v_lshl_add_u32 v12, v14, 7, v12")
        A.e(f"s_mov_b32 s35, {SPIN_MAX}")
        A.e(f"s_mov_b64 exec, {hex((1 << nl)-1)}")
        A.label(f"{pfx}_{name}_p")
        A.e(f"buffer_load_dword v13, v12, s[{SE_}:{SE_+3}], 0 offen sc1")
        A.e("s_waitcnt vmcnt(0)")
        A.e("v_cmp_ne_u32 vcc, 0, v13")
        A.e("s_sub_u32 s35, s35, 1")
        A.e("s_cmp_eq_u32 s35, 0")
        A.e(f"s_cbranch_scc1 {pfx}_{name}_d")
        A.e(f"s_cmp_eq_u32 vcc_lo, {hex((1 << nl)-1)}")
        A.e(f"s_cbranch_scc1 {pfx}_{name}_d")
        A.e(f"s_branch {pfx}_{name}_p")
        A.label(f"{pfx}_{name}_d")
        A.e("s_mov_b64 exec, -1")
        A.label(f"{pfx}_{name}_np")
        A.e("s_waitcnt vmcnt(0)")
        A.e("s_barrier")
    wait_flags("o", [60])
    q.vq = []
    st(A)
    srd(A, SA, PWS, 2048*1280, add=WS_O)
    srd(A, SC, POUT, 2048*2560)
    for t in range(3):
        A.e(f"s_lshl_b32 s21, s{60+t}, 2")
        A.e("s_add_u32 s21, s21, s20")
        A.e(f"s_mul_i32 s{56+t}, s21, 20480")
    ACC = [16, 36]; WF = 56
    def Xr(sl, kk): return ar(80*sl + 4*kk, 4)
    def xld(sl, t, kk):
        return It([f"s_add_u32 s36, s{56+t}, {1024*kk}", f"buffer_load_dwordx4 {Xr(sl, kk)}, v4, s[{SA}:{SA+3}], s36 offen"], vm=f"X{sl}_{kk}")
    def rdW(kk, mt):
        c, ks = kk >> 1, kk & 1; out = []
        for h in range(2):
            off = BWchunk(c) + (32*ks + 8*h)*160 + 32*mt
            a = VWT
            if off >= 131072: a, off = VWTh2, off - 131072
            elif off >= 65536: a, off = VWTh, off - 65536
            out.append(It(f"ds_read_b64_tr_b16 {vr(WF+mt*4+h*2,2)}, v{a} offset:{off}", lds=f"w{kk}_{mt}"))
        return out
    def pack(slot, base):
        for mt in range(5):
            acc = ACC[slot] + 4*mt
            r = base + 2*mt
            A.e(f"v_cvt_pk_bf16_f32 v{r}, v{acc}, v{acc+1}")
            A.e(f"v_cvt_pk_bf16_f32 v{r+1}, v{acc+2}, v{acc+3}")
    def store(base, t):
        A.e(f"s_mul_i32 s21, s{60+t}, 163840")
        A.e("s_add_u32 s21, s21, s55")
        for pr in range(2):
            r = base + 4*pr
            A.e(f"v_permlane16_swap_b32 v{r}, v{r+2}")
            A.e(f"v_permlane16_swap_b32 v{r+1}, v{r+3}")
        q.emit(It(f"buffer_store_dwordx4 {vr(base,4)}, v{VOUT2}, s[{SC}:{SC+3}], s21 offen", vm="S"))
        q.emit(It(f"buffer_store_dwordx4 {vr(base+4,4)}, v{VOUT2}, s[{SC}:{SC+3}], s21 offen offset:64", vm="S"))
        q.emit(It(f"buffer_store_dwordx2 {vr(base+8,2)}, v{VOUT}, s[{SC}:{SC+3}], s21 offen offset:128", vm="S"))
    A.e("s_mul_i32 s55, s23, 160")
    A.e("s_add_u32 s55, s55, 1280")
    def run_pass(tiles):
        n = len(tiles)
        loads = [xld(sl, t, kk) for kk in range(20) for sl, t in enumerate(tiles)]
        ahead = 8*n
        q.run(loads[:ahead]); loads = loads[ahead:]
        for mt in range(5): q.run(rdW(0, mt))
        for kk in range(20):
            for mt in range(5):
                for sl in range(n):
                    nl = gemm_need(kk, mt, []) if sl == 0 else ()
                    nv = tuple(f"X{z}_{kk}" for z in range(n)) if (mt == 0 and sl == 0) else ()
                    q.emit(It(f"v_mfma_f32_16x16x32_bf16 {vr(ACC[sl]+4*mt,4)}, {vr(WF+4*mt,4)}, {Xr(sl, kk)}, {vr(ACC[sl]+4*mt,4) if kk else '0'}",
                              needl=nl, needv=nv))
                if loads and mt < n: q.emit(loads.pop(0))
                if kk+1 < 20: q.run(rdW(kk+1, mt))
        assert not loads
        q.all_l()
        A.e("s_nop 7")
    run_pass([0])
    pack(0, 92)
    store(92, 0)
    st(A)
    wait_flags("o2", [61, 62])
    q.vq = []
    st(A)
    A.e("s_cmp_eq_u32 s63, 2")
    A.e(f"s_cbranch_scc1 {pfx}_b2")
    q = Q(A)
    run_pass([1, 2])
    st(A)
    pack(0, 92); pack(1, 104)
    store(92, 1); store(104, 2)
    finish(A)
    A.label(f"{pfx}_b2")
    q = Q(A)
    run_pass([1])
    st(A)
    pack(0, 92)
    store(92, 1)
    finish(A)

def slow_softmax(A, pfx):
    QD, MX, PS = 10240, 22528, 24576
    Sx, Px, Ox, QFA, QFB = 16, 48, 80, 64, 68
    A.label(f"{pfx}_slow")
    A.e("s_barrier")
    A.e("s_cmp_lg_u32 s20, 0")
    A.e(f"s_cbranch_scc1 {pfx}_sl_nodump")
    A.e("v_lshlrev_b32 v13, 3, v1")
    for tau in range(8):
        j = (2 + tau) & 7
        A.e(f"ds_write_b128 v4, {QAr(tau)} offset:{QD + 1536*j}")
        A.e(f"ds_write_b64 v13, {QBr(tau)} offset:{QD + 1536*j + 1024}")
    A.e("s_waitcnt lgkmcnt(0)")
    A.label(f"{pfx}_sl_nodump")
    A.e("s_barrier")
    A.e("s_mov_b32 s56, 0                 ; tile j")
    A.e("v_and_b32 v12, 31, v1")
    A.e("v_lshlrev_b32 v12, 2, v12        ; query*4")
    A.e("s_lshl_b32 s21, s20, 7")
    A.e(f"s_add_u32 s21, s21, {MX}")
    A.e("v_add_u32 v72, s21, v12")
    A.e(f"v_add_u32 v73, {MX}, v12")
    A.e(f"s_mul_i32 s21, s20, {PART}")
    A.e(f"s_add_u32 s21, s21, {PS}")
    A.e("v_add_u32 v74, s21, v4")
    A.e(f"v_add_u32 v75, {PS}, v4")
    A.label(f"{pfx}_sl_loop")
    A.e("s_mul_i32 s21, s56, 1536")
    A.e(f"s_add_u32 s21, s21, {QD}")
    A.e("v_add_u32 v14, s21, v4")
    A.e("v_lshlrev_b32 v15, 3, v1")
    A.e("v_add_u32 v15, s21, v15")
    A.e(f"ds_read_b128 {vr(QFA,4)}, v14")
    A.e(f"ds_read_b64 {vr(QFB,2)}, v15 offset:1024")
    A.e("v_mov_b32 v70, 0xff800000")
    A.e("s_waitcnt lgkmcnt(0)")
    def scores(t):
        A.e(f"v_mfma_f32_32x32x16_bf16 {vr(Sx,16)}, {KAr(t)}, {vr(QFA,4)}, 0")
        A.e(f"v_mfma_f32_32x32x8_bf16 {vr(Sx,16)}, {KBr(t)}, {vr(QFB,2)}, {vr(Sx,16)}")
        A.e("s_nop 11")
    for t in range(NT):
        scores(t)
        for i in range(8): A.e(f"v_max3_f32 v70, v70, v{Sx+2*i}, v{Sx+2*i+1}")
        A.e("s_nop 6")
    A.e("v_mov_b32 v71, v70")
    A.e("v_mov_b32 v76, v70")
    A.e("s_nop 1")
    A.e("v_permlane32_swap_b32 v71, v76")
    A.e("s_nop 1")
    A.e("v_max3_f32 v70, v70, v71, v76")
    A.e("ds_write_b32 v72, v70")
    A.e("s_waitcnt lgkmcnt(0)")
    A.e("s_barrier")
    for w in range(4): A.e(f"ds_read_b32 v{76+w}, v73 offset:{128*w}")
    A.e("s_waitcnt lgkmcnt(0)")
    A.e("v_max3_f32 v71, v76, v77, v78")
    A.e("v_max_f32 v71, v71, v79")
    for t in range(NT):
        scores(t)
        for i in range(16): A.e(f"v_sub_f32 v{Sx+i}, v{Sx+i}, v71")
        for i in range(16): A.e(f"v_exp_f32 v{Sx+i}, v{Sx+i}")
        A.e("s_nop 0")
        for i in range(8): A.e(f"v_cvt_pk_bf16_f32 v{Px+i}, v{Sx+2*i}, v{Sx+2*i+1}")
        A.e("s_nop 1")
        A.e(f"v_mfma_f32_32x32x16_bf16 {vr(Ox,16)}, {VAr(t,0)}, {vr(Px,4)}, {'0' if t == 0 else vr(Ox,16)}")
        A.e(f"v_mfma_f32_32x32x16_bf16 {vr(Ox,16)}, {VAr(t,1)}, {vr(Px+4,4)}, {vr(Ox,16)}")
        A.e("s_nop 6")
    A.e("s_nop 11")
    for g in range(3): A.e(f"ds_write_b128 v74, {vr(Ox+4*g,4)} offset:{1024*g}")
    A.e("s_waitcnt lgkmcnt(0)")
    A.e("s_barrier")
    A.e("s_lshr_b32 s21, s56, 1")
    A.e("s_cmp_lg_u32 s21, s20")
    A.e(f"s_cbranch_scc1 {pfx}_sl_next")
    for w in range(4):
        for g in range(3): A.e(f"ds_read_b128 {vr(16+12*w+4*g,4)}, v75 offset:{PART*w + 1024*g}")
    A.e("s_waitcnt lgkmcnt(0)")
    for w in range(1, 4):
        for r in range(12): A.e(f"v_add_f32 v{16+r}, v{16+r}, v{16+12*w+r}")
    A.e("v_mov_b32 v76, v24")
    A.e("v_mov_b32 v77, v24")
    A.e("s_nop 1")
    A.e("v_permlane32_swap_b32 v76, v77")
    A.e("s_nop 1")
    A.e("v_rcp_f32 v77, v77")
    A.e("s_nop 0")
    for r in range(12): A.e(f"v_mul_f32 v{16+r}, v{16+r}, v77")
    for g in range(3):
        A.e(f"v_cvt_pk_bf16_f32 v{32+2*g}, v{16+4*g}, v{17+4*g}")
        A.e(f"v_cvt_pk_bf16_f32 v{33+2*g}, v{18+4*g}, v{19+4*g}")
    A.e("s_and_b32 s21, s56, 1")
    A.e("s_mul_i32 s21, s21, 5120")
    A.e(f"v_add_u32 v14, s21, v{VOS}")
    A.e("ds_write_b64 v14, v[32:33]")
    A.e("ds_write_b64 v14, v[34:35] offset:16")
    A.e("s_mov_b32 exec_hi, 0")
    A.e("ds_write_b64 v14, v[36:37] offset:32")
    A.e("s_mov_b32 exec_hi, -1")
    A.e("s_waitcnt lgkmcnt(0)")
    A.label(f"{pfx}_sl_next")
    A.e("s_barrier")
    A.e("s_add_u32 s56, s56, 1")
    A.e("s_cmp_lt_u32 s56, 8")
    A.e(f"s_cbranch_scc1 {pfx}_sl_loop")
    A.e(f"s_branch {pfx}_staged")

def mega_role(A, pfx):
    prologue(A, pfx)
    front(A, pfx)
    attention(A, pfx)
    reduce_publish(A, pfx)
    A.e(f"s_cmp_ge_u32 s3, {NCONV}")
    A.e(f"s_cbranch_scc1 {pfx}_bback")
    conv_part(A, pfx)
    A.label(f"{pfx}_bback")
    outproj_b(A, pfx)
    slow_softmax(A, pfx)
    A.label(f"{pfx}_end")
    A.e("s_endpgm")
```

```python
import sys
from common import *
import mega, asmcheck
DOC = """;
;             accumulators finite) decides; otherwise the workgroup recomputes its tiles with the true row maximum subtracted (mg_slow).
"""
def build(path):
    K = NAME + "_kernel"
    body = Asm()
    kernel_begin(body, K)
    body.e("s_mov_b32 s3, s2")
    body.e("s_cmp_lt_u32 s2, 256")
    body.e("s_cbranch_scc1 mega_go")
    body.e("s_endpgm")
    body.label("mega_go")
    mega.mega_role(body, "mg")
    hdr = open("cdna_kernels/" + NAME + ".s.ref").read().split("; Override launch")[0]
    out = hdr + f"; @launch grid=(256,1,1) block=(256,1,1) lds={mega.LDS_MEGA}\n" + DOC
    out += '.amdgcn_target "amdgcn-amd-amdhsa--gfx950"\n' + body.text() + kernel_desc(K, 512, 256, 102)
    open(path, "w").write(out)
    import re
    go = {"mega_go"}
    pol = {
      "A_w0": (lambda t: t in go | {"mg_qgemm", "mg_kv_d", "mg_safe"} or t.startswith("mg_bgb")),
      "A_w1": (lambda t: t in go | {"mg_qgemm", "mg_kv_d", "mg_noflag", "mg_no3rd"} or t.startswith("mg_bgb")),
      "B_k": (lambda t: t in go | {"mg_kvpro", "mg_kv_d", "mg_o_d", "mg_o2_d", "mg_btr", "mg_bback"} or t.startswith("mg_bga")),
      "B_v": (lambda t: t in go | {"mg_kvpro", "mg_b_vpart", "mg_b_nfv", "mg_kv_d", "mg_o_np", "mg_o2_np", "mg_noflag", "mg_btr", "mg_bback", "mg_b2"} or t.startswith("mg_bga")),
      "B_n": (lambda t: t in go | {"mg_nokp", "mg_noks", "mg_kv_d", "mg_o_d", "mg_o2_d", "mg_btr", "mg_bback"} or t.startswith("mg_bga")),
      "A_slow": (lambda t: t in go | {"mg_qgemm", "mg_kv_d", "mg_slow", "mg_sl_loop"} or t.startswith("mg_bgb")),
      "A_slow1": (lambda t: t in go | {"mg_qgemm", "mg_kv_d", "mg_slow", "mg_sl_nodump", "mg_sl_next", "mg_noflag", "mg_no3rd"} or t.startswith("mg_bgb")),
    }
    errs = asmcheck.check_policies(body.text(), K, pol)
    for e in errs[:30]: print(e)
    print("wrote", path, len(out), "bytes;", len(errs), "checker messages")
if __name__ == "__main__":
    if "stamp" in sys.argv: Cfg.STAMP = True
    build(sys.argv[1])
```

```python
from common import *
from sched import *
import math
LOG2E = math.log2(math.e)
GBUF = 18432; GXB = 8192
L_KR = 73728
L_KG = 0; KGW = 25872
RA = 3
L_XR = 0; L_WKV = 81920; L_WR = 107520
L_QL = 104448
L_PART = 0; PART = 3072
L_U0 = 92160; CS = 4160
L_WA = 108800; WCH = 10240
L_DUMMY = 160000
L_U1 = 64; L_WB = 16704
L_YS = 16896; YSC = 576; YSB = 4*YSC
L_BAD = 161024
LDS_MEGA = 161088
def Wchunk(c): return (L_WA + c*WCH) if c < 5 else (L_WB + (c-5)*WCH)
XBUF = [L_KR, L_KR+8192, L_U0, L_U0+8192, L_U1, L_U1+8192]
WS_FLAG = 0x1100000
SPIN_MAX = 1 << 18
NCONV = 160
PU, PARE, PAIM, PBRE, PBIM, PCRE, PCIM, PLDT = 64, 66, 68, 70, 72, 74, 76, 78
PDSK, PX, PWQ, PWK, PWV, PWO, POUT, PDBG = 80, 82, 84, 86, 88, 90, 92, 94
PWS = 4
SA, SB, SC, SD, SE_, SF, SG, SH = 8, 12, 16, 40, 44, 48, 52, 56
VXD0, VXD1 = 200, 201
VWD = 202
VOUT = 205
VYO = 206
VOS, VOS2a, VOS2b = 207, 208, 209
VOG = 210
VTID16 = 213
VCU, VCK = 214, 215
VYS = 216
VYT, VUT = 217, 218
VUR = 219
VUW = 220
VRED = 221
VXF0, VXF1 = 222, 223
VWT = 224
VUD = 225
VQW = 226
VQR, VQRB = 231, 232
VXF0h, VXF1h, VWTh, VWTh2 = 233, 234, 235, 236
VOUT2 = 245
VUP = 237
VPA = 238
VSTAMP, VSTMP = 252, 253
S = [16, 32]; P = [48, 56]; O = [80, 96]; VW = 7; NT = 16
def QAr(tau): return vr(128+6*tau, 4)
def QBr(tau): return vr(132+6*tau, 2)
def KAr(t): return ar(4*t, 4)
def KBr(t): return ar(64+2*t, 2)
def VAr(t, u): return ar(96+8*t+4*u, 4)

def st(A): stamp(A, VSTAMP)

PREFETCH = True
CODE_BYTES = 80*1024
def prefetch(A, pfx):
    A.e("s_getpc_b64 s[24:25]")
    A.label(f"{pfx}_pc")
    A.e("s_lshr_b32 s26, s3, 3")
    A.e("s_lshl_b32 s26, s26, 2")
    A.e("s_add_u32 s26, s26, s20          ; slice 0..127")
    A.e("s_mul_i32 s26, s26, 768")
    A.e("v_min_u32 v12, 5, v1")
    A.e("v_lshlrev_b32 v12, 7, v12")
    A.e("v_add_u32 v12, s26, v12")
    A.e(f"v_min_u32 v12, mg_end-{pfx}_pc-4, v12")
    A.e("global_load_dword v249, v12, s[24:25]")
    A.e("s_lshl_b32 s26, s3, 2")
    A.e("s_add_u32 s26, s26, s20")
    A.e("s_lshl_b32 s26, s26, 6")
    A.e("v_add_u32 v12, s26, v1           ; slot")
    A.e("v_lshlrev_b32 v13, 7, v12")
    srd(A, SB, PX, 2048*1280)
    A.e(f"buffer_load_dword v250, v13, s[{SB}:{SB+3}], 0 offen")
    A.e("v_subrev_u32 v13, 0x280000, v13")
    srd(A, SB, PWQ, 819200)
    A.e(f"buffer_load_dword v251, v13, s[{SB}:{SB+3}], 0 offen")
def prologue(A, pfx):
    A.e("s_load_dwordx16 s[64:79], s[0:1], 0")
    A.e("s_load_dwordx16 s[80:95], s[0:1], 64")
    A.e(f"s_load_dwordx2 s[4:5], s[0:1], 128")
    stamp_init(A, VSTAMP); st(A)
    A.e("v_and_b32 v1, 63, v0")
    A.e("v_lshrrev_b32 v12, 6, v0")
    A.e("v_lshlrev_b32 v4, 4, v1          ; lane*16")
    A.e("v_readfirstlane_b32 s20, v12")
    A.e("v_and_b32 v2, 15, v1")
    A.e("v_lshrrev_b32 v3, 4, v1")
    A.e(f"s_sub_u32 s52, s3, {NCONV}        ; j")
    A.e("s_and_b32 s24, s3, 7             ; r")
    A.e("s_lshr_b32 s25, s3, 3            ; q (conv)")
    A.e("s_lshr_b32 s26, s52, 3           ; q (others)")
    A.e(f"s_cmp_ge_u32 s3, {NCONV}")
    A.e("s_cselect_b32 s25, s26, s25      ; q")
    A.e("s_cselect_b32 s26, 8, 16")
    A.e("s_cselect_b32 s27, 20, 0")
    A.e("s_cselect_b32 s28, 28, 16")
    A.e("s_lshr_b32 s22, s25, 3")
    A.e("s_lshl_b32 s22, s22, 3")
    A.e("s_add_u32 s22, s22, s24")
    A.e("s_add_u32 s22, s22, s27")
    A.e("s_and_b32 s23, s25, 7")
    A.e("s_lshr_b32 s29, s24, 1")
    A.e("s_add_u32 s29, s29, s28")
    A.e("s_and_b32 s30, s24, 1")
    A.e("s_lshl_b32 s30, s30, 2")
    A.e("s_add_u32 s30, s30, s25")
    A.e("s_sub_u32 s30, s30, s26")
    A.e("s_cmp_ge_u32 s25, s26")
    A.e("s_cselect_b32 s22, s29, s22")
    A.e("s_cselect_b32 s23, s30, s23")
    A.e("s_lshr_b32 s53, s52, 5")
    A.e("s_min_u32 s53, s53, 2")
    A.e("s_cselect_b32 s53, s53, s53")
    A.e(f"s_cmp_lt_u32 s3, {NCONV}")
    A.e("s_cselect_b32 s53, 2, s53")
    A.e("s_and_b32 s54, s52, 31")
    A.e("s_cmp_lt_u32 s53, 2")
    A.e("s_cselect_b32 s54, s54, s22")
    A.e("s_lshl_b32 s32, s20, 10          ; wave*1024")
    A.e("s_lshl_b32 s31, s20, 11          ; wave*2048")
    A.e("s_and_b32 s33, s3, 7")
    A.e("s_mul_i32 s33, s33, 20")
    A.e("s_lshr_b32 s34, s3, 3")
    A.e("s_add_u32 s33, s33, s34")
    A.e("s_min_u32 s33, s33, 159")
    A.e("s_lshl_b32 s34, s33, 2")
    A.e("s_add_u32 s34, s34, s20          ; channel d")
    A.e("s_movk_i32 s27, 1280")
    A.e("v_lshrrev_b32 v12, 3, v1")
    A.e("v_and_b32 v13, 7, v1")
    A.e("v_xor_b32 v13, v13, v12")
    A.e("v_lshlrev_b32 v13, 4, v13")
    A.e("s_lshl_b32 s21, s20, 4")
    A.e("v_add_u32 v12, s21, v12")
    A.e(f"v_mad_u32_u24 v{VXD0}, v12, s27, v13")
    A.e(f"v_add_u32 v{VXD1}, 10240, v{VXD0}")
    A.e("s_mov_b32 s26, 6554")
    for n in range(3):
        A.e(f"s_add_u32 s21, s20, {4*n}")
        A.e("s_lshl_b32 s21, s21, 6")
        A.e("v_add_u32 v12, s21, v1          ; p")
        A.e("v_mul_u32_u24 v13, s26, v12")
        A.e("v_lshrrev_b32 v13, 16, v13      ; rho")
        A.e("v_mul_u32_u24 v14, 10, v13")
        A.e("v_sub_u32 v14, v12, v14         ; cc")
        A.e("v_lshlrev_b32 v14, 4, v14")
        A.e("v_and_b32 v15, 0x33, v13")
        A.e("v_bfe_u32 v5, v13, 2, 1")
        A.e("v_lshl_or_b32 v15, v5, 3, v15")
        A.e("v_bfe_u32 v5, v13, 3, 1")
        A.e("v_lshl_or_b32 v15, v5, 2, v15")
        A.e(f"v_mad_u32_u24 v{VWD+n}, v15, s27, v14")
        if n == 2:
            A.e(f"v_mov_b32 v12, {OOB}")
            A.e("v_cmp_gt_u32 vcc, 64, v13")
            A.e("s_nop 1")
            A.e(f"v_cndmask_b32 v{VWD+2}, v12, v{VWD+2}, vcc")
    for l in addr_setup_items(): A.e(l)
    A.e("s_waitcnt lgkmcnt(0)")
    A.e("s_mul_i32 s21, s54, 81920")
    srd(A, SA, PX, 81920, add="s21")
    A.e("s_mul_i32 s21, s23, 160")
    srd(A, SD, PWQ, "0", add="s21")
    A.e(f"s_sub_u32 s{SD+2}, 819200, s21")

def addr_setup_items(part="front"):
    T = Asm(); A = T
    A.e("s_lshl_b32 s21, s20, 4")
    A.e("v_add_u32 v12, s21, v2")
    A.e("v_lshlrev_b32 v12, 7, v12")
    A.e("v_and_b32 v13, 7, v2")
    A.e("v_xor_b32 v14, v13, v3")
    A.e(f"v_lshl_add_u32 v{VXF0}, v14, 4, v12")
    A.e("v_add_u32 v14, 4, v3")
    A.e("v_xor_b32 v14, v13, v14")
    A.e(f"v_lshl_add_u32 v{VXF1}, v14, 4, v12")
    A.e(f"v_add_u32 v{VXF0h}, 65536, v{VXF0}")
    A.e(f"v_add_u32 v{VXF1h}, 65536, v{VXF1}")
    A.e("v_lshrrev_b32 v12, 1, v3")
    A.e("v_lshlrev_b32 v12, 4, v12")
    A.e("v_and_b32 v13, 1, v3")
    A.e("v_lshl_add_u32 v12, v13, 2, v12")
    A.e("v_lshrrev_b32 v13, 2, v2")
    A.e("v_add_u32 v12, v12, v13")
    A.e("v_mul_u32_u24 v12, 160, v12")
    A.e("v_and_b32 v13, 3, v2")
    A.e(f"v_lshl_add_u32 v{VWT}, v13, 3, v12")
    A.e(f"v_add_u32 v{VWTh}, 65536, v{VWT}")
    A.e(f"v_add_u32 v{VWTh2}, 0x20000, v{VWT}")
    A.e("s_and_b32 s21, s20, 1")
    A.e("s_lshl_b32 s21, s21, 4")
    A.e("v_add_u32 v15, s21, v2          ; pos32")
    A.e("s_lshr_b32 s24, s20, 1")
    A.e("s_mul_i32 s24, s24, 1280")
    A.e(f"s_add_u32 s24, s24, {L_QL}")
    A.e("v_lshlrev_b32 v14, 3, v15        ; 8*pos32")
    A.e("v_add_u32 v14, s24, v14")
    A.e("v_lshlrev_b32 v13, 4, v3")
    A.e("v_and_b32 v13, 16, v13")
    A.e("v_cmp_lt_u32 vcc, 1, v3          ; g >= 2")
    for mt in range(5):
        cs = []; isb = []
        for g in range(4):
            c0 = 16*mt + 4*g; hl, d0 = divmod(c0, 20)
            if d0 < 16: cs.append(hl*2560 + ((d0 >> 2) & 1)*512 + (d0 >> 3)*8); isb.append(0)
            else: cs.append(hl*2560 + 1024); isb.append(1)
        enc = [c | (0 if b else 0x8000) for c, b in zip(cs, isb)]
        assert all(c < 0x8000 for c in cs)
        A.e(f"v_mov_b32 v12, {hex(enc[0] | (enc[1] << 16))}")
        A.e(f"v_mov_b32 v6, {hex(enc[2] | (enc[3] << 16))}")
        A.e("v_cndmask_b32 v12, v12, v6, vcc")
        A.e("v_lshrrev_b32 v12, v13, v12")
        A.e("v_bfe_u32 v6, v12, 15, 1")
        A.e("v_and_b32 v12, 0x7fff, v12")
        A.e("v_mul_u32_u24 v6, v6, v15")
        A.e("v_lshl_add_u32 v6, v6, 3, v14")
        A.e(f"v_add_u32 v{VQW+mt}, v6, v12")
    A.e(f"v_add_u32 v{VQR}, {L_QL}, v4")
    A.e(f"v_lshlrev_b32 v{VQRB}, 3, v1")
    A.e(f"v_mov_b32 v12, {OOB}")
    A.e("v_lshlrev_b32 v5, 3, v1")
    A.e("v_cmp_gt_u32 vcc, 32, v1")
    A.e("v_and_b32 v13, 31, v1")
    A.e("s_nop 0")
    A.e("v_cndmask_b32 v5, v12, v5, vcc")
    A.e("v_cmp_gt_u32 vcc, 21, v13")
    A.e("s_nop 1")
    A.e("v_cndmask_b32 v8, v12, v4, vcc")
    if part == "front": return [x.strip() for x in T.lines if x.strip()]
    T.lines.clear()
    A.e(f"s_mul_i32 s21, s20, {6*PART}")
    A.e(f"v_add_u32 v{VRED}, s21, v4")
    A.e("v_and_b32 v13, 31, v1")
    A.e("v_mul_u32_u24 v13, 160, v13")
    A.e("v_lshrrev_b32 v14, 5, v1         ; h")
    A.e("v_lshl_add_u32 v13, v14, 3, v13")
    A.e("s_mul_i32 s24, s20, 40")
    A.e(f"v_add_u32 v{VOS}, s24, v13")
    A.e(f"v_mov_b32 v12, {L_DUMMY}")
    A.e(f"v_add_u32 v13, 32, v{VOS}")
    A.e("v_cmp_eq_u32 vcc, 0, v14")
    A.e(f"v_add_u32 v15, 5152, v{VOS}")
    A.e("s_nop 0")
    A.e(f"v_cndmask_b32 v{VOS2a}, v12, v13, vcc")
    A.e(f"v_cndmask_b32 v{VOS2b}, v12, v15, vcc")
    A.e("v_lshrrev_b32 v13, 4, v1")
    A.e("v_mul_u32_u24 v13, 0x5000, v13       ; (row >> 4) * 20480")
    A.e("v_and_b32 v14, 15, v1")
    A.e(f"v_lshl_add_u32 v{VOG}, v14, 4, v13")
    A.e("v_mul_u32_u24 v13, 160, v1")
    A.e("s_lshl_b32 s24, s20, 4")
    A.e(f"v_add_u32 v{VTID16}, s24, v13")
    A.e("s_lshl_b32 s21, s20, 4")
    A.e("s_movk_i32 s26, 2560")
    A.e("v_add_u32 v13, s21, v2")
    A.e("v_mul_u32_u24 v13, s26, v13")
    A.e(f"v_lshl_add_u32 v{VOUT}, v3, 3, v13")
    A.e("v_and_b32 v14, 1, v3")
    A.e("v_lshl_add_u32 v13, v14, 5, v13")
    A.e("v_lshrrev_b32 v14, 1, v3")
    A.e(f"v_lshl_add_u32 v{VOUT2}, v14, 4, v13     ; + 32 (g & 1) + 16 (g >> 1)")
    A.e("s_lshl_b32 s21, s20, 6")
    A.e("v_add_u32 v13, s21, v1")
    A.e("v_mul_u32_u24 v13, s26, v13")
    A.e("s_lshl_b32 s21, s33, 3")
    A.e(f"v_add_u32 v{VYO}, s21, v13")
    A.e("v_add_u32 v12, 1, v2")
    A.e("v_and_b32 v12, 1, v12            ; cp")
    A.e("v_sub_u32 v13, v2, v12")
    A.e("v_add_u32 v13, 9, v13")
    A.e("v_and_b32 v14, 1, v3")
    A.e("v_lshlrev_b32 v14, 3, v14        ; 8(g&1)")
    A.e("v_sub_u32 v13, v13, v14")
    A.e("v_lshrrev_b32 v15, 1, v3         ; g>>1")
    A.e("v_lshl_add_u32 v13, v15, 4, v13")
    A.e("v_lshlrev_b32 v13, 1, v13")
    A.e("v_xor_b32 v12, 1, v12")
    A.e(f"s_mov_b32 s24, {L_U0 - L_U1}")
    A.e("v_mul_lo_u32 v12, v12, s24")
    A.e("v_add_u32 v13, v13, v12")
    A.e(f"s_mul_i32 s21, s20, {CS}")
    A.e(f"s_add_u32 s24, s21, {L_U1}")
    A.e(f"v_add_u32 v{VCU}, s24, v13")
    A.e(f"v_add_u32 v{VUW}, s21, v4")
    A.e("v_lshlrev_b32 v13, 4, v2")
    A.e("v_sub_u32 v13, 2040, v13")
    A.e("v_lshl_add_u32 v13, v15, 4, v13")
    A.e("v_sub_u32 v13, v13, v14")
    A.e("v_lshlrev_b32 v13, 1, v13")
    A.e("s_mul_i32 s24, s20, 4608")
    A.e(f"s_add_u32 s24, s24, {L_KR-3584}")
    A.e(f"v_add_u32 v{VCK}, s24, v13")
    A.e("v_lshlrev_b32 v13, 5, v2")
    A.e("v_lshl_add_u32 v13, v3, 3, v13")
    A.e(f"s_mul_i32 s24, s20, {YSC}")
    A.e(f"s_add_u32 s24, s24, {L_YS}")
    A.e(f"v_add_u32 v{VYS}, s24, v13")
    A.e("v_and_b32 v13, 3, v2")
    A.e("v_lshlrev_b32 v13, 3, v13")
    A.e("v_lshl_add_u32 v13, v3, 5, v13")
    A.e("s_lshl_b32 s21, s20, 7")
    A.e("v_add_u32 v13, s21, v13")
    A.e("v_lshrrev_b32 v12, 2, v2")
    A.e(f"v_mul_u32_u24 v14, {YSC}, v12" if False else f"s_movk_i32 s24, {YSC}")
    A.e("v_mul_u32_u24 v14, s24, v12")
    A.e(f"v_add3_u32 v{VYT}, v14, v13, v13" if False else f"v_add_u32 v14, v14, v13")
    A.e(f"v_add_u32 v{VYT}, {L_YS}, v14")
    A.e(f"s_movk_i32 s24, {CS}")
    A.e("v_mul_u32_u24 v14, s24, v12")
    A.e("v_add_u32 v14, v14, v13")
    A.e(f"v_add_u32 v{VUT}, {L_U0+32}, v14")
    A.e("s_lshr_b32 s21, s20, 1")
    A.e("s_mul_i32 s21, s21, 8320")
    A.e(f"s_add_u32 s21, s21, {L_U0}")
    A.e("v_lshlrev_b32 v13, 5, v1")
    A.e(f"v_add_u32 v{VUR}, s21, v13")
    A.e("s_movk_i32 s26, 1280")
    A.e("v_mul_u32_u24 v13, s26, v1")
    A.e("s_lshl_b32 s21, s33, 3")
    A.e(f"v_add_u32 v{VUD}, s21, v13")
    A.e("s_lshl_b32 s21, s20, 11")
    A.e(f"s_add_u32 s21, s21, {L_U0+64}")
    A.e("v_lshlrev_b32 v13, 2, v1")
    A.e(f"v_add_u32 v{VUP}, s21, v13")
    return [x.strip() for x in T.lines if x.strip()]

def wdma_ring(c, base):
    L = []
    for n in range(3):
        g = []
        if n < 2:
            g += [f"s_add_u32 m0, s32, {base + 4096*n}", f"s_mov_b32 s38, {64*1280*c}" if n == 0 else "s_nop 0"]
        else:
            g += [f"s_add_u32 s39, s32, {base + 8192}", "s_cmp_lt_u32 s20, 2", f"s_cselect_b32 m0, s39, {L_DUMMY}", "s_nop 0"]
        g.append(f"buffer_load_dwordx4 v{VWD+n}, s[{SD}:{SD+3}], s38 offen lds")
        L.append(g)
    return L
def xdma(c, base, srd_=SA):
    return [[f"s_add_u32 m0, s31, {base}", f"s_movk_i32 s36, {128*c}",
             f"buffer_load_dwordx4 v{VXD0}, s[{srd_}:{srd_+3}], s36 offen lds"],
            [f"s_add_u32 m0, s31, {base+1024}", "s_nop 0",
             f"buffer_load_dwordx4 v{VXD1}, s[{srd_}:{srd_+3}], s36 offen lds"]]

GACC = 16; GWF = 36; GXF = [56, 60]
def gemm_rdX(kk, xb):
    ks = kk & 1
    if xb < 65536: a, o = (VXF0 if ks == 0 else VXF1), xb
    else: a, o = (VXF0h if ks == 0 else VXF1h), xb - 65536
    return It(f"ds_read_b128 {vr(GXF[kk & 1],4)}, v{a} offset:{o}", lds=f"x{kk}")
def gemm_rdW(kk, mt, wb):
    ks = kk & 1
    out = []
    for h in range(2):
        off = wb + (32*ks + 8*h)*160 + 32*mt
        a = VWT
        if off >= 131072: a, off = VWTh2, off - 131072
        elif off >= 65536: a, off = VWTh, off - 65536
        out.append(It(f"ds_read_b64_tr_b16 {vr(GWF+mt*4+h*2,2)}, v{a} offset:{off}", lds=f"w{kk}_{mt}"))
    return out
def gemm_need(kk, mt, xt):
    if mt == 0: return tuple(xt) + (f"w{kk}_0", f"w{kk}_1", f"w{kk}_2")
    if mt == 3: return (f"w{kk}_3", f"w{kk}_4")
    return ()
def gemm_mm(kk, mt):
    return It(f"v_mfma_f32_16x16x32_bf16 {vr(GACC+4*mt,4)}, {vr(GWF+mt*4,4)}, {vr(GXF[kk & 1],4)}, {vr(GACC+4*mt,4) if kk else '0'}",
              needl=gemm_need(kk, mt, (f"x{kk}",)), w=2)
def gemm_items(xbase, wbase, sync, loads=None):
    steps = []
    spread = list(loads(0)) if loads else []
    pre = list(sync(0)) + [gemm_rdX(0, xbase(0))]
    for mt in range(5): pre += gemm_rdW(0, mt, wbase(0))
    for kk in range(20):
        L = []
        c1 = (kk+1) >> 1
        boundary = (kk+1) & 1 == 0 and kk+1 < 20
        for mt in range(5):
            L.append(gemm_mm(kk, mt))
            if kk+1 < 20:
                if mt == 0:
                    if boundary:
                        L += spread; spread = []
                        L += list(sync(c1))
                        if loads: spread = list(loads(c1))
                    L.append(gemm_rdX(kk+1, xbase(c1)))
                L += gemm_rdW(kk+1, mt, wbase(c1))
            if spread and mt in (1, 2, 3): L.append(spread.pop(0))
        steps.append(L)
    assert not spread
    return pre, steps

def rho(s, b):
    if s == 0: return b
    q = b >> s; rem = b & ((1 << s)-1); half = 1 << (s-1)
    if rem > half or (rem == half and (q & 1)): q += 1
    return q << s
KACC = 64
RS = 528
def kgen_setup_lines():
    T = Asm(); A = T
    A.e("v_lshlrev_b32 v12, 2, v1          ; lane*4")
    A.e("s_lshl_b32 s24, s34, 8           ; d*256")
    A.e("v_add_u32 v13, s24, v12")
    for k, s in enumerate((PARE, PAIM, PBRE, PBIM, PCRE, PCIM)):
        A.e(f"global_load_dword v{104+k}, v13, s[{s}:{s+1}]")
    A.e("s_lshl_b32 s24, s34, 1")
    A.e("v_mov_b32 v14, s24")
    A.e(f"global_load_ushort v110, v14, s[{PLDT}:{PLDT+1}]")
    A.e(f"global_load_ushort v198, v14, s[{PDSK}:{PDSK+1}]")
    A.e(f"s_mul_i32 s21, s20, {KGW}")
    A.e(f"s_add_u32 s21, s21, {L_KG}")
    A.e("v_lshlrev_b32 v14, 3, v1            ; lane*8")
    A.e("v_add_u32 v196, s21, v14")
    A.e(f"v_add_u32 v197, {33*RS}, v196")
    for s in range(4):
        for mt in range(2):
            dst = 112 + 2*s + mt
            A.e(f"v_add_u32 v15, {16*mt}, v2          ; b")
            if s > 0:
                half = 1 << (s-1)
                A.e(f"v_bfe_u32 v12, v15, {s}, 1")
                A.e(f"v_add3_u32 v15, v15, v12, {half-1}")
                A.e(f"v_lshrrev_b32 v15, {s}, v15")
                A.e(f"v_lshlrev_b32 v15, {s}, v15")
            A.e(f"v_mul_u32_u24 v15, {RS}, v15")
            A.e(f"v_lshl_add_u32 v15, v3, 4, v15")
            A.e(f"v_add_u32 v{dst}, s21, v15")
    for s in range(1, 4):
        for b in range(32):
            half = 1 << (s-1)
            assert (((b + half - 1 + ((b >> s) & 1)) >> s) << s) == rho(s, b)
    A.e(f"v_mul_u32_u24 v15, {RS}, v2")
    A.e("v_lshl_add_u32 v15, v3, 4, v15")
    A.e(f"v_add_u32 v15, {33*RS}, v15")
    A.e("v_add_u32 v111, s21, v15")
    return [x.strip() for x in T.lines if x.strip()]

def kgen_parts():
    L = []
    a = lambda t, **k: L.append(It(t, **k))
    E1 = [120, 122]; E32 = [124, 126]
    C = [176, 178]; TM = [180, 182]
    PK = [184, 186]
    WC = [188, 190]
    a("v_lshlrev_b32 v110, 16, v110", needv=("kp",))
    a(f"v_mul_f32 v110, {hex(f2u(LOG2E))}, v110")
    a("v_exp_f32 v110, v110")
    a("s_nop 0")
    a("v_cvt_pk_bf16_f32 v110, v110, v110")
    a("v_lshlrev_b32 v110, 16, v110")
    for hf in range(2):
        for k in range(6):
            a(f"v_lshlrev_b32 v{176+k}, 16, v{104+k}" if hf == 0 else f"v_and_b32 v{176+k}, 0xffff0000, v{104+k}")
        ZR, ZI = 192, 193
        a(f"v_mul_f32 v{ZR}, v110, v176"); a(f"v_mul_f32 v{ZI}, v110, v177")
        a("v_mul_f32 v178, v110, v178"); a("v_mul_f32 v179, v110, v179")
        a(f"v_mul_f32 v{ZR}, {hex(f2u(LOG2E))}, v{ZR}"); a(f"v_mul_f32 v{ZI}, {hex(f2u(1/(2*math.pi)))}, v{ZI}")
        w = WC[hf]
        a(f"v_mul_f32 v{w}, v180, v178"); a(f"v_mul_f32 v{w+1}, v180, v179")
        a(f"v_fma_f32 v{w}, -v181, v179, v{w}"); a(f"v_fma_f32 v{w+1}, v181, v178, v{w+1}")
        for (m, dst) in ((1, E1[hf]), (32, E32[hf])):
            if m == 1:
                a(f"v_exp_f32 v182, v{ZR}"); a(f"v_fract_f32 v183, v{ZI}")
            else:
                lit = hex(f2u(float(m)))
                a(f"v_mul_f32 v182, {lit}, v{ZR}"); a(f"v_mul_f32 v183, {lit}, v{ZI}")
                a("v_exp_f32 v182, v182"); a("v_fract_f32 v183, v183")
            a("v_cos_f32 v194, v183"); a("v_sin_f32 v195, v183")
            a("s_nop 0")
            a(f"v_mul_f32 v{dst}, v182, v194"); a(f"v_mul_f32 v{dst+1}, v182, v195")
    for hf in range(2):
        a(f"v_mov_b32 v{C[hf]}, v{WC[hf]}"); a(f"v_mov_b32 v{C[hf]+1}, v{WC[hf]+1}")
    setup = L
    def cm(x, e, t):
        return (f"v_pk_mul_f32 v[{t}:{t+1}], v[{x}:{x+1}], v[{e}:{e+1}] op_sel:[0,0] op_sel_hi:[0,1]",
                f"v_pk_fma_f32 v[{x}:{x+1}], v[{x}:{x+1}], v[{e}:{e+1}], v[{t}:{t+1}] op_sel:[1,1,0] op_sel_hi:[1,0,1] neg_lo:[1,0,0]")
    rows = []
    def row(n, r, e, neg, waddr, stp, pre=()):
        pk = PK[n & 1]; sg = "-" if neg else ""
        R = [It(y) for y in pre]
        if stp: R += [It(cm(C[0], e[0], TM[0])[0]), It(cm(C[1], e[1], TM[1])[0])]
        R += [It(f"v_cvt_pk_bf16_f32 v{pk}, v{C[0]}, {sg}v{C[0]+1}"), It(f"v_cvt_pk_bf16_f32 v{pk+1}, v{C[1]}, {sg}v{C[1]+1}")]
        if stp: R += [It(cm(C[0], e[0], TM[0])[1]), It(cm(C[1], e[1], TM[1])[1])]
        R.append(It(f"ds_write_b64 v{waddr}, {vr(pk,2)} offset:{r*RS}", lds="kw"))
        rows.append(R)
    for j in range(33): row(j, j, E1, True, 196, j < 32)
    one = [f"v_mov_b32 v{C[0]}, 1.0", f"v_mov_b32 v{C[0]+1}, 0", f"v_mov_b32 v{C[1]}, 1.0", f"v_mov_b32 v{C[1]+1}, 0"]
    for nt in range(4):
        for r in range(16):
            row(33+16*nt+r, r, E32, False, 197, not (nt == 3 and r == 15), pre=(one if (nt == 0 and r == 0) else ()))
    BF = 224
    NS = 12
    def slot(n): return vr(16 + 4*(n % NS), 4)
    afr, bfr, mms = [], [], []
    for nt in range(4):
        variants = [(0,0),(0,1),(1,0),(1,1)] if nt == 0 else [((2 if nt == 1 else 3), 0), ((2 if nt == 1 else 3), 1)]
        tiles = [0,1,2,3] if nt == 0 else [2+2*nt, 3+2*nt]
        nv = len(variants); tot = 8*nv
        ra = []; mm = []
        def rd(n):
            ks, vi = divmod(n, nv); s_, mt = variants[vi]
            return It(f"ds_read_b128 {slot(n)}, v{112+2*s_+mt} offset:{64*ks}", lds=f"ka{nt}_{n}")
        for n in range(tot):
            ks, vi = divmod(n, nv)
            if n < NS: ra.append(rd(n))
            acc = KACC + 4*tiles[vi]
            mm.append(It(f"v_mfma_f32_16x16x32_bf16 {vr(acc,4)}, {slot(n)}, {ar(BF+4*ks,4)}, {vr(acc,4) if ks else '0'}",
                         needl=(f"kb{nt}_{ks}", f"ka{nt}_{n}"), w=2))
            if n + NS < tot: mm.append(rd(n + NS))
        afr.append(ra)
        bfr.append([It(f"ds_read_b128 {ar(BF+4*ks,4)}, v111 offset:{64*ks}", lds=f"kb{nt}_{ks}") for ks in range(8)])
        mms.append(mm)
    return setup, rows, afr, bfr, mms

def kgen_pack_lines():
    T = Asm(); A = T
    ACC = KACC
    A.e("v_lshlrev_b32 v198, 16, v198")
    A.e("v_cmp_eq_u32 vcc, 0, v1")
    A.e("s_nop 1")
    A.e("v_cndmask_b32 v198, 0, v198, vcc")
    A.e(f"v_add_f32 v{ACC}, v{ACC}, v198")
    A.e("v_cmp_gt_u32 vcc, 8, v2")
    A.e("s_nop 1")
    for i in range(8):
        A.e(f"v_cndmask_b32 v{ACC+i}, v{ACC+8+i}, v{ACC+i}, vcc")
    for nt in range(4):
        for mt in range(2):
            tile = mt if nt == 0 else 2+2*nt+mt
            acc = ACC + 4*tile
            b = 176 + 2*(nt*2+mt)
            A.e(f"v_cvt_pk_bf16_f32 v{b}, v{acc+3}, v{acc+2}")
            A.e(f"v_cvt_pk_bf16_f32 v{b+1}, v{acc+1}, v{acc}")
    return [x.strip() for x in T.lines if x.strip()]
def kgen_write_lines():
    T = Asm(); A = T
    A.e("s_mul_i32 s21, s20, 4608")
    A.e(f"s_add_u32 s21, s21, {L_KR}")
    A.e("v_lshlrev_b32 v15, 5, v2")
    A.e("v_lshl_add_u32 v15, v3, 2, v15    ; 32c + 4g")
    A.e("v_sub_u32 v15, 2044, v15")
    A.e("v_lshlrev_b32 v15, 1, v15")
    A.e(f"v_add_u32 v15, s21, v15")
    A.e(f"v_subrev_u32 v15, {(512*3+16)*2}, v15")
    for nt in range(4):
        for mt in range(2):
            b = 176 + 2*(nt*2+mt)
            A.e(f"ds_write_b64 v15, {vr(b,2)} offset:{(512*3+16)*2 - (512*nt+16*mt)*2}")
    A.e("v_mov_b32 v192, 0"); A.e("v_mov_b32 v193, 0")
    A.e("v_lshlrev_b32 v12, 3, v1")
    A.e(f"s_add_u32 s21, s21, 4096")
    A.e("v_add_u32 v12, s21, v12")
    A.e("ds_write_b64 v12, v[192:193]")
    return [x.strip() for x in T.lines if x.strip()]

def q_epilogue(A, q):
    A.e(f"s_mov_b32 s26, {hex(f2u(QSCALE))}")
    for mt in range(5):
        acc = GACC + 4*mt
        for i in range(4): A.e(f"v_mul_f32 v{acc+i}, s26, v{acc+i}")
        A.e(f"v_cvt_pk_bf16_f32 v{36+mt*2}, v{acc}, v{acc+1}")
        A.e(f"v_cvt_pk_bf16_f32 v{37+mt*2}, v{acc+2}, v{acc+3}")
        q.emit(It(f"ds_write_b64 v{VQW+mt}, {vr(36+mt*2,2)}", lds="qw"))

def weave_setup(A, q, setup, pro):
    safe = [i for i, l in enumerate(setup) if l.startswith("v_") and not l.startswith("v_cndmask") and i+1 < len(setup)
            and not setup[i+1].startswith("v_cndmask") and not setup[i+1].startswith("s_nop") and not l.startswith("v_cmp")
            and not setup[i+1].startswith("s_addc")]
    step = max(1, len(safe)//len(pro))
    pts = {safe[min(k*step, len(safe)-1)]: k for k in range(len(pro))}
    done = 0
    for i, l in enumerate(setup):
        A.e(l)
        if i in pts: q.emit(pro[pts[i]]); done += 1
    assert done == len(pro), (done, len(pro))

def X_items(c): return [It(g, vm=f"x{c}") for g in xdma(c, L_XR + 8192*c)]
def W_items(c): return [It(g, vm=f"w{c}") for g in wdma_ring(c, L_WR + WCH*(c % 4))]

def front(A, pfx):
    A.e("s_cmp_lt_u32 s53, 2")
    A.e(f"s_cbranch_scc1 {pfx}_kvpro")
    q = Q(A)
    q.run(X_items(0) + W_items(0))
    A.e(f"s_cmp_ge_u32 s3, {NCONV}")
    A.e(f"s_cbranch_scc1 {pfx}_nokp")
    for l in kgen_setup_lines(): A.e(l)
    A.label(f"{pfx}_nokp")
    for c in range(1, 4): q.run(X_items(c) + W_items(c))
    if PREFETCH: prefetch(A, pfx + "a")
    A.e(f"s_cmp_ge_u32 s3, {NCONV}")
    A.e(f"s_cbranch_scc1 {pfx}_noks")
    A.e(f"s_waitcnt vmcnt({15 + (3 if PREFETCH else 0)})")
    for it in kgen_parts()[0]:
        for l in it.txt: A.e(l)
    A.label(f"{pfx}_noks")
    qcommon = q
    st(A)
    A.e(f"s_branch {pfx}_qgemm")
    A.label(f"{pfx}_kvpro")
    q = Q(A)
    A.e("s_cmp_eq_u32 s53, 0")
    A.e(f"s_cselect_b32 s24, s{PWK}, s{PWV}")
    A.e(f"s_cselect_b32 s25, s{PWK+1}, s{PWV+1}")
    A.e(f"s_mov_b32 s{SB}, s24"); A.e(f"s_mov_b32 s{SB+1}, s25"); A.e(f"s_mov_b32 s{SB+2}, 25600"); A.e(f"s_mov_b32 s{SB+3}, 0x20000")
    for i in range(7):
        if i < 6:
            A.e(f"s_add_u32 s28, s32, {4096*i}")
            A.e(f"s_add_u32 m0, s28, {L_WKV}")
            A.e("s_nop 0")
            A.e(f"buffer_load_dwordx4 v4, s[{SB}:{SB+3}], s28 offen lds")
        else:
            A.e("s_cmp_eq_u32 s20, 0")
            A.e(f"s_mov_b32 s29, {L_WKV + 24*1024}")
            A.e(f"s_cselect_b32 m0, s29, {L_DUMMY}")
            A.e(f"s_mov_b32 s30, 0x7fff0000")
            A.e(f"s_cselect_b32 s28, {24*1024}, s30")
            A.e(f"buffer_load_dwordx4 v4, s[{SB}:{SB+3}], s28 offen lds")
    for c in range(10): q.run(X_items(c))
    if PREFETCH: prefetch(A, pfx + "b")
    st(A)
    KV, KW, KX = 64, 72, [104, 108]
    A.e("v_lshrrev_b32 v12, 2, v2")
    A.e("v_lshl_add_u32 v12, v3, 3, v12")
    A.e("v_mul_u32_u24 v12, 40, v12")
    A.e("v_and_b32 v13, 3, v2")
    A.e("v_lshl_add_u32 v12, v13, 3, v12")
    A.e(f"v_add_u32 v176, {L_WKV}, v12")
    for i in range(8): A.e(f"v_mov_b32 v{KV+i}, 0")
    A.e("s_mul_i32 s21, s22, 81920")
    srd(A, SH, PX, 81920, add="s21")
    q.wait_v(("x0",))
    A.e("s_barrier")
    def rds(kk):
        c, ks = kk >> 1, kk & 1; b = kk & 1
        xb = L_XR + 8192*c
        a, o = ((VXF0 if ks == 0 else VXF1), xb) if xb < 65536 else ((VXF0h if ks == 0 else VXF1h), xb-65536)
        out = [It(f"ds_read_b128 {vr(KX[b],4)}, v{a} offset:{o}", lds=f"kx{kk}", needv=(f"x{c}",))]
        for m in range(2):
            for h in range(2):
                out.append(It(f"ds_read_b64_tr_b16 {vr(KW+8*b+4*m+2*h,2)}, v176 offset:{(32*kk + 4*h)*40 + 32*m}", lds=f"kw{kk}"))
        return out
    for variant in ("k", "v"):
        if variant == "k":
            A.e("s_cmp_eq_u32 s53, 0")
            A.e(f"s_cbranch_scc0 {pfx}_b_vpart")
        else:
            A.label(f"{pfx}_b_vpart")
        qq = Q(A); qq.vq = list(q.vq)
        qq.run(rds(0))
        wq_first = [x for c in range(4) for x in W_items(c)]
        for kk in range(20):
            if kk+1 < 20: qq.run(rds(kk+1))
            if kk >= 8: qq.emit(wq_first.pop(0))
            if kk in (2, 4, 6, 8):
                c_ = kk//2 - 1
                qq.run([It(g, vm=f"ox{c_}") for g in xdma(c_, L_XR + 8192*c_, SH)])
            b = kk & 1
            for m in range(2):
                if variant == "k": t = f"v_mfma_f32_16x16x32_bf16 {vr(KV+4*m,4)}, {vr(KW+8*b+4*m,4)}, {vr(KX[b],4)}, {vr(KV+4*m,4)}"
                else: t = f"v_mfma_f32_16x16x32_bf16 {vr(KV+4*m,4)}, {vr(KX[b],4)}, {vr(KW+8*b+4*m,4)}, {vr(KV+4*m,4)}"
                qq.emit(It(t, needl=(f"kx{kk}", f"kw{kk}")))
        A.e("s_lshr_b32 s21, s20, 1")
        A.e("s_lshl_b32 s26, s54, 1")
        A.e("s_add_u32 s21, s21, s26          ; T")
        A.e("s_and_b32 s26, s20, 1            ; u")
        srd(A, SC, PWS, WS_VA + 64*2048)
        A.e(f"v_mov_b32 v19 , {OOB}".replace(" ,", ","))
        A.e("v_and_b32 v12, 1, v3             ; h (g&1)")
        A.e("v_cmp_gt_u32 vcc, 2, v3")
        A.e(f"v_cvt_pk_bf16_f32 v112, v{KV}, v{KV+1}")
        A.e(f"v_cvt_pk_bf16_f32 v113, v{KV+2}, v{KV+3}")
        A.e(f"v_cvt_pk_bf16_f32 v116, v{KV+4}, v{KV+5}")
        A.e(f"v_cvt_pk_bf16_f32 v117, v{KV+6}, v{KV+7}")
        if variant == "v":
            A.e("s_mov_b64 s[28:29], vcc")
            A.e("v_cmp_eq_u32 vcc, 4, v2")
            A.e("v_mov_b32 v13, 0x3f803f80")
            A.e("s_nop 0")
            A.e("v_cndmask_b32 v116, v116, v13, vcc")
            A.e("v_cndmask_b32 v117, v117, v13, vcc")
            A.e("s_mov_b64 vcc, s[28:29]")
        A.e("v_mov_b32 v120, v112"); A.e("v_mov_b32 v121, v113")
        A.e("v_mov_b32 v122, v116"); A.e("v_mov_b32 v123, v117")
        A.e("s_nop 1")
        A.e("v_permlane32_swap_b32 v120, v114")
        A.e("v_permlane32_swap_b32 v121, v115")
        A.e("v_permlane32_swap_b32 v122, v118")
        A.e("v_permlane32_swap_b32 v123, v119")
        if variant == "k":
            A.e("s_lshl_b32 s28, s26, 4")
            A.e("v_add_u32 v14, s28, v2           ; key32")
            A.e("v_lshl_add_u32 v15, v12, 5, v14")
            A.e("v_lshlrev_b32 v15, 4, v15")
            A.e("s_lshl_b32 s28, s21, 10")
            A.e(f"s_add_u32 s28, s28, {WS_KA}")
            A.e("v_add_u32 v15, s28, v15")
            A.e("v_cndmask_b32 v15, v19, v15, vcc")
            A.e(f"buffer_store_dwordx4 v[112:115], v15, s[{SC}:{SC+3}], 0 offen sc1")
            A.e("v_lshlrev_b32 v14, 3, v14")
            A.e("s_lshl_b32 s28, s21, 9")
            A.e(f"s_add_u32 s28, s28, {WS_KB}")
            A.e("v_add_u32 v14, s28, v14")
            A.e("v_cmp_eq_u32 vcc, 0, v3")
            A.e("s_nop 1")
            A.e("v_cndmask_b32 v14, v19, v14, vcc")
            A.e(f"buffer_store_dwordx2 v[116:117], v14, s[{SC}:{SC+3}], 0 offen sc1")
            A.e("s_lshl_b32 s28, s54, 7")
            A.e(f"s_add_u32 s28, s28, {WS_FLAG}")
            srd(A, SE_, PWS, 128, add="s28")
            A.e("v_lshlrev_b32 v14, 2, v0")
            A.e("v_mov_b32 v13, 0")
            A.e(f"buffer_store_dword v13, v14, s[{SE_}:{SE_+3}], 0 offen sc1")
        else:
            A.e("v_lshl_add_u32 v15, v12, 5, v2")
            A.e("v_lshlrev_b32 v15, 4, v15")
            A.e("s_lshl_b32 s28, s21, 11")
            A.e("s_lshl_b32 s29, s26, 10")
            A.e("s_add_u32 s28, s28, s29")
            A.e(f"s_add_u32 s28, s28, {WS_VA}")
            A.e("v_add_u32 v15, s28, v15")
            A.e("v_add_u32 v14, 256, v15")
            A.e("v_cndmask_b32 v15, v19, v15, vcc")
            A.e("v_cndmask_b32 v14, v19, v14, vcc")
            A.e(f"buffer_store_dwordx4 v[112:115], v15, s[{SC}:{SC+3}], 0 offen sc1")
            A.e("v_cmp_gt_u32 vcc, 5, v2")
            A.e("s_nop 1")
            A.e("v_cndmask_b32 v14, v19, v14, vcc")
            A.e(f"buffer_store_dwordx4 v[116:119], v14, s[{SC}:{SC+3}], 0 offen sc1")
        A.e("s_waitcnt vmcnt(0)")
        A.e("s_barrier")
        A.e("s_cmp_lg_u32 s20, 0")
        A.e(f"s_cbranch_scc1 {pfx}_b_nf{variant}")
        srd(A, SE_, PDBG, 256)
        A.e("s_lshl_b32 s28, s52, 2")
        A.e("v_mov_b32 v14, s28")
        A.e("v_mov_b32 v13, 1")
        A.e("s_mov_b64 exec, 1")
        A.e(f"buffer_store_dword v13, v14, s[{SE_}:{SE_+3}], 0 offen sc1")
        A.e("s_mov_b64 exec, -1")
        A.label(f"{pfx}_b_nf{variant}")
        if variant == "k": A.e(f"s_branch {pfx}_b_ownx")
    A.label(f"{pfx}_b_ownx")
    A.e("s_mul_i32 s21, s22, 81920")
    srd(A, SA, PX, 81920, add="s21")
    st(A)
    A.label(f"{pfx}_qgemm")
    q = qcommon
    def sync(c): return [It("s_barrier", needv=(f"x{c}", f"w{c}"))]
    def loads(c):
        L = []
        if c+4 < 10: L += X_items(c+4)
        if c >= 2 and c+2 < 10: L += W_items(c+2)
        return L
    pre, steps = gemm_items(lambda c: L_XR + 8192*c, lambda c: L_WR + WCH*(c % 4), sync, loads)
    q.run(pre)
    late = [It(x) for x in part_addr_lines() + addr_setup_items("late")]
    grp = []; cur = []
    for it in late:
        cur.append(it)
        t = it.txt[0]
        if not (t.startswith("v_cmp") or t.startswith("s_nop") or (len(cur) > 1 and cur[-2].txt[0].startswith("v_cmp"))
                or (len(cur) > 2 and cur[-3].txt[0].startswith("v_cmp")) or (len(cur) > 3 and cur[-4].txt[0].startswith("v_cmp"))):
            grp.append(It([y for c in cur for y in c.txt], w=len(cur))); cur = []
    if cur: grp.append(It([y for c in cur for y in c.txt], w=len(cur)))
    per = (len(grp) + 17)//18
    for kk in range(20):
        q.run(merge(steps[kk], grp[kk*per:(kk+1)*per]))
    q.all_l(); q.all_v()
    srd(A, SE_, PDBG, 256)
    A.e("v_lshlrev_b32 v12, 2, v1")
    A.e(f"buffer_load_dword v248, v12, s[{SE_}:{SE_+3}], 0 offen sc1")
    st(A)
    A.e("s_barrier")
    q_epilogue(A, q)
    A.e(f"s_mov_b32 s35, {SPIN_MAX}")
    A.label(f"{pfx}_kv_p")
    A.e("s_waitcnt vmcnt(0)")
    A.e("v_cmp_ne_u32 vcc, 0, v248")
    A.e("s_sub_u32 s35, s35, 1")
    A.e("s_cmp_eq_u32 s35, 0")
    A.e(f"s_cbranch_scc1 {pfx}_kv_d")
    A.e("s_cmp_eq_u64 vcc, -1")
    A.e(f"s_cbranch_scc1 {pfx}_kv_d")
    A.e("s_sleep 1")
    A.e(f"buffer_load_dword v248, v12, s[{SE_}:{SE_+3}], 0 offen sc1")
    A.e(f"s_branch {pfx}_kv_p")
    A.label(f"{pfx}_kv_d")
    A.e("s_waitcnt lgkmcnt(0)")
    A.e("s_barrier")
    st(A)

def poll(A, pfx, name, srd_, nl, cmpmask):
    A.e("s_cmp_lg_u32 s20, 0")
    A.e(f"s_cbranch_scc1 {pfx}_{name}_np")
    A.e("v_lshlrev_b32 v12, 2, v1")
    A.e(f"s_mov_b32 s35, {SPIN_MAX}")
    if nl < 64: A.e(f"s_mov_b64 exec, {hex((1 << nl)-1)}")
    A.label(f"{pfx}_{name}_p")
    A.e(f"buffer_load_dword v13, v12, s[{srd_}:{srd_+3}], 0 offen sc1")
    A.e("s_waitcnt vmcnt(0)")
    A.e("v_cmp_ne_u32 vcc, 0, v13")
    A.e("s_sub_u32 s35, s35, 1")
    A.e("s_cmp_eq_u32 s35, 0")
    A.e(f"s_cbranch_scc1 {pfx}_{name}_d")
    if nl == 64:
        A.e("s_cmp_eq_u64 vcc, -1")
    else:
        A.e(f"s_cmp_eq_u32 vcc_lo, {hex((1 << nl)-1)}")
    A.e(f"s_cbranch_scc1 {pfx}_{name}_d")
    A.e("s_sleep 1")
    A.e(f"s_branch {pfx}_{name}_p")
    A.label(f"{pfx}_{name}_d")
    if nl < 64: A.e("s_mov_b64 exec, -1")
    A.label(f"{pfx}_{name}_np")

PREF_K, PREF_V = 6, 5
def step(A, tau, t, first=False, last=False, fillers=None, pre=None):
    cur = S[t & 1]; nxt = S[(t+1) & 1]
    Pc = P[t & 1]; Pp = P[(t+1) & 1]
    par = tau & 1
    if t < NT-1: nt, ntau = t+1, tau
    else: nt, ntau = 0, tau+1
    do_next = not (last and t == NT-1)
    M1 = f"v_mfma_f32_32x32x16_bf16 {vr(nxt,16)}, {KAr(nt)}, {QAr(ntau)}, 0" if do_next else None
    M2 = f"v_mfma_f32_32x32x8_bf16 {vr(nxt,16)}, {KBr(nt)}, {QBr(ntau)}, {vr(nxt,16)}" if do_next else None
    if t == 0: pt, op, c0 = NT-1, O[par ^ 1], None
    else:
        pt, op = t-1, O[par]
        c0 = "0" if t == 1 else None
    if t == 0 and first: PV0p = PVp = None
    else:
        PV0p = f"v_mfma_f32_32x32x16_bf16 {vr(op,16)}, {VAr(pt,0)}, {vr(Pp,4)}, {c0 or vr(op,16)}"
        PVp = f"v_mfma_f32_32x32x16_bf16 {vr(op,16)}, {VAr(pt,1)}, {vr(Pp+4,4)}, {vr(op,16)}"
    E = lambda i: f"v_exp_f32 v{cur+i}, v{cur+i}"
    C = lambda i: f"v_cvt_pk_bf16_f32 v{Pc+i}, v{cur+2*i}, v{cur+2*i+1}"
    seq = [E(0), M1, E(1), E(2), C(0), E(3), E(4), PV0p, C(1), E(5), E(6), C(2), E(7), M2, E(8), C(3), E(9), E(10), C(4), E(11),
           PVp, E(12), C(5), E(13), E(14), E(15), C(6), C(7)]
    seq = [x for x in seq if x]
    groups = list(fillers or [])
    if groups:
        epos = [i for i, x in enumerate(seq) if x.startswith("v_exp")]
        flat = []
        for g in groups:
            if any(y.startswith("s_cbranch") for y in g) or any("exec" in y for y in g): flat.append(g)
            elif any("m0" in y for y in g): flat.append(g)
            else: flat += [[y] for y in g]
        n = len(flat); out = []; k = 0
        for i, x in enumerate(seq):
            out.append(x)
            if i in epos:
                want = ((epos.index(i)+1)*n + len(epos)-1)//len(epos) if True else 0
                while k < min(want, n):
                    out += flat[k]; k += 1
        for g in flat[k:]: out += g
        seq = out
    for x in (pre or []): A.e(x)
    for x in seq:
        if x.endswith(":"): A.label(x[:-1])
        else: A.e(x)

def part_addr_lines():
    L = ["s_lshl_b32 s29, s20, 1"]
    for tau in range(1, 7):
        slot_ = (-2 - ((tau-1) >> 1)) & 3
        for w in range(4):
            j = (2*w + 1 + tau) & 7
            assert slot_ == (w - (j >> 1) - 1) & 3
        L += [f"s_add_u32 s28, s29, {1+tau}", "s_and_b32 s28, s28, 7", f"s_mul_i32 s28, s28, {3*PART}",
              f"s_add_u32 s28, s28, {slot_*PART}", f"v_add_u32 v{VPA+tau-1}, s28, v4"]
    return L
def part_write(tau):
    par = (tau-1) & 1
    return [[f"ds_write_b128 v{VPA+tau-1}, {vr(O[par]+4*g,4)} offset:{1024*g}"] for g in range(3)]

def kv_load_groups():
    def ldK(t): return [[f"s_add_u32 s27, s44, {1024*t}", f"buffer_load_dwordx4 {KAr(t)}, v4, s[{SA}:{SA+3}], s27 offen"],
                        [f"s_add_u32 s28, s45, {512*t}", f"buffer_load_dwordx2 {KBr(t)}, v5, s[{SA}:{SA+3}], s28 offen"]]
    def ldV(t): return [[f"s_add_u32 s29, s46, {2048*t}", f"buffer_load_dwordx4 {VAr(t,0)}, v8, s[{SA}:{SA+3}], s29 offen"],
                        [f"buffer_load_dwordx4 {VAr(t,1)}, v8, s[{SA}:{SA+3}], s29 offen offset:1024"]]
    return ldK, ldV

def q_reads(A):
    A.e(f"v_mov_b32 v12, {L_BAD}")
    A.e("v_mov_b32 v13, 0")
    A.e("ds_write_b32 v12, v13")
    A.e("s_lshl_b32 s35, s20, 1")
    for tau in range(8):
        A.e(f"s_add_u32 s36, s35, {2+tau}")
        A.e("s_and_b32 s36, s36, 7")
        A.e("s_mul_i32 s36, s36, 1280")
        A.e(f"v_add_u32 v{16+tau}, s36, v{VQR}")
        A.e(f"ds_read_b128 {QAr(tau)}, v{16+tau}")
        A.e(f"v_mov_b32 v{132+6*tau}, 0"); A.e(f"v_mov_b32 v{133+6*tau}, 0")
    A.e("s_mov_b32 exec_hi, 0")
    for tau in range(8):
        A.e(f"v_sub_u32 v{24+tau}, v{16+tau}, v{VQRB}")
        A.e(f"ds_read_b64 {QBr(tau)}, v{24+tau} offset:1024")
    A.e("s_mov_b32 exec_hi, -1")

def late_setup(A):
    A.e("s_mul_i32 s21, s23, 160")
    srd(A, SD, PWO, "0", add="s21")
    A.e(f"s_sub_u32 s{SD+2}, 819200, s21")
    srd(A, SF, PU, 2048*1280)

def first_scores(A):
    A.e(f"v_mfma_f32_32x32x16_bf16 {vr(S[0],16)}, {KAr(0)}, {QAr(0)}, 0")
    A.e(f"v_mfma_f32_32x32x8_bf16 {vr(S[0],16)}, {KBr(0)}, {QBr(0)}, {vr(S[0],16)}")
    A.e("s_nop 7"); A.e("s_nop 3")

def kgen_phase(A, pfx):
    q = Q(A)
    ldK, ldV = kv_load_groups()
    kv = []
    for t in range(NT): kv += [It(g, vm="kv") for g in ldK(t) + ldV(t)]
    ksetup, rows, afr, bfr, mms = kgen_parts()
    q.vq = []
    q_reads(A)
    due = {49: 0, 65: 1, 81: 2, 97: 3}
    arow = {}
    for nt, r0 in enumerate((36, 52, 68, 84)):
        for i, it in enumerate(afr[nt]): arow.setdefault(r0 + i, []).append(it)
    share = [26, 14, 14, 10]; k = 0
    for pos, R in enumerate(rows):
        q.run(R + arow.get(pos, []))
        if pos+1 in due:
            nt = due[pos+1]
            q.run(bfr[nt])
            L = kv[k:k+share[nt]]; k += share[nt]
            if nt == 2: A.e("s_waitcnt vmcnt(30)")
            q.run(L[:4])
            q.run(merge(mms[nt], L[4:]))
    assert k == len(kv)
    q.all_l()
    A.e("s_nop 7")
    st(A)
    for l in kgen_pack_lines(): A.e(l)
    A.e("s_barrier")
    for l in kgen_write_lines(): A.e(l)
    late_setup(A)
    A.e("v_mov_b32 v192, 0")
    A.e("s_and_b32 s21, s20, 1")
    A.e("s_mul_i32 s21, s21, 8320")
    A.e(f"s_add_u32 s21, s21, {L_U0}")
    A.e("v_and_b32 v12, 15, v1")
    A.e("v_lshlrev_b32 v12, 2, v12")
    A.e("v_lshrrev_b32 v13, 4, v1")
    A.e("v_and_b32 v13, 1, v13")
    A.e("v_mul_u32_u24 v13, 0x2040, v13        ; 8256")
    A.e("v_add3_u32 v12, v12, v13, s21")
    A.e("ds_write_b32 v12, v192")
    A.e("s_waitcnt vmcnt(0)")
    st(A)
    first_scores(A)
    for t in range(NT): step(A, 0, t, first=True)

def b_transition(A, pfx):
    ldK, ldV = kv_load_groups()
    PK, PVn = PREF_K, PREF_V
    for g in ldK(0) + ldV(0):
        for x in g: A.e(x)
    q_reads(A)
    for t in range(1, PK):
        for g in ldK(t):
            for x in g: A.e(x)
        if t < PVn:
            for g in ldV(t):
                for x in g: A.e(x)
    late_setup(A)
    A.e("s_waitcnt lgkmcnt(0)")
    A.e("s_barrier")
    order = ["K0", "V0"]
    for t in range(1, PK):
        order.append(f"K{t}")
        if t < PVn: order.append(f"V{t}")
    A.e(f"s_waitcnt vmcnt({2*(len(order)-1)})")
    st(A)
    first_scores(A)
    for t in range(NT):
        fl = []; need = []
        if t+1 < NT: need.append(f"K{t+1}")
        if t >= 1: need.append(f"V{t-1}")
        idx = max(order.index(x) for x in need)
        nout = 2*(len(order) - 1 - idx)
        if t == NT-1: nout = 0
        new = []
        if t+PK < NT: fl += ldK(t+PK); new.append(f"K{t+PK}")
        if t+PVn < NT: fl += ldV(t+PVn); new.append(f"V{t+PVn}")
        step(A, 0, t, first=True, fillers=fl, pre=[f"s_waitcnt vmcnt({nout})"])
        order += new

def attention(A, pfx):
    srd(A, SA, PWS, WS_VA + 64*2048)
    A.e("s_lshl_b32 s44, s20, 14          ; KA: T*1024")
    A.e(f"s_lshl_b32 s45, s20, 13         ; KB: T*512")
    A.e(f"s_add_u32 s45, s45, {WS_KB}")
    A.e("s_lshl_b32 s46, s20, 15          ; VA: T*2048")
    A.e(f"s_add_u32 s46, s46, {WS_VA}")
    A.e(f"s_cmp_ge_u32 s3, {NCONV}")
    A.e(f"s_cbranch_scc1 {pfx}_btr")
    wl = []
    for c in range(8): wl += wdma_ring(c, BWchunk(c))
    def bg(kind, n):
        if kind == "b": return wl[n]
        if n < 8: return [f"s_add_u32 s63, s61, {64*1280*n}", f"buffer_load_dwordx2 {vr(176+2*n,2)}, v{VUD}, s[{SF}:{SF+3}], s63 offen"]
        if 12 <= n < 20:
            k = n - 12
            return (["s_waitcnt vmcnt(0)"] if k == 0 else []) + \
                   [f"ds_write_b32 v{VUP}, v{176+2*k} offset:{256*k}", f"ds_write_b32 v{VUP}, v{177+2*k} offset:{8320+256*k}"]
        return None
    def taus(kind):
        st(A)
        for tau in range(1, 7):
            for t in range(NT):
                fl = []
                if t in (3, 4, 6): fl += [part_write(tau)[(3, 4, 6).index(t)]]
                if t in (5, 8, 11, 14):
                    g = bg(kind, (tau-1)*4 + (t-5)//3)
                    if g: fl += [g]
                step(A, tau, t, fillers=fl)
            st(A)
    kgen_phase(A, pfx)
    A.e(f"s_mul_i32 s61, s20, {512*1280}")
    taus("a")
    A.e(f"s_branch {pfx}_tau7")
    A.label(f"{pfx}_btr")
    b_transition(A, pfx)
    taus("b")
    A.label(f"{pfx}_tau7")
    for t in range(NT): step(A, 7, t, last=True)
    st(A)
    A.e("s_nop 1")
    par = 1; Pp = P[(NT-1) & 1]
    A.e(f"v_mfma_f32_32x32x16_bf16 {vr(O[par],16)}, {VAr(NT-1,0)}, {vr(Pp,4)}, {vr(O[par],16)}")
    A.e(f"v_mfma_f32_32x32x16_bf16 {vr(O[par],16)}, {VAr(NT-1,1)}, {vr(Pp+4,4)}, {vr(O[par],16)}")
    A.e("s_waitcnt vmcnt(0) lgkmcnt(0)")
    A.e("s_barrier")
    st(A)

def reduce_publish(A, pfx):
    quads = [[64, 68, 72, 76, 112, 116, 120, 124, 176], [180, 184, 188, 192, 196, 44, 48, 52, 56]]
    def rdpart(jj):
        for sl in range(3):
            for g in range(3):
                A.e(f"ds_read_b128 {vr(quads[jj][3*sl+g], 4)}, v{VRED} offset:{(jj*3+sl)*PART + 1024*g}")
    rdpart(0)
    srd(A, SC, PWS, 2048*1280, add=WS_O)
    A.e("s_mov_b64 s[56:57], 0")
    for jj in range(2):
        Of = O[jj]
        A.e("s_waitcnt lgkmcnt(0)")
        if jj == 0: rdpart(1)
        for sl in range(3):
            for r in range(12): A.e(f"v_add_f32 v{Of+r}, v{Of+r}, v{quads[jj][3*sl + (r >> 2)] + (r & 3)}")
        A.e(f"v_mov_b32 v28, v{Of+8}")
        A.e(f"v_mov_b32 v29, v{Of+8}")
        A.e(f"v_max3_f32 v30, |v{Of}|, |v{Of+1}|, |v{Of+2}|")
        A.e(f"v_max3_f32 v30, v30, |v{Of+3}|, |v{Of+4}|")
        A.e("v_permlane32_swap_b32 v28, v29")
        for r in range(5, 11, 2): A.e(f"v_max3_f32 v30, v30, |v{Of+r}|, |v{Of+r+1}|")
        A.e(f"v_max_f32 v30, v30, |v{Of+11}|")
        A.e("v_cmp_nle_f32 vcc, 0x2b800000, v29      ; !(2^-40 <= l)")
        A.e("v_mov_b32 v31, 0x7f800000")
        A.e("v_rcp_f32 v28, v29")
        A.e("s_or_b64 s[56:57], s[56:57], vcc")
        A.e("v_cmp_nge_f32 vcc, 0x53800000, v29      ; !(2^40 >= l)")
        A.e("v_cmp_ngt_f32 s[58:59], v31, v30")
        A.e("v_mov_b32 v29, v28")
        A.e("s_or_b64 s[56:57], s[56:57], vcc")
        A.e("s_or_b64 s[56:57], s[56:57], s[58:59]")
        for r in range(12): A.e(f"v_mul_f32 v{16+r}, v{Of+r}, v29")
        for g in range(3):
            A.e(f"v_cvt_pk_bf16_f32 v{32+6*jj+2*g}, v{16+4*g}, v{17+4*g}")
            A.e(f"v_cvt_pk_bf16_f32 v{33+6*jj+2*g}, v{18+4*g}, v{19+4*g}")
    A.e(f"v_mov_b32 v14, {L_BAD}")
    A.e("s_cmp_eq_u64 s[56:57], 0")
    A.e(f"s_cbranch_scc1 {pfx}_safe")
    A.e("v_mov_b32 v15, 1")
    A.e("ds_write_b32 v14, v15")
    A.e("s_waitcnt lgkmcnt(0)")
    A.label(f"{pfx}_safe")
    A.e("s_barrier")
    A.e("ds_read_b32 v15, v14")
    for jj in range(2):
        A.e(f"ds_write_b64 v{VOS}, {vr(32+6*jj,2)} offset:{5120*jj}")
        A.e(f"ds_write_b64 v{VOS}, {vr(34+6*jj,2)} offset:{5120*jj+16}")
        A.e(f"ds_write_b64 v{VOS2a if jj == 0 else VOS2b}, {vr(36+6*jj,2)}")
    for i in range(3):
        A.e("s_mul_i32 s24, s23, 10")
        A.e("s_add_u32 s24, s24, s20")
        if i: A.e(f"s_add_u32 s24, s24, {4*i}")
        A.e("s_lshr_b32 s25, s24, 2")
        A.e("s_lshl_b32 s25, s25, 10")
        A.e("s_and_b32 s24, s24, 3")
        A.e("s_lshl_b32 s24, s24, 8")
        A.e("s_add_u32 s24, s24, s25")
        A.e("s_mul_i32 s25, s22, 81920")
        A.e(f"s_add_u32 s{28+i}, s24, s25")
    A.e("s_waitcnt lgkmcnt(0)")
    A.e("v_readfirstlane_b32 s56, v15")
    A.e("s_nop 0")
    A.e("s_cmp_lg_u32 s56, 0")
    A.e(f"s_cbranch_scc1 {pfx}_slow")
    A.label(f"{pfx}_staged")
    A.e("s_barrier")
    for i in range(3):
        A.e(f"ds_read_b128 {vr(44+4*i,4)}, v{VTID16} offset:{64*i}")
    for i in range(2):
        A.e(f"s_waitcnt lgkmcnt({2-i})")
        A.e(f"buffer_store_dwordx4 {vr(44+4*i,4)}, v{VOG}, s[{SC}:{SC+3}], s{28+i} offen sc1")
    A.e("s_cmp_ge_u32 s20, 2")
    A.e(f"s_cbranch_scc1 {pfx}_no3rd")
    A.e("s_waitcnt lgkmcnt(0)")
    A.e(f"buffer_store_dwordx4 {vr(52,4)}, v{VOG}, s[{SC}:{SC+3}], s30 offen sc1")
    A.label(f"{pfx}_no3rd")
    A.e("s_waitcnt lgkmcnt(0)")
    A.e("s_lshl_b32 s21, s22, 7")
    A.e(f"s_add_u32 s21, s21, {WS_FLAG}")
    srd(A, SE_, PWS, 128, add="s21")
    A.e(f"s_cmp_ge_u32 s3, {NCONV}")
    A.e(f"s_cbranch_scc1 {pfx}_nouprep")
    u_prep(A)
    A.label(f"{pfx}_nouprep")
    A.e("s_waitcnt vmcnt(0)")
    A.e("s_barrier")
    A.e("s_cmp_lg_u32 s20, 0")
    A.e(f"s_cbranch_scc1 {pfx}_noflag")
    A.e("s_lshl_b32 s21, s23, 2")
    A.e("v_mov_b32 v12, s21")
    A.e("v_mov_b32 v13, 1")
    A.e("s_mov_b64 exec, 1")
    A.e(f"buffer_store_dword v13, v12, s[{SE_}:{SE_+3}], 0 offen sc1")
    A.e("s_mov_b64 exec, -1")
    A.label(f"{pfx}_noflag")
    st(A)

def u_prep(A):
    for ps in range(5):
        b = 64 + 10*ps
        A.e(f"ds_read_b128 {vr(b,4)}, v{VUR} offset:{2048*ps}")
        A.e(f"ds_read_b128 {vr(b+4,4)}, v{VUR} offset:{2048*ps+16}")
        A.e(f"ds_read_b32 v{b+8}, v{VUR} offset:{2048*ps+32}")
    A.e("s_and_b32 s21, s20, 1")
    A.e("s_cmp_eq_u32 s21, 0")
    A.e("s_mov_b32 s25, 0x07060302")
    A.e("s_cselect_b32 s26, 0x05040100, s25")
    A.e(f"v_add_u32 v12, {L_U0}, v{VUW}")
    A.e("s_waitcnt lgkmcnt(0)")
    A.e("s_barrier")
    for ps in range(5):
        b = 64 + 10*ps
        if ps == 4: A.e("s_mov_b64 exec, 15")
        o = 116 + 8*(ps & 1)
        for i in range(4): A.e(f"v_perm_b32 v{o+i}, v{b+2*i+1}, v{b+2*i}, s26")
        for i in range(4): A.e(f"v_perm_b32 v{o+4+i}, v{b+2*i+2}, v{b+2*i+1}, s26")
        A.e(f"ds_write_b128 v12, {vr(o,4)} offset:{1024*ps}")
        A.e(f"ds_write_b128 v{VUW}, {vr(o+4,4)} offset:{L_U1+1024*ps}")
        if ps == 4: A.e("s_mov_b64 exec, -1")

def conv_part(A, pfx):
    ACC = 16; AB = 64
    def Br(D, i): return ar(32*D + 4*i, 4)
    def Ar(c, i): return vr(AB + 32*(c & 1) + 4*i, 4)
    def Ahalf(c, i, h): return vr(AB + 32*(c & 1) + 4*i + 2*h, 2)
    srd(A, SH, POUT, 2048*2560)
    A.e("s_waitcnt lgkmcnt(0)")
    st(A)
    q = Q(A)
    def readsA(c):
        L = [It(f"v_add_u32 v11, {512*c}, v{VCU}")]
        for i in range(8):
            L.append(It(f"ds_read2_b32 {Ahalf(c,i,0)}, v11 offset0:{16*i} offset1:{16*i+1}", lds=f"a{c}_{i}"))
            L.append(It(f"ds_read2_b32 {Ahalf(c,i,1)}, v11 offset0:{16*i+2} offset1:{16*i+3}", lds=f"a{c}_{i}"))
        return L
    def readsB(D):
        return [It(f"ds_read_b128 {Br(D,i)}, v{VCK} offset:{512*(7-D)+64*i}", lds=f"b{D}_{i}") for i in range(8)]
    def mm(c, D, i):
        acc = ACC + 4*(c + D)
        first = (c == 0 and i == 0)
        return It(f"v_mfma_f32_16x16x32_bf16 {vr(acc,4)}, {Ar(c,i)}, {Br(D,i)}, {'0' if first else vr(acc,4)}", needl=(f"a{c}_{i}", f"b{D}_{i}"), w=2)
    def flush1(B):
        acc = ACC + 4*B; bo = (B & 1)*YSB
        return [It(f"v_cvt_pk_bf16_f32 v48, v{acc}, v{acc+1}"), It(f"v_cvt_pk_bf16_f32 v49, v{acc+2}, v{acc+3}"),
                It(f"ds_write_b64 v{VYS}, v[48:49] offset:{bo}", lds=f"yw{B}")]
    def flush2(B):
        bo = (B & 1)*YSB; r = 50 + 2*(B & 1)
        return [It("s_barrier", needl=(f"yw{B}",)),
                It(f"ds_read_b64_tr_b16 {vr(r,2)}, v{VYT} offset:{bo}", lds=f"yr{B}")]
    def flush3(B):
        r = 50 + 2*(B & 1)
        return [It([f"s_mov_b32 s28, {B*256*2560}", f"buffer_store_dwordx2 {vr(r,2)}, v{VYO}, s[{SH}:{SH+3}], s28 offen"], vm="Y", needl=(f"yr{B}",))]
    q.run(readsA(0) + readsB(0))
    for c in range(8):
        if c == 0:
            for D in range(8):
                M = [mm(0, D, i) for i in range(8)]
                R = readsB(D+1) if D < 7 else readsA(1)
                q.run(merge(M, R))
        else:
            M = [mm(c, D, i) for i in range(8) for D in range(8-c)]
            R = readsA(c+1) if c < 7 else []
            n = len(M); h1 = min(5, n); h2 = max(h1, n//2);
            q.run(M[:h1])
            if c == 7: A.e("s_nop 2")
            q.run(flush1(c-1))
            q.run(merge(M[h1:h2], R[:len(R)//2]))
            q.run(flush2(c-1))
            q.run(merge(M[h2:], R[len(R)//2:]))
            q.run(flush3(c-1))
        import os
        if Cfg.STAMP and os.environ.get("DETC") == "1": st(A); q.lq = []
    A.e("s_nop 7")
    q.run(flush1(7) + flush2(7) + flush3(7))
    st(A)
    finish(A)

BW0 = 73728
def BWchunk(c): return (BW0 + c*WCH) if c < 8 else (16704 + (c-8)*WCH)
BXBUF = [0, 8192, 37184, 37184+8192, 37184+16384, 37184+24576]

def finish(A):
    if Cfg.STAMP:
        A.e("s_waitcnt vmcnt(0)")
        st(A)
        A.e("s_mov_b32 s2, s3")
        stamp_out(A, PWS, 4, STAMP_BASE, VSTAMP, VSTMP)
    A.e("s_endpgm")

def outproj_b(A, pfx):
    A.e("s_mov_b32 s60, s22")
    A.e("s_sub_u32 s61, s22, 20")
    A.e("s_add_u32 s62, s61, 12")
    A.e("s_cmp_lt_u32 s62, 20")
    A.e("s_cselect_b32 s63, 3, 2")
    A.e("s_cselect_b32 s62, s62, s61")
    q = Q(A)
    for c in (8, 9): q.run([It(g, vm=f"W{c}") for g in wdma_ring(c, BWchunk(c))])
    srd(A, SE_, PWS, 32*128, add=WS_FLAG)
    def wait_flags(name, regs):
        nl = 8*len(regs)
        A.e("s_cmp_lg_u32 s20, 0")
        A.e(f"s_cbranch_scc1 {pfx}_{name}_np")
        A.e(f"v_mov_b32 v14, s{regs[0]}")
        if len(regs) > 1:
            A.e("v_lshrrev_b32 v13, 3, v1")
            A.e("v_cmp_eq_u32 vcc, 1, v13")
            A.e(f"v_mov_b32 v15, s{regs[1]}")
            A.e("s_nop 0")
            A.e("v_cndmask_b32 v14, v14, v15, vcc")
        A.e("v_and_b32 v12, 7, v1")
        A.e("v_lshlrev_b32 v12, 2, v12")
        A.e("v_lshl_add_u32 v12, v14, 7, v12")
        A.e(f"s_mov_b32 s35, {SPIN_MAX}")
        A.e(f"s_mov_b64 exec, {hex((1 << nl)-1)}")
        A.label(f"{pfx}_{name}_p")
        A.e(f"buffer_load_dword v13, v12, s[{SE_}:{SE_+3}], 0 offen sc1")
        A.e("s_waitcnt vmcnt(0)")
        A.e("v_cmp_ne_u32 vcc, 0, v13")
        A.e("s_sub_u32 s35, s35, 1")
        A.e("s_cmp_eq_u32 s35, 0")
        A.e(f"s_cbranch_scc1 {pfx}_{name}_d")
        A.e(f"s_cmp_eq_u32 vcc_lo, {hex((1 << nl)-1)}")
        A.e(f"s_cbranch_scc1 {pfx}_{name}_d")
        A.e(f"s_branch {pfx}_{name}_p")
        A.label(f"{pfx}_{name}_d")
        A.e("s_mov_b64 exec, -1")
        A.label(f"{pfx}_{name}_np")
        A.e("s_waitcnt vmcnt(0)")
        A.e("s_barrier")
    wait_flags("o", [60])
    q.vq = []
    st(A)
    srd(A, SA, PWS, 2048*1280, add=WS_O)
    srd(A, SC, POUT, 2048*2560)
    for t in range(3):
        A.e(f"s_lshl_b32 s21, s{60+t}, 2")
        A.e("s_add_u32 s21, s21, s20")
        A.e(f"s_mul_i32 s{56+t}, s21, 20480")
    ACC = [16, 36]; WF = 56
    def Xr(sl, kk): return ar(80*sl + 4*kk, 4)
    def xld(sl, t, kk):
        return It([f"s_add_u32 s36, s{56+t}, {1024*kk}", f"buffer_load_dwordx4 {Xr(sl, kk)}, v4, s[{SA}:{SA+3}], s36 offen"], vm=f"X{sl}_{kk}")
    def rdW(kk, mt):
        c, ks = kk >> 1, kk & 1; out = []
        for h in range(2):
            off = BWchunk(c) + (32*ks + 8*h)*160 + 32*mt
            a = VWT
            if off >= 131072: a, off = VWTh2, off - 131072
            elif off >= 65536: a, off = VWTh, off - 65536
            out.append(It(f"ds_read_b64_tr_b16 {vr(WF+mt*4+h*2,2)}, v{a} offset:{off}", lds=f"w{kk}_{mt}"))
        return out
    def pack(slot, base):
        for mt in range(5):
            acc = ACC[slot] + 4*mt
            r = base + 2*mt
            A.e(f"v_cvt_pk_bf16_f32 v{r}, v{acc}, v{acc+1}")
            A.e(f"v_cvt_pk_bf16_f32 v{r+1}, v{acc+2}, v{acc+3}")
    def store(base, t):
        A.e(f"s_mul_i32 s21, s{60+t}, 163840")
        A.e("s_add_u32 s21, s21, s55")
        for pr in range(2):
            r = base + 4*pr
            A.e(f"v_permlane16_swap_b32 v{r}, v{r+2}")
            A.e(f"v_permlane16_swap_b32 v{r+1}, v{r+3}")
        q.emit(It(f"buffer_store_dwordx4 {vr(base,4)}, v{VOUT2}, s[{SC}:{SC+3}], s21 offen", vm="S"))
        q.emit(It(f"buffer_store_dwordx4 {vr(base+4,4)}, v{VOUT2}, s[{SC}:{SC+3}], s21 offen offset:64", vm="S"))
        q.emit(It(f"buffer_store_dwordx2 {vr(base+8,2)}, v{VOUT}, s[{SC}:{SC+3}], s21 offen offset:128", vm="S"))
    A.e("s_mul_i32 s55, s23, 160")
    A.e("s_add_u32 s55, s55, 1280")
    def run_pass(tiles):
        n = len(tiles)
        loads = [xld(sl, t, kk) for kk in range(20) for sl, t in enumerate(tiles)]
        ahead = 8*n
        q.run(loads[:ahead]); loads = loads[ahead:]
        for mt in range(5): q.run(rdW(0, mt))
        for kk in range(20):
            for mt in range(5):
                for sl in range(n):
                    nl = gemm_need(kk, mt, []) if sl == 0 else ()
                    nv = tuple(f"X{z}_{kk}" for z in range(n)) if (mt == 0 and sl == 0) else ()
                    q.emit(It(f"v_mfma_f32_16x16x32_bf16 {vr(ACC[sl]+4*mt,4)}, {vr(WF+4*mt,4)}, {Xr(sl, kk)}, {vr(ACC[sl]+4*mt,4) if kk else '0'}",
                              needl=nl, needv=nv))
                if loads and mt < n: q.emit(loads.pop(0))
                if kk+1 < 20: q.run(rdW(kk+1, mt))
        assert not loads
        q.all_l()
        A.e("s_nop 7")
    run_pass([0])
    pack(0, 92)
    store(92, 0)
    st(A)
    wait_flags("o2", [61, 62])
    q.vq = []
    st(A)
    A.e("s_cmp_eq_u32 s63, 2")
    A.e(f"s_cbranch_scc1 {pfx}_b2")
    q = Q(A)
    run_pass([1, 2])
    st(A)
    pack(0, 92); pack(1, 104)
    store(92, 1); store(104, 2)
    finish(A)
    A.label(f"{pfx}_b2")
    q = Q(A)
    run_pass([1])
    st(A)
    pack(0, 92)
    store(92, 1)
    finish(A)

def slow_softmax(A, pfx):
    QD, MX, PS = 10240, 22528, 24576
    Sx, Px, Ox, QFA, QFB = 16, 48, 80, 64, 68
    A.label(f"{pfx}_slow")
    A.e("s_barrier")
    A.e("s_cmp_lg_u32 s20, 0")
    A.e(f"s_cbranch_scc1 {pfx}_sl_nodump")
    A.e("v_lshlrev_b32 v13, 3, v1")
    for tau in range(8):
        j = (2 + tau) & 7
        A.e(f"ds_write_b128 v4, {QAr(tau)} offset:{QD + 1536*j}")
        A.e(f"ds_write_b64 v13, {QBr(tau)} offset:{QD + 1536*j + 1024}")
    A.e("s_waitcnt lgkmcnt(0)")
    A.label(f"{pfx}_sl_nodump")
    A.e("s_barrier")
    A.e("s_mov_b32 s56, 0                 ; tile j")
    A.e("v_and_b32 v12, 31, v1")
    A.e("v_lshlrev_b32 v12, 2, v12        ; query*4")
    A.e("s_lshl_b32 s21, s20, 7")
    A.e(f"s_add_u32 s21, s21, {MX}")
    A.e("v_add_u32 v72, s21, v12")
    A.e(f"v_add_u32 v73, {MX}, v12")
    A.e(f"s_mul_i32 s21, s20, {PART}")
    A.e(f"s_add_u32 s21, s21, {PS}")
    A.e("v_add_u32 v74, s21, v4")
    A.e(f"v_add_u32 v75, {PS}, v4")
    A.label(f"{pfx}_sl_loop")
    A.e("s_mul_i32 s21, s56, 1536")
    A.e(f"s_add_u32 s21, s21, {QD}")
    A.e("v_add_u32 v14, s21, v4")
    A.e("v_lshlrev_b32 v15, 3, v1")
    A.e("v_add_u32 v15, s21, v15")
    A.e(f"ds_read_b128 {vr(QFA,4)}, v14")
    A.e(f"ds_read_b64 {vr(QFB,2)}, v15 offset:1024")
    A.e("v_mov_b32 v70, 0xff800000")
    A.e("s_waitcnt lgkmcnt(0)")
    def scores(t):
        A.e(f"v_mfma_f32_32x32x16_bf16 {vr(Sx,16)}, {KAr(t)}, {vr(QFA,4)}, 0")
        A.e(f"v_mfma_f32_32x32x8_bf16 {vr(Sx,16)}, {KBr(t)}, {vr(QFB,2)}, {vr(Sx,16)}")
        A.e("s_nop 11")
    for t in range(NT):
        scores(t)
        for i in range(8): A.e(f"v_max3_f32 v70, v70, v{Sx+2*i}, v{Sx+2*i+1}")
        A.e("s_nop 6")
    A.e("v_mov_b32 v71, v70")
    A.e("v_mov_b32 v76, v70")
    A.e("s_nop 1")
    A.e("v_permlane32_swap_b32 v71, v76")
    A.e("s_nop 1")
    A.e("v_max3_f32 v70, v70, v71, v76")
    A.e("ds_write_b32 v72, v70")
    A.e("s_waitcnt lgkmcnt(0)")
    A.e("s_barrier")
    for w in range(4): A.e(f"ds_read_b32 v{76+w}, v73 offset:{128*w}")
    A.e("s_waitcnt lgkmcnt(0)")
    A.e("v_max3_f32 v71, v76, v77, v78")
    A.e("v_max_f32 v71, v71, v79")
    for t in range(NT):
        scores(t)
        for i in range(16): A.e(f"v_sub_f32 v{Sx+i}, v{Sx+i}, v71")
        for i in range(16): A.e(f"v_exp_f32 v{Sx+i}, v{Sx+i}")
        A.e("s_nop 0")
        for i in range(8): A.e(f"v_cvt_pk_bf16_f32 v{Px+i}, v{Sx+2*i}, v{Sx+2*i+1}")
        A.e("s_nop 1")
        A.e(f"v_mfma_f32_32x32x16_bf16 {vr(Ox,16)}, {VAr(t,0)}, {vr(Px,4)}, {'0' if t == 0 else vr(Ox,16)}")
        A.e(f"v_mfma_f32_32x32x16_bf16 {vr(Ox,16)}, {VAr(t,1)}, {vr(Px+4,4)}, {vr(Ox,16)}")
        A.e("s_nop 6")
    A.e("s_nop 11")
    for g in range(3): A.e(f"ds_write_b128 v74, {vr(Ox+4*g,4)} offset:{1024*g}")
    A.e("s_waitcnt lgkmcnt(0)")
    A.e("s_barrier")
    A.e("s_lshr_b32 s21, s56, 1")
    A.e("s_cmp_lg_u32 s21, s20")
    A.e(f"s_cbranch_scc1 {pfx}_sl_next")
    for w in range(4):
        for g in range(3): A.e(f"ds_read_b128 {vr(16+12*w+4*g,4)}, v75 offset:{PART*w + 1024*g}")
    A.e("s_waitcnt lgkmcnt(0)")
    for w in range(1, 4):
        for r in range(12): A.e(f"v_add_f32 v{16+r}, v{16+r}, v{16+12*w+r}")
    A.e("v_mov_b32 v76, v24")
    A.e("v_mov_b32 v77, v24")
    A.e("s_nop 1")
    A.e("v_permlane32_swap_b32 v76, v77")
    A.e("s_nop 1")
    A.e("v_rcp_f32 v77, v77")
    A.e("s_nop 0")
    for r in range(12): A.e(f"v_mul_f32 v{16+r}, v{16+r}, v77")
    for g in range(3):
        A.e(f"v_cvt_pk_bf16_f32 v{32+2*g}, v{16+4*g}, v{17+4*g}")
        A.e(f"v_cvt_pk_bf16_f32 v{33+2*g}, v{18+4*g}, v{19+4*g}")
    A.e("s_and_b32 s21, s56, 1")
    A.e("s_mul_i32 s21, s21, 5120")
    A.e(f"v_add_u32 v14, s21, v{VOS}")
    A.e("ds_write_b64 v14, v[32:33]")
    A.e("ds_write_b64 v14, v[34:35] offset:16")
    A.e("s_mov_b32 exec_hi, 0")
    A.e("ds_write_b64 v14, v[36:37] offset:32")
    A.e("s_mov_b32 exec_hi, -1")
    A.e("s_waitcnt lgkmcnt(0)")
    A.label(f"{pfx}_sl_next")
    A.e("s_barrier")
    A.e("s_add_u32 s56, s56, 1")
    A.e("s_cmp_lt_u32 s56, 8")
    A.e(f"s_cbranch_scc1 {pfx}_sl_loop")
    A.e(f"s_branch {pfx}_staged")

def mega_role(A, pfx):
    prologue(A, pfx)
    front(A, pfx)
    attention(A, pfx)
    reduce_publish(A, pfx)
    A.e(f"s_cmp_ge_u32 s3, {NCONV}")
    A.e(f"s_cbranch_scc1 {pfx}_bback")
    conv_part(A, pfx)
    A.label(f"{pfx}_bback")
    outproj_b(A, pfx)
    slow_softmax(A, pfx)
    A.label(f"{pfx}_end")
    A.e("s_endpgm")
```

```python
from common import *
from sched import *
import math
LOG2E = math.log2(math.e)
GBUF = 18432; GXB = 8192
L_KR = 73728
L_KG = 0; KGW = 25872
RA = 3
L_XR = 0; L_WKV = 81920; L_WR = 107520
L_QL = 104448
L_PART = 0; PART = 3072
L_U0 = 92160; CS = 4160
L_WA = 108800; WCH = 10240
L_DUMMY = 160000
L_U1 = 64; L_WB = 16704
L_YS = 16896; YSC = 576; YSB = 4*YSC
L_BAD = 161024
LDS_MEGA = 161088
def Wchunk(c): return (L_WA + c*WCH) if c < 5 else (L_WB + (c-5)*WCH)
XBUF = [L_KR, L_KR+8192, L_U0, L_U0+8192, L_U1, L_U1+8192]
WS_FLAG = 0x1100000
SPIN_MAX = 1 << 18
NCONV = 160
PU, PARE, PAIM, PBRE, PBIM, PCRE, PCIM, PLDT = 64, 66, 68, 70, 72, 74, 76, 78
PDSK, PX, PWQ, PWK, PWV, PWO, POUT, PDBG = 80, 82, 84, 86, 88, 90, 92, 94
PWS = 4
SA, SB, SC, SD, SE_, SF, SG, SH = 8, 12, 16, 40, 44, 48, 52, 56
VXD0, VXD1 = 200, 201
VWD = 202
VOUT = 205
VYO = 206
VOS, VOS2a, VOS2b = 207, 208, 209
VOG = 210
VTID16 = 213
VCU, VCK = 214, 215
VYS = 216
VYT, VUT = 217, 218
VUR = 219
VUW = 220
VRED = 221
VXF0, VXF1 = 222, 223
VWT = 224
VUD = 225
VQW = 226
VQR, VQRB = 231, 232
VXF0h, VXF1h, VWTh, VWTh2 = 233, 234, 235, 236
VOUT2 = 245
VUP = 237
VPA = 238
VSTAMP, VSTMP = 252, 253
S = [16, 32]; P = [48, 56]; O = [80, 96]; VW = 7; NT = 16
def QAr(tau): return vr(128+6*tau, 4)
def QBr(tau): return vr(132+6*tau, 2)
def KAr(t): return ar(4*t, 4)
def KBr(t): return ar(64+2*t, 2)
def VAr(t, u): return ar(96+8*t+4*u, 4)

def st(A): stamp(A, VSTAMP)

PREFETCH = True
CODE_BYTES = 80*1024
def prefetch(A, pfx):
    A.e("s_getpc_b64 s[24:25]")
    A.label(f"{pfx}_pc")
    A.e("s_lshr_b32 s26, s3, 3")
    A.e("s_lshl_b32 s26, s26, 2")
    A.e("s_add_u32 s26, s26, s20          ; slice 0..127")
    A.e("s_mul_i32 s26, s26, 768")
    A.e("v_min_u32 v12, 5, v1")
    A.e("v_lshlrev_b32 v12, 7, v12")
    A.e("v_add_u32 v12, s26, v12")
    A.e(f"v_min_u32 v12, mg_end-{pfx}_pc-4, v12")
    A.e("global_load_dword v249, v12, s[24:25]")
    A.e("s_lshl_b32 s26, s3, 2")
    A.e("s_add_u32 s26, s26, s20")
    A.e("s_lshl_b32 s26, s26, 6")
    A.e("v_add_u32 v12, s26, v1           ; slot")
    A.e("v_lshlrev_b32 v13, 7, v12")
    srd(A, SB, PX, 2048*1280)
    A.e(f"buffer_load_dword v250, v13, s[{SB}:{SB+3}], 0 offen")
    A.e("v_subrev_u32 v13, 0x280000, v13")
    srd(A, SB, PWQ, 819200)
    A.e(f"buffer_load_dword v251, v13, s[{SB}:{SB+3}], 0 offen")
def prologue(A, pfx):
    A.e("s_load_dwordx16 s[64:79], s[0:1], 0")
    A.e("s_load_dwordx16 s[80:95], s[0:1], 64")
    A.e(f"s_load_dwordx2 s[4:5], s[0:1], 128")
    if PREFETCH:
        A.e("s_getpc_b64 s[24:25]")
        A.label(f"{pfx}_pc0")
        A.e("v_lshlrev_b32 v12, 7, v0")
        A.e("global_load_dword v247, v12, s[24:25]")
    stamp_init(A, VSTAMP); st(A)
    A.e("v_and_b32 v1, 63, v0")
    A.e("v_lshrrev_b32 v12, 6, v0")
    A.e("v_lshlrev_b32 v4, 4, v1          ; lane*16")
    A.e("v_readfirstlane_b32 s20, v12")
    A.e("v_and_b32 v2, 15, v1")
    A.e("v_lshrrev_b32 v3, 4, v1")
    A.e(f"s_sub_u32 s52, s3, {NCONV}        ; j")
    A.e("s_and_b32 s24, s3, 7             ; r")
    A.e("s_lshr_b32 s25, s3, 3            ; q (conv)")
    A.e("s_lshr_b32 s26, s52, 3           ; q (others)")
    A.e(f"s_cmp_ge_u32 s3, {NCONV}")
    A.e("s_cselect_b32 s25, s26, s25      ; q")
    A.e("s_cselect_b32 s26, 8, 16")
    A.e("s_cselect_b32 s27, 20, 0")
    A.e("s_cselect_b32 s28, 28, 16")
    A.e("s_lshr_b32 s22, s25, 3")
    A.e("s_lshl_b32 s22, s22, 3")
    A.e("s_add_u32 s22, s22, s24")
    A.e("s_add_u32 s22, s22, s27")
    A.e("s_and_b32 s23, s25, 7")
    A.e("s_lshr_b32 s29, s24, 1")
    A.e("s_add_u32 s29, s29, s28")
    A.e("s_and_b32 s30, s24, 1")
    A.e("s_lshl_b32 s30, s30, 2")
    A.e("s_add_u32 s30, s30, s25")
    A.e("s_sub_u32 s30, s30, s26")
    A.e("s_cmp_ge_u32 s25, s26")
    A.e("s_cselect_b32 s22, s29, s22")
    A.e("s_cselect_b32 s23, s30, s23")
    A.e("s_lshr_b32 s53, s52, 5")
    A.e("s_min_u32 s53, s53, 2")
    A.e("s_cselect_b32 s53, s53, s53")
    A.e(f"s_cmp_lt_u32 s3, {NCONV}")
    A.e("s_cselect_b32 s53, 2, s53")
    A.e("s_and_b32 s54, s52, 31")
    A.e("s_cmp_lt_u32 s53, 2")
    A.e("s_cselect_b32 s54, s54, s22")
    A.e("s_lshl_b32 s32, s20, 10          ; wave*1024")
    A.e("s_lshl_b32 s31, s20, 11          ; wave*2048")
    A.e("s_and_b32 s33, s3, 7")
    A.e("s_mul_i32 s33, s33, 20")
    A.e("s_lshr_b32 s34, s3, 3")
    A.e("s_add_u32 s33, s33, s34")
    A.e("s_min_u32 s33, s33, 159")
    A.e("s_lshl_b32 s34, s33, 2")
    A.e("s_add_u32 s34, s34, s20          ; channel d")
    A.e("s_movk_i32 s27, 1280")
    A.e("v_lshrrev_b32 v12, 3, v1")
    A.e("v_and_b32 v13, 7, v1")
    A.e("v_xor_b32 v13, v13, v12")
    A.e("v_lshlrev_b32 v13, 4, v13")
    A.e("s_lshl_b32 s21, s20, 4")
    A.e("v_add_u32 v12, s21, v12")
    A.e(f"v_mad_u32_u24 v{VXD0}, v12, s27, v13")
    A.e(f"v_add_u32 v{VXD1}, 10240, v{VXD0}")
    A.e("s_mov_b32 s26, 6554")
    for n in range(3):
        A.e(f"s_add_u32 s21, s20, {4*n}")
        A.e("s_lshl_b32 s21, s21, 6")
        A.e("v_add_u32 v12, s21, v1          ; p")
        A.e("v_mul_u32_u24 v13, s26, v12")
        A.e("v_lshrrev_b32 v13, 16, v13      ; rho")
        A.e("v_mul_u32_u24 v14, 10, v13")
        A.e("v_sub_u32 v14, v12, v14         ; cc")
        A.e("v_lshlrev_b32 v14, 4, v14")
        A.e("v_and_b32 v15, 0x33, v13")
        A.e("v_bfe_u32 v5, v13, 2, 1")
        A.e("v_lshl_or_b32 v15, v5, 3, v15")
        A.e("v_bfe_u32 v5, v13, 3, 1")
        A.e("v_lshl_or_b32 v15, v5, 2, v15")
        A.e(f"v_mad_u32_u24 v{VWD+n}, v15, s27, v14")
        if n == 2:
            A.e(f"v_mov_b32 v12, {OOB}")
            A.e("v_cmp_gt_u32 vcc, 64, v13")
            A.e("s_nop 1")
            A.e(f"v_cndmask_b32 v{VWD+2}, v12, v{VWD+2}, vcc")
    A.e("s_waitcnt lgkmcnt(0)")
    A.e("s_mul_i32 s21, s54, 81920")
    srd(A, SA, PX, 81920, add="s21")
    A.e("s_mul_i32 s21, s23, 160")
    srd(A, SD, PWQ, "0", add="s21")
    A.e(f"s_sub_u32 s{SD+2}, 819200, s21")

def addr_setup_items(part="front"):
    T = Asm(); A = T
    A.e("s_lshl_b32 s21, s20, 4")
    A.e("v_add_u32 v12, s21, v2")
    A.e("v_lshlrev_b32 v12, 7, v12")
    A.e("v_and_b32 v13, 7, v2")
    A.e("v_xor_b32 v14, v13, v3")
    A.e(f"v_lshl_add_u32 v{VXF0}, v14, 4, v12")
    A.e("v_add_u32 v14, 4, v3")
    A.e("v_xor_b32 v14, v13, v14")
    A.e(f"v_lshl_add_u32 v{VXF1}, v14, 4, v12")
    A.e(f"v_add_u32 v{VXF0h}, 65536, v{VXF0}")
    A.e(f"v_add_u32 v{VXF1h}, 65536, v{VXF1}")
    A.e("v_lshrrev_b32 v12, 1, v3")
    A.e("v_lshlrev_b32 v12, 4, v12")
    A.e("v_and_b32 v13, 1, v3")
    A.e("v_lshl_add_u32 v12, v13, 2, v12")
    A.e("v_lshrrev_b32 v13, 2, v2")
    A.e("v_add_u32 v12, v12, v13")
    A.e("v_mul_u32_u24 v12, 160, v12")
    A.e("v_and_b32 v13, 3, v2")
    A.e(f"v_lshl_add_u32 v{VWT}, v13, 3, v12")
    A.e(f"v_add_u32 v{VWTh}, 65536, v{VWT}")
    A.e(f"v_add_u32 v{VWTh2}, 0x20000, v{VWT}")
    A.e("s_and_b32 s21, s20, 1")
    A.e("s_lshl_b32 s21, s21, 4")
    A.e("v_add_u32 v15, s21, v2          ; pos32")
    A.e("s_lshr_b32 s24, s20, 1")
    A.e("s_mul_i32 s24, s24, 1280")
    A.e(f"s_add_u32 s24, s24, {L_QL}")
    A.e("v_lshlrev_b32 v14, 3, v15        ; 8*pos32")
    A.e("v_add_u32 v14, s24, v14")
    A.e("v_lshlrev_b32 v13, 4, v3")
    A.e("v_and_b32 v13, 16, v13")
    A.e("v_cmp_lt_u32 vcc, 1, v3          ; g >= 2")
    for mt in range(5):
        cs = []; isb = []
        for g in range(4):
            c0 = 16*mt + 4*g; hl, d0 = divmod(c0, 20)
            if d0 < 16: cs.append(hl*2560 + ((d0 >> 2) & 1)*512 + (d0 >> 3)*8); isb.append(0)
            else: cs.append(hl*2560 + 1024); isb.append(1)
        enc = [c | (0 if b else 0x8000) for c, b in zip(cs, isb)]
        assert all(c < 0x8000 for c in cs)
        A.e(f"v_mov_b32 v12, {hex(enc[0] | (enc[1] << 16))}")
        A.e(f"v_mov_b32 v6, {hex(enc[2] | (enc[3] << 16))}")
        A.e("v_cndmask_b32 v12, v12, v6, vcc")
        A.e("v_lshrrev_b32 v12, v13, v12")
        A.e("v_bfe_u32 v6, v12, 15, 1")
        A.e("v_and_b32 v12, 0x7fff, v12")
        A.e("v_mul_u32_u24 v6, v6, v15")
        A.e("v_lshl_add_u32 v6, v6, 3, v14")
        A.e(f"v_add_u32 v{VQW+mt}, v6, v12")
    A.e(f"v_add_u32 v{VQR}, {L_QL}, v4")
    A.e(f"v_lshlrev_b32 v{VQRB}, 3, v1")
    A.e(f"v_mov_b32 v12, {OOB}")
    A.e("v_lshlrev_b32 v5, 3, v1")
    A.e("v_cmp_gt_u32 vcc, 32, v1")
    A.e("v_and_b32 v13, 31, v1")
    A.e("s_nop 0")
    A.e("v_cndmask_b32 v5, v12, v5, vcc")
    A.e("v_cmp_gt_u32 vcc, 21, v13")
    A.e("s_nop 1")
    A.e("v_cndmask_b32 v8, v12, v4, vcc")
    if part == "front": return [x.strip() for x in T.lines if x.strip()]
    T.lines.clear()
    A.e(f"s_mul_i32 s21, s20, {6*PART}")
    A.e(f"v_add_u32 v{VRED}, s21, v4")
    A.e("v_and_b32 v13, 31, v1")
    A.e("v_mul_u32_u24 v13, 160, v13")
    A.e("v_lshrrev_b32 v14, 5, v1         ; h")
    A.e("v_lshl_add_u32 v13, v14, 3, v13")
    A.e("s_mul_i32 s24, s20, 40")
    A.e(f"v_add_u32 v{VOS}, s24, v13")
    A.e(f"v_mov_b32 v12, {L_DUMMY}")
    A.e(f"v_add_u32 v13, 32, v{VOS}")
    A.e("v_cmp_eq_u32 vcc, 0, v14")
    A.e(f"v_add_u32 v15, 5152, v{VOS}")
    A.e("s_nop 0")
    A.e(f"v_cndmask_b32 v{VOS2a}, v12, v13, vcc")
    A.e(f"v_cndmask_b32 v{VOS2b}, v12, v15, vcc")
    A.e("v_lshrrev_b32 v13, 4, v1")
    A.e("v_mul_u32_u24 v13, 0x5000, v13       ; (row >> 4) * 20480")
    A.e("v_and_b32 v14, 15, v1")
    A.e(f"v_lshl_add_u32 v{VOG}, v14, 4, v13")
    A.e("v_mul_u32_u24 v13, 160, v1")
    A.e("s_lshl_b32 s24, s20, 4")
    A.e(f"v_add_u32 v{VTID16}, s24, v13")
    A.e("s_lshl_b32 s21, s20, 4")
    A.e("s_movk_i32 s26, 2560")
    A.e("v_add_u32 v13, s21, v2")
    A.e("v_mul_u32_u24 v13, s26, v13")
    A.e(f"v_lshl_add_u32 v{VOUT}, v3, 3, v13")
    A.e("v_and_b32 v14, 1, v3")
    A.e("v_lshl_add_u32 v13, v14, 5, v13")
    A.e("v_lshrrev_b32 v14, 1, v3")
    A.e(f"v_lshl_add_u32 v{VOUT2}, v14, 4, v13     ; + 32 (g & 1) + 16 (g >> 1)")
    A.e("s_lshl_b32 s21, s20, 6")
    A.e("v_add_u32 v13, s21, v1")
    A.e("v_mul_u32_u24 v13, s26, v13")
    A.e("s_lshl_b32 s21, s33, 3")
    A.e(f"v_add_u32 v{VYO}, s21, v13")
    A.e("v_add_u32 v12, 1, v2")
    A.e("v_and_b32 v12, 1, v12            ; cp")
    A.e("v_sub_u32 v13, v2, v12")
    A.e("v_add_u32 v13, 9, v13")
    A.e("v_and_b32 v14, 1, v3")
    A.e("v_lshlrev_b32 v14, 3, v14        ; 8(g&1)")
    A.e("v_sub_u32 v13, v13, v14")
    A.e("v_lshrrev_b32 v15, 1, v3         ; g>>1")
    A.e("v_lshl_add_u32 v13, v15, 4, v13")
    A.e("v_lshlrev_b32 v13, 1, v13")
    A.e("v_xor_b32 v12, 1, v12")
    A.e(f"s_mov_b32 s24, {L_U0 - L_U1}")
    A.e("v_mul_lo_u32 v12, v12, s24")
    A.e("v_add_u32 v13, v13, v12")
    A.e(f"s_mul_i32 s21, s20, {CS}")
    A.e(f"s_add_u32 s24, s21, {L_U1}")
    A.e(f"v_add_u32 v{VCU}, s24, v13")
    A.e(f"v_add_u32 v{VUW}, s21, v4")
    A.e("v_lshlrev_b32 v13, 4, v2")
    A.e("v_sub_u32 v13, 2040, v13")
    A.e("v_lshl_add_u32 v13, v15, 4, v13")
    A.e("v_sub_u32 v13, v13, v14")
    A.e("v_lshlrev_b32 v13, 1, v13")
    A.e("s_mul_i32 s24, s20, 4608")
    A.e(f"s_add_u32 s24, s24, {L_KR-3584}")
    A.e(f"v_add_u32 v{VCK}, s24, v13")
    A.e("v_lshlrev_b32 v13, 5, v2")
    A.e("v_lshl_add_u32 v13, v3, 3, v13")
    A.e(f"s_mul_i32 s24, s20, {YSC}")
    A.e(f"s_add_u32 s24, s24, {L_YS}")
    A.e(f"v_add_u32 v{VYS}, s24, v13")
    A.e("v_and_b32 v13, 3, v2")
    A.e("v_lshlrev_b32 v13, 3, v13")
    A.e("v_lshl_add_u32 v13, v3, 5, v13")
    A.e("s_lshl_b32 s21, s20, 7")
    A.e("v_add_u32 v13, s21, v13")
    A.e("v_lshrrev_b32 v12, 2, v2")
    A.e(f"v_mul_u32_u24 v14, {YSC}, v12" if False else f"s_movk_i32 s24, {YSC}")
    A.e("v_mul_u32_u24 v14, s24, v12")
    A.e(f"v_add3_u32 v{VYT}, v14, v13, v13" if False else f"v_add_u32 v14, v14, v13")
    A.e(f"v_add_u32 v{VYT}, {L_YS}, v14")
    A.e(f"s_movk_i32 s24, {CS}")
    A.e("v_mul_u32_u24 v14, s24, v12")
    A.e("v_add_u32 v14, v14, v13")
    A.e(f"v_add_u32 v{VUT}, {L_U0+32}, v14")
    A.e("s_lshr_b32 s21, s20, 1")
    A.e("s_mul_i32 s21, s21, 8320")
    A.e(f"s_add_u32 s21, s21, {L_U0}")
    A.e("v_lshlrev_b32 v13, 5, v1")
    A.e(f"v_add_u32 v{VUR}, s21, v13")
    A.e("s_movk_i32 s26, 1280")
    A.e("v_mul_u32_u24 v13, s26, v1")
    A.e("s_lshl_b32 s21, s33, 3")
    A.e(f"v_add_u32 v{VUD}, s21, v13")
    A.e("s_lshl_b32 s21, s20, 11")
    A.e(f"s_add_u32 s21, s21, {L_U0+64}")
    A.e("v_lshlrev_b32 v13, 2, v1")
    A.e(f"v_add_u32 v{VUP}, s21, v13")
    return [x.strip() for x in T.lines if x.strip()]

def wdma_ring(c, base):
    L = []
    for n in range(3):
        g = []
        if n < 2:
            g += [f"s_add_u32 m0, s32, {base + 4096*n}", f"s_mov_b32 s38, {64*1280*c}" if n == 0 else "s_nop 0"]
        else:
            g += [f"s_add_u32 s39, s32, {base + 8192}", "s_cmp_lt_u32 s20, 2", f"s_cselect_b32 m0, s39, {L_DUMMY}", "s_nop 0"]
        g.append(f"buffer_load_dwordx4 v{VWD+n}, s[{SD}:{SD+3}], s38 offen lds")
        L.append(g)
    return L
def xdma(c, base, srd_=SA):
    return [[f"s_add_u32 m0, s31, {base}", f"s_movk_i32 s36, {128*c}",
             f"buffer_load_dwordx4 v{VXD0}, s[{srd_}:{srd_+3}], s36 offen lds"],
            [f"s_add_u32 m0, s31, {base+1024}", "s_nop 0",
             f"buffer_load_dwordx4 v{VXD1}, s[{srd_}:{srd_+3}], s36 offen lds"]]

GACC = 16; GWF = 36; GXF = [56, 60]
def gemm_rdX(kk, xb):
    ks = kk & 1
    if xb < 65536: a, o = (VXF0 if ks == 0 else VXF1), xb
    else: a, o = (VXF0h if ks == 0 else VXF1h), xb - 65536
    return It(f"ds_read_b128 {vr(GXF[kk & 1],4)}, v{a} offset:{o}", lds=f"x{kk}")
def gemm_rdW(kk, mt, wb):
    ks = kk & 1
    out = []
    for h in range(2):
        off = wb + (32*ks + 8*h)*160 + 32*mt
        a = VWT
        if off >= 131072: a, off = VWTh2, off - 131072
        elif off >= 65536: a, off = VWTh, off - 65536
        out.append(It(f"ds_read_b64_tr_b16 {vr(GWF+mt*4+h*2,2)}, v{a} offset:{off}", lds=f"w{kk}_{mt}"))
    return out
def gemm_need(kk, mt, xt):
    if mt == 0: return tuple(xt) + (f"w{kk}_0", f"w{kk}_1", f"w{kk}_2")
    if mt == 3: return (f"w{kk}_3", f"w{kk}_4")
    return ()
def gemm_mm(kk, mt):
    return It(f"v_mfma_f32_16x16x32_bf16 {vr(GACC+4*mt,4)}, {vr(GWF+mt*4,4)}, {vr(GXF[kk & 1],4)}, {vr(GACC+4*mt,4) if kk else '0'}",
              needl=gemm_need(kk, mt, (f"x{kk}",)), w=2)
def gemm_items(xbase, wbase, sync, loads=None):
    steps = []
    spread = list(loads(0)) if loads else []
    pre = list(sync(0)) + [gemm_rdX(0, xbase(0))]
    for mt in range(5): pre += gemm_rdW(0, mt, wbase(0))
    for kk in range(20):
        L = []
        c1 = (kk+1) >> 1
        boundary = (kk+1) & 1 == 0 and kk+1 < 20
        for mt in range(5):
            L.append(gemm_mm(kk, mt))
            if kk+1 < 20:
                if mt == 0:
                    if boundary:
                        L += spread; spread = []
                        L += list(sync(c1))
                        if loads: spread = list(loads(c1))
                    L.append(gemm_rdX(kk+1, xbase(c1)))
                L += gemm_rdW(kk+1, mt, wbase(c1))
            if spread and mt in (1, 2, 3): L.append(spread.pop(0))
        steps.append(L)
    assert not spread
    return pre, steps

def rho(s, b):
    if s == 0: return b
    q = b >> s; rem = b & ((1 << s)-1); half = 1 << (s-1)
    if rem > half or (rem == half and (q & 1)): q += 1
    return q << s
KACC = 64
RS = 528
def kgen_setup_lines():
    T = Asm(); A = T
    A.e("v_lshlrev_b32 v12, 2, v1          ; lane*4")
    A.e("s_lshl_b32 s24, s34, 8           ; d*256")
    A.e("v_add_u32 v13, s24, v12")
    for k, s in enumerate((PARE, PAIM, PBRE, PBIM, PCRE, PCIM)):
        A.e(f"global_load_dword v{104+k}, v13, s[{s}:{s+1}]")
    A.e("s_lshl_b32 s24, s34, 1")
    A.e("v_mov_b32 v14, s24")
    A.e(f"global_load_ushort v110, v14, s[{PLDT}:{PLDT+1}]")
    A.e(f"global_load_ushort v198, v14, s[{PDSK}:{PDSK+1}]")
    A.e(f"s_mul_i32 s21, s20, {KGW}")
    A.e(f"s_add_u32 s21, s21, {L_KG}")
    A.e("v_lshlrev_b32 v14, 3, v1            ; lane*8")
    A.e("v_add_u32 v196, s21, v14")
    A.e(f"v_add_u32 v197, {33*RS}, v196")
    for s in range(4):
        for mt in range(2):
            dst = 112 + 2*s + mt
            A.e(f"v_add_u32 v15, {16*mt}, v2          ; b")
            if s > 0:
                half = 1 << (s-1)
                A.e(f"v_bfe_u32 v12, v15, {s}, 1")
                A.e(f"v_add3_u32 v15, v15, v12, {half-1}")
                A.e(f"v_lshrrev_b32 v15, {s}, v15")
                A.e(f"v_lshlrev_b32 v15, {s}, v15")
            A.e(f"v_mul_u32_u24 v15, {RS}, v15")
            A.e(f"v_lshl_add_u32 v15, v3, 4, v15")
            A.e(f"v_add_u32 v{dst}, s21, v15")
    for s in range(1, 4):
        for b in range(32):
            half = 1 << (s-1)
            assert (((b + half - 1 + ((b >> s) & 1)) >> s) << s) == rho(s, b)
    A.e(f"v_mul_u32_u24 v15, {RS}, v2")
    A.e("v_lshl_add_u32 v15, v3, 4, v15")
    A.e(f"v_add_u32 v15, {33*RS}, v15")
    A.e("v_add_u32 v111, s21, v15")
    return [x.strip() for x in T.lines if x.strip()]

def kgen_parts():
    L = []
    a = lambda t, **k: L.append(It(t, **k))
    E1 = [120, 122]; E32 = [124, 126]
    C = [176, 178]; TM = [180, 182]
    PK = [184, 186]
    WC = [188, 190]
    a("v_lshlrev_b32 v110, 16, v110", needv=("kp",))
    a(f"v_mul_f32 v110, {hex(f2u(LOG2E))}, v110")
    a("v_exp_f32 v110, v110")
    a("s_nop 0")
    a("v_cvt_pk_bf16_f32 v110, v110, v110")
    a("v_lshlrev_b32 v110, 16, v110")
    for hf in range(2):
        for k in range(6):
            a(f"v_lshlrev_b32 v{176+k}, 16, v{104+k}" if hf == 0 else f"v_and_b32 v{176+k}, 0xffff0000, v{104+k}")
        ZR, ZI = 192, 193
        a(f"v_mul_f32 v{ZR}, v110, v176"); a(f"v_mul_f32 v{ZI}, v110, v177")
        a("v_mul_f32 v178, v110, v178"); a("v_mul_f32 v179, v110, v179")
        a(f"v_mul_f32 v{ZR}, {hex(f2u(LOG2E))}, v{ZR}"); a(f"v_mul_f32 v{ZI}, {hex(f2u(1/(2*math.pi)))}, v{ZI}")
        w = WC[hf]
        a(f"v_mul_f32 v{w}, v180, v178"); a(f"v_mul_f32 v{w+1}, v180, v179")
        a(f"v_fma_f32 v{w}, -v181, v179, v{w}"); a(f"v_fma_f32 v{w+1}, v181, v178, v{w+1}")
        for (m, dst) in ((1, E1[hf]), (32, E32[hf])):
            if m == 1:
                a(f"v_exp_f32 v182, v{ZR}"); a(f"v_fract_f32 v183, v{ZI}")
            else:
                lit = hex(f2u(float(m)))
                a(f"v_mul_f32 v182, {lit}, v{ZR}"); a(f"v_mul_f32 v183, {lit}, v{ZI}")
                a("v_exp_f32 v182, v182"); a("v_fract_f32 v183, v183")
            a("v_cos_f32 v194, v183"); a("v_sin_f32 v195, v183")
            a("s_nop 0")
            a(f"v_mul_f32 v{dst}, v182, v194"); a(f"v_mul_f32 v{dst+1}, v182, v195")
    for hf in range(2):
        a(f"v_mov_b32 v{C[hf]}, v{WC[hf]}"); a(f"v_mov_b32 v{C[hf]+1}, v{WC[hf]+1}")
    setup = L
    def cm(x, e, t):
        return (f"v_pk_mul_f32 v[{t}:{t+1}], v[{x}:{x+1}], v[{e}:{e+1}] op_sel:[0,0] op_sel_hi:[0,1]",
                f"v_pk_fma_f32 v[{x}:{x+1}], v[{x}:{x+1}], v[{e}:{e+1}], v[{t}:{t+1}] op_sel:[1,1,0] op_sel_hi:[1,0,1] neg_lo:[1,0,0]")
    rows = []
    def row(n, r, e, neg, waddr, stp, pre=()):
        pk = PK[n & 1]; sg = "-" if neg else ""
        R = [It(y) for y in pre]
        if stp: R += [It(cm(C[0], e[0], TM[0])[0]), It(cm(C[1], e[1], TM[1])[0])]
        R += [It(f"v_cvt_pk_bf16_f32 v{pk}, v{C[0]}, {sg}v{C[0]+1}"), It(f"v_cvt_pk_bf16_f32 v{pk+1}, v{C[1]}, {sg}v{C[1]+1}")]
        if stp: R += [It(cm(C[0], e[0], TM[0])[1]), It(cm(C[1], e[1], TM[1])[1])]
        R.append(It(f"ds_write_b64 v{waddr}, {vr(pk,2)} offset:{r*RS}", lds="kw"))
        rows.append(R)
    for j in range(33): row(j, j, E1, True, 196, j < 32)
    one = [f"v_mov_b32 v{C[0]}, 1.0", f"v_mov_b32 v{C[0]+1}, 0", f"v_mov_b32 v{C[1]}, 1.0", f"v_mov_b32 v{C[1]+1}, 0"]
    for nt in range(4):
        for r in range(16):
            row(33+16*nt+r, r, E32, False, 197, not (nt == 3 and r == 15), pre=(one if (nt == 0 and r == 0) else ()))
    BF = 224
    NS = 12
    def slot(n): return vr(16 + 4*(n % NS), 4)
    afr, bfr, mms = [], [], []
    for nt in range(4):
        variants = [(0,0),(0,1),(1,0),(1,1)] if nt == 0 else [((2 if nt == 1 else 3), 0), ((2 if nt == 1 else 3), 1)]
        tiles = [0,1,2,3] if nt == 0 else [2+2*nt, 3+2*nt]
        nv = len(variants); tot = 8*nv
        ra = []; mm = []
        def rd(n):
            ks, vi = divmod(n, nv); s_, mt = variants[vi]
            return It(f"ds_read_b128 {slot(n)}, v{112+2*s_+mt} offset:{64*ks}", lds=f"ka{nt}_{n}")
        for n in range(tot):
            ks, vi = divmod(n, nv)
            if n < NS: ra.append(rd(n))
            acc = KACC + 4*tiles[vi]
            mm.append(It(f"v_mfma_f32_16x16x32_bf16 {vr(acc,4)}, {slot(n)}, {ar(BF+4*ks,4)}, {vr(acc,4) if ks else '0'}",
                         needl=(f"kb{nt}_{ks}", f"ka{nt}_{n}"), w=2))
            if n + NS < tot: mm.append(rd(n + NS))
        afr.append(ra)
        bfr.append([It(f"ds_read_b128 {ar(BF+4*ks,4)}, v111 offset:{64*ks}", lds=f"kb{nt}_{ks}") for ks in range(8)])
        mms.append(mm)
    return setup, rows, afr, bfr, mms

def kgen_pack_lines():
    T = Asm(); A = T
    ACC = KACC
    A.e("v_lshlrev_b32 v198, 16, v198")
    A.e("v_cmp_eq_u32 vcc, 0, v1")
    A.e("s_nop 1")
    A.e("v_cndmask_b32 v198, 0, v198, vcc")
    A.e(f"v_add_f32 v{ACC}, v{ACC}, v198")
    A.e("v_cmp_gt_u32 vcc, 8, v2")
    A.e("s_nop 1")
    for i in range(8):
        A.e(f"v_cndmask_b32 v{ACC+i}, v{ACC+8+i}, v{ACC+i}, vcc")
    for nt in range(4):
        for mt in range(2):
            tile = mt if nt == 0 else 2+2*nt+mt
            acc = ACC + 4*tile
            b = 176 + 2*(nt*2+mt)
            A.e(f"v_cvt_pk_bf16_f32 v{b}, v{acc+3}, v{acc+2}")
            A.e(f"v_cvt_pk_bf16_f32 v{b+1}, v{acc+1}, v{acc}")
    return [x.strip() for x in T.lines if x.strip()]
def kgen_write_lines():
    T = Asm(); A = T
    A.e("s_mul_i32 s21, s20, 4608")
    A.e(f"s_add_u32 s21, s21, {L_KR}")
    A.e("v_lshlrev_b32 v15, 5, v2")
    A.e("v_lshl_add_u32 v15, v3, 2, v15    ; 32c + 4g")
    A.e("v_sub_u32 v15, 2044, v15")
    A.e("v_lshlrev_b32 v15, 1, v15")
    A.e(f"v_add_u32 v15, s21, v15")
    A.e(f"v_subrev_u32 v15, {(512*3+16)*2}, v15")
    for nt in range(4):
        for mt in range(2):
            b = 176 + 2*(nt*2+mt)
            A.e(f"ds_write_b64 v15, {vr(b,2)} offset:{(512*3+16)*2 - (512*nt+16*mt)*2}")
    A.e("v_mov_b32 v192, 0"); A.e("v_mov_b32 v193, 0")
    A.e("v_lshlrev_b32 v12, 3, v1")
    A.e(f"s_add_u32 s21, s21, 4096")
    A.e("v_add_u32 v12, s21, v12")
    A.e("ds_write_b64 v12, v[192:193]")
    return [x.strip() for x in T.lines if x.strip()]

def q_epilogue(A, q):
    A.e(f"s_mov_b32 s26, {hex(f2u(QSCALE))}")
    for mt in range(5):
        acc = GACC + 4*mt
        for i in range(4): A.e(f"v_mul_f32 v{acc+i}, s26, v{acc+i}")
        A.e(f"v_cvt_pk_bf16_f32 v{36+mt*2}, v{acc}, v{acc+1}")
        A.e(f"v_cvt_pk_bf16_f32 v{37+mt*2}, v{acc+2}, v{acc+3}")
        q.emit(It(f"ds_write_b64 v{VQW+mt}, {vr(36+mt*2,2)}", lds="qw"))

def weave_setup(A, q, setup, pro):
    safe = [i for i, l in enumerate(setup) if l.startswith("v_") and not l.startswith("v_cndmask") and i+1 < len(setup)
            and not setup[i+1].startswith("v_cndmask") and not setup[i+1].startswith("s_nop") and not l.startswith("v_cmp")
            and not setup[i+1].startswith("s_addc")]
    step = max(1, len(safe)//len(pro))
    pts = {safe[min(k*step, len(safe)-1)]: k for k in range(len(pro))}
    done = 0
    for i, l in enumerate(setup):
        A.e(l)
        if i in pts: q.emit(pro[pts[i]]); done += 1
    assert done == len(pro), (done, len(pro))

def X_items(c): return [It(g, vm=f"x{c}") for g in xdma(c, L_XR + 8192*c)]
def W_items(c): return [It(g, vm=f"w{c}") for g in wdma_ring(c, L_WR + WCH*(c % 4))]

def front(A, pfx):
    A.e("s_cmp_lt_u32 s53, 2")
    A.e(f"s_cbranch_scc1 {pfx}_kvpro")
    q = Q(A)
    q.run(X_items(0) + W_items(0))
    A.e(f"s_cmp_ge_u32 s3, {NCONV}")
    A.e(f"s_cbranch_scc1 {pfx}_nokp")
    for l in kgen_setup_lines(): A.e(l)
    A.label(f"{pfx}_nokp")
    pro = []
    for c in range(1, 4): pro += X_items(c) + W_items(c)
    weave_setup(A, q, addr_setup_items(), pro)
    if PREFETCH: prefetch(A, pfx + "a")
    A.e(f"s_cmp_ge_u32 s3, {NCONV}")
    A.e(f"s_cbranch_scc1 {pfx}_noks")
    A.e(f"s_waitcnt vmcnt({15 + (3 if PREFETCH else 0)})")
    for it in kgen_parts()[0]:
        for l in it.txt: A.e(l)
    A.label(f"{pfx}_noks")
    qcommon = q
    st(A)
    A.e(f"s_branch {pfx}_qgemm")
    A.label(f"{pfx}_kvpro")
    q = Q(A)
    A.e("s_cmp_eq_u32 s53, 0")
    A.e(f"s_cselect_b32 s24, s{PWK}, s{PWV}")
    A.e(f"s_cselect_b32 s25, s{PWK+1}, s{PWV+1}")
    A.e(f"s_mov_b32 s{SB}, s24"); A.e(f"s_mov_b32 s{SB+1}, s25"); A.e(f"s_mov_b32 s{SB+2}, 25600"); A.e(f"s_mov_b32 s{SB+3}, 0x20000")
    for i in range(7):
        if i < 6:
            A.e(f"s_add_u32 s28, s32, {4096*i}")
            A.e(f"s_add_u32 m0, s28, {L_WKV}")
            A.e("s_nop 0")
            A.e(f"buffer_load_dwordx4 v4, s[{SB}:{SB+3}], s28 offen lds")
        else:
            A.e("s_cmp_eq_u32 s20, 0")
            A.e(f"s_mov_b32 s29, {L_WKV + 24*1024}")
            A.e(f"s_cselect_b32 m0, s29, {L_DUMMY}")
            A.e(f"s_mov_b32 s30, 0x7fff0000")
            A.e(f"s_cselect_b32 s28, {24*1024}, s30")
            A.e(f"buffer_load_dwordx4 v4, s[{SB}:{SB+3}], s28 offen lds")
    pro = []
    for c in range(10): pro += X_items(c)
    weave_setup(A, q, addr_setup_items(), pro)
    if PREFETCH: prefetch(A, pfx + "b")
    st(A)
    KV, KW, KX = 64, 72, [104, 108]
    A.e("v_lshrrev_b32 v12, 2, v2")
    A.e("v_lshl_add_u32 v12, v3, 3, v12")
    A.e("v_mul_u32_u24 v12, 40, v12")
    A.e("v_and_b32 v13, 3, v2")
    A.e("v_lshl_add_u32 v12, v13, 3, v12")
    A.e(f"v_add_u32 v176, {L_WKV}, v12")
    for i in range(8): A.e(f"v_mov_b32 v{KV+i}, 0")
    A.e("s_mul_i32 s21, s22, 81920")
    srd(A, SH, PX, 81920, add="s21")
    q.wait_v(("x0",))
    A.e("s_barrier")
    def rds(kk):
        c, ks = kk >> 1, kk & 1; b = kk & 1
        xb = L_XR + 8192*c
        a, o = ((VXF0 if ks == 0 else VXF1), xb) if xb < 65536 else ((VXF0h if ks == 0 else VXF1h), xb-65536)
        out = [It(f"ds_read_b128 {vr(KX[b],4)}, v{a} offset:{o}", lds=f"kx{kk}", needv=(f"x{c}",))]
        for m in range(2):
            for h in range(2):
                out.append(It(f"ds_read_b64_tr_b16 {vr(KW+8*b+4*m+2*h,2)}, v176 offset:{(32*kk + 4*h)*40 + 32*m}", lds=f"kw{kk}"))
        return out
    for variant in ("k", "v"):
        if variant == "k":
            A.e("s_cmp_eq_u32 s53, 0")
            A.e(f"s_cbranch_scc0 {pfx}_b_vpart")
        else:
            A.label(f"{pfx}_b_vpart")
        qq = Q(A); qq.vq = list(q.vq)
        qq.run(rds(0))
        wq_first = [x for c in range(4) for x in W_items(c)]
        for kk in range(20):
            if kk+1 < 20: qq.run(rds(kk+1))
            if kk >= 8: qq.emit(wq_first.pop(0))
            if kk in (2, 4, 6, 8):
                c_ = kk//2 - 1
                qq.run([It(g, vm=f"ox{c_}") for g in xdma(c_, L_XR + 8192*c_, SH)])
            b = kk & 1
            for m in range(2):
                if variant == "k": t = f"v_mfma_f32_16x16x32_bf16 {vr(KV+4*m,4)}, {vr(KW+8*b+4*m,4)}, {vr(KX[b],4)}, {vr(KV+4*m,4)}"
                else: t = f"v_mfma_f32_16x16x32_bf16 {vr(KV+4*m,4)}, {vr(KX[b],4)}, {vr(KW+8*b+4*m,4)}, {vr(KV+4*m,4)}"
                qq.emit(It(t, needl=(f"kx{kk}", f"kw{kk}")))
        A.e("s_lshr_b32 s21, s20, 1")
        A.e("s_lshl_b32 s26, s54, 1")
        A.e("s_add_u32 s21, s21, s26          ; T")
        A.e("s_and_b32 s26, s20, 1            ; u")
        srd(A, SC, PWS, WS_VA + 64*2048)
        A.e(f"v_mov_b32 v19 , {OOB}".replace(" ,", ","))
        A.e("v_and_b32 v12, 1, v3             ; h (g&1)")
        A.e("v_cmp_gt_u32 vcc, 2, v3")
        A.e(f"v_cvt_pk_bf16_f32 v112, v{KV}, v{KV+1}")
        A.e(f"v_cvt_pk_bf16_f32 v113, v{KV+2}, v{KV+3}")
        A.e(f"v_cvt_pk_bf16_f32 v116, v{KV+4}, v{KV+5}")
        A.e(f"v_cvt_pk_bf16_f32 v117, v{KV+6}, v{KV+7}")
        if variant == "v":
            A.e("s_mov_b64 s[28:29], vcc")
            A.e("v_cmp_eq_u32 vcc, 4, v2")
            A.e("v_mov_b32 v13, 0x3f803f80")
            A.e("s_nop 0")
            A.e("v_cndmask_b32 v116, v116, v13, vcc")
            A.e("v_cndmask_b32 v117, v117, v13, vcc")
            A.e("s_mov_b64 vcc, s[28:29]")
        A.e("v_mov_b32 v120, v112"); A.e("v_mov_b32 v121, v113")
        A.e("v_mov_b32 v122, v116"); A.e("v_mov_b32 v123, v117")
        A.e("s_nop 1")
        A.e("v_permlane32_swap_b32 v120, v114")
        A.e("v_permlane32_swap_b32 v121, v115")
        A.e("v_permlane32_swap_b32 v122, v118")
        A.e("v_permlane32_swap_b32 v123, v119")
        if variant == "k":
            A.e("s_lshl_b32 s28, s26, 4")
            A.e("v_add_u32 v14, s28, v2           ; key32")
            A.e("v_lshl_add_u32 v15, v12, 5, v14")
            A.e("v_lshlrev_b32 v15, 4, v15")
            A.e("s_lshl_b32 s28, s21, 10")
            A.e(f"s_add_u32 s28, s28, {WS_KA}")
            A.e("v_add_u32 v15, s28, v15")
            A.e("v_cndmask_b32 v15, v19, v15, vcc")
            A.e(f"buffer_store_dwordx4 v[112:115], v15, s[{SC}:{SC+3}], 0 offen sc1")
            A.e("v_lshlrev_b32 v14, 3, v14")
            A.e("s_lshl_b32 s28, s21, 9")
            A.e(f"s_add_u32 s28, s28, {WS_KB}")
            A.e("v_add_u32 v14, s28, v14")
            A.e("v_cmp_eq_u32 vcc, 0, v3")
            A.e("s_nop 1")
            A.e("v_cndmask_b32 v14, v19, v14, vcc")
            A.e(f"buffer_store_dwordx2 v[116:117], v14, s[{SC}:{SC+3}], 0 offen sc1")
            A.e("s_lshl_b32 s28, s54, 7")
            A.e(f"s_add_u32 s28, s28, {WS_FLAG}")
            srd(A, SE_, PWS, 128, add="s28")
            A.e("v_lshlrev_b32 v14, 2, v0")
            A.e("v_mov_b32 v13, 0")
            A.e(f"buffer_store_dword v13, v14, s[{SE_}:{SE_+3}], 0 offen sc1")
        else:
            A.e("v_lshl_add_u32 v15, v12, 5, v2")
            A.e("v_lshlrev_b32 v15, 4, v15")
            A.e("s_lshl_b32 s28, s21, 11")
            A.e("s_lshl_b32 s29, s26, 10")
            A.e("s_add_u32 s28, s28, s29")
            A.e(f"s_add_u32 s28, s28, {WS_VA}")
            A.e("v_add_u32 v15, s28, v15")
            A.e("v_add_u32 v14, 256, v15")
            A.e("v_cndmask_b32 v15, v19, v15, vcc")
            A.e("v_cndmask_b32 v14, v19, v14, vcc")
            A.e(f"buffer_store_dwordx4 v[112:115], v15, s[{SC}:{SC+3}], 0 offen sc1")
            A.e("v_cmp_gt_u32 vcc, 5, v2")
            A.e("s_nop 1")
            A.e("v_cndmask_b32 v14, v19, v14, vcc")
            A.e(f"buffer_store_dwordx4 v[116:119], v14, s[{SC}:{SC+3}], 0 offen sc1")
        A.e("s_waitcnt vmcnt(0)")
        A.e("s_barrier")
        A.e("s_cmp_lg_u32 s20, 0")
        A.e(f"s_cbranch_scc1 {pfx}_b_nf{variant}")
        srd(A, SE_, PDBG, 256)
        A.e("s_lshl_b32 s28, s52, 2")
        A.e("v_mov_b32 v14, s28")
        A.e("v_mov_b32 v13, 1")
        A.e("s_mov_b64 exec, 1")
        A.e(f"buffer_store_dword v13, v14, s[{SE_}:{SE_+3}], 0 offen sc1")
        A.e("s_mov_b64 exec, -1")
        A.label(f"{pfx}_b_nf{variant}")
        if variant == "k": A.e(f"s_branch {pfx}_b_ownx")
    A.label(f"{pfx}_b_ownx")
    A.e("s_mul_i32 s21, s22, 81920")
    srd(A, SA, PX, 81920, add="s21")
    st(A)
    A.label(f"{pfx}_qgemm")
    q = qcommon
    def sync(c): return [It("s_barrier", needv=(f"x{c}", f"w{c}"))]
    def loads(c):
        L = []
        if c+4 < 10: L += X_items(c+4)
        if c >= 2 and c+2 < 10: L += W_items(c+2)
        return L
    pre, steps = gemm_items(lambda c: L_XR + 8192*c, lambda c: L_WR + WCH*(c % 4), sync, loads)
    q.run(pre)
    late = [It(x) for x in part_addr_lines() + addr_setup_items("late")]
    grp = []; cur = []
    for it in late:
        cur.append(it)
        t = it.txt[0]
        if not (t.startswith("v_cmp") or t.startswith("s_nop") or (len(cur) > 1 and cur[-2].txt[0].startswith("v_cmp"))
                or (len(cur) > 2 and cur[-3].txt[0].startswith("v_cmp")) or (len(cur) > 3 and cur[-4].txt[0].startswith("v_cmp"))):
            grp.append(It([y for c in cur for y in c.txt], w=len(cur))); cur = []
    if cur: grp.append(It([y for c in cur for y in c.txt], w=len(cur)))
    per = (len(grp) + 17)//18
    for kk in range(20):
        q.run(merge(steps[kk], grp[kk*per:(kk+1)*per]))
    q.all_l(); q.all_v()
    srd(A, SE_, PDBG, 256)
    A.e("v_lshlrev_b32 v12, 2, v1")
    A.e(f"buffer_load_dword v248, v12, s[{SE_}:{SE_+3}], 0 offen sc1")
    st(A)
    A.e("s_barrier")
    q_epilogue(A, q)
    A.e(f"s_mov_b32 s35, {SPIN_MAX}")
    A.label(f"{pfx}_kv_p")
    A.e("s_waitcnt vmcnt(0)")
    A.e("v_cmp_ne_u32 vcc, 0, v248")
    A.e("s_sub_u32 s35, s35, 1")
    A.e("s_cmp_eq_u32 s35, 0")
    A.e(f"s_cbranch_scc1 {pfx}_kv_d")
    A.e("s_cmp_eq_u64 vcc, -1")
    A.e(f"s_cbranch_scc1 {pfx}_kv_d")
    A.e("s_sleep 1")
    A.e(f"buffer_load_dword v248, v12, s[{SE_}:{SE_+3}], 0 offen sc1")
    A.e(f"s_branch {pfx}_kv_p")
    A.label(f"{pfx}_kv_d")
    A.e("s_waitcnt lgkmcnt(0)")
    A.e("s_barrier")
    st(A)

def poll(A, pfx, name, srd_, nl, cmpmask):
    A.e("s_cmp_lg_u32 s20, 0")
    A.e(f"s_cbranch_scc1 {pfx}_{name}_np")
    A.e("v_lshlrev_b32 v12, 2, v1")
    A.e(f"s_mov_b32 s35, {SPIN_MAX}")
    if nl < 64: A.e(f"s_mov_b64 exec, {hex((1 << nl)-1)}")
    A.label(f"{pfx}_{name}_p")
    A.e(f"buffer_load_dword v13, v12, s[{srd_}:{srd_+3}], 0 offen sc1")
    A.e("s_waitcnt vmcnt(0)")
    A.e("v_cmp_ne_u32 vcc, 0, v13")
    A.e("s_sub_u32 s35, s35, 1")
    A.e("s_cmp_eq_u32 s35, 0")
    A.e(f"s_cbranch_scc1 {pfx}_{name}_d")
    if nl == 64:
        A.e("s_cmp_eq_u64 vcc, -1")
    else:
        A.e(f"s_cmp_eq_u32 vcc_lo, {hex((1 << nl)-1)}")
    A.e(f"s_cbranch_scc1 {pfx}_{name}_d")
    A.e("s_sleep 1")
    A.e(f"s_branch {pfx}_{name}_p")
    A.label(f"{pfx}_{name}_d")
    if nl < 64: A.e("s_mov_b64 exec, -1")
    A.label(f"{pfx}_{name}_np")

PREF_K, PREF_V = 6, 5
def step(A, tau, t, first=False, last=False, fillers=None, pre=None):
    cur = S[t & 1]; nxt = S[(t+1) & 1]
    Pc = P[t & 1]; Pp = P[(t+1) & 1]
    par = tau & 1
    if t < NT-1: nt, ntau = t+1, tau
    else: nt, ntau = 0, tau+1
    do_next = not (last and t == NT-1)
    M1 = f"v_mfma_f32_32x32x16_bf16 {vr(nxt,16)}, {KAr(nt)}, {QAr(ntau)}, 0" if do_next else None
    M2 = f"v_mfma_f32_32x32x8_bf16 {vr(nxt,16)}, {KBr(nt)}, {QBr(ntau)}, {vr(nxt,16)}" if do_next else None
    if t == 0: pt, op, c0 = NT-1, O[par ^ 1], None
    else:
        pt, op = t-1, O[par]
        c0 = "0" if t == 1 else None
    if t == 0 and first: PV0p = PVp = None
    else:
        PV0p = f"v_mfma_f32_32x32x16_bf16 {vr(op,16)}, {VAr(pt,0)}, {vr(Pp,4)}, {c0 or vr(op,16)}"
        PVp = f"v_mfma_f32_32x32x16_bf16 {vr(op,16)}, {VAr(pt,1)}, {vr(Pp+4,4)}, {vr(op,16)}"
    E = lambda i: f"v_exp_f32 v{cur+i}, v{cur+i}"
    C = lambda i: f"v_cvt_pk_bf16_f32 v{Pc+i}, v{cur+2*i}, v{cur+2*i+1}"
    seq = [E(0), M1, E(1), E(2), C(0), E(3), E(4), PV0p, C(1), E(5), E(6), C(2), E(7), M2, E(8), C(3), E(9), E(10), C(4), E(11),
           PVp, E(12), C(5), E(13), E(14), E(15), C(6), C(7)]
    seq = [x for x in seq if x]
    groups = list(fillers or [])
    if groups:
        epos = [i for i, x in enumerate(seq) if x.startswith("v_exp")]
        flat = []
        for g in groups:
            if any(y.startswith("s_cbranch") for y in g) or any("exec" in y for y in g): flat.append(g)
            elif any("m0" in y for y in g): flat.append(g)
            else: flat += [[y] for y in g]
        n = len(flat); out = []; k = 0
        for i, x in enumerate(seq):
            out.append(x)
            if i in epos:
                want = ((epos.index(i)+1)*n + len(epos)-1)//len(epos) if True else 0
                while k < min(want, n):
                    out += flat[k]; k += 1
        for g in flat[k:]: out += g
        seq = out
    for x in (pre or []): A.e(x)
    for x in seq:
        if x.endswith(":"): A.label(x[:-1])
        else: A.e(x)

def part_addr_lines():
    L = ["s_lshl_b32 s29, s20, 1"]
    for tau in range(1, 7):
        slot_ = (-2 - ((tau-1) >> 1)) & 3
        for w in range(4):
            j = (2*w + 1 + tau) & 7
            assert slot_ == (w - (j >> 1) - 1) & 3
        L += [f"s_add_u32 s28, s29, {1+tau}", "s_and_b32 s28, s28, 7", f"s_mul_i32 s28, s28, {3*PART}",
              f"s_add_u32 s28, s28, {slot_*PART}", f"v_add_u32 v{VPA+tau-1}, s28, v4"]
    return L
def part_write(tau):
    par = (tau-1) & 1
    return [[f"ds_write_b128 v{VPA+tau-1}, {vr(O[par]+4*g,4)} offset:{1024*g}"] for g in range(3)]

def kv_load_groups():
    def ldK(t): return [[f"s_add_u32 s27, s44, {1024*t}", f"buffer_load_dwordx4 {KAr(t)}, v4, s[{SA}:{SA+3}], s27 offen"],
                        [f"s_add_u32 s28, s45, {512*t}", f"buffer_load_dwordx2 {KBr(t)}, v5, s[{SA}:{SA+3}], s28 offen"]]
    def ldV(t): return [[f"s_add_u32 s29, s46, {2048*t}", f"buffer_load_dwordx4 {VAr(t,0)}, v8, s[{SA}:{SA+3}], s29 offen"],
                        [f"buffer_load_dwordx4 {VAr(t,1)}, v8, s[{SA}:{SA+3}], s29 offen offset:1024"]]
    return ldK, ldV

def q_reads(A):
    A.e(f"v_mov_b32 v12, {L_BAD}")
    A.e("v_mov_b32 v13, 0")
    A.e("ds_write_b32 v12, v13")
    A.e("s_lshl_b32 s35, s20, 1")
    for tau in range(8):
        A.e(f"s_add_u32 s36, s35, {2+tau}")
        A.e("s_and_b32 s36, s36, 7")
        A.e("s_mul_i32 s36, s36, 1280")
        A.e(f"v_add_u32 v{16+tau}, s36, v{VQR}")
        A.e(f"ds_read_b128 {QAr(tau)}, v{16+tau}")
        A.e(f"v_mov_b32 v{132+6*tau}, 0"); A.e(f"v_mov_b32 v{133+6*tau}, 0")
    A.e("s_mov_b32 exec_hi, 0")
    for tau in range(8):
        A.e(f"v_sub_u32 v{24+tau}, v{16+tau}, v{VQRB}")
        A.e(f"ds_read_b64 {QBr(tau)}, v{24+tau} offset:1024")
    A.e("s_mov_b32 exec_hi, -1")

def late_setup(A):
    A.e("s_mul_i32 s21, s23, 160")
    srd(A, SD, PWO, "0", add="s21")
    A.e(f"s_sub_u32 s{SD+2}, 819200, s21")
    srd(A, SF, PU, 2048*1280)

def first_scores(A):
    A.e(f"v_mfma_f32_32x32x16_bf16 {vr(S[0],16)}, {KAr(0)}, {QAr(0)}, 0")
    A.e(f"v_mfma_f32_32x32x8_bf16 {vr(S[0],16)}, {KBr(0)}, {QBr(0)}, {vr(S[0],16)}")
    A.e("s_nop 7"); A.e("s_nop 3")

def kgen_phase(A, pfx):
    q = Q(A)
    ldK, ldV = kv_load_groups()
    kv = []
    for t in range(NT): kv += [It(g, vm="kv") for g in ldK(t) + ldV(t)]
    ksetup, rows, afr, bfr, mms = kgen_parts()
    q.vq = []
    q_reads(A)
    due = {49: 0, 65: 1, 81: 2, 97: 3}
    arow = {}
    for nt, r0 in enumerate((36, 52, 68, 84)):
        for i, it in enumerate(afr[nt]): arow.setdefault(r0 + i, []).append(it)
    share = [26, 14, 14, 10]; k = 0
    for pos, R in enumerate(rows):
        q.run(R + arow.get(pos, []))
        if pos+1 in due:
            nt = due[pos+1]
            q.run(bfr[nt])
            L = kv[k:k+share[nt]]; k += share[nt]
            if nt == 2: A.e("s_waitcnt vmcnt(30)")
            q.run(L[:4])
            q.run(merge(mms[nt], L[4:]))
    assert k == len(kv)
    q.all_l()
    A.e("s_nop 7")
    st(A)
    for l in kgen_pack_lines(): A.e(l)
    A.e("s_barrier")
    for l in kgen_write_lines(): A.e(l)
    late_setup(A)
    A.e("v_mov_b32 v192, 0")
    A.e("s_and_b32 s21, s20, 1")
    A.e("s_mul_i32 s21, s21, 8320")
    A.e(f"s_add_u32 s21, s21, {L_U0}")
    A.e("v_and_b32 v12, 15, v1")
    A.e("v_lshlrev_b32 v12, 2, v12")
    A.e("v_lshrrev_b32 v13, 4, v1")
    A.e("v_and_b32 v13, 1, v13")
    A.e("v_mul_u32_u24 v13, 0x2040, v13        ; 8256")
    A.e("v_add3_u32 v12, v12, v13, s21")
    A.e("ds_write_b32 v12, v192")
    A.e("s_waitcnt vmcnt(0)")
    st(A)
    first_scores(A)
    for t in range(NT): step(A, 0, t, first=True)

def b_transition(A, pfx):
    ldK, ldV = kv_load_groups()
    PK, PVn = PREF_K, PREF_V
    for g in ldK(0) + ldV(0):
        for x in g: A.e(x)
    q_reads(A)
    for t in range(1, PK):
        for g in ldK(t):
            for x in g: A.e(x)
        if t < PVn:
            for g in ldV(t):
                for x in g: A.e(x)
    late_setup(A)
    A.e("s_waitcnt lgkmcnt(0)")
    A.e("s_barrier")
    order = ["K0", "V0"]
    for t in range(1, PK):
        order.append(f"K{t}")
        if t < PVn: order.append(f"V{t}")
    A.e(f"s_waitcnt vmcnt({2*(len(order)-1)})")
    st(A)
    first_scores(A)
    for t in range(NT):
        fl = []; need = []
        if t+1 < NT: need.append(f"K{t+1}")
        if t >= 1: need.append(f"V{t-1}")
        idx = max(order.index(x) for x in need)
        nout = 2*(len(order) - 1 - idx)
        if t == NT-1: nout = 0
        new = []
        if t+PK < NT: fl += ldK(t+PK); new.append(f"K{t+PK}")
        if t+PVn < NT: fl += ldV(t+PVn); new.append(f"V{t+PVn}")
        step(A, 0, t, first=True, fillers=fl, pre=[f"s_waitcnt vmcnt({nout})"])
        order += new

def attention(A, pfx):
    srd(A, SA, PWS, WS_VA + 64*2048)
    A.e("s_lshl_b32 s44, s20, 14          ; KA: T*1024")
    A.e(f"s_lshl_b32 s45, s20, 13         ; KB: T*512")
    A.e(f"s_add_u32 s45, s45, {WS_KB}")
    A.e("s_lshl_b32 s46, s20, 15          ; VA: T*2048")
    A.e(f"s_add_u32 s46, s46, {WS_VA}")
    A.e(f"s_cmp_ge_u32 s3, {NCONV}")
    A.e(f"s_cbranch_scc1 {pfx}_btr")
    wl = []
    for c in range(8): wl += wdma_ring(c, BWchunk(c))
    def bg(kind, n):
        if kind == "b": return wl[n]
        if n < 8: return [f"s_add_u32 s63, s61, {64*1280*n}", f"buffer_load_dwordx2 {vr(176+2*n,2)}, v{VUD}, s[{SF}:{SF+3}], s63 offen"]
        if 12 <= n < 20:
            k = n - 12
            return (["s_waitcnt vmcnt(0)"] if k == 0 else []) + \
                   [f"ds_write_b32 v{VUP}, v{176+2*k} offset:{256*k}", f"ds_write_b32 v{VUP}, v{177+2*k} offset:{8320+256*k}"]
        return None
    def taus(kind):
        st(A)
        for tau in range(1, 7):
            for t in range(NT):
                fl = []
                if t in (3, 4, 6): fl += [part_write(tau)[(3, 4, 6).index(t)]]
                if t in (5, 8, 11, 14):
                    g = bg(kind, (tau-1)*4 + (t-5)//3)
                    if g: fl += [g]
                step(A, tau, t, fillers=fl)
            st(A)
    kgen_phase(A, pfx)
    A.e(f"s_mul_i32 s61, s20, {512*1280}")
    taus("a")
    A.e(f"s_branch {pfx}_tau7")
    A.label(f"{pfx}_btr")
    b_transition(A, pfx)
    taus("b")
    A.label(f"{pfx}_tau7")
    for t in range(NT): step(A, 7, t, last=True)
    st(A)
    A.e("s_nop 1")
    par = 1; Pp = P[(NT-1) & 1]
    A.e(f"v_mfma_f32_32x32x16_bf16 {vr(O[par],16)}, {VAr(NT-1,0)}, {vr(Pp,4)}, {vr(O[par],16)}")
    A.e(f"v_mfma_f32_32x32x16_bf16 {vr(O[par],16)}, {VAr(NT-1,1)}, {vr(Pp+4,4)}, {vr(O[par],16)}")
    A.e("s_waitcnt vmcnt(0) lgkmcnt(0)")
    A.e("s_barrier")
    st(A)

def reduce_publish(A, pfx):
    quads = [[64, 68, 72, 76, 112, 116, 120, 124, 176], [180, 184, 188, 192, 196, 44, 48, 52, 56]]
    def rdpart(jj):
        for sl in range(3):
            for g in range(3):
                A.e(f"ds_read_b128 {vr(quads[jj][3*sl+g], 4)}, v{VRED} offset:{(jj*3+sl)*PART + 1024*g}")
    rdpart(0)
    srd(A, SC, PWS, 2048*1280, add=WS_O)
    A.e("s_mov_b64 s[56:57], 0")
    for jj in range(2):
        Of = O[jj]
        A.e("s_waitcnt lgkmcnt(0)")
        if jj == 0: rdpart(1)
        for sl in range(3):
            for r in range(12): A.e(f"v_add_f32 v{Of+r}, v{Of+r}, v{quads[jj][3*sl + (r >> 2)] + (r & 3)}")
        A.e(f"v_mov_b32 v28, v{Of+8}")
        A.e(f"v_mov_b32 v29, v{Of+8}")
        A.e(f"v_max3_f32 v30, |v{Of}|, |v{Of+1}|, |v{Of+2}|")
        A.e(f"v_max3_f32 v30, v30, |v{Of+3}|, |v{Of+4}|")
        A.e("v_permlane32_swap_b32 v28, v29")
        for r in range(5, 11, 2): A.e(f"v_max3_f32 v30, v30, |v{Of+r}|, |v{Of+r+1}|")
        A.e(f"v_max_f32 v30, v30, |v{Of+11}|")
        A.e("v_cmp_nle_f32 vcc, 0x2b800000, v29      ; !(2^-40 <= l)")
        A.e("v_mov_b32 v31, 0x7f800000")
        A.e("v_rcp_f32 v28, v29")
        A.e("s_or_b64 s[56:57], s[56:57], vcc")
        A.e("v_cmp_nge_f32 vcc, 0x53800000, v29      ; !(2^40 >= l)")
        A.e("v_cmp_ngt_f32 s[58:59], v31, v30")
        A.e("v_mov_b32 v29, v28")
        A.e("s_or_b64 s[56:57], s[56:57], vcc")
        A.e("s_or_b64 s[56:57], s[56:57], s[58:59]")
        for r in range(12): A.e(f"v_mul_f32 v{16+r}, v{Of+r}, v29")
        for g in range(3):
            A.e(f"v_cvt_pk_bf16_f32 v{32+6*jj+2*g}, v{16+4*g}, v{17+4*g}")
            A.e(f"v_cvt_pk_bf16_f32 v{33+6*jj+2*g}, v{18+4*g}, v{19+4*g}")
    A.e(f"v_mov_b32 v14, {L_BAD}")
    A.e("s_cmp_eq_u64 s[56:57], 0")
    A.e(f"s_cbranch_scc1 {pfx}_safe")
    A.e("v_mov_b32 v15, 1")
    A.e("ds_write_b32 v14, v15")
    A.e("s_waitcnt lgkmcnt(0)")
    A.label(f"{pfx}_safe")
    A.e("s_barrier")
    A.e("ds_read_b32 v15, v14")
    for jj in range(2):
        A.e(f"ds_write_b64 v{VOS}, {vr(32+6*jj,2)} offset:{5120*jj}")
        A.e(f"ds_write_b64 v{VOS}, {vr(34+6*jj,2)} offset:{5120*jj+16}")
        A.e(f"ds_write_b64 v{VOS2a if jj == 0 else VOS2b}, {vr(36+6*jj,2)}")
    for i in range(3):
        A.e("s_mul_i32 s24, s23, 10")
        A.e("s_add_u32 s24, s24, s20")
        if i: A.e(f"s_add_u32 s24, s24, {4*i}")
        A.e("s_lshr_b32 s25, s24, 2")
        A.e("s_lshl_b32 s25, s25, 10")
        A.e("s_and_b32 s24, s24, 3")
        A.e("s_lshl_b32 s24, s24, 8")
        A.e("s_add_u32 s24, s24, s25")
        A.e("s_mul_i32 s25, s22, 81920")
        A.e(f"s_add_u32 s{28+i}, s24, s25")
    A.e("s_waitcnt lgkmcnt(0)")
    A.e("v_readfirstlane_b32 s56, v15")
    A.e("s_nop 0")
    A.e("s_cmp_lg_u32 s56, 0")
    A.e(f"s_cbranch_scc1 {pfx}_slow")
    A.label(f"{pfx}_staged")
    A.e("s_barrier")
    for i in range(3):
        A.e(f"ds_read_b128 {vr(44+4*i,4)}, v{VTID16} offset:{64*i}")
    for i in range(2):
        A.e(f"s_waitcnt lgkmcnt({2-i})")
        A.e(f"buffer_store_dwordx4 {vr(44+4*i,4)}, v{VOG}, s[{SC}:{SC+3}], s{28+i} offen sc1")
    A.e("s_cmp_ge_u32 s20, 2")
    A.e(f"s_cbranch_scc1 {pfx}_no3rd")
    A.e("s_waitcnt lgkmcnt(0)")
    A.e(f"buffer_store_dwordx4 {vr(52,4)}, v{VOG}, s[{SC}:{SC+3}], s30 offen sc1")
    A.label(f"{pfx}_no3rd")
    A.e("s_waitcnt lgkmcnt(0)")
    A.e("s_lshl_b32 s21, s22, 7")
    A.e(f"s_add_u32 s21, s21, {WS_FLAG}")
    srd(A, SE_, PWS, 128, add="s21")
    A.e(f"s_cmp_ge_u32 s3, {NCONV}")
    A.e(f"s_cbranch_scc1 {pfx}_nouprep")
    u_prep(A)
    A.label(f"{pfx}_nouprep")
    A.e("s_waitcnt vmcnt(0)")
    A.e("s_barrier")
    A.e("s_cmp_lg_u32 s20, 0")
    A.e(f"s_cbranch_scc1 {pfx}_noflag")
    A.e("s_lshl_b32 s21, s23, 2")
    A.e("v_mov_b32 v12, s21")
    A.e("v_mov_b32 v13, 1")
    A.e("s_mov_b64 exec, 1")
    A.e(f"buffer_store_dword v13, v12, s[{SE_}:{SE_+3}], 0 offen sc1")
    A.e("s_mov_b64 exec, -1")
    A.label(f"{pfx}_noflag")
    st(A)

def u_prep(A):
    for ps in range(5):
        b = 64 + 10*ps
        A.e(f"ds_read_b128 {vr(b,4)}, v{VUR} offset:{2048*ps}")
        A.e(f"ds_read_b128 {vr(b+4,4)}, v{VUR} offset:{2048*ps+16}")
        A.e(f"ds_read_b32 v{b+8}, v{VUR} offset:{2048*ps+32}")
    A.e("s_and_b32 s21, s20, 1")
    A.e("s_cmp_eq_u32 s21, 0")
    A.e("s_mov_b32 s25, 0x07060302")
    A.e("s_cselect_b32 s26, 0x05040100, s25")
    A.e(f"v_add_u32 v12, {L_U0}, v{VUW}")
    A.e("s_waitcnt lgkmcnt(0)")
    A.e("s_barrier")
    for ps in range(5):
        b = 64 + 10*ps
        if ps == 4: A.e("s_mov_b64 exec, 15")
        o = 116 + 8*(ps & 1)
        for i in range(4): A.e(f"v_perm_b32 v{o+i}, v{b+2*i+1}, v{b+2*i}, s26")
        for i in range(4): A.e(f"v_perm_b32 v{o+4+i}, v{b+2*i+2}, v{b+2*i+1}, s26")
        A.e(f"ds_write_b128 v12, {vr(o,4)} offset:{1024*ps}")
        A.e(f"ds_write_b128 v{VUW}, {vr(o+4,4)} offset:{L_U1+1024*ps}")
        if ps == 4: A.e("s_mov_b64 exec, -1")

def conv_part(A, pfx):
    ACC = 16; AB = 64
    def Br(D, i): return ar(32*D + 4*i, 4)
    def Ar(c, i): return vr(AB + 32*(c & 1) + 4*i, 4)
    def Ahalf(c, i, h): return vr(AB + 32*(c & 1) + 4*i + 2*h, 2)
    srd(A, SH, POUT, 2048*2560)
    A.e("s_waitcnt lgkmcnt(0)")
    st(A)
    q = Q(A)
    def readsA(c):
        L = [It(f"v_add_u32 v11, {512*c}, v{VCU}")]
        for i in range(8):
            L.append(It(f"ds_read2_b32 {Ahalf(c,i,0)}, v11 offset0:{16*i} offset1:{16*i+1}", lds=f"a{c}_{i}"))
            L.append(It(f"ds_read2_b32 {Ahalf(c,i,1)}, v11 offset0:{16*i+2} offset1:{16*i+3}", lds=f"a{c}_{i}"))
        return L
    def readsB(D):
        return [It(f"ds_read_b128 {Br(D,i)}, v{VCK} offset:{512*(7-D)+64*i}", lds=f"b{D}_{i}") for i in range(8)]
    def mm(c, D, i):
        acc = ACC + 4*(c + D)
        first = (c == 0 and i == 0)
        return It(f"v_mfma_f32_16x16x32_bf16 {vr(acc,4)}, {Ar(c,i)}, {Br(D,i)}, {'0' if first else vr(acc,4)}", needl=(f"a{c}_{i}", f"b{D}_{i}"), w=2)
    def flush1(B):
        acc = ACC + 4*B; bo = (B & 1)*YSB
        return [It(f"v_cvt_pk_bf16_f32 v48, v{acc}, v{acc+1}"), It(f"v_cvt_pk_bf16_f32 v49, v{acc+2}, v{acc+3}"),
                It(f"ds_write_b64 v{VYS}, v[48:49] offset:{bo}", lds=f"yw{B}")]
    def flush2(B):
        bo = (B & 1)*YSB; r = 50 + 2*(B & 1)
        return [It("s_barrier", needl=(f"yw{B}",)),
                It(f"ds_read_b64_tr_b16 {vr(r,2)}, v{VYT} offset:{bo}", lds=f"yr{B}")]
    def flush3(B):
        r = 50 + 2*(B & 1)
        return [It([f"s_mov_b32 s28, {B*256*2560}", f"buffer_store_dwordx2 {vr(r,2)}, v{VYO}, s[{SH}:{SH+3}], s28 offen"], vm="Y", needl=(f"yr{B}",))]
    q.run(readsA(0) + readsB(0))
    for c in range(8):
        if c == 0:
            for D in range(8):
                M = [mm(0, D, i) for i in range(8)]
                R = readsB(D+1) if D < 7 else readsA(1)
                q.run(merge(M, R))
        else:
            M = [mm(c, D, i) for i in range(8) for D in range(8-c)]
            R = readsA(c+1) if c < 7 else []
            n = len(M); h1 = min(5, n); h2 = max(h1, n//2);
            q.run(M[:h1])
            if c == 7: A.e("s_nop 2")
            q.run(flush1(c-1))
            q.run(merge(M[h1:h2], R[:len(R)//2]))
            q.run(flush2(c-1))
            q.run(merge(M[h2:], R[len(R)//2:]))
            q.run(flush3(c-1))
        import os
        if Cfg.STAMP and os.environ.get("DETC") == "1": st(A); q.lq = []
    A.e("s_nop 7")
    q.run(flush1(7) + flush2(7) + flush3(7))
    st(A)
    finish(A)

BW0 = 73728
def BWchunk(c): return (BW0 + c*WCH) if c < 8 else (16704 + (c-8)*WCH)
BXBUF = [0, 8192, 37184, 37184+8192, 37184+16384, 37184+24576]

def finish(A):
    if Cfg.STAMP:
        A.e("s_waitcnt vmcnt(0)")
        st(A)
        A.e("s_mov_b32 s2, s3")
        stamp_out(A, PWS, 4, STAMP_BASE, VSTAMP, VSTMP)
    A.e("s_endpgm")

def outproj_b(A, pfx):
    A.e("s_mov_b32 s60, s22")
    A.e("s_sub_u32 s61, s22, 20")
    A.e("s_add_u32 s62, s61, 12")
    A.e("s_cmp_lt_u32 s62, 20")
    A.e("s_cselect_b32 s63, 3, 2")
    A.e("s_cselect_b32 s62, s62, s61")
    q = Q(A)
    for c in (8, 9): q.run([It(g, vm=f"W{c}") for g in wdma_ring(c, BWchunk(c))])
    srd(A, SE_, PWS, 32*128, add=WS_FLAG)
    def wait_flags(name, regs):
        nl = 8*len(regs)
        A.e("s_cmp_lg_u32 s20, 0")
        A.e(f"s_cbranch_scc1 {pfx}_{name}_np")
        A.e(f"v_mov_b32 v14, s{regs[0]}")
        if len(regs) > 1:
            A.e("v_lshrrev_b32 v13, 3, v1")
            A.e("v_cmp_eq_u32 vcc, 1, v13")
            A.e(f"v_mov_b32 v15, s{regs[1]}")
            A.e("s_nop 0")
            A.e("v_cndmask_b32 v14, v14, v15, vcc")
        A.e("v_and_b32 v12, 7, v1")
        A.e("v_lshlrev_b32 v12, 2, v12")
        A.e("v_lshl_add_u32 v12, v14, 7, v12")
        A.e(f"s_mov_b32 s35, {SPIN_MAX}")
        A.e(f"s_mov_b64 exec, {hex((1 << nl)-1)}")
        A.label(f"{pfx}_{name}_p")
        A.e(f"buffer_load_dword v13, v12, s[{SE_}:{SE_+3}], 0 offen sc1")
        A.e("s_waitcnt vmcnt(0)")
        A.e("v_cmp_ne_u32 vcc, 0, v13")
        A.e("s_sub_u32 s35, s35, 1")
        A.e("s_cmp_eq_u32 s35, 0")
        A.e(f"s_cbranch_scc1 {pfx}_{name}_d")
        A.e(f"s_cmp_eq_u32 vcc_lo, {hex((1 << nl)-1)}")
        A.e(f"s_cbranch_scc1 {pfx}_{name}_d")
        A.e(f"s_branch {pfx}_{name}_p")
        A.label(f"{pfx}_{name}_d")
        A.e("s_mov_b64 exec, -1")
        A.label(f"{pfx}_{name}_np")
        A.e("s_waitcnt vmcnt(0)")
        A.e("s_barrier")
    wait_flags("o", [60])
    q.vq = []
    st(A)
    srd(A, SA, PWS, 2048*1280, add=WS_O)
    srd(A, SC, POUT, 2048*2560)
    for t in range(3):
        A.e(f"s_lshl_b32 s21, s{60+t}, 2")
        A.e("s_add_u32 s21, s21, s20")
        A.e(f"s_mul_i32 s{56+t}, s21, 20480")
    ACC = [16, 36]; WF = 56
    def Xr(sl, kk): return ar(80*sl + 4*kk, 4)
    def xld(sl, t, kk):
        return It([f"s_add_u32 s36, s{56+t}, {1024*kk}", f"buffer_load_dwordx4 {Xr(sl, kk)}, v4, s[{SA}:{SA+3}], s36 offen"], vm=f"X{sl}_{kk}")
    def rdW(kk, mt):
        c, ks = kk >> 1, kk & 1; out = []
        for h in range(2):
            off = BWchunk(c) + (32*ks + 8*h)*160 + 32*mt
            a = VWT
            if off >= 131072: a, off = VWTh2, off - 131072
            elif off >= 65536: a, off = VWTh, off - 65536
            out.append(It(f"ds_read_b64_tr_b16 {vr(WF+mt*4+h*2,2)}, v{a} offset:{off}", lds=f"w{kk}_{mt}"))
        return out
    def pack(slot, base):
        for mt in range(5):
            acc = ACC[slot] + 4*mt
            r = base + 2*mt
            A.e(f"v_cvt_pk_bf16_f32 v{r}, v{acc}, v{acc+1}")
            A.e(f"v_cvt_pk_bf16_f32 v{r+1}, v{acc+2}, v{acc+3}")
    def store(base, t):
        A.e(f"s_mul_i32 s21, s{60+t}, 163840")
        A.e("s_add_u32 s21, s21, s55")
        for pr in range(2):
            r = base + 4*pr
            A.e(f"v_permlane16_swap_b32 v{r}, v{r+2}")
            A.e(f"v_permlane16_swap_b32 v{r+1}, v{r+3}")
        q.emit(It(f"buffer_store_dwordx4 {vr(base,4)}, v{VOUT2}, s[{SC}:{SC+3}], s21 offen", vm="S"))
        q.emit(It(f"buffer_store_dwordx4 {vr(base+4,4)}, v{VOUT2}, s[{SC}:{SC+3}], s21 offen offset:64", vm="S"))
        q.emit(It(f"buffer_store_dwordx2 {vr(base+8,2)}, v{VOUT}, s[{SC}:{SC+3}], s21 offen offset:128", vm="S"))
    A.e("s_mul_i32 s55, s23, 160")
    A.e("s_add_u32 s55, s55, 1280")
    def run_pass(tiles):
        n = len(tiles)
        loads = [xld(sl, t, kk) for kk in range(20) for sl, t in enumerate(tiles)]
        ahead = 8*n
        q.run(loads[:ahead]); loads = loads[ahead:]
        for mt in range(5): q.run(rdW(0, mt))
        for kk in range(20):
            for mt in range(5):
                for sl in range(n):
                    nl = gemm_need(kk, mt, []) if sl == 0 else ()
                    nv = tuple(f"X{z}_{kk}" for z in range(n)) if (mt == 0 and sl == 0) else ()
                    q.emit(It(f"v_mfma_f32_16x16x32_bf16 {vr(ACC[sl]+4*mt,4)}, {vr(WF+4*mt,4)}, {Xr(sl, kk)}, {vr(ACC[sl]+4*mt,4) if kk else '0'}",
                              needl=nl, needv=nv))
                if loads and mt < n: q.emit(loads.pop(0))
                if kk+1 < 20: q.run(rdW(kk+1, mt))
        assert not loads
        q.all_l()
        A.e("s_nop 7")
    run_pass([0])
    pack(0, 92)
    store(92, 0)
    st(A)
    wait_flags("o2", [61, 62])
    q.vq = []
    st(A)
    A.e("s_cmp_eq_u32 s63, 2")
    A.e(f"s_cbranch_scc1 {pfx}_b2")
    q = Q(A)
    run_pass([1, 2])
    st(A)
    pack(0, 92); pack(1, 104)
    store(92, 1); store(104, 2)
    finish(A)
    A.label(f"{pfx}_b2")
    q = Q(A)
    run_pass([1])
    st(A)
    pack(0, 92)
    store(92, 1)
    finish(A)

def slow_softmax(A, pfx):
    QD, MX, PS = 10240, 22528, 24576
    Sx, Px, Ox, QFA, QFB = 16, 48, 80, 64, 68
    A.label(f"{pfx}_slow")
    A.e("s_barrier")
    A.e("s_cmp_lg_u32 s20, 0")
    A.e(f"s_cbranch_scc1 {pfx}_sl_nodump")
    A.e("v_lshlrev_b32 v13, 3, v1")
    for tau in range(8):
        j = (2 + tau) & 7
        A.e(f"ds_write_b128 v4, {QAr(tau)} offset:{QD + 1536*j}")
        A.e(f"ds_write_b64 v13, {QBr(tau)} offset:{QD + 1536*j + 1024}")
    A.e("s_waitcnt lgkmcnt(0)")
    A.label(f"{pfx}_sl_nodump")
    A.e("s_barrier")
    A.e("s_mov_b32 s56, 0                 ; tile j")
    A.e("v_and_b32 v12, 31, v1")
    A.e("v_lshlrev_b32 v12, 2, v12        ; query*4")
    A.e("s_lshl_b32 s21, s20, 7")
    A.e(f"s_add_u32 s21, s21, {MX}")
    A.e("v_add_u32 v72, s21, v12")
    A.e(f"v_add_u32 v73, {MX}, v12")
    A.e(f"s_mul_i32 s21, s20, {PART}")
    A.e(f"s_add_u32 s21, s21, {PS}")
    A.e("v_add_u32 v74, s21, v4")
    A.e(f"v_add_u32 v75, {PS}, v4")
    A.label(f"{pfx}_sl_loop")
    A.e("s_mul_i32 s21, s56, 1536")
    A.e(f"s_add_u32 s21, s21, {QD}")
    A.e("v_add_u32 v14, s21, v4")
    A.e("v_lshlrev_b32 v15, 3, v1")
    A.e("v_add_u32 v15, s21, v15")
    A.e(f"ds_read_b128 {vr(QFA,4)}, v14")
    A.e(f"ds_read_b64 {vr(QFB,2)}, v15 offset:1024")
    A.e("v_mov_b32 v70, 0xff800000")
    A.e("s_waitcnt lgkmcnt(0)")
    def scores(t):
        A.e(f"v_mfma_f32_32x32x16_bf16 {vr(Sx,16)}, {KAr(t)}, {vr(QFA,4)}, 0")
        A.e(f"v_mfma_f32_32x32x8_bf16 {vr(Sx,16)}, {KBr(t)}, {vr(QFB,2)}, {vr(Sx,16)}")
        A.e("s_nop 11")
    for t in range(NT):
        scores(t)
        for i in range(8): A.e(f"v_max3_f32 v70, v70, v{Sx+2*i}, v{Sx+2*i+1}")
        A.e("s_nop 6")
    A.e("v_mov_b32 v71, v70")
    A.e("v_mov_b32 v76, v70")
    A.e("s_nop 1")
    A.e("v_permlane32_swap_b32 v71, v76")
    A.e("s_nop 1")
    A.e("v_max3_f32 v70, v70, v71, v76")
    A.e("ds_write_b32 v72, v70")
    A.e("s_waitcnt lgkmcnt(0)")
    A.e("s_barrier")
    for w in range(4): A.e(f"ds_read_b32 v{76+w}, v73 offset:{128*w}")
    A.e("s_waitcnt lgkmcnt(0)")
    A.e("v_max3_f32 v71, v76, v77, v78")
    A.e("v_max_f32 v71, v71, v79")
    for t in range(NT):
        scores(t)
        for i in range(16): A.e(f"v_sub_f32 v{Sx+i}, v{Sx+i}, v71")
        for i in range(16): A.e(f"v_exp_f32 v{Sx+i}, v{Sx+i}")
        A.e("s_nop 0")
        for i in range(8): A.e(f"v_cvt_pk_bf16_f32 v{Px+i}, v{Sx+2*i}, v{Sx+2*i+1}")
        A.e("s_nop 1")
        A.e(f"v_mfma_f32_32x32x16_bf16 {vr(Ox,16)}, {VAr(t,0)}, {vr(Px,4)}, {'0' if t == 0 else vr(Ox,16)}")
        A.e(f"v_mfma_f32_32x32x16_bf16 {vr(Ox,16)}, {VAr(t,1)}, {vr(Px+4,4)}, {vr(Ox,16)}")
        A.e("s_nop 6")
    A.e("s_nop 11")
    for g in range(3): A.e(f"ds_write_b128 v74, {vr(Ox+4*g,4)} offset:{1024*g}")
    A.e("s_waitcnt lgkmcnt(0)")
    A.e("s_barrier")
    A.e("s_lshr_b32 s21, s56, 1")
    A.e("s_cmp_lg_u32 s21, s20")
    A.e(f"s_cbranch_scc1 {pfx}_sl_next")
    for w in range(4):
        for g in range(3): A.e(f"ds_read_b128 {vr(16+12*w+4*g,4)}, v75 offset:{PART*w + 1024*g}")
    A.e("s_waitcnt lgkmcnt(0)")
    for w in range(1, 4):
        for r in range(12): A.e(f"v_add_f32 v{16+r}, v{16+r}, v{16+12*w+r}")
    A.e("v_mov_b32 v76, v24")
    A.e("v_mov_b32 v77, v24")
    A.e("s_nop 1")
    A.e("v_permlane32_swap_b32 v76, v77")
    A.e("s_nop 1")
    A.e("v_rcp_f32 v77, v77")
    A.e("s_nop 0")
    for r in range(12): A.e(f"v_mul_f32 v{16+r}, v{16+r}, v77")
    for g in range(3):
        A.e(f"v_cvt_pk_bf16_f32 v{32+2*g}, v{16+4*g}, v{17+4*g}")
        A.e(f"v_cvt_pk_bf16_f32 v{33+2*g}, v{18+4*g}, v{19+4*g}")
    A.e("s_and_b32 s21, s56, 1")
    A.e("s_mul_i32 s21, s21, 5120")
    A.e(f"v_add_u32 v14, s21, v{VOS}")
    A.e("ds_write_b64 v14, v[32:33]")
    A.e("ds_write_b64 v14, v[34:35] offset:16")
    A.e("s_mov_b32 exec_hi, 0")
    A.e("ds_write_b64 v14, v[36:37] offset:32")
    A.e("s_mov_b32 exec_hi, -1")
    A.e("s_waitcnt lgkmcnt(0)")
    A.label(f"{pfx}_sl_next")
    A.e("s_barrier")
    A.e("s_add_u32 s56, s56, 1")
    A.e("s_cmp_lt_u32 s56, 8")
    A.e(f"s_cbranch_scc1 {pfx}_sl_loop")
    A.e(f"s_branch {pfx}_staged")

def mega_role(A, pfx):
    prologue(A, pfx)
    front(A, pfx)
    attention(A, pfx)
    reduce_publish(A, pfx)
    A.e(f"s_cmp_ge_u32 s3, {NCONV}")
    A.e(f"s_cbranch_scc1 {pfx}_bback")
    conv_part(A, pfx)
    A.label(f"{pfx}_bback")
    outproj_b(A, pfx)
    slow_softmax(A, pfx)
    A.label(f"{pfx}_end")
    A.e("s_endpgm")
```

```python
from common import *
from sched import *
import math
LOG2E = math.log2(math.e)
GBUF = 18432; GXB = 8192
L_KR = 73728
L_KG = 0; KGW = 25872
RA = 3
L_XR = 0; L_WKV = 81920; L_WR = 107520
L_QL = 104448
L_PART = 0; PART = 3072
L_U0 = 92160; CS = 4160
L_WA = 108800; WCH = 10240
L_DUMMY = 160000
L_U1 = 64; L_WB = 16704
L_YS = 16896; YSC = 576; YSB = 4*YSC
L_BAD = 161024
LDS_MEGA = 161088
def Wchunk(c): return (L_WA + c*WCH) if c < 5 else (L_WB + (c-5)*WCH)
XBUF = [L_KR, L_KR+8192, L_U0, L_U0+8192, L_U1, L_U1+8192]
WS_FLAG = 0x1100000
SPIN_MAX = 1 << 18
NCONV = 160
PU, PARE, PAIM, PBRE, PBIM, PCRE, PCIM, PLDT = 64, 66, 68, 70, 72, 74, 76, 78
PDSK, PX, PWQ, PWK, PWV, PWO, POUT, PDBG = 80, 82, 84, 86, 88, 90, 92, 94
PWS = 4
SA, SB, SC, SD, SE_, SF, SG, SH = 8, 12, 16, 40, 44, 48, 52, 56
VXD0, VXD1 = 200, 201
VWD = 202
VOUT = 205
VYO = 206
VOS, VOS2a, VOS2b = 207, 208, 209
VOG = 210
VTID16 = 213
VCU, VCK = 214, 215
VYS = 216
VYT, VUT = 217, 218
VUR = 219
VUW = 220
VRED = 221
VXF0, VXF1 = 222, 223
VWT = 224
VUD = 225
VQW = 226
VQR, VQRB = 231, 232
VXF0h, VXF1h, VWTh, VWTh2 = 233, 234, 235, 236
VOUT2 = 245
VUP = 237
VPA = 238
VSTAMP, VSTMP = 252, 253
S = [16, 32]; P = [48, 56]; O = [80, 96]; VW = 7; NT = 16
def QAr(tau): return vr(128+6*tau, 4)
def QBr(tau): return vr(132+6*tau, 2)
def KAr(t): return ar(4*t, 4)
def KBr(t): return ar(64+2*t, 2)
def VAr(t, u): return ar(96+8*t+4*u, 4)

def st(A): stamp(A, VSTAMP)

PREFETCH = True
CODE_BYTES = 80*1024
def prefetch(A, pfx):
    A.e("s_getpc_b64 s[24:25]")
    A.label(f"{pfx}_pc")
    A.e("s_lshr_b32 s26, s3, 3")
    A.e("s_lshl_b32 s26, s26, 2")
    A.e("s_add_u32 s26, s26, s20          ; slice 0..127")
    A.e("s_mul_i32 s26, s26, 768")
    A.e("v_min_u32 v12, 5, v1")
    A.e("v_lshlrev_b32 v12, 7, v12")
    A.e("v_add_u32 v12, s26, v12")
    A.e(f"v_min_u32 v12, mg_end-{pfx}_pc-4, v12")
    A.e("global_load_dword v249, v12, s[24:25]")
    A.e("s_lshl_b32 s26, s3, 2")
    A.e("s_add_u32 s26, s26, s20")
    A.e("s_lshl_b32 s26, s26, 6")
    A.e("v_add_u32 v12, s26, v1           ; slot")
    A.e("v_lshlrev_b32 v13, 7, v12")
    srd(A, SB, PX, 2048*1280)
    A.e(f"buffer_load_dword v250, v13, s[{SB}:{SB+3}], 0 offen")
    A.e("v_subrev_u32 v13, 0x280000, v13")
    srd(A, SB, PWQ, 819200)
    A.e(f"buffer_load_dword v251, v13, s[{SB}:{SB+3}], 0 offen")
def prologue(A, pfx):
    A.e("s_load_dwordx16 s[64:79], s[0:1], 0")
    A.e("s_load_dwordx16 s[80:95], s[0:1], 64")
    A.e(f"s_load_dwordx2 s[4:5], s[0:1], 128")
    A.e("s_mov_b32 s3, s2")
    A.e("s_cmp_ge_u32 s2, 256")
    A.e(f"s_cbranch_scc1 {pfx}_end")
    if PREFETCH:
        A.e("s_getpc_b64 s[24:25]")
        A.label(f"{pfx}_pc0")
        A.e("v_lshlrev_b32 v12, 7, v0")
        A.e("global_load_dword v247, v12, s[24:25]")
    stamp_init(A, VSTAMP); st(A)
    A.e("v_and_b32 v1, 63, v0")
    A.e("v_lshrrev_b32 v12, 6, v0")
    A.e("v_lshlrev_b32 v4, 4, v1          ; lane*16")
    A.e("v_readfirstlane_b32 s20, v12")
    A.e("v_and_b32 v2, 15, v1")
    A.e("v_lshrrev_b32 v3, 4, v1")
    A.e(f"s_sub_u32 s52, s3, {NCONV}        ; j")
    A.e("s_and_b32 s24, s3, 7             ; r")
    A.e("s_lshr_b32 s25, s3, 3            ; q (conv)")
    A.e("s_lshr_b32 s26, s52, 3           ; q (others)")
    A.e(f"s_cmp_ge_u32 s3, {NCONV}")
    A.e("s_cselect_b32 s25, s26, s25      ; q")
    A.e("s_cselect_b32 s26, 8, 16")
    A.e("s_cselect_b32 s27, 20, 0")
    A.e("s_cselect_b32 s28, 28, 16")
    A.e("s_lshr_b32 s22, s25, 3")
    A.e("s_lshl_b32 s22, s22, 3")
    A.e("s_add_u32 s22, s22, s24")
    A.e("s_add_u32 s22, s22, s27")
    A.e("s_and_b32 s23, s25, 7")
    A.e("s_lshr_b32 s29, s24, 1")
    A.e("s_add_u32 s29, s29, s28")
    A.e("s_and_b32 s30, s24, 1")
    A.e("s_lshl_b32 s30, s30, 2")
    A.e("s_add_u32 s30, s30, s25")
    A.e("s_sub_u32 s30, s30, s26")
    A.e("s_cmp_ge_u32 s25, s26")
    A.e("s_cselect_b32 s22, s29, s22")
    A.e("s_cselect_b32 s23, s30, s23")
    A.e("s_lshr_b32 s53, s52, 5")
    A.e("s_min_u32 s53, s53, 2")
    A.e("s_cselect_b32 s53, s53, s53")
    A.e(f"s_cmp_lt_u32 s3, {NCONV}")
    A.e("s_cselect_b32 s53, 2, s53")
    A.e("s_and_b32 s54, s52, 31")
    A.e("s_cmp_lt_u32 s53, 2")
    A.e("s_cselect_b32 s54, s54, s22")
    A.e("s_lshl_b32 s32, s20, 10          ; wave*1024")
    A.e("s_lshl_b32 s31, s20, 11          ; wave*2048")
    A.e("s_and_b32 s33, s3, 7")
    A.e("s_mul_i32 s33, s33, 20")
    A.e("s_lshr_b32 s34, s3, 3")
    A.e("s_add_u32 s33, s33, s34")
    A.e("s_min_u32 s33, s33, 159")
    A.e("s_lshl_b32 s34, s33, 2")
    A.e("s_add_u32 s34, s34, s20          ; channel d")
    A.e("s_movk_i32 s27, 1280")
    A.e("v_lshrrev_b32 v12, 3, v1")
    A.e("v_and_b32 v13, 7, v1")
    A.e("v_xor_b32 v13, v13, v12")
    A.e("v_lshlrev_b32 v13, 4, v13")
    A.e("s_lshl_b32 s21, s20, 4")
    A.e("v_add_u32 v12, s21, v12")
    A.e(f"v_mad_u32_u24 v{VXD0}, v12, s27, v13")
    A.e(f"v_add_u32 v{VXD1}, 10240, v{VXD0}")
    A.e("s_mov_b32 s26, 6554")
    for n in range(3):
        A.e(f"s_add_u32 s21, s20, {4*n}")
        A.e("s_lshl_b32 s21, s21, 6")
        A.e("v_add_u32 v12, s21, v1          ; p")
        A.e("v_mul_u32_u24 v13, s26, v12")
        A.e("v_lshrrev_b32 v13, 16, v13      ; rho")
        A.e("v_mul_u32_u24 v14, 10, v13")
        A.e("v_sub_u32 v14, v12, v14         ; cc")
        A.e("v_lshlrev_b32 v14, 4, v14")
        A.e("v_and_b32 v15, 0x33, v13")
        A.e("v_bfe_u32 v5, v13, 2, 1")
        A.e("v_lshl_or_b32 v15, v5, 3, v15")
        A.e("v_bfe_u32 v5, v13, 3, 1")
        A.e("v_lshl_or_b32 v15, v5, 2, v15")
        A.e(f"v_mad_u32_u24 v{VWD+n}, v15, s27, v14")
        if n == 2:
            A.e(f"v_mov_b32 v12, {OOB}")
            A.e("v_cmp_gt_u32 vcc, 64, v13")
            A.e("s_nop 1")
            A.e(f"v_cndmask_b32 v{VWD+2}, v12, v{VWD+2}, vcc")
    A.e("s_waitcnt lgkmcnt(0)")
    A.e("s_mul_i32 s21, s54, 81920")
    srd(A, SA, PX, 81920, add="s21")
    A.e("s_mul_i32 s21, s23, 160")
    srd(A, SD, PWQ, "0", add="s21")
    A.e(f"s_sub_u32 s{SD+2}, 819200, s21")

def addr_setup_items(part="front"):
    T = Asm(); A = T
    A.e("s_lshl_b32 s21, s20, 4")
    A.e("v_add_u32 v12, s21, v2")
    A.e("v_lshlrev_b32 v12, 7, v12")
    A.e("v_and_b32 v13, 7, v2")
    A.e("v_xor_b32 v14, v13, v3")
    A.e(f"v_lshl_add_u32 v{VXF0}, v14, 4, v12")
    A.e("v_add_u32 v14, 4, v3")
    A.e("v_xor_b32 v14, v13, v14")
    A.e(f"v_lshl_add_u32 v{VXF1}, v14, 4, v12")
    A.e(f"v_add_u32 v{VXF0h}, 65536, v{VXF0}")
    A.e(f"v_add_u32 v{VXF1h}, 65536, v{VXF1}")
    A.e("v_lshrrev_b32 v12, 1, v3")
    A.e("v_lshlrev_b32 v12, 4, v12")
    A.e("v_and_b32 v13, 1, v3")
    A.e("v_lshl_add_u32 v12, v13, 2, v12")
    A.e("v_lshrrev_b32 v13, 2, v2")
    A.e("v_add_u32 v12, v12, v13")
    A.e("v_mul_u32_u24 v12, 160, v12")
    A.e("v_and_b32 v13, 3, v2")
    A.e(f"v_lshl_add_u32 v{VWT}, v13, 3, v12")
    A.e(f"v_add_u32 v{VWTh}, 65536, v{VWT}")
    A.e(f"v_add_u32 v{VWTh2}, 0x20000, v{VWT}")
    A.e("s_and_b32 s21, s20, 1")
    A.e("s_lshl_b32 s21, s21, 4")
    A.e("v_add_u32 v15, s21, v2          ; pos32")
    A.e("s_lshr_b32 s24, s20, 1")
    A.e("s_mul_i32 s24, s24, 1280")
    A.e(f"s_add_u32 s24, s24, {L_QL}")
    A.e("v_lshlrev_b32 v14, 3, v15        ; 8*pos32")
    A.e("v_add_u32 v14, s24, v14")
    A.e("v_lshlrev_b32 v13, 4, v3")
    A.e("v_and_b32 v13, 16, v13")
    A.e("v_cmp_lt_u32 vcc, 1, v3          ; g >= 2")
    for mt in range(5):
        cs = []; isb = []
        for g in range(4):
            c0 = 16*mt + 4*g; hl, d0 = divmod(c0, 20)
            if d0 < 16: cs.append(hl*2560 + ((d0 >> 2) & 1)*512 + (d0 >> 3)*8); isb.append(0)
            else: cs.append(hl*2560 + 1024); isb.append(1)
        enc = [c | (0 if b else 0x8000) for c, b in zip(cs, isb)]
        assert all(c < 0x8000 for c in cs)
        A.e(f"v_mov_b32 v12, {hex(enc[0] | (enc[1] << 16))}")
        A.e(f"v_mov_b32 v6, {hex(enc[2] | (enc[3] << 16))}")
        A.e("v_cndmask_b32 v12, v12, v6, vcc")
        A.e("v_lshrrev_b32 v12, v13, v12")
        A.e("v_bfe_u32 v6, v12, 15, 1")
        A.e("v_and_b32 v12, 0x7fff, v12")
        A.e("v_mul_u32_u24 v6, v6, v15")
        A.e("v_lshl_add_u32 v6, v6, 3, v14")
        A.e(f"v_add_u32 v{VQW+mt}, v6, v12")
    A.e(f"v_add_u32 v{VQR}, {L_QL}, v4")
    A.e(f"v_lshlrev_b32 v{VQRB}, 3, v1")
    A.e(f"v_mov_b32 v12, {OOB}")
    A.e("v_lshlrev_b32 v5, 3, v1")
    A.e("v_cmp_gt_u32 vcc, 32, v1")
    A.e("v_and_b32 v13, 31, v1")
    A.e("s_nop 0")
    A.e("v_cndmask_b32 v5, v12, v5, vcc")
    A.e("v_cmp_gt_u32 vcc, 21, v13")
    A.e("s_nop 1")
    A.e("v_cndmask_b32 v8, v12, v4, vcc")
    if part == "front": return [x.strip() for x in T.lines if x.strip()]
    T.lines.clear()
    A.e(f"s_mul_i32 s21, s20, {6*PART}")
    A.e(f"v_add_u32 v{VRED}, s21, v4")
    A.e("v_and_b32 v13, 31, v1")
    A.e("v_mul_u32_u24 v13, 160, v13")
    A.e("v_lshrrev_b32 v14, 5, v1         ; h")
    A.e("v_lshl_add_u32 v13, v14, 3, v13")
    A.e("s_mul_i32 s24, s20, 40")
    A.e(f"v_add_u32 v{VOS}, s24, v13")
    A.e(f"v_mov_b32 v12, {L_DUMMY}")
    A.e(f"v_add_u32 v13, 32, v{VOS}")
    A.e("v_cmp_eq_u32 vcc, 0, v14")
    A.e(f"v_add_u32 v15, 5152, v{VOS}")
    A.e("s_nop 0")
    A.e(f"v_cndmask_b32 v{VOS2a}, v12, v13, vcc")
    A.e(f"v_cndmask_b32 v{VOS2b}, v12, v15, vcc")
    A.e("v_lshrrev_b32 v13, 4, v1")
    A.e("v_mul_u32_u24 v13, 0x5000, v13       ; (row >> 4) * 20480")
    A.e("v_and_b32 v14, 15, v1")
    A.e(f"v_lshl_add_u32 v{VOG}, v14, 4, v13")
    A.e("v_mul_u32_u24 v13, 160, v1")
    A.e("s_lshl_b32 s24, s20, 4")
    A.e(f"v_add_u32 v{VTID16}, s24, v13")
    A.e("s_lshl_b32 s21, s20, 4")
    A.e("s_movk_i32 s26, 2560")
    A.e("v_add_u32 v13, s21, v2")
    A.e("v_mul_u32_u24 v13, s26, v13")
    A.e(f"v_lshl_add_u32 v{VOUT}, v3, 3, v13")
    A.e("v_and_b32 v14, 1, v3")
    A.e("v_lshl_add_u32 v13, v14, 5, v13")
    A.e("v_lshrrev_b32 v14, 1, v3")
    A.e(f"v_lshl_add_u32 v{VOUT2}, v14, 4, v13     ; + 32 (g & 1) + 16 (g >> 1)")
    A.e("s_lshl_b32 s21, s20, 6")
    A.e("v_add_u32 v13, s21, v1")
    A.e("v_mul_u32_u24 v13, s26, v13")
    A.e("s_lshl_b32 s21, s33, 3")
    A.e(f"v_add_u32 v{VYO}, s21, v13")
    A.e("v_add_u32 v12, 1, v2")
    A.e("v_and_b32 v12, 1, v12            ; cp")
    A.e("v_sub_u32 v13, v2, v12")
    A.e("v_add_u32 v13, 9, v13")
    A.e("v_and_b32 v14, 1, v3")
    A.e("v_lshlrev_b32 v14, 3, v14        ; 8(g&1)")
    A.e("v_sub_u32 v13, v13, v14")
    A.e("v_lshrrev_b32 v15, 1, v3         ; g>>1")
    A.e("v_lshl_add_u32 v13, v15, 4, v13")
    A.e("v_lshlrev_b32 v13, 1, v13")
    A.e("v_xor_b32 v12, 1, v12")
    A.e(f"s_mov_b32 s24, {L_U0 - L_U1}")
    A.e("v_mul_lo_u32 v12, v12, s24")
    A.e("v_add_u32 v13, v13, v12")
    A.e(f"s_mul_i32 s21, s20, {CS}")
    A.e(f"s_add_u32 s24, s21, {L_U1}")
    A.e(f"v_add_u32 v{VCU}, s24, v13")
    A.e(f"v_add_u32 v{VUW}, s21, v4")
    A.e("v_lshlrev_b32 v13, 4, v2")
    A.e("v_sub_u32 v13, 2040, v13")
    A.e("v_lshl_add_u32 v13, v15, 4, v13")
    A.e("v_sub_u32 v13, v13, v14")
    A.e("v_lshlrev_b32 v13, 1, v13")
    A.e("s_mul_i32 s24, s20, 4608")
    A.e(f"s_add_u32 s24, s24, {L_KR-3584}")
    A.e(f"v_add_u32 v{VCK}, s24, v13")
    A.e("v_lshlrev_b32 v13, 5, v2")
    A.e("v_lshl_add_u32 v13, v3, 3, v13")
    A.e(f"s_mul_i32 s24, s20, {YSC}")
    A.e(f"s_add_u32 s24, s24, {L_YS}")
    A.e(f"v_add_u32 v{VYS}, s24, v13")
    A.e("v_and_b32 v13, 3, v2")
    A.e("v_lshlrev_b32 v13, 3, v13")
    A.e("v_lshl_add_u32 v13, v3, 5, v13")
    A.e("s_lshl_b32 s21, s20, 7")
    A.e("v_add_u32 v13, s21, v13")
    A.e("v_lshrrev_b32 v12, 2, v2")
    A.e(f"v_mul_u32_u24 v14, {YSC}, v12" if False else f"s_movk_i32 s24, {YSC}")
    A.e("v_mul_u32_u24 v14, s24, v12")
    A.e(f"v_add3_u32 v{VYT}, v14, v13, v13" if False else f"v_add_u32 v14, v14, v13")
    A.e(f"v_add_u32 v{VYT}, {L_YS}, v14")
    A.e(f"s_movk_i32 s24, {CS}")
    A.e("v_mul_u32_u24 v14, s24, v12")
    A.e("v_add_u32 v14, v14, v13")
    A.e(f"v_add_u32 v{VUT}, {L_U0+32}, v14")
    A.e("s_lshr_b32 s21, s20, 1")
    A.e("s_mul_i32 s21, s21, 8320")
    A.e(f"s_add_u32 s21, s21, {L_U0}")
    A.e("v_lshlrev_b32 v13, 5, v1")
    A.e(f"v_add_u32 v{VUR}, s21, v13")
    A.e("s_movk_i32 s26, 1280")
    A.e("v_mul_u32_u24 v13, s26, v1")
    A.e("s_lshl_b32 s21, s33, 3")
    A.e(f"v_add_u32 v{VUD}, s21, v13")
    A.e("s_lshl_b32 s21, s20, 11")
    A.e(f"s_add_u32 s21, s21, {L_U0+64}")
    A.e("v_lshlrev_b32 v13, 2, v1")
    A.e(f"v_add_u32 v{VUP}, s21, v13")
    return [x.strip() for x in T.lines if x.strip()]

def wdma_ring(c, base):
    L = []
    for n in range(3):
        g = []
        if n < 2:
            g += [f"s_add_u32 m0, s32, {base + 4096*n}", f"s_mov_b32 s38, {64*1280*c}" if n == 0 else "s_nop 0"]
        else:
            g += [f"s_add_u32 s39, s32, {base + 8192}", "s_cmp_lt_u32 s20, 2", f"s_cselect_b32 m0, s39, {L_DUMMY}", "s_nop 0"]
        g.append(f"buffer_load_dwordx4 v{VWD+n}, s[{SD}:{SD+3}], s38 offen lds")
        L.append(g)
    return L
def xdma(c, base, srd_=SA):
    return [[f"s_add_u32 m0, s31, {base}", f"s_movk_i32 s36, {128*c}",
             f"buffer_load_dwordx4 v{VXD0}, s[{srd_}:{srd_+3}], s36 offen lds"],
            [f"s_add_u32 m0, s31, {base+1024}", "s_nop 0",
             f"buffer_load_dwordx4 v{VXD1}, s[{srd_}:{srd_+3}], s36 offen lds"]]

GACC = 16; GWF = 36; GXF = [56, 60]
def gemm_rdX(kk, xb):
    ks = kk & 1
    if xb < 65536: a, o = (VXF0 if ks == 0 else VXF1), xb
    else: a, o = (VXF0h if ks == 0 else VXF1h), xb - 65536
    return It(f"ds_read_b128 {vr(GXF[kk & 1],4)}, v{a} offset:{o}", lds=f"x{kk}")
def gemm_rdW(kk, mt, wb):
    ks = kk & 1
    out = []
    for h in range(2):
        off = wb + (32*ks + 8*h)*160 + 32*mt
        a = VWT
        if off >= 131072: a, off = VWTh2, off - 131072
        elif off >= 65536: a, off = VWTh, off - 65536
        out.append(It(f"ds_read_b64_tr_b16 {vr(GWF+mt*4+h*2,2)}, v{a} offset:{off}", lds=f"w{kk}_{mt}"))
    return out
def gemm_need(kk, mt, xt):
    if mt == 0: return tuple(xt) + (f"w{kk}_0", f"w{kk}_1", f"w{kk}_2")
    if mt == 3: return (f"w{kk}_3", f"w{kk}_4")
    return ()
def gemm_mm(kk, mt):
    return It(f"v_mfma_f32_16x16x32_bf16 {vr(GACC+4*mt,4)}, {vr(GWF+mt*4,4)}, {vr(GXF[kk & 1],4)}, {vr(GACC+4*mt,4) if kk else '0'}",
              needl=gemm_need(kk, mt, (f"x{kk}",)), w=2)
def gemm_items(xbase, wbase, sync, loads=None):
    steps = []
    spread = list(loads(0)) if loads else []
    pre = list(sync(0)) + [gemm_rdX(0, xbase(0))]
    for mt in range(5): pre += gemm_rdW(0, mt, wbase(0))
    for kk in range(20):
        L = []
        c1 = (kk+1) >> 1
        boundary = (kk+1) & 1 == 0 and kk+1 < 20
        for mt in range(5):
            L.append(gemm_mm(kk, mt))
            if kk+1 < 20:
                if mt == 0:
                    if boundary:
                        L += spread; spread = []
                        L += list(sync(c1))
                        if loads: spread = list(loads(c1))
                    L.append(gemm_rdX(kk+1, xbase(c1)))
                L += gemm_rdW(kk+1, mt, wbase(c1))
            if spread and mt in (1, 2, 3): L.append(spread.pop(0))
        steps.append(L)
    assert not spread
    return pre, steps

def rho(s, b):
    if s == 0: return b
    q = b >> s; rem = b & ((1 << s)-1); half = 1 << (s-1)
    if rem > half or (rem == half and (q & 1)): q += 1
    return q << s
KACC = 64
RS = 528
def kgen_setup_lines():
    T = Asm(); A = T
    A.e("v_lshlrev_b32 v12, 2, v1          ; lane*4")
    A.e("s_lshl_b32 s24, s34, 8           ; d*256")
    A.e("v_add_u32 v13, s24, v12")
    for k, s in enumerate((PARE, PAIM, PBRE, PBIM, PCRE, PCIM)):
        A.e(f"global_load_dword v{104+k}, v13, s[{s}:{s+1}]")
    A.e("s_lshl_b32 s24, s34, 1")
    A.e("v_mov_b32 v14, s24")
    A.e(f"global_load_ushort v110, v14, s[{PLDT}:{PLDT+1}]")
    A.e(f"global_load_ushort v198, v14, s[{PDSK}:{PDSK+1}]")
    A.e(f"s_mul_i32 s21, s20, {KGW}")
    A.e(f"s_add_u32 s21, s21, {L_KG}")
    A.e("v_lshlrev_b32 v14, 3, v1            ; lane*8")
    A.e("v_add_u32 v196, s21, v14")
    A.e(f"v_add_u32 v197, {33*RS}, v196")
    for s in range(4):
        for mt in range(2):
            dst = 112 + 2*s + mt
            A.e(f"v_add_u32 v15, {16*mt}, v2          ; b")
            if s > 0:
                half = 1 << (s-1)
                A.e(f"v_bfe_u32 v12, v15, {s}, 1")
                A.e(f"v_add3_u32 v15, v15, v12, {half-1}")
                A.e(f"v_lshrrev_b32 v15, {s}, v15")
                A.e(f"v_lshlrev_b32 v15, {s}, v15")
            A.e(f"v_mul_u32_u24 v15, {RS}, v15")
            A.e(f"v_lshl_add_u32 v15, v3, 4, v15")
            A.e(f"v_add_u32 v{dst}, s21, v15")
    for s in range(1, 4):
        for b in range(32):
            half = 1 << (s-1)
            assert (((b + half - 1 + ((b >> s) & 1)) >> s) << s) == rho(s, b)
    A.e(f"v_mul_u32_u24 v15, {RS}, v2")
    A.e("v_lshl_add_u32 v15, v3, 4, v15")
    A.e(f"v_add_u32 v15, {33*RS}, v15")
    A.e("v_add_u32 v111, s21, v15")
    return [x.strip() for x in T.lines if x.strip()]

def kgen_parts():
    L = []
    a = lambda t, **k: L.append(It(t, **k))
    E1 = [120, 122]; E32 = [124, 126]
    C = [176, 178]; TM = [180, 182]
    PK = [184, 186]
    WC = [188, 190]
    a("v_lshlrev_b32 v110, 16, v110", needv=("kp",))
    a(f"v_mul_f32 v110, {hex(f2u(LOG2E))}, v110")
    a("v_exp_f32 v110, v110")
    a("s_nop 0")
    a("v_cvt_pk_bf16_f32 v110, v110, v110")
    a("v_lshlrev_b32 v110, 16, v110")
    for hf in range(2):
        for k in range(6):
            a(f"v_lshlrev_b32 v{176+k}, 16, v{104+k}" if hf == 0 else f"v_and_b32 v{176+k}, 0xffff0000, v{104+k}")
        ZR, ZI = 192, 193
        a(f"v_mul_f32 v{ZR}, v110, v176"); a(f"v_mul_f32 v{ZI}, v110, v177")
        a("v_mul_f32 v178, v110, v178"); a("v_mul_f32 v179, v110, v179")
        a(f"v_mul_f32 v{ZR}, {hex(f2u(LOG2E))}, v{ZR}"); a(f"v_mul_f32 v{ZI}, {hex(f2u(1/(2*math.pi)))}, v{ZI}")
        w = WC[hf]
        a(f"v_mul_f32 v{w}, v180, v178"); a(f"v_mul_f32 v{w+1}, v180, v179")
        a(f"v_fma_f32 v{w}, -v181, v179, v{w}"); a(f"v_fma_f32 v{w+1}, v181, v178, v{w+1}")
        for (m, dst) in ((1, E1[hf]), (32, E32[hf])):
            if m == 1:
                a(f"v_exp_f32 v182, v{ZR}"); a(f"v_fract_f32 v183, v{ZI}")
            else:
                lit = hex(f2u(float(m)))
                a(f"v_mul_f32 v182, {lit}, v{ZR}"); a(f"v_mul_f32 v183, {lit}, v{ZI}")
                a("v_exp_f32 v182, v182"); a("v_fract_f32 v183, v183")
            a("v_cos_f32 v194, v183"); a("v_sin_f32 v195, v183")
            a("s_nop 0")
            a(f"v_mul_f32 v{dst}, v182, v194"); a(f"v_mul_f32 v{dst+1}, v182, v195")
    for hf in range(2):
        a(f"v_mov_b32 v{C[hf]}, v{WC[hf]}"); a(f"v_mov_b32 v{C[hf]+1}, v{WC[hf]+1}")
    setup = L
    def cm(x, e, t):
        return (f"v_pk_mul_f32 v[{t}:{t+1}], v[{x}:{x+1}], v[{e}:{e+1}] op_sel:[0,0] op_sel_hi:[0,1]",
                f"v_pk_fma_f32 v[{x}:{x+1}], v[{x}:{x+1}], v[{e}:{e+1}], v[{t}:{t+1}] op_sel:[1,1,0] op_sel_hi:[1,0,1] neg_lo:[1,0,0]")
    rows = []
    def row(n, r, e, neg, waddr, stp, pre=()):
        pk = PK[n & 1]; sg = "-" if neg else ""
        R = [It(y) for y in pre]
        if stp: R += [It(cm(C[0], e[0], TM[0])[0]), It(cm(C[1], e[1], TM[1])[0])]
        R += [It(f"v_cvt_pk_bf16_f32 v{pk}, v{C[0]}, {sg}v{C[0]+1}"), It(f"v_cvt_pk_bf16_f32 v{pk+1}, v{C[1]}, {sg}v{C[1]+1}")]
        if stp: R += [It(cm(C[0], e[0], TM[0])[1]), It(cm(C[1], e[1], TM[1])[1])]
        R.append(It(f"ds_write_b64 v{waddr}, {vr(pk,2)} offset:{r*RS}", lds="kw"))
        rows.append(R)
    for j in range(33): row(j, j, E1, True, 196, j < 32)
    one = [f"v_mov_b32 v{C[0]}, 1.0", f"v_mov_b32 v{C[0]+1}, 0", f"v_mov_b32 v{C[1]}, 1.0", f"v_mov_b32 v{C[1]+1}, 0"]
    for nt in range(4):
        for r in range(16):
            row(33+16*nt+r, r, E32, False, 197, not (nt == 3 and r == 15), pre=(one if (nt == 0 and r == 0) else ()))
    BF = 224
    NS = 12
    def slot(n): return vr(16 + 4*(n % NS), 4)
    afr, bfr, mms = [], [], []
    for nt in range(4):
        variants = [(0,0),(0,1),(1,0),(1,1)] if nt == 0 else [((2 if nt == 1 else 3), 0), ((2 if nt == 1 else 3), 1)]
        tiles = [0,1,2,3] if nt == 0 else [2+2*nt, 3+2*nt]
        nv = len(variants); tot = 8*nv
        ra = []; mm = []
        def rd(n):
            ks, vi = divmod(n, nv); s_, mt = variants[vi]
            return It(f"ds_read_b128 {slot(n)}, v{112+2*s_+mt} offset:{64*ks}", lds=f"ka{nt}_{n}")
        for n in range(tot):
            ks, vi = divmod(n, nv)
            if n < NS: ra.append(rd(n))
            acc = KACC + 4*tiles[vi]
            mm.append(It(f"v_mfma_f32_16x16x32_bf16 {vr(acc,4)}, {slot(n)}, {ar(BF+4*ks,4)}, {vr(acc,4) if ks else '0'}",
                         needl=(f"kb{nt}_{ks}", f"ka{nt}_{n}"), w=2))
            if n + NS < tot: mm.append(rd(n + NS))
        afr.append(ra)
        bfr.append([It(f"ds_read_b128 {ar(BF+4*ks,4)}, v111 offset:{64*ks}", lds=f"kb{nt}_{ks}") for ks in range(8)])
        mms.append(mm)
    return setup, rows, afr, bfr, mms

def kgen_pack_lines():
    T = Asm(); A = T
    ACC = KACC
    A.e("v_lshlrev_b32 v198, 16, v198")
    A.e("v_cmp_eq_u32 vcc, 0, v1")
    A.e("s_nop 1")
    A.e("v_cndmask_b32 v198, 0, v198, vcc")
    A.e(f"v_add_f32 v{ACC}, v{ACC}, v198")
    A.e("v_cmp_gt_u32 vcc, 8, v2")
    A.e("s_nop 1")
    for i in range(8):
        A.e(f"v_cndmask_b32 v{ACC+i}, v{ACC+8+i}, v{ACC+i}, vcc")
    for nt in range(4):
        for mt in range(2):
            tile = mt if nt == 0 else 2+2*nt+mt
            acc = ACC + 4*tile
            b = 176 + 2*(nt*2+mt)
            A.e(f"v_cvt_pk_bf16_f32 v{b}, v{acc+3}, v{acc+2}")
            A.e(f"v_cvt_pk_bf16_f32 v{b+1}, v{acc+1}, v{acc}")
    return [x.strip() for x in T.lines if x.strip()]
def kgen_write_lines():
    T = Asm(); A = T
    A.e("s_mul_i32 s21, s20, 4608")
    A.e(f"s_add_u32 s21, s21, {L_KR}")
    A.e("v_lshlrev_b32 v15, 5, v2")
    A.e("v_lshl_add_u32 v15, v3, 2, v15    ; 32c + 4g")
    A.e("v_sub_u32 v15, 2044, v15")
    A.e("v_lshlrev_b32 v15, 1, v15")
    A.e(f"v_add_u32 v15, s21, v15")
    A.e(f"v_subrev_u32 v15, {(512*3+16)*2}, v15")
    for nt in range(4):
        for mt in range(2):
            b = 176 + 2*(nt*2+mt)
            A.e(f"ds_write_b64 v15, {vr(b,2)} offset:{(512*3+16)*2 - (512*nt+16*mt)*2}")
    A.e("v_mov_b32 v192, 0"); A.e("v_mov_b32 v193, 0")
    A.e("v_lshlrev_b32 v12, 3, v1")
    A.e(f"s_add_u32 s21, s21, 4096")
    A.e("v_add_u32 v12, s21, v12")
    A.e("ds_write_b64 v12, v[192:193]")
    return [x.strip() for x in T.lines if x.strip()]

def q_epilogue(A, q):
    A.e(f"s_mov_b32 s26, {hex(f2u(QSCALE))}")
    for mt in range(5):
        acc = GACC + 4*mt
        for i in range(4): A.e(f"v_mul_f32 v{acc+i}, s26, v{acc+i}")
        A.e(f"v_cvt_pk_bf16_f32 v{36+mt*2}, v{acc}, v{acc+1}")
        A.e(f"v_cvt_pk_bf16_f32 v{37+mt*2}, v{acc+2}, v{acc+3}")
        q.emit(It(f"ds_write_b64 v{VQW+mt}, {vr(36+mt*2,2)}", lds="qw"))

def weave_setup(A, q, setup, pro):
    safe = [i for i, l in enumerate(setup) if l.startswith("v_") and not l.startswith("v_cndmask") and i+1 < len(setup)
            and not setup[i+1].startswith("v_cndmask") and not setup[i+1].startswith("s_nop") and not l.startswith("v_cmp")
            and not setup[i+1].startswith("s_addc")]
    step = max(1, len(safe)//len(pro))
    pts = {safe[min(k*step, len(safe)-1)]: k for k in range(len(pro))}
    done = 0
    for i, l in enumerate(setup):
        A.e(l)
        if i in pts: q.emit(pro[pts[i]]); done += 1
    assert done == len(pro), (done, len(pro))

def X_items(c): return [It(g, vm=f"x{c}") for g in xdma(c, L_XR + 8192*c)]
def W_items(c): return [It(g, vm=f"w{c}") for g in wdma_ring(c, L_WR + WCH*(c % 4))]

def front(A, pfx):
    A.e("s_cmp_lt_u32 s53, 2")
    A.e(f"s_cbranch_scc1 {pfx}_kvpro")
    q = Q(A)
    q.run(X_items(0) + W_items(0))
    A.e(f"s_cmp_ge_u32 s3, {NCONV}")
    A.e(f"s_cbranch_scc1 {pfx}_nokp")
    for l in kgen_setup_lines(): A.e(l)
    A.label(f"{pfx}_nokp")
    pro = []
    for c in range(1, 4): pro += X_items(c) + W_items(c)
    weave_setup(A, q, addr_setup_items(), pro)
    if PREFETCH: prefetch(A, pfx + "a")
    A.e(f"s_cmp_ge_u32 s3, {NCONV}")
    A.e(f"s_cbranch_scc1 {pfx}_noks")
    A.e(f"s_waitcnt vmcnt({15 + (3 if PREFETCH else 0)})")
    for it in kgen_parts()[0]:
        for l in it.txt: A.e(l)
    A.label(f"{pfx}_noks")
    qcommon = q
    st(A)
    A.e(f"s_branch {pfx}_qgemm")
    A.label(f"{pfx}_kvpro")
    q = Q(A)
    A.e("s_cmp_eq_u32 s53, 0")
    A.e(f"s_cselect_b32 s24, s{PWK}, s{PWV}")
    A.e(f"s_cselect_b32 s25, s{PWK+1}, s{PWV+1}")
    A.e(f"s_mov_b32 s{SB}, s24"); A.e(f"s_mov_b32 s{SB+1}, s25"); A.e(f"s_mov_b32 s{SB+2}, 25600"); A.e(f"s_mov_b32 s{SB+3}, 0x20000")
    for i in range(7):
        if i < 6:
            A.e(f"s_add_u32 s28, s32, {4096*i}")
            A.e(f"s_add_u32 m0, s28, {L_WKV}")
            A.e("s_nop 0")
            A.e(f"buffer_load_dwordx4 v4, s[{SB}:{SB+3}], s28 offen lds")
        else:
            A.e("s_cmp_eq_u32 s20, 0")
            A.e(f"s_mov_b32 s29, {L_WKV + 24*1024}")
            A.e(f"s_cselect_b32 m0, s29, {L_DUMMY}")
            A.e(f"s_mov_b32 s30, 0x7fff0000")
            A.e(f"s_cselect_b32 s28, {24*1024}, s30")
            A.e(f"buffer_load_dwordx4 v4, s[{SB}:{SB+3}], s28 offen lds")
    pro = []
    for c in range(10): pro += X_items(c)
    weave_setup(A, q, addr_setup_items(), pro)
    if PREFETCH: prefetch(A, pfx + "b")
    st(A)
    KV, KW, KX = 64, 72, [104, 108]
    A.e("v_lshrrev_b32 v12, 2, v2")
    A.e("v_lshl_add_u32 v12, v3, 3, v12")
    A.e("v_mul_u32_u24 v12, 40, v12")
    A.e("v_and_b32 v13, 3, v2")
    A.e("v_lshl_add_u32 v12, v13, 3, v12")
    A.e(f"v_add_u32 v176, {L_WKV}, v12")
    for i in range(8): A.e(f"v_mov_b32 v{KV+i}, 0")
    A.e("s_mul_i32 s21, s22, 81920")
    srd(A, SH, PX, 81920, add="s21")
    q.wait_v(("x0",))
    A.e("s_barrier")
    def rds(kk):
        c, ks = kk >> 1, kk & 1; b = kk & 1
        xb = L_XR + 8192*c
        a, o = ((VXF0 if ks == 0 else VXF1), xb) if xb < 65536 else ((VXF0h if ks == 0 else VXF1h), xb-65536)
        out = [It(f"ds_read_b128 {vr(KX[b],4)}, v{a} offset:{o}", lds=f"kx{kk}", needv=(f"x{c}",))]
        for m in range(2):
            for h in range(2):
                out.append(It(f"ds_read_b64_tr_b16 {vr(KW+8*b+4*m+2*h,2)}, v176 offset:{(32*kk + 4*h)*40 + 32*m}", lds=f"kw{kk}"))
        return out
    for variant in ("k", "v"):
        if variant == "k":
            A.e("s_cmp_eq_u32 s53, 0")
            A.e(f"s_cbranch_scc0 {pfx}_b_vpart")
        else:
            A.label(f"{pfx}_b_vpart")
        qq = Q(A); qq.vq = list(q.vq)
        qq.run(rds(0))
        wq_first = [x for c in range(4) for x in W_items(c)]
        for kk in range(20):
            if kk+1 < 20: qq.run(rds(kk+1))
            if kk >= 8: qq.emit(wq_first.pop(0))
            if kk in (2, 4, 6, 8):
                c_ = kk//2 - 1
                qq.run([It(g, vm=f"ox{c_}") for g in xdma(c_, L_XR + 8192*c_, SH)])
            b = kk & 1
            for m in range(2):
                if variant == "k": t = f"v_mfma_f32_16x16x32_bf16 {vr(KV+4*m,4)}, {vr(KW+8*b+4*m,4)}, {vr(KX[b],4)}, {vr(KV+4*m,4)}"
                else: t = f"v_mfma_f32_16x16x32_bf16 {vr(KV+4*m,4)}, {vr(KX[b],4)}, {vr(KW+8*b+4*m,4)}, {vr(KV+4*m,4)}"
                qq.emit(It(t, needl=(f"kx{kk}", f"kw{kk}")))
        A.e("s_lshr_b32 s21, s20, 1")
        A.e("s_lshl_b32 s26, s54, 1")
        A.e("s_add_u32 s21, s21, s26          ; T")
        A.e("s_and_b32 s26, s20, 1            ; u")
        srd(A, SC, PWS, WS_VA + 64*2048)
        A.e(f"v_mov_b32 v19 , {OOB}".replace(" ,", ","))
        A.e("v_and_b32 v12, 1, v3             ; h (g&1)")
        A.e("v_cmp_gt_u32 vcc, 2, v3")
        A.e(f"v_cvt_pk_bf16_f32 v112, v{KV}, v{KV+1}")
        A.e(f"v_cvt_pk_bf16_f32 v113, v{KV+2}, v{KV+3}")
        A.e(f"v_cvt_pk_bf16_f32 v116, v{KV+4}, v{KV+5}")
        A.e(f"v_cvt_pk_bf16_f32 v117, v{KV+6}, v{KV+7}")
        if variant == "v":
            A.e("s_mov_b64 s[28:29], vcc")
            A.e("v_cmp_eq_u32 vcc, 4, v2")
            A.e("v_mov_b32 v13, 0x3f803f80")
            A.e("s_nop 0")
            A.e("v_cndmask_b32 v116, v116, v13, vcc")
            A.e("v_cndmask_b32 v117, v117, v13, vcc")
            A.e("s_mov_b64 vcc, s[28:29]")
        A.e("v_mov_b32 v120, v112"); A.e("v_mov_b32 v121, v113")
        A.e("v_mov_b32 v122, v116"); A.e("v_mov_b32 v123, v117")
        A.e("s_nop 1")
        A.e("v_permlane32_swap_b32 v120, v114")
        A.e("v_permlane32_swap_b32 v121, v115")
        A.e("v_permlane32_swap_b32 v122, v118")
        A.e("v_permlane32_swap_b32 v123, v119")
        if variant == "k":
            A.e("s_lshl_b32 s28, s26, 4")
            A.e("v_add_u32 v14, s28, v2           ; key32")
            A.e("v_lshl_add_u32 v15, v12, 5, v14")
            A.e("v_lshlrev_b32 v15, 4, v15")
            A.e("s_lshl_b32 s28, s21, 10")
            A.e(f"s_add_u32 s28, s28, {WS_KA}")
            A.e("v_add_u32 v15, s28, v15")
            A.e("v_cndmask_b32 v15, v19, v15, vcc")
            A.e(f"buffer_store_dwordx4 v[112:115], v15, s[{SC}:{SC+3}], 0 offen sc1")
            A.e("v_lshlrev_b32 v14, 3, v14")
            A.e("s_lshl_b32 s28, s21, 9")
            A.e(f"s_add_u32 s28, s28, {WS_KB}")
            A.e("v_add_u32 v14, s28, v14")
            A.e("v_cmp_eq_u32 vcc, 0, v3")
            A.e("s_nop 1")
            A.e("v_cndmask_b32 v14, v19, v14, vcc")
            A.e(f"buffer_store_dwordx2 v[116:117], v14, s[{SC}:{SC+3}], 0 offen sc1")
            A.e("s_lshl_b32 s28, s54, 7")
            A.e(f"s_add_u32 s28, s28, {WS_FLAG}")
            srd(A, SE_, PWS, 128, add="s28")
            A.e("v_lshlrev_b32 v14, 2, v0")
            A.e("v_mov_b32 v13, 0")
            A.e(f"buffer_store_dword v13, v14, s[{SE_}:{SE_+3}], 0 offen sc1")
        else:
            A.e("v_lshl_add_u32 v15, v12, 5, v2")
            A.e("v_lshlrev_b32 v15, 4, v15")
            A.e("s_lshl_b32 s28, s21, 11")
            A.e("s_lshl_b32 s29, s26, 10")
            A.e("s_add_u32 s28, s28, s29")
            A.e(f"s_add_u32 s28, s28, {WS_VA}")
            A.e("v_add_u32 v15, s28, v15")
            A.e("v_add_u32 v14, 256, v15")
            A.e("v_cndmask_b32 v15, v19, v15, vcc")
            A.e("v_cndmask_b32 v14, v19, v14, vcc")
            A.e(f"buffer_store_dwordx4 v[112:115], v15, s[{SC}:{SC+3}], 0 offen sc1")
            A.e("v_cmp_gt_u32 vcc, 5, v2")
            A.e("s_nop 1")
            A.e("v_cndmask_b32 v14, v19, v14, vcc")
            A.e(f"buffer_store_dwordx4 v[116:119], v14, s[{SC}:{SC+3}], 0 offen sc1")
        A.e("s_waitcnt vmcnt(0)")
        A.e("s_barrier")
        A.e("s_cmp_lg_u32 s20, 0")
        A.e(f"s_cbranch_scc1 {pfx}_b_nf{variant}")
        srd(A, SE_, PDBG, 256)
        A.e("s_lshl_b32 s28, s52, 2")
        A.e("v_mov_b32 v14, s28")
        A.e("v_mov_b32 v13, 1")
        A.e("s_mov_b64 exec, 1")
        A.e(f"buffer_store_dword v13, v14, s[{SE_}:{SE_+3}], 0 offen sc1")
        A.e("s_mov_b64 exec, -1")
        A.label(f"{pfx}_b_nf{variant}")
        if variant == "k": A.e(f"s_branch {pfx}_b_ownx")
    A.label(f"{pfx}_b_ownx")
    A.e("s_mul_i32 s21, s22, 81920")
    srd(A, SA, PX, 81920, add="s21")
    st(A)
    A.label(f"{pfx}_qgemm")
    q = qcommon
    def sync(c): return [It("s_barrier", needv=(f"x{c}", f"w{c}"))]
    def loads(c):
        L = []
        if c+4 < 10: L += X_items(c+4)
        if c >= 2 and c+2 < 10: L += W_items(c+2)
        return L
    pre, steps = gemm_items(lambda c: L_XR + 8192*c, lambda c: L_WR + WCH*(c % 4), sync, loads)
    q.run(pre)
    late = [It(x) for x in part_addr_lines() + addr_setup_items("late")]
    grp = []; cur = []
    for it in late:
        cur.append(it)
        t = it.txt[0]
        if not (t.startswith("v_cmp") or t.startswith("s_nop") or (len(cur) > 1 and cur[-2].txt[0].startswith("v_cmp"))
                or (len(cur) > 2 and cur[-3].txt[0].startswith("v_cmp")) or (len(cur) > 3 and cur[-4].txt[0].startswith("v_cmp"))):
            grp.append(It([y for c in cur for y in c.txt], w=len(cur))); cur = []
    if cur: grp.append(It([y for c in cur for y in c.txt], w=len(cur)))
    per = (len(grp) + 17)//18
    for kk in range(20):
        q.run(merge(steps[kk], grp[kk*per:(kk+1)*per]))
    q.all_l(); q.all_v()
    srd(A, SE_, PDBG, 256)
    A.e("v_lshlrev_b32 v12, 2, v1")
    A.e("s_cmp_lg_u32 s20, 0")
    A.e(f"s_cbranch_scc1 {pfx}_kv_nl")
    A.e(f"buffer_load_dword v248, v12, s[{SE_}:{SE_+3}], 0 offen sc1")
    A.label(f"{pfx}_kv_nl")
    st(A)
    A.e("s_barrier")
    q_epilogue(A, q)
    A.e(f"s_mov_b32 s35, {SPIN_MAX}")
    A.e("s_cmp_lg_u32 s20, 0")
    A.e(f"s_cbranch_scc1 {pfx}_kv_d")
    A.label(f"{pfx}_kv_p")
    A.e("s_waitcnt vmcnt(0)")
    A.e("v_cmp_ne_u32 vcc, 0, v248")
    A.e("s_sub_u32 s35, s35, 1")
    A.e("s_cmp_eq_u32 s35, 0")
    A.e(f"s_cbranch_scc1 {pfx}_kv_d")
    A.e("s_cmp_eq_u64 vcc, -1")
    A.e(f"s_cbranch_scc1 {pfx}_kv_d")
    A.e(f"buffer_load_dword v248, v12, s[{SE_}:{SE_+3}], 0 offen sc1")
    A.e(f"s_branch {pfx}_kv_p")
    A.label(f"{pfx}_kv_d")
    A.e("s_waitcnt lgkmcnt(0)")
    A.e("s_barrier")
    st(A)

def poll(A, pfx, name, srd_, nl, cmpmask):
    A.e("s_cmp_lg_u32 s20, 0")
    A.e(f"s_cbranch_scc1 {pfx}_{name}_np")
    A.e("v_lshlrev_b32 v12, 2, v1")
    A.e(f"s_mov_b32 s35, {SPIN_MAX}")
    if nl < 64: A.e(f"s_mov_b64 exec, {hex((1 << nl)-1)}")
    A.label(f"{pfx}_{name}_p")
    A.e(f"buffer_load_dword v13, v12, s[{srd_}:{srd_+3}], 0 offen sc1")
    A.e("s_waitcnt vmcnt(0)")
    A.e("v_cmp_ne_u32 vcc, 0, v13")
    A.e("s_sub_u32 s35, s35, 1")
    A.e("s_cmp_eq_u32 s35, 0")
    A.e(f"s_cbranch_scc1 {pfx}_{name}_d")
    if nl == 64:
        A.e("s_cmp_eq_u64 vcc, -1")
    else:
        A.e(f"s_cmp_eq_u32 vcc_lo, {hex((1 << nl)-1)}")
    A.e(f"s_cbranch_scc1 {pfx}_{name}_d")
    A.e("s_sleep 1")
    A.e(f"s_branch {pfx}_{name}_p")
    A.label(f"{pfx}_{name}_d")
    if nl < 64: A.e("s_mov_b64 exec, -1")
    A.label(f"{pfx}_{name}_np")

PREF_K, PREF_V = 6, 5
def step(A, tau, t, first=False, last=False, fillers=None, pre=None):
    cur = S[t & 1]; nxt = S[(t+1) & 1]
    Pc = P[t & 1]; Pp = P[(t+1) & 1]
    par = tau & 1
    if t < NT-1: nt, ntau = t+1, tau
    else: nt, ntau = 0, tau+1
    do_next = not (last and t == NT-1)
    M1 = f"v_mfma_f32_32x32x16_bf16 {vr(nxt,16)}, {KAr(nt)}, {QAr(ntau)}, 0" if do_next else None
    M2 = f"v_mfma_f32_32x32x8_bf16 {vr(nxt,16)}, {KBr(nt)}, {QBr(ntau)}, {vr(nxt,16)}" if do_next else None
    if t == 0: pt, op, c0 = NT-1, O[par ^ 1], None
    else:
        pt, op = t-1, O[par]
        c0 = "0" if t == 1 else None
    if t == 0 and first: PV0p = PVp = None
    else:
        PV0p = f"v_mfma_f32_32x32x16_bf16 {vr(op,16)}, {VAr(pt,0)}, {vr(Pp,4)}, {c0 or vr(op,16)}"
        PVp = f"v_mfma_f32_32x32x16_bf16 {vr(op,16)}, {VAr(pt,1)}, {vr(Pp+4,4)}, {vr(op,16)}"
    E = lambda i: f"v_exp_f32 v{cur+i}, v{cur+i}"
    C = lambda i: f"v_cvt_pk_bf16_f32 v{Pc+i}, v{cur+2*i}, v{cur+2*i+1}"
    seq = [E(0), M1, E(1), E(2), C(0), E(3), E(4), PV0p, C(1), E(5), E(6), C(2), E(7), M2, E(8), C(3), E(9), E(10), C(4), E(11),
           PVp, E(12), C(5), E(13), E(14), E(15), C(6), C(7)]
    seq = [x for x in seq if x]
    groups = list(fillers or [])
    if groups:
        epos = [i for i, x in enumerate(seq) if x.startswith("v_exp")]
        flat = []
        for g in groups:
            if any(y.startswith("s_cbranch") for y in g) or any("exec" in y for y in g): flat.append(g)
            elif any("m0" in y for y in g): flat.append(g)
            else: flat += [[y] for y in g]
        n = len(flat); out = []; k = 0
        for i, x in enumerate(seq):
            out.append(x)
            if i in epos:
                want = ((epos.index(i)+1)*n + len(epos)-1)//len(epos) if True else 0
                while k < min(want, n):
                    out += flat[k]; k += 1
        for g in flat[k:]: out += g
        seq = out
    for x in (pre or []): A.e(x)
    for x in seq:
        if x.endswith(":"): A.label(x[:-1])
        else: A.e(x)

def part_addr_lines():
    L = ["s_lshl_b32 s29, s20, 1"]
    for tau in range(1, 7):
        slot_ = (-2 - ((tau-1) >> 1)) & 3
        for w in range(4):
            j = (2*w + 1 + tau) & 7
            assert slot_ == (w - (j >> 1) - 1) & 3
        L += [f"s_add_u32 s28, s29, {1+tau}", "s_and_b32 s28, s28, 7", f"s_mul_i32 s28, s28, {3*PART}",
              f"s_add_u32 s28, s28, {slot_*PART}", f"v_add_u32 v{VPA+tau-1}, s28, v4"]
    return L
def part_write(tau):
    par = (tau-1) & 1
    return [[f"ds_write_b128 v{VPA+tau-1}, {vr(O[par]+4*g,4)} offset:{1024*g}"] for g in range(3)]

def kv_load_groups():
    def ldK(t): return [[f"s_add_u32 s27, s44, {1024*t}", f"buffer_load_dwordx4 {KAr(t)}, v4, s[{SA}:{SA+3}], s27 offen"],
                        [f"s_add_u32 s28, s45, {512*t}", f"buffer_load_dwordx2 {KBr(t)}, v5, s[{SA}:{SA+3}], s28 offen"]]
    def ldV(t): return [[f"s_add_u32 s29, s46, {2048*t}", f"buffer_load_dwordx4 {VAr(t,0)}, v8, s[{SA}:{SA+3}], s29 offen"],
                        [f"buffer_load_dwordx4 {VAr(t,1)}, v8, s[{SA}:{SA+3}], s29 offen offset:1024"]]
    return ldK, ldV

def q_reads(A):
    A.e(f"v_mov_b32 v12, {L_BAD}")
    A.e("v_mov_b32 v13, 0")
    A.e("ds_write_b32 v12, v13")
    A.e("s_lshl_b32 s35, s20, 1")
    for tau in range(8):
        A.e(f"s_add_u32 s36, s35, {2+tau}")
        A.e("s_and_b32 s36, s36, 7")
        A.e("s_mul_i32 s36, s36, 1280")
        A.e(f"v_add_u32 v{16+tau}, s36, v{VQR}")
        A.e(f"ds_read_b128 {QAr(tau)}, v{16+tau}")
        A.e(f"v_mov_b32 v{132+6*tau}, 0"); A.e(f"v_mov_b32 v{133+6*tau}, 0")
    A.e("s_mov_b32 exec_hi, 0")
    for tau in range(8):
        A.e(f"v_sub_u32 v{24+tau}, v{16+tau}, v{VQRB}")
        A.e(f"ds_read_b64 {QBr(tau)}, v{24+tau} offset:1024")
    A.e("s_mov_b32 exec_hi, -1")

def late_setup(A):
    A.e("s_mul_i32 s21, s23, 160")
    srd(A, SD, PWO, "0", add="s21")
    A.e(f"s_sub_u32 s{SD+2}, 819200, s21")
    srd(A, SF, PU, 2048*1280)

def first_scores(A):
    A.e(f"v_mfma_f32_32x32x16_bf16 {vr(S[0],16)}, {KAr(0)}, {QAr(0)}, 0")
    A.e(f"v_mfma_f32_32x32x8_bf16 {vr(S[0],16)}, {KBr(0)}, {QBr(0)}, {vr(S[0],16)}")
    A.e("s_nop 7"); A.e("s_nop 3")

def kgen_phase(A, pfx):
    q = Q(A)
    ldK, ldV = kv_load_groups()
    kv = []
    for t in range(NT): kv += [It(g, vm="kv") for g in ldK(t) + ldV(t)]
    ksetup, rows, afr, bfr, mms = kgen_parts()
    q.vq = []
    q_reads(A)
    due = {49: 0, 65: 1, 81: 2, 97: 3}
    arow = {}
    for nt, r0 in enumerate((36, 52, 68, 84)):
        for i, it in enumerate(afr[nt]): arow.setdefault(r0 + i, []).append(it)
    share = [26, 14, 14, 10]; k = 0
    for pos, R in enumerate(rows):
        q.run(R + arow.get(pos, []))
        if pos+1 in due:
            nt = due[pos+1]
            q.run(bfr[nt])
            L = kv[k:k+share[nt]]; k += share[nt]
            if nt == 2: A.e("s_waitcnt vmcnt(30)")
            q.run(L[:4])
            q.run(merge(mms[nt], L[4:]))
    assert k == len(kv)
    q.all_l()
    A.e("s_nop 7")
    st(A)
    for l in kgen_pack_lines(): A.e(l)
    A.e("s_barrier")
    for l in kgen_write_lines(): A.e(l)
    late_setup(A)
    A.e("v_mov_b32 v192, 0")
    A.e("s_and_b32 s21, s20, 1")
    A.e("s_mul_i32 s21, s21, 8320")
    A.e(f"s_add_u32 s21, s21, {L_U0}")
    A.e("v_and_b32 v12, 15, v1")
    A.e("v_lshlrev_b32 v12, 2, v12")
    A.e("v_lshrrev_b32 v13, 4, v1")
    A.e("v_and_b32 v13, 1, v13")
    A.e("v_mul_u32_u24 v13, 0x2040, v13        ; 8256")
    A.e("v_add3_u32 v12, v12, v13, s21")
    A.e("ds_write_b32 v12, v192")
    A.e("s_waitcnt vmcnt(0)")
    st(A)
    first_scores(A)
    for t in range(NT): step(A, 0, t, first=True)

def b_transition(A, pfx):
    ldK, ldV = kv_load_groups()
    PK, PVn = PREF_K, PREF_V
    for g in ldK(0) + ldV(0):
        for x in g: A.e(x)
    q_reads(A)
    for t in range(1, PK):
        for g in ldK(t):
            for x in g: A.e(x)
        if t < PVn:
            for g in ldV(t):
                for x in g: A.e(x)
    late_setup(A)
    A.e("s_waitcnt lgkmcnt(0)")
    A.e("s_barrier")
    order = ["K0", "V0"]
    for t in range(1, PK):
        order.append(f"K{t}")
        if t < PVn: order.append(f"V{t}")
    A.e(f"s_waitcnt vmcnt({2*(len(order)-1)})")
    st(A)
    first_scores(A)
    for t in range(NT):
        fl = []; need = []
        if t+1 < NT: need.append(f"K{t+1}")
        if t >= 1: need.append(f"V{t-1}")
        idx = max(order.index(x) for x in need)
        nout = 2*(len(order) - 1 - idx)
        if t == NT-1: nout = 0
        new = []
        if t+PK < NT: fl += ldK(t+PK); new.append(f"K{t+PK}")
        if t+PVn < NT: fl += ldV(t+PVn); new.append(f"V{t+PVn}")
        step(A, 0, t, first=True, fillers=fl, pre=[f"s_waitcnt vmcnt({nout})"])
        order += new

def attention(A, pfx):
    srd(A, SA, PWS, WS_VA + 64*2048)
    A.e("s_lshl_b32 s44, s20, 14          ; KA: T*1024")
    A.e(f"s_lshl_b32 s45, s20, 13         ; KB: T*512")
    A.e(f"s_add_u32 s45, s45, {WS_KB}")
    A.e("s_lshl_b32 s46, s20, 15          ; VA: T*2048")
    A.e(f"s_add_u32 s46, s46, {WS_VA}")
    A.e(f"s_cmp_ge_u32 s3, {NCONV}")
    A.e(f"s_cbranch_scc1 {pfx}_btr")
    wl = []
    for c in range(8): wl += wdma_ring(c, BWchunk(c))
    def bg(kind, n):
        if kind == "b": return wl[n]
        if n < 8: return [f"s_add_u32 s63, s61, {64*1280*n}", f"buffer_load_dwordx2 {vr(176+2*n,2)}, v{VUD}, s[{SF}:{SF+3}], s63 offen"]
        if 12 <= n < 20:
            k = n - 12
            return (["s_waitcnt vmcnt(0)"] if k == 0 else []) + \
                   [f"ds_write_b32 v{VUP}, v{176+2*k} offset:{256*k}", f"ds_write_b32 v{VUP}, v{177+2*k} offset:{8320+256*k}"]
        return None
    def taus(kind):
        st(A)
        for tau in range(1, 7):
            for t in range(NT):
                fl = []
                if t in (3, 4, 6): fl += [part_write(tau)[(3, 4, 6).index(t)]]
                if t in (5, 8, 11, 14):
                    g = bg(kind, (tau-1)*4 + (t-5)//3)
                    if g: fl += [g]
                step(A, tau, t, fillers=fl)
            st(A)
    kgen_phase(A, pfx)
    A.e(f"s_mul_i32 s61, s20, {512*1280}")
    taus("a")
    A.e(f"s_branch {pfx}_tau7")
    A.label(f"{pfx}_btr")
    b_transition(A, pfx)
    taus("b")
    A.label(f"{pfx}_tau7")
    for t in range(NT): step(A, 7, t, last=True)
    st(A)
    A.e("s_nop 1")
    par = 1; Pp = P[(NT-1) & 1]
    A.e(f"v_mfma_f32_32x32x16_bf16 {vr(O[par],16)}, {VAr(NT-1,0)}, {vr(Pp,4)}, {vr(O[par],16)}")
    A.e(f"v_mfma_f32_32x32x16_bf16 {vr(O[par],16)}, {VAr(NT-1,1)}, {vr(Pp+4,4)}, {vr(O[par],16)}")
    A.e("s_waitcnt vmcnt(0) lgkmcnt(0)")
    A.e("s_barrier")
    st(A)

def reduce_publish(A, pfx):
    quads = [[64, 68, 72, 76, 112, 116, 120, 124, 176], [180, 184, 188, 192, 196, 44, 48, 52, 56]]
    def rdpart(jj):
        for sl in range(3):
            for g in range(3):
                A.e(f"ds_read_b128 {vr(quads[jj][3*sl+g], 4)}, v{VRED} offset:{(jj*3+sl)*PART + 1024*g}")
    rdpart(0)
    srd(A, SC, PWS, 2048*1280, add=WS_O)
    A.e("s_mov_b64 s[56:57], 0")
    for jj in range(2):
        Of = O[jj]
        A.e("s_waitcnt lgkmcnt(0)")
        if jj == 0: rdpart(1)
        for sl in range(3):
            for r in range(12): A.e(f"v_add_f32 v{Of+r}, v{Of+r}, v{quads[jj][3*sl + (r >> 2)] + (r & 3)}")
        A.e(f"v_mov_b32 v28, v{Of+8}")
        A.e(f"v_mov_b32 v29, v{Of+8}")
        A.e(f"v_max3_f32 v30, |v{Of}|, |v{Of+1}|, |v{Of+2}|")
        A.e(f"v_max3_f32 v30, v30, |v{Of+3}|, |v{Of+4}|")
        A.e("v_permlane32_swap_b32 v28, v29")
        for r in range(5, 11, 2): A.e(f"v_max3_f32 v30, v30, |v{Of+r}|, |v{Of+r+1}|")
        A.e(f"v_max_f32 v30, v30, |v{Of+11}|")
        A.e("v_cmp_nle_f32 vcc, 0x2b800000, v29      ; !(2^-40 <= l)")
        A.e("v_mov_b32 v31, 0x7f800000")
        A.e("v_rcp_f32 v28, v29")
        A.e("s_or_b64 s[56:57], s[56:57], vcc")
        A.e("v_cmp_nge_f32 vcc, 0x53800000, v29      ; !(2^40 >= l)")
        A.e("v_cmp_ngt_f32 s[58:59], v31, v30")
        A.e("v_mov_b32 v29, v28")
        A.e("s_or_b64 s[56:57], s[56:57], vcc")
        A.e("s_or_b64 s[56:57], s[56:57], s[58:59]")
        for r in range(12): A.e(f"v_mul_f32 v{16+r}, v{Of+r}, v29")
        for g in range(3):
            A.e(f"v_cvt_pk_bf16_f32 v{32+6*jj+2*g}, v{16+4*g}, v{17+4*g}")
            A.e(f"v_cvt_pk_bf16_f32 v{33+6*jj+2*g}, v{18+4*g}, v{19+4*g}")
    A.e(f"v_mov_b32 v14, {L_BAD}")
    A.e("s_cmp_eq_u64 s[56:57], 0")
    A.e(f"s_cbranch_scc1 {pfx}_safe")
    A.e("v_mov_b32 v15, 1")
    A.e("ds_write_b32 v14, v15")
    A.e("s_waitcnt lgkmcnt(0)")
    A.label(f"{pfx}_safe")
    A.e("s_barrier")
    A.e("ds_read_b32 v15, v14")
    for jj in range(2):
        A.e(f"ds_write_b64 v{VOS}, {vr(32+6*jj,2)} offset:{5120*jj}")
        A.e(f"ds_write_b64 v{VOS}, {vr(34+6*jj,2)} offset:{5120*jj+16}")
        A.e(f"ds_write_b64 v{VOS2a if jj == 0 else VOS2b}, {vr(36+6*jj,2)}")
    for i in range(3):
        A.e("s_mul_i32 s24, s23, 10")
        A.e("s_add_u32 s24, s24, s20")
        if i: A.e(f"s_add_u32 s24, s24, {4*i}")
        A.e("s_lshr_b32 s25, s24, 2")
        A.e("s_lshl_b32 s25, s25, 10")
        A.e("s_and_b32 s24, s24, 3")
        A.e("s_lshl_b32 s24, s24, 8")
        A.e("s_add_u32 s24, s24, s25")
        A.e("s_mul_i32 s25, s22, 81920")
        A.e(f"s_add_u32 s{28+i}, s24, s25")
    A.e("s_waitcnt lgkmcnt(0)")
    A.e("v_readfirstlane_b32 s56, v15")
    A.e("s_nop 0")
    A.e("s_cmp_lg_u32 s56, 0")
    A.e(f"s_cbranch_scc1 {pfx}_slow")
    A.label(f"{pfx}_staged")
    A.e("s_barrier")
    for i in range(3):
        A.e(f"ds_read_b128 {vr(44+4*i,4)}, v{VTID16} offset:{64*i}")
    for i in range(2):
        A.e(f"s_waitcnt lgkmcnt({2-i})")
        A.e(f"buffer_store_dwordx4 {vr(44+4*i,4)}, v{VOG}, s[{SC}:{SC+3}], s{28+i} offen sc1")
    A.e("s_cmp_ge_u32 s20, 2")
    A.e(f"s_cbranch_scc1 {pfx}_no3rd")
    A.e("s_waitcnt lgkmcnt(0)")
    A.e(f"buffer_store_dwordx4 {vr(52,4)}, v{VOG}, s[{SC}:{SC+3}], s30 offen sc1")
    A.label(f"{pfx}_no3rd")
    A.e("s_waitcnt lgkmcnt(0)")
    A.e("s_lshl_b32 s21, s22, 7")
    A.e(f"s_add_u32 s21, s21, {WS_FLAG}")
    srd(A, SE_, PWS, 128, add="s21")
    A.e(f"s_cmp_ge_u32 s3, {NCONV}")
    A.e(f"s_cbranch_scc1 {pfx}_nouprep")
    u_prep(A)
    A.label(f"{pfx}_nouprep")
    A.e("s_waitcnt vmcnt(0)")
    A.e("s_barrier")
    A.e("s_cmp_lg_u32 s20, 0")
    A.e(f"s_cbranch_scc1 {pfx}_noflag")
    A.e("s_lshl_b32 s21, s23, 2")
    A.e("v_mov_b32 v12, s21")
    A.e("v_mov_b32 v13, 1")
    A.e("s_mov_b64 exec, 1")
    A.e(f"buffer_store_dword v13, v12, s[{SE_}:{SE_+3}], 0 offen sc1")
    A.e("s_mov_b64 exec, -1")
    A.label(f"{pfx}_noflag")
    st(A)

def u_prep(A):
    for ps in range(5):
        b = 64 + 10*ps
        A.e(f"ds_read_b128 {vr(b,4)}, v{VUR} offset:{2048*ps}")
        A.e(f"ds_read_b128 {vr(b+4,4)}, v{VUR} offset:{2048*ps+16}")
        A.e(f"ds_read_b32 v{b+8}, v{VUR} offset:{2048*ps+32}")
    A.e("s_and_b32 s21, s20, 1")
    A.e("s_cmp_eq_u32 s21, 0")
    A.e("s_mov_b32 s25, 0x07060302")
    A.e("s_cselect_b32 s26, 0x05040100, s25")
    A.e(f"v_add_u32 v12, {L_U0}, v{VUW}")
    A.e("s_waitcnt lgkmcnt(0)")
    A.e("s_barrier")
    for ps in range(5):
        b = 64 + 10*ps
        if ps == 4: A.e("s_mov_b64 exec, 15")
        o = 116 + 8*(ps & 1)
        for i in range(4): A.e(f"v_perm_b32 v{o+i}, v{b+2*i+1}, v{b+2*i}, s26")
        for i in range(4): A.e(f"v_perm_b32 v{o+4+i}, v{b+2*i+2}, v{b+2*i+1}, s26")
        A.e(f"ds_write_b128 v12, {vr(o,4)} offset:{1024*ps}")
        A.e(f"ds_write_b128 v{VUW}, {vr(o+4,4)} offset:{L_U1+1024*ps}")
        if ps == 4: A.e("s_mov_b64 exec, -1")

def conv_part(A, pfx):
    ACC = 16; AB = 64
    def Br(D, i): return ar(32*D + 4*i, 4)
    def Ar(c, i): return vr(AB + 32*(c & 1) + 4*i, 4)
    def Ahalf(c, i, h): return vr(AB + 32*(c & 1) + 4*i + 2*h, 2)
    srd(A, SH, POUT, 2048*2560)
    A.e("s_waitcnt lgkmcnt(0)")
    st(A)
    q = Q(A)
    def readsA(c):
        L = [It(f"v_add_u32 v11, {512*c}, v{VCU}")]
        for i in range(8):
            L.append(It(f"ds_read2_b32 {Ahalf(c,i,0)}, v11 offset0:{16*i} offset1:{16*i+1}", lds=f"a{c}_{i}"))
            L.append(It(f"ds_read2_b32 {Ahalf(c,i,1)}, v11 offset0:{16*i+2} offset1:{16*i+3}", lds=f"a{c}_{i}"))
        return L
    def readsB(D):
        return [It(f"ds_read_b128 {Br(D,i)}, v{VCK} offset:{512*(7-D)+64*i}", lds=f"b{D}_{i}") for i in range(8)]
    def mm(c, D, i):
        acc = ACC + 4*(c + D)
        first = (c == 0 and i == 0)
        return It(f"v_mfma_f32_16x16x32_bf16 {vr(acc,4)}, {Ar(c,i)}, {Br(D,i)}, {'0' if first else vr(acc,4)}", needl=(f"a{c}_{i}", f"b{D}_{i}"), w=2)
    def flush1(B):
        acc = ACC + 4*B; bo = (B & 1)*YSB
        return [It(f"v_cvt_pk_bf16_f32 v48, v{acc}, v{acc+1}"), It(f"v_cvt_pk_bf16_f32 v49, v{acc+2}, v{acc+3}"),
                It(f"ds_write_b64 v{VYS}, v[48:49] offset:{bo}", lds=f"yw{B}")]
    def flush2(B):
        bo = (B & 1)*YSB; r = 50 + 2*(B & 1)
        return [It("s_barrier", needl=(f"yw{B}",)),
                It(f"ds_read_b64_tr_b16 {vr(r,2)}, v{VYT} offset:{bo}", lds=f"yr{B}")]
    def flush3(B):
        r = 50 + 2*(B & 1)
        return [It([f"s_mov_b32 s28, {B*256*2560}", f"buffer_store_dwordx2 {vr(r,2)}, v{VYO}, s[{SH}:{SH+3}], s28 offen"], vm="Y", needl=(f"yr{B}",))]
    q.run(readsA(0) + readsB(0))
    for c in range(8):
        if c == 0:
            for D in range(8):
                M = [mm(0, D, i) for i in range(8)]
                R = readsB(D+1) if D < 7 else readsA(1)
                q.run(merge(M, R))
        else:
            M = [mm(c, D, i) for i in range(8) for D in range(8-c)]
            R = readsA(c+1) if c < 7 else []
            n = len(M); h1 = min(5, n); h2 = max(h1, n//2);
            q.run(M[:h1])
            if c == 7: A.e("s_nop 2")
            q.run(flush1(c-1))
            q.run(merge(M[h1:h2], R[:len(R)//2]))
            q.run(flush2(c-1))
            q.run(merge(M[h2:], R[len(R)//2:]))
            q.run(flush3(c-1))
        import os
        if Cfg.STAMP and os.environ.get("DETC") == "1": st(A); q.lq = []
    A.e("s_nop 7")
    q.run(flush1(7) + flush2(7) + flush3(7))
    st(A)
    finish(A)

BW0 = 73728
def BWchunk(c): return (BW0 + c*WCH) if c < 8 else (16704 + (c-8)*WCH)
BXBUF = [0, 8192, 37184, 37184+8192, 37184+16384, 37184+24576]

def finish(A):
    if Cfg.STAMP:
        A.e("s_waitcnt vmcnt(0)")
        st(A)
        A.e("s_mov_b32 s2, s3")
        stamp_out(A, PWS, 4, STAMP_BASE, VSTAMP, VSTMP)
    A.e("s_endpgm")

def outproj_b(A, pfx):
    A.e("s_mov_b32 s60, s22")
    A.e("s_sub_u32 s61, s22, 20")
    A.e("s_add_u32 s62, s61, 12")
    A.e("s_cmp_lt_u32 s62, 20")
    A.e("s_cselect_b32 s63, 3, 2")
    A.e("s_cselect_b32 s62, s62, s61")
    q = Q(A)
    for c in (8, 9): q.run([It(g, vm=f"W{c}") for g in wdma_ring(c, BWchunk(c))])
    srd(A, SE_, PWS, 32*128, add=WS_FLAG)
    def wait_flags(name, regs):
        nl = 8*len(regs)
        A.e("s_cmp_lg_u32 s20, 0")
        A.e(f"s_cbranch_scc1 {pfx}_{name}_np")
        A.e(f"v_mov_b32 v14, s{regs[0]}")
        if len(regs) > 1:
            A.e("v_lshrrev_b32 v13, 3, v1")
            A.e("v_cmp_eq_u32 vcc, 1, v13")
            A.e(f"v_mov_b32 v15, s{regs[1]}")
            A.e("s_nop 0")
            A.e("v_cndmask_b32 v14, v14, v15, vcc")
        A.e("v_and_b32 v12, 7, v1")
        A.e("v_lshlrev_b32 v12, 2, v12")
        A.e("v_lshl_add_u32 v12, v14, 7, v12")
        A.e(f"s_mov_b32 s35, {SPIN_MAX}")
        A.e(f"s_mov_b64 exec, {hex((1 << nl)-1)}")
        A.label(f"{pfx}_{name}_p")
        A.e(f"buffer_load_dword v13, v12, s[{SE_}:{SE_+3}], 0 offen sc1")
        A.e("s_waitcnt vmcnt(0)")
        A.e("v_cmp_ne_u32 vcc, 0, v13")
        A.e("s_sub_u32 s35, s35, 1")
        A.e("s_cmp_eq_u32 s35, 0")
        A.e(f"s_cbranch_scc1 {pfx}_{name}_d")
        A.e(f"s_cmp_eq_u32 vcc_lo, {hex((1 << nl)-1)}")
        A.e(f"s_cbranch_scc1 {pfx}_{name}_d")
        A.e(f"s_branch {pfx}_{name}_p")
        A.label(f"{pfx}_{name}_d")
        A.e("s_mov_b64 exec, -1")
        A.label(f"{pfx}_{name}_np")
        A.e("s_waitcnt vmcnt(0)")
        A.e("s_barrier")
    wait_flags("o", [60])
    q.vq = []
    st(A)
    srd(A, SA, PWS, 2048*1280, add=WS_O)
    srd(A, SC, POUT, 2048*2560)
    for t in range(3):
        A.e(f"s_lshl_b32 s21, s{60+t}, 2")
        A.e("s_add_u32 s21, s21, s20")
        A.e(f"s_mul_i32 s{56+t}, s21, 20480")
    ACC = [16, 36]; WF = 56
    def Xr(sl, kk): return ar(80*sl + 4*kk, 4)
    def xld(sl, t, kk):
        return It([f"s_add_u32 s36, s{56+t}, {1024*kk}", f"buffer_load_dwordx4 {Xr(sl, kk)}, v4, s[{SA}:{SA+3}], s36 offen"], vm=f"X{sl}_{kk}")
    def rdW(kk, mt):
        c, ks = kk >> 1, kk & 1; out = []
        for h in range(2):
            off = BWchunk(c) + (32*ks + 8*h)*160 + 32*mt
            a = VWT
            if off >= 131072: a, off = VWTh2, off - 131072
            elif off >= 65536: a, off = VWTh, off - 65536
            out.append(It(f"ds_read_b64_tr_b16 {vr(WF+mt*4+h*2,2)}, v{a} offset:{off}", lds=f"w{kk}_{mt}"))
        return out
    def pack(slot, base):
        for mt in range(5):
            acc = ACC[slot] + 4*mt
            r = base + 2*mt
            A.e(f"v_cvt_pk_bf16_f32 v{r}, v{acc}, v{acc+1}")
            A.e(f"v_cvt_pk_bf16_f32 v{r+1}, v{acc+2}, v{acc+3}")
    def store(base, t):
        A.e(f"s_mul_i32 s21, s{60+t}, 163840")
        A.e("s_add_u32 s21, s21, s55")
        for pr in range(2):
            r = base + 4*pr
            A.e(f"v_permlane16_swap_b32 v{r}, v{r+2}")
            A.e(f"v_permlane16_swap_b32 v{r+1}, v{r+3}")
        q.emit(It(f"buffer_store_dwordx4 {vr(base,4)}, v{VOUT2}, s[{SC}:{SC+3}], s21 offen", vm="S"))
        q.emit(It(f"buffer_store_dwordx4 {vr(base+4,4)}, v{VOUT2}, s[{SC}:{SC+3}], s21 offen offset:64", vm="S"))
        q.emit(It(f"buffer_store_dwordx2 {vr(base+8,2)}, v{VOUT}, s[{SC}:{SC+3}], s21 offen offset:128", vm="S"))
    A.e("s_mul_i32 s55, s23, 160")
    A.e("s_add_u32 s55, s55, 1280")
    def run_pass(tiles):
        n = len(tiles)
        loads = [xld(sl, t, kk) for kk in range(20) for sl, t in enumerate(tiles)]
        ahead = 8*n
        q.run(loads[:ahead]); loads = loads[ahead:]
        for mt in range(5): q.run(rdW(0, mt))
        for kk in range(20):
            for mt in range(5):
                for sl in range(n):
                    nl = gemm_need(kk, mt, []) if sl == 0 else ()
                    nv = tuple(f"X{z}_{kk}" for z in range(n)) if (mt == 0 and sl == 0) else ()
                    q.emit(It(f"v_mfma_f32_16x16x32_bf16 {vr(ACC[sl]+4*mt,4)}, {vr(WF+4*mt,4)}, {Xr(sl, kk)}, {vr(ACC[sl]+4*mt,4) if kk else '0'}",
                              needl=nl, needv=nv))
                if loads and mt < n: q.emit(loads.pop(0))
                if kk+1 < 20: q.run(rdW(kk+1, mt))
        assert not loads
        q.all_l()
        A.e("s_nop 7")
    run_pass([0])
    pack(0, 92)
    store(92, 0)
    st(A)
    wait_flags("o2", [61, 62])
    q.vq = []
    st(A)
    A.e("s_cmp_eq_u32 s63, 2")
    A.e(f"s_cbranch_scc1 {pfx}_b2")
    q = Q(A)
    run_pass([1, 2])
    st(A)
    pack(0, 92); pack(1, 104)
    store(92, 1); store(104, 2)
    finish(A)
    A.label(f"{pfx}_b2")
    q = Q(A)
    run_pass([1])
    st(A)
    pack(0, 92)
    store(92, 1)
    finish(A)

def slow_softmax(A, pfx):
    QD, MX, PS = 10240, 22528, 24576
    Sx, Px, Ox, QFA, QFB = 16, 48, 80, 64, 68
    A.label(f"{pfx}_slow")
    A.e("s_barrier")
    A.e("s_cmp_lg_u32 s20, 0")
    A.e(f"s_cbranch_scc1 {pfx}_sl_nodump")
    A.e("v_lshlrev_b32 v13, 3, v1")
    for tau in range(8):
        j = (2 + tau) & 7
        A.e(f"ds_write_b128 v4, {QAr(tau)} offset:{QD + 1536*j}")
        A.e(f"ds_write_b64 v13, {QBr(tau)} offset:{QD + 1536*j + 1024}")
    A.e("s_waitcnt lgkmcnt(0)")
    A.label(f"{pfx}_sl_nodump")
    A.e("s_barrier")
    A.e("s_mov_b32 s56, 0                 ; tile j")
    A.e("v_and_b32 v12, 31, v1")
    A.e("v_lshlrev_b32 v12, 2, v12        ; query*4")
    A.e("s_lshl_b32 s21, s20, 7")
    A.e(f"s_add_u32 s21, s21, {MX}")
    A.e("v_add_u32 v72, s21, v12")
    A.e(f"v_add_u32 v73, {MX}, v12")
    A.e(f"s_mul_i32 s21, s20, {PART}")
    A.e(f"s_add_u32 s21, s21, {PS}")
    A.e("v_add_u32 v74, s21, v4")
    A.e(f"v_add_u32 v75, {PS}, v4")
    A.label(f"{pfx}_sl_loop")
    A.e("s_mul_i32 s21, s56, 1536")
    A.e(f"s_add_u32 s21, s21, {QD}")
    A.e("v_add_u32 v14, s21, v4")
    A.e("v_lshlrev_b32 v15, 3, v1")
    A.e("v_add_u32 v15, s21, v15")
    A.e(f"ds_read_b128 {vr(QFA,4)}, v14")
    A.e(f"ds_read_b64 {vr(QFB,2)}, v15 offset:1024")
    A.e("v_mov_b32 v70, 0xff800000")
    A.e("s_waitcnt lgkmcnt(0)")
    def scores(t):
        A.e(f"v_mfma_f32_32x32x16_bf16 {vr(Sx,16)}, {KAr(t)}, {vr(QFA,4)}, 0")
        A.e(f"v_mfma_f32_32x32x8_bf16 {vr(Sx,16)}, {KBr(t)}, {vr(QFB,2)}, {vr(Sx,16)}")
        A.e("s_nop 11")
    for t in range(NT):
        scores(t)
        for i in range(8): A.e(f"v_max3_f32 v70, v70, v{Sx+2*i}, v{Sx+2*i+1}")
        A.e("s_nop 6")
    A.e("v_mov_b32 v71, v70")
    A.e("v_mov_b32 v76, v70")
    A.e("s_nop 1")
    A.e("v_permlane32_swap_b32 v71, v76")
    A.e("s_nop 1")
    A.e("v_max3_f32 v70, v70, v71, v76")
    A.e("ds_write_b32 v72, v70")
    A.e("s_waitcnt lgkmcnt(0)")
    A.e("s_barrier")
    for w in range(4): A.e(f"ds_read_b32 v{76+w}, v73 offset:{128*w}")
    A.e("s_waitcnt lgkmcnt(0)")
    A.e("v_max3_f32 v71, v76, v77, v78")
    A.e("v_max_f32 v71, v71, v79")
    for t in range(NT):
        scores(t)
        for i in range(16): A.e(f"v_sub_f32 v{Sx+i}, v{Sx+i}, v71")
        for i in range(16): A.e(f"v_exp_f32 v{Sx+i}, v{Sx+i}")
        A.e("s_nop 0")
        for i in range(8): A.e(f"v_cvt_pk_bf16_f32 v{Px+i}, v{Sx+2*i}, v{Sx+2*i+1}")
        A.e("s_nop 1")
        A.e(f"v_mfma_f32_32x32x16_bf16 {vr(Ox,16)}, {VAr(t,0)}, {vr(Px,4)}, {'0' if t == 0 else vr(Ox,16)}")
        A.e(f"v_mfma_f32_32x32x16_bf16 {vr(Ox,16)}, {VAr(t,1)}, {vr(Px+4,4)}, {vr(Ox,16)}")
        A.e("s_nop 6")
    A.e("s_nop 11")
    for g in range(3): A.e(f"ds_write_b128 v74, {vr(Ox+4*g,4)} offset:{1024*g}")
    A.e("s_waitcnt lgkmcnt(0)")
    A.e("s_barrier")
    A.e("s_lshr_b32 s21, s56, 1")
    A.e("s_cmp_lg_u32 s21, s20")
    A.e(f"s_cbranch_scc1 {pfx}_sl_next")
    for w in range(4):
        for g in range(3): A.e(f"ds_read_b128 {vr(16+12*w+4*g,4)}, v75 offset:{PART*w + 1024*g}")
    A.e("s_waitcnt lgkmcnt(0)")
    for w in range(1, 4):
        for r in range(12): A.e(f"v_add_f32 v{16+r}, v{16+r}, v{16+12*w+r}")
    A.e("v_mov_b32 v76, v24")
    A.e("v_mov_b32 v77, v24")
    A.e("s_nop 1")
    A.e("v_permlane32_swap_b32 v76, v77")
    A.e("s_nop 1")
    A.e("v_rcp_f32 v77, v77")
    A.e("s_nop 0")
    for r in range(12): A.e(f"v_mul_f32 v{16+r}, v{16+r}, v77")
    for g in range(3):
        A.e(f"v_cvt_pk_bf16_f32 v{32+2*g}, v{16+4*g}, v{17+4*g}")
        A.e(f"v_cvt_pk_bf16_f32 v{33+2*g}, v{18+4*g}, v{19+4*g}")
    A.e("s_and_b32 s21, s56, 1")
    A.e("s_mul_i32 s21, s21, 5120")
    A.e(f"v_add_u32 v14, s21, v{VOS}")
    A.e("ds_write_b64 v14, v[32:33]")
    A.e("ds_write_b64 v14, v[34:35] offset:16")
    A.e("s_mov_b32 exec_hi, 0")
    A.e("ds_write_b64 v14, v[36:37] offset:32")
    A.e("s_mov_b32 exec_hi, -1")
    A.e("s_waitcnt lgkmcnt(0)")
    A.label(f"{pfx}_sl_next")
    A.e("s_barrier")
    A.e("s_add_u32 s56, s56, 1")
    A.e("s_cmp_lt_u32 s56, 8")
    A.e(f"s_cbranch_scc1 {pfx}_sl_loop")
    A.e(f"s_branch {pfx}_staged")

def mega_role(A, pfx):
    prologue(A, pfx)
    front(A, pfx)
    attention(A, pfx)
    reduce_publish(A, pfx)
    A.e(f"s_cmp_ge_u32 s3, {NCONV}")
    A.e(f"s_cbranch_scc1 {pfx}_bback")
    conv_part(A, pfx)
    A.label(f"{pfx}_bback")
    outproj_b(A, pfx)
    slow_softmax(A, pfx)
    A.label(f"{pfx}_end")
    A.e("s_endpgm")
```

```python
import sys
from common import *
import mega, asmcheck
DOC = """;
;             accumulators finite) decides; otherwise the workgroup recomputes its tiles with the true row maximum subtracted (mg_slow).
"""
def build(path):
    K = NAME + "_kernel"
    body = Asm()
    kernel_begin(body, K)
    mega.mega_role(body, "mg")
    hdr = open("cdna_kernels/" + NAME + ".s.ref").read().split("; Override launch")[0]
    out = hdr + f"; @launch grid=(256,1,1) block=(256,1,1) lds={mega.LDS_MEGA}\n" + DOC
    out += '.amdgcn_target "amdgcn-amd-amdhsa--gfx950"\n' + body.text() + kernel_desc(K, 512, 256, 102)
    open(path, "w").write(out)
    import re
    go = {"mega_go"}
    pol = {
      "A_w0": (lambda t: t in go | {"mg_qgemm", "mg_kv_d", "mg_safe"} or t.startswith("mg_bgb")),
      "A_w1": (lambda t: t in go | {"mg_qgemm", "mg_kv_d", "mg_noflag", "mg_no3rd"} or t.startswith("mg_bgb")),
      "B_k": (lambda t: t in go | {"mg_kvpro", "mg_kv_d", "mg_o_d", "mg_o2_d", "mg_btr", "mg_bback"} or t.startswith("mg_bga")),
      "B_v": (lambda t: t in go | {"mg_kvpro", "mg_b_vpart", "mg_b_nfv", "mg_kv_d", "mg_o_np", "mg_o2_np", "mg_noflag", "mg_btr", "mg_bback", "mg_b2"} or t.startswith("mg_bga")),
      "B_n": (lambda t: t in go | {"mg_nokp", "mg_noks", "mg_kv_d", "mg_o_d", "mg_o2_d", "mg_btr", "mg_bback"} or t.startswith("mg_bga")),
      "A_slow": (lambda t: t in go | {"mg_qgemm", "mg_kv_d", "mg_slow", "mg_sl_loop"} or t.startswith("mg_bgb")),
      "A_slow1": (lambda t: t in go | {"mg_qgemm", "mg_kv_d", "mg_slow", "mg_sl_nodump", "mg_sl_next", "mg_noflag", "mg_no3rd"} or t.startswith("mg_bgb")),
    }
    errs = asmcheck.check_policies(body.text(), K, pol)
    for e in errs[:30]: print(e)
    print("wrote", path, len(out), "bytes;", len(errs), "checker messages")
if __name__ == "__main__":
    if "stamp" in sys.argv: Cfg.STAMP = True
    build(sys.argv[1])
```
